```python
import torch

def _softmax(x, axis=-1):
    return torch.softmax(x, dim=axis)
def _gelu(x):
    return torch.nn.functional.gelu(x, approximate="tanh")
def _silu(x):
    return torch.nn.functional.silu(x)
def _sigmoid(x):
    return torch.sigmoid(x)
def _layernorm(x, axis=-1, eps=1e-5):
    m = x.mean(dim=axis, keepdim=True)
    v = x.var(dim=axis, keepdim=True, unbiased=False)
    return (x - m) / torch.sqrt(v + eps)
def _scatter_add(tgt, idx, src, axis=0):
    return tgt.clone().index_add_(axis, idx, src)
def _segment_sum(src, seg, n):
    out = torch.zeros((n,) + src.shape[1:], dtype=src.dtype)
    return out.index_add_(0, seg, src)
def _pad(x, pw):
    flat = tuple(v for pair in reversed(pw) for v in pair)
    return torch.nn.functional.pad(x, flat)

kernel_name = 'standalone__gqa_softmax__near_ridge'

def setup_inputs():

    _w = (lambda a: (lambda t: t.to(torch.bfloat16) if t.is_floating_point() else t)(torch.as_tensor(a)))
    B, Hq, Hkv, Sq, Sk, D = 8, 32, 8, 112, 1024, 128
    return {
        "q": _w((lambda *s: torch.randn(*s, dtype=torch.bfloat16) * 0.8)(B, Hq, Sq, D)),
        "k": _w((lambda *s: torch.randn(*s, dtype=torch.bfloat16) * 0.8)(B, Hkv, Sk, D)),
        "v": _w((lambda *s: torch.randn(*s, dtype=torch.bfloat16) * 0.05)(B, Hkv, Sk, D)),
    }

def reference(q, k, v):
    B, Hq, Sq, D = q.shape
    Hkv = k.shape[1]
    rep = Hq // Hkv
    k = (lambda x, n, axis: torch.repeat_interleave(x, n, dim=axis))(k, rep, axis=1)
    v = (lambda x, n, axis: torch.repeat_interleave(x, n, dim=axis))(v, rep, axis=1)
    scale = D ** -0.5
    scores = torch.einsum("bhqd,bhkd->bhqk", q, k) * scale
    p = _softmax(scores, axis=-1)
    return torch.einsum("bhqk,bhkd->bhqd", p, v)
```

```python
import sys, struct, argparse

NAME = "standalone__gqa_softmax__near_ridge"

def f2u(x): return struct.unpack("<I", struct.pack("<f", x))[0]

class Asm:
    def __init__(self): self.l = []
    def __call__(self, s): self.l.append("    " + s)
    def label(self, s): self.l.append(s + ":")
    def c(self, s): self.l.append("    ; " + s)
    def raw(self, s): self.l.append(s)
    def text(self): return "\n".join(self.l) + "\n"

def vr(b, n=1): return f"v{b}" if n == 1 else f"v[{b}:{b+n-1}]"
def ar(b, n=1): return f"a{b}" if n == 1 else f"a[{b}:{b+n-1}]"

V_TID = 0
V_LANE = 1
V_T = 2
V_L = 16
V_M = 17
V_DK0, V_DK1, V_DV = 18, 19, 20
V_OST = 21
V_AK = 24
V_AV = 40
V_P = 48
V_CI = 56
V_S = 72
V_Q = 104
V_O = 136
NV = 200
A_K = 0
A_V = 32
NA = 64

S_W = 3
SRD_Q, SRD_K, SRD_V, SRD_O = 12, 16, 20, 24
S_OFF, S_M0B, S_CNT, S_C = 28, 29, 30, 31
S_FB = 34
S_T0 = 36
S_STAMP = 48

LDS_Q = 131072
SCALE = (128 ** -0.5) * 1.4426950408889634
THRESH = 2.0 ** 30

def srd(b): return f"s[{b}:{b+3}]"

def gen(diag=False):
    a = Asm()
    nst = [0]
    def stamp():
        if diag:
            a(f"s_memrealtime s[{S_STAMP+2*nst[0]}:{S_STAMP+2*nst[0]+1}]")
            nst[0] += 1
    a.raw(open("cdna_kernels/%s.s.ref" % NAME).read().split("; Override launch")[0].rstrip())
    a.raw("; @launch grid=(256,1,1) block=(256,1,1) lds=163840")
    a.raw('.amdgcn_target "amdgcn-amd-amdhsa--gfx950"')
    a.raw(".text")
    a.raw(f".globl {NAME}_kernel")
    a.raw(".p2align 8")
    a.raw(f".type {NAME}_kernel,@function")
    a.label(f"{NAME}_kernel")
    a("s_cmp_ge_u32 s2, 256")
    a("s_cbranch_scc1 L_end")
    a("s_load_dwordx8 s[4:11], s[0:1], 0")
    if diag:
        a("s_load_dwordx2 s[32:33], s[0:1], 40")
        stamp()
    T = V_T
    a(f"v_and_b32 v{V_LANE}, 63, v0")
    a(f"v_lshrrev_b32 v{T}, 6, v0")
    a(f"v_lshrrev_b32 v{T+1}, 4, v{V_LANE}")
    a(f"v_readfirstlane_b32 s{S_W}, v{T}")
    a(f"v_and_b32 v{T+2}, 15, v{V_LANE}")
    a("s_and_b32 s36, s2, 7")
    a("s_lshr_b32 s37, s2, 3")
    a("s_lshl_b32 s36, s36, 5")
    a("s_add_u32 s36, s36, s37")
    a("s_lshr_b32 s37, s36, 2")
    a("s_mul_i32 s38, s36, 28672")
    a("s_lshl_b32 s39, s37, 18")
    a(f"s_lshl_b32 s{S_M0B}, s{S_W}, 12")
    a(f"s_lshl_b32 s40, s{S_W}, 11")
    a(f"s_lshl_b32 s41, s{S_W}, 13")
    a(f"s_and_b32 s42, s{S_W}, 1")
    a("s_lshl_b32 s42, s42, 7")
    a(f"v_xor_b32 v{T+3}, v{T+2}, v{T+1}")
    a(f"v_lshlrev_b32 v{T+3}, 4, v{T+3}")
    a(f"v_lshl_add_u32 v{T+3}, v{T+1}, 8, v{T+3}")
    a(f"v_xor_b32 v{V_DK0}, s42, v{T+3}")
    a(f"v_add_u32 v{V_DK0}, s40, v{V_DK0}")
    a(f"v_xor_b32 v{V_DK1}, 64, v{V_DK0}")
    a(f"v_add_u32 v{T+4}, s41, v{T+3}")
    a(f"v_xor_b32 v{T+5}, 64, v{T+4}")
    a(f"v_xor_b32 v{T+6}, 0x80, v{T+4}")
    a(f"v_xor_b32 v{T+7}, 0xc0, v{T+4}")
    a(f"v_lshlrev_b32 v{T+8}, 4, v{T+2}")
    a(f"v_lshlrev_b32 v{T+9}, 6, v{T+1}")
    a(f"v_xor_b32 v{T+8}, v{T+8}, v{T+9}")
    a(f"v_lshl_add_u32 v{T+8}, v{T+1}, 8, v{T+8}")
    a(f"v_add_u32 v{V_DV}, s40, v{T+8}")
    a(f"s_add_u32 s43, s41, {LDS_Q}")
    a("s_mov_b32 m0, s43")
    a("s_movk_i32 s44, 0x1000")
    a("s_waitcnt lgkmcnt(0)")
    a(f"s_add_u32 s{SRD_Q}, s4, s38")
    a(f"s_addc_u32 s{SRD_Q+1}, s5, 0")
    a(f"s_mov_b32 s{SRD_Q+2}, 28672")
    a(f"s_mov_b32 s{SRD_Q+3}, 0x20000")
    for p in range(4):
        a(f"buffer_load_dwordx4 v{T+4+p}, {srd(SRD_Q)}, 0 offen offset:{p*1024} lds")
    a("s_add_u32 m0, s43, 0x1000")
    a(f"s_add_u32 s{SRD_K}, s6, s39")
    for p in range(4):
        a(f"buffer_load_dwordx4 v{T+4+p}, {srd(SRD_Q)}, s44 offen offset:{p*1024} lds")
    a(f"s_addc_u32 s{SRD_K+1}, s7, 0")
    a(f"s_mov_b32 s{SRD_K+2}, 0x40000")
    a(f"s_mov_b32 s{SRD_K+3}, 0x20000")
    a(f"s_add_u32 s{SRD_V}, s8, s39")
    a(f"s_addc_u32 s{SRD_V+1}, s9, 0")
    a(f"s_sub_u32 s{SRD_V}, s{SRD_V}, 2048")
    a(f"s_subb_u32 s{SRD_V+1}, s{SRD_V+1}, 0")
    a(f"s_mov_b32 s{SRD_V+2}, 0x40800")
    a(f"s_mov_b32 s{SRD_V+3}, 0x20000")
    def dmaK(soff):
        return [f"buffer_load_dwordx4 v{V_DK0}, {srd(SRD_K)}, {soff} offen lds",
                f"buffer_load_dwordx4 v{V_DK1}, {srd(SRD_K)}, {soff} offen offset:1024 lds"]
    def dmaV(soff):
        return [f"buffer_load_dwordx4 v{V_DV}, {srd(SRD_V)}, {soff} offen offset:2048 lds",
                f"buffer_load_dwordx4 v{V_DV}, {srd(SRD_V)}, {soff} offen offset:3072 lds"]
    order = [("K",0),("K",1),("V",0),("K",2),("V",1),("V",2),("K",3),("V",3)]
    for x in range(4, 8): order += [("K",x),("V",x)]
    cur = None
    for kind, x in order:
        if cur != x:
            a(f"s_add_u32 m0, s{S_M0B}, {x*16384}")
            a(f"s_mov_b32 s{S_OFF}, {x*8192}")
            cur = x
        for ins in (dmaK if kind == "K" else dmaV)(f"s{S_OFF}"): a(ins)
    stamp()
    a(f"s_add_u32 s{SRD_O}, s10, s38")
    a(f"s_addc_u32 s{SRD_O+1}, s11, 0")
    a(f"s_mov_b32 s{SRD_O+2}, 28672")
    a(f"s_mov_b32 s{SRD_O+3}, 0x20000")
    a(f"s_mov_b32 s{S_C}, {hex(f2u(SCALE))}")
    a(f"s_mov_b32 s{S_FB}, 0")
    a(f"v_and_b32 v{T+4}, 31, v{V_LANE}")
    a(f"v_lshrrev_b32 v{T+5}, 5, v{V_LANE}")
    a(f"v_xor_b32 v{T+6}, v{T+2}, v{T+5}")
    a(f"v_lshlrev_b32 v{T+6}, 4, v{T+6}")
    a(f"v_lshrrev_b32 v{T+7}, 3, v{T+4}")
    a(f"v_and_b32 v{T+8}, 7, v{T+4}")
    a(f"v_lshl_add_u32 v{T+9}, v{T+7}, 12, v{T+6}")
    a(f"v_lshl_add_u32 v{V_AK}, v{T+8}, 8, v{T+9}")
    for j in range(1, 8):
        a(f"v_xor_b32 v{V_AK+j}, {32*j}, v{V_AK}")
    for j in range(8):
        a(f"v_add_u32 v{V_AK+8+j}, 0x10000, v{V_AK+j}")
    a(f"v_lshl_add_u32 v{T+10}, v{T+4}, 8, v{T+6}")
    a(f"v_add_u32 v{T+10}, s43, v{T+10}")
    a(f"v_lshlrev_b32 v{V_OST}, 8, v{T+4}")
    a(f"v_lshl_add_u32 v{V_OST}, v{T+5}, 4, v{V_OST}")
    a(f"v_add_u32 v{V_OST}, s41, v{V_OST}")
    a(f"v_bfe_u32 v{T+11}, v{V_LANE}, 2, 2")
    a(f"v_and_b32 v{T+12}, 1, v{V_LANE}")
    a(f"v_lshlrev_b32 v{T+12}, 4, v{T+12}")
    a(f"v_bfe_u32 v{T+13}, v{V_LANE}, 1, 1")
    a(f"v_lshl_add_u32 v{T+12}, v{T+13}, 3, v{T+12}")
    a(f"v_bfe_u32 v{T+13}, v{V_LANE}, 4, 1")
    a(f"v_lshl_add_u32 v{T+12}, v{T+13}, 5, v{T+12}")
    a(f"v_mul_u32_u24 v{T+13}, 0x140, v{T+11}")
    a(f"v_add_u32 v{T+12}, v{T+12}, v{T+13}")
    a(f"v_lshl_add_u32 v{T+12}, v{T+5}, 10, v{T+12}")
    a(f"v_add_u32 v{V_AV}, 0x800, v{T+12}")
    for d in range(1, 4):
        a(f"v_xor_b32 v{V_AV+d}, {64*d}, v{V_AV}")
    for d in range(4):
        a(f"v_add_u32 v{V_AV+4+d}, 0x10000, v{V_AV+d}")
    for r in range(64):
        a(f"v_mov_b32 v{V_O+r}, 0")
    a(f"v_mov_b32 v{V_L}, 0")
    for j in range(1, 8):
        a(f"v_xor_b32 v{V_P+j}, {32*j}, v{T+10}")
    a("s_waitcnt vmcnt(32)")
    stamp()
    for j in range(8):
        ad = T+10 if j == 0 else V_P+j
        a(f"ds_read_b128 {vr(V_S+4*j,4)}, v{ad}")
    a(f"v_mov_b32 v{T}, s{S_C}")
    for j in range(8):
        a(f"s_waitcnt lgkmcnt({7-j})")
        for r in range(4):
            src = V_S + 4*j + r
            t0 = V_CI + 2*(r)
            a(f"v_lshlrev_b32 v{t0}, 16, v{src}")
            a(f"v_and_b32 v{t0+1}, 0xffff0000, v{src}")
        for r in range(4):
            t0 = V_CI + 2*r
            a(f"v_pk_mul_f32 {vr(t0,2)}, {vr(t0,2)}, {vr(T,2)} op_sel_hi:[1,0]")
        for r in range(4):
            t0 = V_CI + 2*r
            a(f"v_cvt_pk_bf16_f32 v{V_Q+4*j+r}, v{t0}, v{t0+1}")
    def kread(tile, j):
        s = tile % 8
        return f"ds_read_b128 {ar(A_K+4*j,4)}, v{V_AK + (s//4)*8 + j} offset:{(s%4)*16384}"
    def vread(tile, i, u):
        s = tile % 8
        m, dt = i // 4, i % 4
        return f"ds_read_b64_tr_b16 {ar(A_V+4*i+2*u,2)}, v{V_AV + (s//4)*4 + dt} offset:{(s%4)*16384 + (2*m+u)*4096}"
    def qk(tile, j, cinit=True):
        S = V_S + 16*(tile & 1)
        c = vr(S,16) if j else (vr(V_CI,16) if cinit else "0")
        return f"v_mfma_f32_32x32x16_bf16 {vr(S,16)}, {ar(A_K+4*j,4)}, {vr(V_Q+4*j,4)}, {c}"
    def pv(i):
        m, dt = i // 4, i % 4
        return f"v_mfma_f32_32x32x16_bf16 {vr(V_O+16*dt,16)}, {ar(A_V+4*i,4)}, {vr(V_P+4*m,4)}, {vr(V_O+16*dt,16)}"
    def sexp(tile, e): S = V_S + 16*(tile&1); return f"v_exp_f32 v{S+e}, v{S+e}"
    def sadd(tile, e): S = V_S + 16*(tile&1); return f"v_add_f32 v{V_L}, v{V_L}, v{S+e}"
    def scvt(tile, e): S = V_S + 16*(tile&1); return f"v_cvt_pk_bf16_f32 v{V_P+e//2}, v{S+e-1}, v{S+e}"
    a("s_waitcnt vmcnt(28)")
    a("s_barrier")
    stamp()
    for j in range(8): a(kread(0, j))
    for j in range(8):
        a(f"s_waitcnt lgkmcnt({7-j})")
        a(qk(0, j, cinit=False))
    for j in range(8): a(kread(1, j))
    a("s_nop 7")
    S0 = V_S
    a(f"v_max3_f32 v{T}, v{S0}, v{S0+1}, v{S0+2}")
    a(f"v_max3_f32 v{T+1}, v{S0+3}, v{S0+4}, v{S0+5}")
    a(f"v_max3_f32 v{T+2}, v{S0+6}, v{S0+7}, v{S0+8}")
    a(f"v_max3_f32 v{T+3}, v{S0+9}, v{S0+10}, v{S0+11}")
    a(f"v_max3_f32 v{T+4}, v{S0+12}, v{S0+13}, v{S0+14}")
    a(f"v_max3_f32 v{T}, v{T}, v{T+1}, v{S0+15}")
    a(f"v_max3_f32 v{T+2}, v{T+2}, v{T+3}, v{T+4}")
    a(f"v_max_f32 v{T}, v{T}, v{T+2}")
    a(f"v_mov_b32 v{T+1}, v{T}")
    a("s_nop 1")
    a(f"v_permlane32_swap_b32 v{T}, v{T+1}")
    a("s_nop 1")
    a(f"v_max_f32 v{V_M}, v{T}, v{T+1}")
    for r in range(16): a(f"v_sub_f32 v{V_CI+r}, 0, v{V_M}")
    for r in range(16): a(f"v_sub_f32 v{S0+r}, v{S0+r}, v{V_M}")
    for g in range(9, 16):
        e = g - 9
        a(sexp(0, e))
        if e >= 1:
            a(sadd(0, e-1))
            if (e-1) % 2 == 1: a(scvt(0, e-1))
    a("s_waitcnt vmcnt(24) lgkmcnt(0)")
    a("s_barrier")
    a(f"s_mov_b32 s{S_CNT}, 3")
    stamp()

    def tile_body(t, dma, vm, last_k=True, has_next=True, loop_ctl=None):
        for g in range(16):
            if g < 8:
                if has_next: a(qk(t+1, g))
            else:
                a(pv(g-8))
            if g == 12 and vm is not None: a("s_barrier")
            if g < 8:
                a(vread(t, g, 0)); a(vread(t, g, 1))
            elif g < 12:
                if last_k:
                    a(kread(t+2, 2*(g-8))); a(kread(t+2, 2*(g-8)+1))
            elif dma:
                a((dmaK(f"s{S_OFF}") + dmaV(f"s{S_OFF}"))[g-12])
            if dma and g == 2: a(f"s_add_u32 m0, s{S_M0B}, {(t%8)*16384}")
            if dma and g == 4: a(f"s_add_u32 s{S_OFF}, s{S_OFF}, 0x2000")
            if loop_ctl and g == 8: a(f"s_sub_u32 s{S_CNT}, s{S_CNT}, 1")
            def el(gg):
                if gg <= 8: return (t, gg + 7)
                return (t+1, gg - 9) if has_next else None
            x = el(g)
            if x: a(sexp(*x))
            y = el(g-1) if g > 0 else (t, 6)
            if y:
                if not x: a("s_nop 0")
                a(sadd(*y))
                if y[1] % 2 == 1: a(scvt(*y))
            if g == 6: a("s_waitcnt lgkmcnt(6)")
            if g == 10:
                n = 6 if last_k else 0
                if vm is not None: a(f"s_waitcnt vmcnt({vm}) lgkmcnt({n})")
                else: a(f"s_waitcnt lgkmcnt({n})")
            if g == 14 and last_k: a("s_waitcnt lgkmcnt(0)")

    a.raw(".p2align 6")
    a.label("L_loop")
    for t in range(8):
        a.c(f"tile {t}")
        tile_body(t, True, 18, loop_ctl=(t == 7))
    a(f"s_cmp_lg_u32 s{S_CNT}, 0")
    a("s_cbranch_scc1 L_loop")
    stamp()
    vms = [18, 14, 10, 6, 2, 2, 0, None]
    for t in range(24, 32):
        a.c(f"tile {t}")
        tile_body(t, False, vms[t-24], last_k=(t < 30), has_next=(t < 31))
    stamp()
    a.label("L_epi")
    a(f"v_mov_b32 v{T+1}, v{V_L}")
    a(f"v_mov_b32 v{T}, v{V_L}")
    a("s_nop 1")
    a(f"v_permlane32_swap_b32 v{T}, v{T+1}")
    a(f"s_mov_b32 s36, {hex(f2u(THRESH))}")
    a("s_nop 0")
    a(f"v_add_f32 v{T}, v{T}, v{T+1}")
    a(f"v_cmp_ngt_f32 vcc, s36, v{T}")
    a(f"v_rcp_f32 v{T+2}, v{T}")
    a(f"s_cmp_lg_u32 s{S_FB}, 0")
    a("s_cbranch_scc1 L_store")
    a("s_nop 0")
    a("s_cbranch_vccnz L_fallback")
    a.label("L_store")
    a("s_nop 3")
    for dt in range(4):
        for hf in range(2):
            b = V_O + 16*dt + 8*hf
            for r in range(0, 8, 2):
                a(f"v_pk_mul_f32 {vr(b+r,2)}, {vr(b+r,2)}, {vr(T+2,2)} op_sel_hi:[1,0]")
            d = V_S + 4*(2*dt+hf)
            for r in range(4):
                a(f"v_cvt_pk_bf16_f32 v{d+r}, v{b+2*r}, v{b+2*r+1}")
            a(f"buffer_store_dwordx4 {vr(d,4)}, v{V_OST}, {srd(SRD_O)}, 0 offen offset:{32*(2*dt+hf)}")
    if diag:
        a("s_waitcnt vmcnt(0)")
        stamp()
        a("s_waitcnt lgkmcnt(0)")
        a("s_mov_b32 s36, s32")
        a("s_mov_b32 s37, s33")
        a("s_mov_b32 s38, 0x100000")
        a("s_mov_b32 s39, 0x20000")
        a(f"s_lshl_b32 s40, s2, 2")
        a(f"s_add_u32 s40, s40, s{S_W}")
        a(f"s_lshl_b32 s40, s40, 7")
        a(f"v_mov_b32 v{T+4}, s40")
        a(f"v_cmp_eq_u32 vcc, 0, v{V_LANE}")
        a("s_and_saveexec_b64 s[42:43], vcc")
        for i in range(nst[0]):
            a(f"v_mov_b32 v{T+6}, s{S_STAMP+2*i}")
            a(f"v_mov_b32 v{T+7}, s{S_STAMP+2*i+1}")
            a(f"buffer_store_dwordx2 {vr(T+6,2)}, v{T+4}, s[36:39], 0 offen offset:{8*i}")
            a("s_nop 1")
    a.label("L_end")
    a("s_endpgm")

    a.label("L_fallback")
    a(f"s_mov_b32 s{S_FB}, 1")
    a(f"s_lshl_b32 s41, s{S_W}, 13")
    a(f"s_add_u32 s43, s41, {LDS_Q}")
    a(f"v_lshrrev_b32 v{T+1}, 4, v{V_LANE}")
    a(f"v_and_b32 v{T+2}, 15, v{V_LANE}")
    FK = V_AK + 8
    FV = V_AK + 12
    a(f"v_xor_b32 v{T+3}, v{T+2}, v{T+1}")
    a(f"v_lshlrev_b32 v{T+3}, 4, v{T+3}")
    a(f"v_lshl_add_u32 v{FK}, v{T+1}, 8, v{T+3}")
    for p in range(1, 4): a(f"v_xor_b32 v{FK+p}, {64*p}, v{FK}")
    a(f"v_lshlrev_b32 v{T+8}, 4, v{T+2}")
    a(f"v_lshlrev_b32 v{T+9}, 6, v{T+1}")
    a(f"v_xor_b32 v{T+8}, v{T+8}, v{T+9}")
    a(f"v_lshl_add_u32 v{T+8}, v{T+1}, 8, v{T+8}")
    a(f"v_add_u32 v{FV}, 0x800, v{T+8}")
    a(f"v_and_b32 v{T+4}, 31, v{V_LANE}")
    a(f"v_lshrrev_b32 v{T+5}, 5, v{V_LANE}")
    a(f"v_xor_b32 v{T+6}, v{T+2}, v{T+5}")
    a(f"v_lshlrev_b32 v{T+6}, 4, v{T+6}")
    a(f"v_lshl_add_u32 v{T+10}, v{T+4}, 8, v{T+6}")
    a(f"v_add_u32 v{V_AK}, s43, v{T+10}")
    for j in range(1, 8): a(f"v_xor_b32 v{V_AK+j}, {32*j}, v{V_AK}")
    a("s_sub_u32 s44, s43, 0x800")
    for d in range(4): a(f"v_add_u32 v{V_AV+d}, s44, v{V_AV+d}")
    def fb_loadK():
        a("s_mov_b32 m0, s43")
        a(f"s_add_u32 s45, s{S_OFF}, 0x1000")
        for p in range(4): a(f"buffer_load_dwordx4 v{FK+p}, {srd(SRD_K)}, s{S_OFF} offen offset:{p*1024} lds")
        a("s_add_u32 m0, s43, 0x1000")
        a("s_nop 0")
        for p in range(4): a(f"buffer_load_dwordx4 v{FK+p}, {srd(SRD_K)}, s45 offen offset:{p*1024} lds")
        a("s_waitcnt vmcnt(0)")
        for j in range(8): a(f"ds_read_b128 {ar(A_K+4*j,4)}, v{V_AK+j}")
        a("s_waitcnt lgkmcnt(0)")
    a(f"v_mov_b32 v{V_M}, 0xff800000")
    a(f"s_mov_b32 s{S_OFF}, 0")
    a("s_nop 7")
    a("s_nop 7")
    a.label("L_fb1")
    fb_loadK()
    for j in range(8): a(qk(0, j, cinit=False))
    a("s_nop 15")
    for r in range(0, 16, 2): a(f"v_max3_f32 v{V_M}, v{V_M}, v{S0+r}, v{S0+r+1}")
    a(f"s_add_u32 s{S_OFF}, s{S_OFF}, 0x2000")
    a(f"s_cmp_lt_u32 s{S_OFF}, 0x40000")
    a("s_cbranch_scc1 L_fb1")
    a(f"v_mov_b32 v{T}, v{V_M}")
    a(f"v_mov_b32 v{T+1}, v{V_M}")
    a("s_nop 1")
    a(f"v_permlane32_swap_b32 v{T}, v{T+1}")
    a("s_nop 1")
    a(f"v_max_f32 v{V_M}, v{T}, v{T+1}")
    for r in range(16): a(f"v_sub_f32 v{V_CI+r}, 0, v{V_M}")
    for r in range(64): a(f"v_mov_b32 v{V_O+r}, 0")
    a(f"v_mov_b32 v{V_L}, 0")
    a(f"s_mov_b32 s{S_OFF}, 0")
    a.label("L_fb2")
    fb_loadK()
    for j in range(8): a(qk(0, j))
    a("s_mov_b32 m0, s43")
    a(f"s_add_u32 s45, s{S_OFF}, 0x1000")
    for p in range(4): a(f"buffer_load_dwordx4 v{FV}, {srd(SRD_V)}, s{S_OFF} offen offset:{p*1024} lds")
    a("s_add_u32 m0, s43, 0x1000")
    a("s_nop 0")
    for p in range(4): a(f"buffer_load_dwordx4 v{FV}, {srd(SRD_V)}, s45 offen offset:{p*1024} lds")
    a("s_nop 15")
    for e in range(16): a(sexp(0, e))
    a("s_nop 0")
    for e in range(16): a(sadd(0, e))
    for e in range(1, 16, 2): a(scvt(0, e))
    a("s_waitcnt vmcnt(0)")
    for i in range(8):
        m, dt = i // 4, i % 4
        for u in range(2):
            a(f"ds_read_b64_tr_b16 {ar(A_V+4*i+2*u,2)}, v{V_AV+dt} offset:{(2*m+u)*2048}")
    a("s_waitcnt lgkmcnt(0)")
    for i in range(8): a(pv(i))
    a(f"s_add_u32 s{S_OFF}, s{S_OFF}, 0x2000")
    a(f"s_cmp_lt_u32 s{S_OFF}, 0x40000")
    a("s_cbranch_scc1 L_fb2")
    a("s_nop 15")
    a("s_branch L_epi")

    acc = (NV + 3) // 4 * 4
    a.raw('.section .rodata,"a"')
    a.raw(".p2align 6")
    a.raw(f".amdhsa_kernel {NAME}_kernel")
    a.raw(f"  .amdhsa_next_free_vgpr {acc + NA}")
    a.raw("  .amdhsa_next_free_sgpr 102")
    a.raw(f"  .amdhsa_accum_offset {acc}")
    a.raw("  .amdhsa_group_segment_fixed_size 0")
    a.raw("  .amdhsa_kernarg_size 48")
    a.raw("  .amdhsa_user_sgpr_count 2")
    a.raw("  .amdhsa_user_sgpr_kernarg_segment_ptr 1")
    a.raw("  .amdhsa_system_sgpr_workgroup_id_x 1")
    a.raw(".end_amdhsa_kernel")
    return a.text()

if __name__ == "__main__":
    ap = argparse.ArgumentParser()
    ap.add_argument("-o", default=f"cdna_kernels/{NAME}.s")
    ap.add_argument("--diag", action="store_true")
    args = ap.parse_args()
    open(args.o, "w").write(gen(diag=args.diag))
```

```python
import sys, struct, argparse

NAME = "standalone__gqa_softmax__near_ridge"

def f2u(x): return struct.unpack("<I", struct.pack("<f", x))[0]

class Asm:
    def __init__(self): self.l = []
    def __call__(self, s): self.l.append("    " + s)
    def label(self, s): self.l.append(s + ":")
    def c(self, s): self.l.append("    ; " + s)
    def raw(self, s): self.l.append(s)
    def text(self): return "\n".join(self.l) + "\n"

def vr(b, n=1): return f"v{b}" if n == 1 else f"v[{b}:{b+n-1}]"
def ar(b, n=1): return f"a{b}" if n == 1 else f"a[{b}:{b+n-1}]"

V_TID = 0
V_LANE = 1
V_T = 2
V_L = 16
V_M = 17
V_DK0, V_DK1, V_DV = 18, 19, 20
V_OST = 21
V_AK = 24
V_AV = 40
V_P = 48
V_CI = 56
V_S = 72
V_Q = 104
V_O = 136
NV = 200
A_K = 0
A_V = 32
NA = 64

S_W = 3
SRD_Q, SRD_K, SRD_V, SRD_O = 12, 16, 20, 24
S_OFF, S_M0B, S_CNT, S_C = 28, 29, 30, 31
S_FB = 34
S_T0 = 36
S_STAMP = 48

LDS_Q = 131072
SCALE = (128 ** -0.5) * 1.4426950408889634
THRESH = 2.0 ** 30

def srd(b): return f"s[{b}:{b+3}]"

def gen(diag=False, dbg=False):
    a = Asm()
    nst = [0]
    def stamp():
        if diag:
            a(f"s_memrealtime s[{S_STAMP+2*nst[0]}:{S_STAMP+2*nst[0]+1}]")
            a(f"s_memtime s[{S_STAMP+16+2*nst[0]}:{S_STAMP+16+2*nst[0]+1}]")
            nst[0] += 1
    a.raw(open("cdna_kernels/%s.s.ref" % NAME).read().split("; Override launch")[0].rstrip())
    a.raw("; @launch grid=(256,1,1) block=(256,1,1) lds=163840")
    a.raw('.amdgcn_target "amdgcn-amd-amdhsa--gfx950"')
    a.raw(".text")
    a.raw(f".globl {NAME}_kernel")
    a.raw(".p2align 8")
    a.raw(f".type {NAME}_kernel,@function")
    a.label(f"{NAME}_kernel")
    a("s_cmp_ge_u32 s2, 256")
    a("s_cbranch_scc1 L_end")
    a("s_load_dwordx8 s[4:11], s[0:1], 0")
    if diag:
        a("s_load_dwordx2 s[32:33], s[0:1], %d" % (32 if dbg else 40))
        stamp()
    T = V_T
    a(f"v_and_b32 v{V_LANE}, 63, v0")
    a(f"v_lshrrev_b32 v{T}, 6, v0")
    a(f"v_lshrrev_b32 v{T+1}, 4, v{V_LANE}")
    a(f"v_readfirstlane_b32 s{S_W}, v{T}")
    a(f"v_and_b32 v{T+2}, 15, v{V_LANE}")
    a("s_and_b32 s36, s2, 7")
    a("s_lshr_b32 s37, s2, 3")
    a("s_lshl_b32 s36, s36, 5")
    a("s_add_u32 s36, s36, s37")
    a("s_lshr_b32 s37, s36, 2")
    a("s_mul_i32 s38, s36, 28672")
    a("s_lshl_b32 s39, s37, 18")
    a(f"s_lshl_b32 s{S_M0B}, s{S_W}, 12")
    a(f"s_lshl_b32 s40, s{S_W}, 11")
    a(f"s_lshl_b32 s41, s{S_W}, 13")
    a(f"s_and_b32 s42, s{S_W}, 1")
    a("s_lshl_b32 s42, s42, 7")
    a(f"v_xor_b32 v{T+3}, v{T+2}, v{T+1}")
    a(f"v_lshlrev_b32 v{T+3}, 4, v{T+3}")
    a(f"v_lshl_add_u32 v{T+3}, v{T+1}, 8, v{T+3}")
    a(f"v_xor_b32 v{V_DK0}, s42, v{T+3}")
    a(f"v_add_u32 v{V_DK0}, s40, v{V_DK0}")
    a(f"v_xor_b32 v{V_DK1}, 64, v{V_DK0}")
    a(f"v_add_u32 v{T+4}, s41, v{T+3}")
    a(f"v_xor_b32 v{T+5}, 64, v{T+4}")
    a(f"v_xor_b32 v{T+6}, 0x80, v{T+4}")
    a(f"v_xor_b32 v{T+7}, 0xc0, v{T+4}")
    a(f"v_lshlrev_b32 v{T+8}, 4, v{T+2}")
    a(f"v_lshlrev_b32 v{T+9}, 6, v{T+1}")
    a(f"v_xor_b32 v{T+8}, v{T+8}, v{T+9}")
    a(f"v_lshl_add_u32 v{T+8}, v{T+1}, 8, v{T+8}")
    a(f"v_add_u32 v{V_DV}, s40, v{T+8}")
    a(f"s_add_u32 s43, s41, {LDS_Q}")
    a("s_mov_b32 m0, s43")
    a("s_movk_i32 s44, 0x1000")
    a("s_waitcnt lgkmcnt(0)")
    a(f"s_add_u32 s{SRD_Q}, s4, s38")
    a(f"s_addc_u32 s{SRD_Q+1}, s5, 0")
    a(f"s_mov_b32 s{SRD_Q+2}, 28672")
    a(f"s_mov_b32 s{SRD_Q+3}, 0x20000")
    for p in range(4):
        a(f"buffer_load_dwordx4 v{T+4+p}, {srd(SRD_Q)}, 0 offen offset:{p*1024} lds")
    a("s_add_u32 m0, s43, 0x1000")
    a(f"s_add_u32 s{SRD_K}, s6, s39")
    for p in range(4):
        a(f"buffer_load_dwordx4 v{T+4+p}, {srd(SRD_Q)}, s44 offen offset:{p*1024} lds")
    a(f"s_addc_u32 s{SRD_K+1}, s7, 0")
    a(f"s_mov_b32 s{SRD_K+2}, 0x40000")
    a(f"s_mov_b32 s{SRD_K+3}, 0x20000")
    a(f"s_add_u32 s{SRD_V}, s8, s39")
    a(f"s_addc_u32 s{SRD_V+1}, s9, 0")
    a(f"s_sub_u32 s{SRD_V}, s{SRD_V}, 2048")
    a(f"s_subb_u32 s{SRD_V+1}, s{SRD_V+1}, 0")
    a(f"s_mov_b32 s{SRD_V+2}, 0x40800")
    a(f"s_mov_b32 s{SRD_V+3}, 0x20000")
    def dmaK(soff):
        return [f"buffer_load_dwordx4 v{V_DK0}, {srd(SRD_K)}, {soff} offen lds",
                f"buffer_load_dwordx4 v{V_DK1}, {srd(SRD_K)}, {soff} offen offset:1024 lds"]
    def dmaV(soff):
        return [f"buffer_load_dwordx4 v{V_DV}, {srd(SRD_V)}, {soff} offen offset:2048 lds",
                f"buffer_load_dwordx4 v{V_DV}, {srd(SRD_V)}, {soff} offen offset:3072 lds"]
    order = [("K",0),("K",1),("V",0),("K",2),("V",1),("V",2),("K",3),("V",3)]
    for x in range(4, 8): order += [("K",x),("V",x)]
    cur = None
    for kind, x in order:
        if cur != x:
            a(f"s_add_u32 m0, s{S_M0B}, {x*16384}")
            a(f"s_mov_b32 s{S_OFF}, {x*8192}")
            cur = x
        for ins in (dmaK if kind == "K" else dmaV)(f"s{S_OFF}"): a(ins)
    stamp()
    a(f"s_add_u32 s{SRD_O}, s10, s38")
    a(f"s_addc_u32 s{SRD_O+1}, s11, 0")
    a(f"s_mov_b32 s{SRD_O+2}, 28672")
    a(f"s_mov_b32 s{SRD_O+3}, 0x20000")
    a(f"s_mov_b32 s{S_C}, {hex(f2u(SCALE))}")
    a(f"s_mov_b32 s{S_FB}, 0")
    a(f"v_and_b32 v{T+4}, 31, v{V_LANE}")
    a(f"v_lshrrev_b32 v{T+5}, 5, v{V_LANE}")
    a(f"v_xor_b32 v{T+6}, v{T+2}, v{T+5}")
    a(f"v_lshlrev_b32 v{T+6}, 4, v{T+6}")
    a(f"v_lshrrev_b32 v{T+7}, 3, v{T+4}")
    a(f"v_and_b32 v{T+8}, 7, v{T+4}")
    a(f"v_lshl_add_u32 v{T+9}, v{T+7}, 12, v{T+6}")
    a(f"v_lshl_add_u32 v{V_AK}, v{T+8}, 8, v{T+9}")
    for j in range(1, 8):
        a(f"v_xor_b32 v{V_AK+j}, {32*j}, v{V_AK}")
    for j in range(8):
        a(f"v_add_u32 v{V_AK+8+j}, 0x10000, v{V_AK+j}")
    a(f"v_lshl_add_u32 v{T+10}, v{T+4}, 8, v{T+6}")
    a(f"v_add_u32 v{T+10}, s43, v{T+10}")
    a(f"v_lshlrev_b32 v{V_OST}, 8, v{T+4}")
    a(f"v_lshl_add_u32 v{V_OST}, v{T+5}, 4, v{V_OST}")
    a(f"v_add_u32 v{V_OST}, s41, v{V_OST}")
    a(f"v_bfe_u32 v{T+11}, v{V_LANE}, 2, 2")
    a(f"v_and_b32 v{T+12}, 1, v{V_LANE}")
    a(f"v_lshlrev_b32 v{T+12}, 4, v{T+12}")
    a(f"v_bfe_u32 v{T+13}, v{V_LANE}, 1, 1")
    a(f"v_lshl_add_u32 v{T+12}, v{T+13}, 3, v{T+12}")
    a(f"v_bfe_u32 v{T+13}, v{V_LANE}, 4, 1")
    a(f"v_lshl_add_u32 v{T+12}, v{T+13}, 5, v{T+12}")
    a(f"v_mul_u32_u24 v{T+13}, 0x140, v{T+11}")
    a(f"v_add_u32 v{T+12}, v{T+12}, v{T+13}")
    a(f"v_lshl_add_u32 v{T+12}, v{T+5}, 10, v{T+12}")
    a(f"v_add_u32 v{V_AV}, 0x800, v{T+12}")
    for d in range(1, 4):
        a(f"v_xor_b32 v{V_AV+d}, {64*d}, v{V_AV}")
    for d in range(4):
        a(f"v_add_u32 v{V_AV+4+d}, 0x10000, v{V_AV+d}")
    for r in range(64):
        a(f"v_mov_b32 v{V_O+r}, 0")
    a(f"v_mov_b32 v{V_L}, 0")
    for j in range(1, 8):
        a(f"v_xor_b32 v{V_P+j}, {32*j}, v{T+10}")
    a("s_waitcnt vmcnt(32)")
    stamp()
    for j in range(8):
        ad = T+10 if j == 0 else V_P+j
        a(f"ds_read_b128 {vr(V_S+4*j,4)}, v{ad}")
    a(f"v_mov_b32 v{T}, s{S_C}")
    for j in range(8):
        a(f"s_waitcnt lgkmcnt({7-j})")
        for r in range(4):
            src = V_S + 4*j + r
            t0 = V_CI + 2*(r)
            a(f"v_lshlrev_b32 v{t0}, 16, v{src}")
            a(f"v_and_b32 v{t0+1}, 0xffff0000, v{src}")
        for r in range(4):
            t0 = V_CI + 2*r
            a(f"v_pk_mul_f32 {vr(t0,2)}, {vr(t0,2)}, {vr(T,2)} op_sel_hi:[1,0]")
        for r in range(4):
            t0 = V_CI + 2*r
            a(f"v_cvt_pk_bf16_f32 v{V_Q+4*j+r}, v{t0}, v{t0+1}")
    def kread(tile, j):
        s = tile % 8
        return f"ds_read_b128 {ar(A_K+4*j,4)}, v{V_AK + (s//4)*8 + j} offset:{(s%4)*16384}"
    def vread(tile, i, u):
        s = tile % 8
        m, dt = i // 4, i % 4
        return f"ds_read_b64_tr_b16 {ar(A_V+4*i+2*u,2)}, v{V_AV + (s//4)*4 + dt} offset:{(s%4)*16384 + (2*m+u)*4096}"
    def qk(tile, j, cinit=True):
        S = V_S + 16*(tile & 1)
        c = vr(S,16) if j else (vr(V_CI,16) if cinit else "0")
        return f"v_mfma_f32_32x32x16_bf16 {vr(S,16)}, {ar(A_K+4*j,4)}, {vr(V_Q+4*j,4)}, {c}"
    def pv(i):
        m, dt = i // 4, i % 4
        return f"v_mfma_f32_32x32x16_bf16 {vr(V_O+16*dt,16)}, {ar(A_V+4*i,4)}, {vr(V_P+4*m,4)}, {vr(V_O+16*dt,16)}"
    def sexp(tile, e): S = V_S + 16*(tile&1); return f"v_exp_f32 v{S+e}, v{S+e}"
    def sadd(tile, e): S = V_S + 16*(tile&1); return f"v_add_f32 v{V_L}, v{V_L}, v{S+e}"
    def scvt(tile, e): S = V_S + 16*(tile&1); return f"v_cvt_pk_bf16_f32 v{V_P+e//2}, v{S+e-1}, v{S+e}"
    a("s_waitcnt vmcnt(28)")
    a("s_barrier")
    stamp()
    for j in range(8): a(kread(0, j))
    for j in range(8):
        a(f"s_waitcnt lgkmcnt({7-j})")
        a(qk(0, j, cinit=False))
    for j in range(8): a(kread(1, j))
    a("s_nop 7")
    S0 = V_S
    a(f"v_max3_f32 v{T}, v{S0}, v{S0+1}, v{S0+2}")
    a(f"v_max3_f32 v{T+1}, v{S0+3}, v{S0+4}, v{S0+5}")
    a(f"v_max3_f32 v{T+2}, v{S0+6}, v{S0+7}, v{S0+8}")
    a(f"v_max3_f32 v{T+3}, v{S0+9}, v{S0+10}, v{S0+11}")
    a(f"v_max3_f32 v{T+4}, v{S0+12}, v{S0+13}, v{S0+14}")
    a(f"v_max3_f32 v{T}, v{T}, v{T+1}, v{S0+15}")
    a(f"v_max3_f32 v{T+2}, v{T+2}, v{T+3}, v{T+4}")
    a(f"v_max_f32 v{T}, v{T}, v{T+2}")
    a(f"v_mov_b32 v{T+1}, v{T}")
    a("s_nop 1")
    a(f"v_permlane32_swap_b32 v{T}, v{T+1}")
    a("s_nop 1")
    a(f"v_max_f32 v{V_M}, v{T}, v{T+1}")
    for r in range(16): a(f"v_sub_f32 v{V_CI+r}, 0, v{V_M}")
    for r in range(16): a(f"v_sub_f32 v{S0+r}, v{S0+r}, v{V_M}")
    for g in range(9, 16):
        e = g - 9
        a(sexp(0, e))
        if e >= 1:
            a(sadd(0, e-1))
            if (e-1) % 2 == 1: a(scvt(0, e-1))
    a("s_waitcnt vmcnt(24) lgkmcnt(0)")
    a("s_barrier")
    a(f"s_mov_b32 s{S_CNT}, 3")
    stamp()

    def tile_body(t, dma, vm, last_k=True, has_next=True, loop_ctl=None):
        for g in range(16):
            if g < 8:
                if has_next: a(qk(t+1, g))
            else:
                a(pv(g-8))
            if g == 12 and vm is not None: a("s_barrier")
            if g < 8:
                a(vread(t, g, 0)); a(vread(t, g, 1))
            elif g < 12:
                if last_k:
                    a(kread(t+2, 2*(g-8))); a(kread(t+2, 2*(g-8)+1))
            elif dma:
                a((dmaK(f"s{S_OFF}") + dmaV(f"s{S_OFF}"))[g-12])
            if dma and g == 2: a(f"s_add_u32 m0, s{S_M0B}, {(t%8)*16384}")
            if dma and g == 4: a(f"s_add_u32 s{S_OFF}, s{S_OFF}, 0x2000")
            if loop_ctl and g == 8: a(f"s_sub_u32 s{S_CNT}, s{S_CNT}, 1")
            def el(gg):
                if gg <= 8: return (t, gg + 7)
                return (t+1, gg - 9) if has_next else None
            x = el(g)
            if x: a(sexp(*x))
            y = el(g-1) if g > 0 else (t, 6)
            if y:
                if not x: a("s_nop 0")
                a(sadd(*y))
                if y[1] % 2 == 1: a(scvt(*y))
            if g == 6: a("s_waitcnt lgkmcnt(6)")
            if g == 10:
                n = 6 if last_k else 0
                if vm is not None: a(f"s_waitcnt vmcnt({vm}) lgkmcnt({n})")
                else: a(f"s_waitcnt lgkmcnt({n})")
            if g == 14 and last_k: a("s_waitcnt lgkmcnt(0)")

    a.raw(".p2align 6")
    a.label("L_loop")
    for t in range(8):
        a.c(f"tile {t}")
        tile_body(t, True, 18, loop_ctl=(t == 7))
    a(f"s_cmp_lg_u32 s{S_CNT}, 0")
    a("s_cbranch_scc1 L_loop")
    stamp()
    vms = [18, 14, 10, 6, 2, 2, 0, None]
    for t in range(24, 32):
        a.c(f"tile {t}")
        tile_body(t, False, vms[t-24], last_k=(t < 30), has_next=(t < 31))
    stamp()
    a.label("L_epi")
    a(f"v_mov_b32 v{T+1}, v{V_L}")
    a(f"v_mov_b32 v{T}, v{V_L}")
    a("s_nop 1")
    a(f"v_permlane32_swap_b32 v{T}, v{T+1}")
    a(f"s_mov_b32 s36, {hex(f2u(THRESH))}")
    a("s_nop 0")
    a(f"v_add_f32 v{T}, v{T}, v{T+1}")
    a(f"v_cmp_ngt_f32 vcc, s36, v{T}")
    a(f"v_rcp_f32 v{T+2}, v{T}")
    a(f"s_cmp_lg_u32 s{S_FB}, 0")
    a("s_cbranch_scc1 L_store")
    a("s_nop 0")
    a("s_cbranch_vccnz L_fallback")
    a.label("L_store")
    a("s_nop 3")
    for dt in range(4):
        for hf in range(2):
            b = V_O + 16*dt + 8*hf
            for r in range(0, 8, 2):
                a(f"v_pk_mul_f32 {vr(b+r,2)}, {vr(b+r,2)}, {vr(T+2,2)} op_sel_hi:[1,0]")
            d = V_S + 4*(2*dt+hf)
            for r in range(4):
                a(f"v_cvt_pk_bf16_f32 v{d+r}, v{b+2*r}, v{b+2*r+1}")
            a(f"buffer_store_dwordx4 {vr(d,4)}, v{V_OST}, {srd(SRD_O)}, 0 offen offset:{32*(2*dt+hf)}")
    if diag and dbg:
        a("s_waitcnt vmcnt(0)")
        stamp()
        a("s_waitcnt lgkmcnt(0)")
        a("s_mov_b32 s36, s32")
        a("s_mov_b32 s37, s33")
        a("s_mov_b32 s38, 256")
        a("s_mov_b32 s39, 0x20000")
        a("s_and_b32 s40, s2, 127")
        a(f"s_add_u32 s40, s40, s{S_W}")
        a("s_cmp_lg_u32 s40, 0")
        a("s_cbranch_scc1 L_end")
        a("s_lshr_b32 s40, s2, 7")
        a("s_lshl_b32 s40, s40, 5")
        a(f"v_mov_b32 v{T+4}, s40")
        a(f"v_cmp_eq_u32 vcc, 0, v{V_LANE}")
        a("s_and_saveexec_b64 s[42:43], vcc")
        for i in range(8):
            if i == 0:
                a(f"s_sub_u32 s41, s{S_STAMP+16+14}, s{S_STAMP+16}")
            else:
                a(f"s_sub_u32 s41, s{S_STAMP+2*i}, s{S_STAMP}")
            a(f"v_mov_b32 v{T+6}, s41")
            a(f"buffer_store_dword v{T+6}, v{T+4}, s[36:39], 0 offen offset:{4*i}")
            a("s_nop 1")
    elif diag:
        a("s_waitcnt vmcnt(0)")
        stamp()
        a("s_waitcnt lgkmcnt(0)")
        a("s_mov_b32 s36, s32")
        a("s_mov_b32 s37, s33")
        a("s_mov_b32 s38, 0x100000")
        a("s_mov_b32 s39, 0x20000")
        a(f"s_lshl_b32 s40, s2, 2")
        a(f"s_add_u32 s40, s40, s{S_W}")
        a(f"s_lshl_b32 s40, s40, 7")
        a(f"v_mov_b32 v{T+4}, s40")
        a(f"v_cmp_eq_u32 vcc, 0, v{V_LANE}")
        a("s_and_saveexec_b64 s[42:43], vcc")
        for i in range(16):
            a(f"v_mov_b32 v{T+6}, s{S_STAMP+2*i}")
            a(f"v_mov_b32 v{T+7}, s{S_STAMP+2*i+1}")
            a(f"buffer_store_dwordx2 {vr(T+6,2)}, v{T+4}, s[36:39], 0 offen offset:{8*i}")
            a("s_nop 1")
    a.label("L_end")
    a("s_endpgm")

    a.label("L_fallback")
    a(f"s_mov_b32 s{S_FB}, 1")
    a(f"s_lshl_b32 s41, s{S_W}, 13")
    a(f"s_add_u32 s43, s41, {LDS_Q}")
    a(f"v_lshrrev_b32 v{T+1}, 4, v{V_LANE}")
    a(f"v_and_b32 v{T+2}, 15, v{V_LANE}")
    FK = V_AK + 8
    FV = V_AK + 12
    a(f"v_xor_b32 v{T+3}, v{T+2}, v{T+1}")
    a(f"v_lshlrev_b32 v{T+3}, 4, v{T+3}")
    a(f"v_lshl_add_u32 v{FK}, v{T+1}, 8, v{T+3}")
    for p in range(1, 4): a(f"v_xor_b32 v{FK+p}, {64*p}, v{FK}")
    a(f"v_lshlrev_b32 v{T+8}, 4, v{T+2}")
    a(f"v_lshlrev_b32 v{T+9}, 6, v{T+1}")
    a(f"v_xor_b32 v{T+8}, v{T+8}, v{T+9}")
    a(f"v_lshl_add_u32 v{T+8}, v{T+1}, 8, v{T+8}")
    a(f"v_add_u32 v{FV}, 0x800, v{T+8}")
    a(f"v_and_b32 v{T+4}, 31, v{V_LANE}")
    a(f"v_lshrrev_b32 v{T+5}, 5, v{V_LANE}")
    a(f"v_xor_b32 v{T+6}, v{T+2}, v{T+5}")
    a(f"v_lshlrev_b32 v{T+6}, 4, v{T+6}")
    a(f"v_lshl_add_u32 v{T+10}, v{T+4}, 8, v{T+6}")
    a(f"v_add_u32 v{V_AK}, s43, v{T+10}")
    for j in range(1, 8): a(f"v_xor_b32 v{V_AK+j}, {32*j}, v{V_AK}")
    a("s_sub_u32 s44, s43, 0x800")
    for d in range(4): a(f"v_add_u32 v{V_AV+d}, s44, v{V_AV+d}")
    def fb_loadK():
        a("s_mov_b32 m0, s43")
        a(f"s_add_u32 s45, s{S_OFF}, 0x1000")
        for p in range(4): a(f"buffer_load_dwordx4 v{FK+p}, {srd(SRD_K)}, s{S_OFF} offen offset:{p*1024} lds")
        a("s_add_u32 m0, s43, 0x1000")
        a("s_nop 0")
        for p in range(4): a(f"buffer_load_dwordx4 v{FK+p}, {srd(SRD_K)}, s45 offen offset:{p*1024} lds")
        a("s_waitcnt vmcnt(0)")
        for j in range(8): a(f"ds_read_b128 {ar(A_K+4*j,4)}, v{V_AK+j}")
        a("s_waitcnt lgkmcnt(0)")
    a(f"v_mov_b32 v{V_M}, 0xff800000")
    a(f"s_mov_b32 s{S_OFF}, 0")
    a("s_nop 7")
    a("s_nop 7")
    a.label("L_fb1")
    fb_loadK()
    for j in range(8): a(qk(0, j, cinit=False))
    a("s_nop 15")
    for r in range(0, 16, 2): a(f"v_max3_f32 v{V_M}, v{V_M}, v{S0+r}, v{S0+r+1}")
    a(f"s_add_u32 s{S_OFF}, s{S_OFF}, 0x2000")
    a(f"s_cmp_lt_u32 s{S_OFF}, 0x40000")
    a("s_cbranch_scc1 L_fb1")
    a(f"v_mov_b32 v{T}, v{V_M}")
    a(f"v_mov_b32 v{T+1}, v{V_M}")
    a("s_nop 1")
    a(f"v_permlane32_swap_b32 v{T}, v{T+1}")
    a("s_nop 1")
    a(f"v_max_f32 v{V_M}, v{T}, v{T+1}")
    for r in range(16): a(f"v_sub_f32 v{V_CI+r}, 0, v{V_M}")
    for r in range(64): a(f"v_mov_b32 v{V_O+r}, 0")
    a(f"v_mov_b32 v{V_L}, 0")
    a(f"s_mov_b32 s{S_OFF}, 0")
    a.label("L_fb2")
    fb_loadK()
    for j in range(8): a(qk(0, j))
    a("s_mov_b32 m0, s43")
    a(f"s_add_u32 s45, s{S_OFF}, 0x1000")
    for p in range(4): a(f"buffer_load_dwordx4 v{FV}, {srd(SRD_V)}, s{S_OFF} offen offset:{p*1024} lds")
    a("s_add_u32 m0, s43, 0x1000")
    a("s_nop 0")
    for p in range(4): a(f"buffer_load_dwordx4 v{FV}, {srd(SRD_V)}, s45 offen offset:{p*1024} lds")
    a("s_nop 15")
    for e in range(16): a(sexp(0, e))
    a("s_nop 0")
    for e in range(16): a(sadd(0, e))
    for e in range(1, 16, 2): a(scvt(0, e))
    a("s_waitcnt vmcnt(0)")
    for i in range(8):
        m, dt = i // 4, i % 4
        for u in range(2):
            a(f"ds_read_b64_tr_b16 {ar(A_V+4*i+2*u,2)}, v{V_AV+dt} offset:{(2*m+u)*2048}")
    a("s_waitcnt lgkmcnt(0)")
    for i in range(8): a(pv(i))
    a(f"s_add_u32 s{S_OFF}, s{S_OFF}, 0x2000")
    a(f"s_cmp_lt_u32 s{S_OFF}, 0x40000")
    a("s_cbranch_scc1 L_fb2")
    a("s_nop 15")
    a("s_branch L_epi")

    acc = (NV + 3) // 4 * 4
    a.raw('.section .rodata,"a"')
    a.raw(".p2align 6")
    a.raw(f".amdhsa_kernel {NAME}_kernel")
    a.raw(f"  .amdhsa_next_free_vgpr {acc + NA}")
    a.raw("  .amdhsa_next_free_sgpr 102")
    a.raw(f"  .amdhsa_accum_offset {acc}")
    a.raw("  .amdhsa_group_segment_fixed_size 0")
    a.raw("  .amdhsa_kernarg_size 48")
    a.raw("  .amdhsa_user_sgpr_count 2")
    a.raw("  .amdhsa_user_sgpr_kernarg_segment_ptr 1")
    a.raw("  .amdhsa_system_sgpr_workgroup_id_x 1")
    a.raw(".end_amdhsa_kernel")
    return a.text()

if __name__ == "__main__":
    ap = argparse.ArgumentParser()
    ap.add_argument("-o", default=f"cdna_kernels/{NAME}.s")
    ap.add_argument("--diag", action="store_true")
    ap.add_argument("--dbg", action="store_true")
    args = ap.parse_args()
    open(args.o, "w").write(gen(diag=args.diag, dbg=args.dbg))
```

```python
import re
REG = re.compile(r"\b([va])(?:(\d+)|\[(\d+):(\d+)\])")
def regs(op):
    out = set()
    for m in REG.finditer(op):
        k = m.group(1)
        if m.group(2) is not None: out.add((k, int(m.group(2))))
        else: out.update((k, i) for i in range(int(m.group(3)), int(m.group(4)) + 1))
    return out
TRANS = ("v_exp_f32", "v_rcp_f32", "v_log_f32", "v_rsq_f32", "v_sqrt_f32")
def parse(ins):
    ins = ins.split(";")[0].strip()
    if not ins or ins.endswith(":") or ins.startswith("."): return None
    mn, _, rest = ins.partition(" ")
    ops = [o.strip() for o in re.split(r",(?![^\[]*\])", rest)] if rest else []
    d = dict(mn=mn, txt=ins, r=set(), w=set(), c=set(), kind="s", ws=1)
    if mn == "s_nop": d["ws"] = int(ops[0], 0) + 1
    elif mn.startswith("v_mfma"):
        d["kind"] = "mfma"; d["w"] = regs(ops[0]); d["ab"] = regs(ops[1]) | regs(ops[2]); d["c"] = regs(ops[3]); d["r"] = d["ab"] | d["c"]
        d["passes"] = 8 if "32x32" in mn else 4
    elif mn.startswith("v_permlane"):
        d["kind"] = "valu"; d["w"] = regs(ops[0]) | regs(ops[1]); d["r"] = set(d["w"])
    elif mn.startswith("v_cmp") or mn.startswith("v_readfirstlane") or mn.startswith("v_readlane"):
        d["kind"] = "valu"; d["r"] = set().union(*[regs(o) for o in ops[1:]])
    elif mn.startswith("v_"):
        d["kind"] = "valu"; d["w"] = regs(ops[0]); d["r"] = set().union(*[regs(o) for o in ops[1:]]) if len(ops) > 1 else set()
        if "fmac" in mn: d["r"] |= d["w"]
    elif mn.startswith("ds_read"):
        d["kind"] = "mem"; d["w"] = regs(ops[0]); d["r"] = regs(ops[1])
    elif mn.startswith("ds_write") or mn.startswith("ds_add"):
        d["kind"] = "mem"; d["r"] = set().union(*[regs(o) for o in ops])
    elif mn.startswith("buffer_load") or mn.startswith("global_load"):
        d["kind"] = "mem"
        if ins.rstrip().endswith("lds"): d["r"] = regs(ops[0])
        else: d["w"] = regs(ops[0]); d["r"] = regs(ops[1])
    elif mn.startswith("buffer_store") or mn.startswith("global_store"):
        d["kind"] = "mem"; d["r"] = regs(ops[0]) | regs(ops[1]); d["store"] = regs(ops[0]) if "x4" in mn or "x3" in mn else set()
    return d
def check(lines):
    seq = [p for p in (parse(l) for l in lines) if p]
    bad = []
    for i, b in enumerate(seq):
        dist = 0
        for j in range(i - 1, max(i - 24, -1), -1):
            a = seq[j]
            need = 0
            if a["kind"] == "mfma":
                P = a["passes"]
                if b["kind"] == "mfma":
                    if a["w"] & b["ab"]: need = 8 if P == 4 else 12
                    elif a["w"] & b["c"] and not (a["w"] == b["c"] and b["passes"] == P): need = 6 if P == 4 else 10
                    elif a["w"] & b["w"] and not (a["w"] & b["c"]): need = 0
                elif b["kind"] in ("valu", "mem"):
                    if a["w"] & (b["r"] | b["w"]): need = 8 if P == 4 else 12
                    if b["kind"] == "valu" and a["c"] & b["w"]: need = max(need, 3 if P == 4 else 7)
            elif a["kind"] == "valu":
                if b["kind"] == "mfma" and a["w"] & b["r"]: need = 2
                if b["kind"] == "valu":
                    if a["mn"] in TRANS and b["mn"] not in TRANS and a["w"] & b["r"]: need = 1
                    if b["mn"].startswith("v_permlane") and a["w"] & b["r"]: need = 2
                    if (b["mn"].startswith("v_readfirstlane") or b["mn"].startswith("v_readlane")) and a["w"] & b["r"]: need = 1
            elif a["kind"] == "mem" and a.get("store") and b["kind"] == "valu" and a["store"] & b["w"]: need = 2
            elif a["kind"] == "s" and re.match(r"s_\w+ m0,", a["txt"]) and b["kind"] == "mem" and b["txt"].endswith("lds"): need = 1
            if need > dist: bad.append((need, dist, a["txt"], b["txt"]))
            dist += a["ws"]
    return bad
if __name__ == "__main__":
    import sys
    for x in check(open(sys.argv[1]).read().splitlines()): print(x)
```

```python
import sys, struct, argparse
import hz
NAME = "standalone__gqa_softmax__near_ridge"
def f2u(x): return struct.unpack("<I", struct.pack("<f", x))[0]
class Asm:
    def __init__(self): self.l = []
    def __call__(self, s): self.l.append("    " + s)
    def label(self, s): self.l.append(s + ":")
    def c(self, s): self.l.append("    ; " + s)
    def raw(self, s): self.l.append(s)
    def text(self): return "\n".join(self.l) + "\n"
def vr(b, n=1): return f"v{b}" if n == 1 else f"v[{b}:{b+n-1}]"
def ar(b, n=1): return f"a{b}" if n == 1 else f"a[{b}:{b+n-1}]"
def srd(b): return f"s[{b}:{b+3}]"

V_LANE, V_LIN, V_KEEP, V_VOFF, V_AK, V_AV, V_T = 0, 1, 2, 4, 8, 10, 14
V_S, V_P, V_CI, V_OWN, V_O6, V_K, V_V, V_Q = 20, 28, 32, 60, 116, 140, 172, 224
A_O, A_L, A_ONE, A_Q = 0, 144, 172, 176
S_W = 3
SRD_Q, SRD_K, SRD_V, SRD_O = 12, 16, 20, 24
S_KA, S_KB, S_VA, S_VB = 28, 29, 30, 31
S_FB, S_WB, S_CNT = 33, 34, 35
S_STAMP = 48
REG = 40960
KB = lambda par: par * 8192
VB = lambda par: 16384 + par * 8192
XO = 32768
CI_AREA = 3 * REG + XO + 6144
LT0 = 39936
def LTAB(u): return u * 256 if u < 4 else REG + (u - 4) * 256
SCALE = (128 ** -0.5) * 1.4426950408889634
THRESH = 2.0 ** 40

def Qf(u, c):
    i = 4 * u + c
    return vr(V_Q + 4 * i, 4) if i < 8 else ar(A_Q + 4 * (i - 8), 4)
def Kf(j): return vr(V_K + 4 * j, 4)
def Vbase(dt, par): return V_V + 4 * dt if dt < 3 else V_V + 12 + 20 * par + 4 * (dt - 3)
def Of(u, dt):
    if dt < 2: return vr(V_OWN + 8 * u + 4 * dt, 4)
    if u == 6: return vr(V_O6 + 4 * (dt - 2), 4)
    return ar(A_O + 24 * u + 4 * (dt - 2), 4)
M16 = "v_mfma_f32_16x16x32_bf16"
def qk(u, j, zero=False):
    kt, c = j // 4, j % 4
    S = vr(V_S + 4 * kt, 4)
    cc = S if c else ("0" if zero else vr(V_CI + 4 * u, 4))
    return f"{M16} {S}, {Kf(j)}, {Qf(u, c)}, {cc}"
def pv(u, dt, par, first):
    o = Of(u, dt)
    return f"{M16} {o}, {vr(Vbase(dt, par), 4)}, {vr(V_P, 4)}, {'0' if first else o}"
def sm(u, first):
    o = ar(A_L + 4 * u, 4)
    return f"{M16} {o}, {ar(A_ONE, 4)}, {vr(V_P, 4)}, {'0' if first else o}"
def ex(e): return f"v_exp_f32 v{V_S+e}, v{V_S+e}"
def cv(i): return f"v_cvt_pk_bf16_f32 v{V_P+i}, v{V_S+2*i}, v{V_S+2*i+1}"
def kread(par, j, base=None, dst=None):
    kt, c = j // 4, j % 4
    off = (KB(par) if base is None else base) + (c >> 1) * 4096 + kt * 2048
    return f"ds_read_b128 {dst or Kf(j)}, v{V_AK + (c & 1)} offset:{off}"
def vread(par, dt):
    b = Vbase(dt, par)
    return [f"ds_read_b64_tr_b16 {vr(b + 2*h, 2)}, v{V_AV + (dt & 3)} offset:{VB(par) + (dt >> 2) * 4096 + h * 2048}" for h in range(2)]

def gen(diag=False, dbg=False, flags="", sflags="", direct_store=False):
    a = Asm()
    fl = (" " + flags) if flags else ""
    def dma(s, soff, p): return f"buffer_load_dwordx4 v{V_VOFF+p}, {srd(s)}, s{soff} offen offset:{p*1024}{fl} lds"
    def m0(off): return f"s_add_u32 m0, s{S_WB}, {off}"
    nst = [0]
    def stamp():
        if diag:
            a(f"s_memrealtime s[{S_STAMP+2*nst[0]}:{S_STAMP+2*nst[0]+1}]")
            a(f"s_memtime s[{S_STAMP+16+2*nst[0]}:{S_STAMP+16+2*nst[0]+1}]")
            nst[0] += 1
    a.raw(open("cdna_kernels/%s.s.ref" % NAME).read().split("; Override launch")[0].rstrip())
    a.raw("; @launch grid=(256,1,1) block=(256,1,1) lds=163840")
    a.raw('.amdgcn_target "amdgcn-amd-amdhsa--gfx950"')
    a.raw(".text"); a.raw(f".globl {NAME}_kernel"); a.raw(".p2align 8"); a.raw(f".type {NAME}_kernel,@function")
    a.label(f"{NAME}_kernel")
    a("s_cmp_ge_u32 s2, 256")
    a("s_cbranch_scc1 L_end")
    a("s_load_dwordx8 s[4:11], s[0:1], 0")
    if diag:
        a("s_load_dwordx2 s[46:47], s[0:1], %d" % (32 if dbg else 40))
        stamp()
    T = V_T
    L = V_LANE
    a(f"v_lshrrev_b32 v{T}, 6, v0")
    a(f"v_and_b32 v{L}, 63, v0")
    a(f"v_readfirstlane_b32 s{S_W}, v{T}")
    a("s_and_b32 s36, s2, 7")
    a("s_lshr_b32 s37, s2, 3")
    a("s_lshl_b32 s36, s36, 5")
    a("s_add_u32 s36, s36, s37")
    a("s_lshr_b32 s37, s36, 2")
    a("s_mul_i32 s38, s36, 28672")
    a("s_lshl_b32 s39, s37, 18")
    a(f"s_lshl_b32 s40, s{S_W}, 16")
    a("s_add_u32 s39, s39, s40")
    a(f"s_mul_i32 s{S_WB}, s{S_W}, {REG}")
    a(f"s_mov_b32 s{S_FB}, 0")
    a(f"v_lshrrev_b32 v{T}, 4, v{L}")
    a(f"v_lshlrev_b32 v{T}, 1, v{T}")
    a(f"v_and_b32 v{T+1}, 7, v{L}")
    a(f"v_xor_b32 v{T}, v{T}, v{T+1}")
    a(f"v_lshlrev_b32 v{T}, 4, v{T}")
    a(f"v_lshrrev_b32 v{T+1}, 3, v{L}")
    a(f"v_lshl_add_u32 v{V_VOFF}, v{T+1}, 8, v{T}")
    a(f"v_xor_b32 v{V_VOFF+1}, 16, v{V_VOFF}")
    a(f"v_add_u32 v{V_VOFF+1}, 0x400, v{V_VOFF+1}")
    a(f"v_add_u32 v{V_VOFF+2}, 0x800, v{V_VOFF}")
    a(f"v_add_u32 v{V_VOFF+3}, 0x800, v{V_VOFF+1}")
    a("s_waitcnt lgkmcnt(0)")
    for base, src, off, num in ((SRD_Q, 4, 38, 28672), (SRD_K, 6, 39, 0x10000), (SRD_V, 8, 39, 0x10000), (SRD_O, 10, 38, 28672)):
        a(f"s_add_u32 s{base}, s{src}, s{off}")
        a(f"s_addc_u32 s{base+1}, s{src+1}, 0")
        a(f"s_mov_b32 s{base+2}, {num}")
        a(f"s_mov_b32 s{base+3}, 0x20000")
    a.label("L_start")
    a(f"s_lshl_b32 s40, s{S_W}, 13")
    a("s_add_u32 s41, s40, 128")
    a(m0(XO)); a(f"s_mov_b32 s{S_KA}, 0")
    for p in (0, 1): a(dma(SRD_Q, 40, p))
    a(m0(XO + 4096)); a(f"s_movk_i32 s{S_KB}, 128")
    for p in (0, 1): a(dma(SRD_Q, 41, p))
    a(f"s_cmp_eq_u32 s{S_W}, 3")
    a("s_cbranch_scc1 L_q1")
    for p in (2, 3): a(dma(SRD_Q, 41, p))
    a(m0(XO)); a("s_nop 0")
    for p in (2, 3): a(dma(SRD_Q, 40, p))
    a.label("L_q1")
    a(m0(KB(0))); a(f"s_lshr_b32 s{S_VA}, s{S_W}, 1")
    for p in range(4): a(dma(SRD_K, S_KA, p))
    a(m0(KB(0) + 4096)); a(f"s_lshl_b32 s{S_VA}, s{S_VA}, 7")
    for p in range(4): a(dma(SRD_K, S_KB, p))
    a(f"s_xor_b32 s{S_VB}, s{S_VA}, 128")
    a(f"v_and_b32 v{T}, 15, v{L}")
    a(f"v_and_b32 v{T+1}, 6, v{T}")
    a(f"v_lshrrev_b32 v{T+2}, 3, v{T}")
    a(f"v_or_b32 v{T+1}, v{T+1}, v{T+2}")
    a(f"v_lshrrev_b32 v{T+2}, 4, v{L}")
    a(f"v_lshlrev_b32 v{T+2}, 1, v{T+2}")
    a(f"v_xor_b32 v{T+1}, v{T+1}, v{T+2}")
    a(f"v_lshlrev_b32 v{T+1}, 4, v{T+1}")
    a(f"v_lshl_add_u32 v{T+1}, v{T}, 7, v{T+1}")
    a(f"v_add_u32 v{V_AK}, s{S_WB}, v{T+1}")
    a(f"v_xor_b32 v{V_AK+1}, 16, v{V_AK}")
    a(f"v_lshrrev_b32 v{T}, 2, v{L}")
    a(f"v_and_b32 v{T+1}, 6, v{T}")
    a(f"v_lshrrev_b32 v{T+2}, 3, v{T}")
    a(f"v_or_b32 v{T+1}, v{T+1}, v{T+2}")
    a(f"v_bfe_u32 v{T+2}, v{L}, 1, 1")
    a(f"v_xor_b32 v{T+1}, v{T+1}, v{T+2}")
    a(f"s_and_b32 s42, s{S_W}, 1")
    a("s_lshl_b32 s42, s42, 2")
    a(f"v_xor_b32 v{T+1}, s42, v{T+1}")
    a(f"v_lshlrev_b32 v{T+1}, 4, v{T+1}")
    a(f"v_lshl_add_u32 v{T+1}, v{T}, 7, v{T+1}")
    a(f"v_and_b32 v{T+2}, 1, v{L}")
    a(f"v_lshl_add_u32 v{T+1}, v{T+2}, 3, v{T+1}")
    a(f"v_add_u32 v{V_AV}, s{S_WB}, v{T+1}")
    for k in range(1, 4): a(f"v_xor_b32 v{V_AV+k}, {32*k}, v{V_AV}")
    a(f"v_lshlrev_b32 v{T}, 4, v{L}")
    a(f"v_add_u32 v{V_LIN}, s{S_WB}, v{T}")
    a(f"v_and_b32 v{T}, 3, v{L}")
    a(f"v_mov_b32 v{T+1}, 0x3f803f80")
    a(f"v_cmp_eq_u32 vcc, 0, v{T}")
    a(f"v_mov_b32 v{T+4}, {hex(f2u(SCALE))}")
    a(m0(VB(0)))
    a(f"v_cndmask_b32 v{T+1}, 0, v{T+1}, vcc")
    for r in range(4): a(f"v_accvgpr_write_b32 a{A_ONE+r}, v{T+1}")
    for p in range(4): a(dma(SRD_V, S_VA, p))
    a(m0(VB(0) + 4096)); a("s_nop 0")
    for p in range(4): a(dma(SRD_V, S_VB, p))
    for s in (S_KA, S_KB, S_VA, S_VB): a(f"s_add_u32 s{s}, s{s}, 0x2000")
    stamp()
    RAW, QP, TMP = V_V, V_OWN, V_O6
    a("s_waitcnt vmcnt(16)")
    stamp()
    for j in range(8): a(kread(0, j, base=XO, dst=vr(RAW + 4*j, 4)))
    k1 = [m0(KB(1))] + [dma(SRD_K, S_KA, p) for p in range(4)] + [m0(KB(1) + 4096)] + [dma(SRD_K, S_KB, p) for p in range(4)]
    for j in range(8):
        if j in (0, 4): a(k1.pop(0))
        a(f"s_waitcnt lgkmcnt({7-j})" if j < 4 else ("s_waitcnt lgkmcnt(0)" if j == 4 else "s_nop 0"))
        a(k1.pop(0))
        if j >= 4:
            a(f"ds_write_b128 v{V_LIN}, {vr(QP + 4*(j-4), 4)} offset:{XO + (j-4)*1024}")
        for r in range(4):
            a(f"v_lshlrev_b32 v{TMP+2*r}, 16, v{RAW+4*j+r}")
            a(f"v_and_b32 v{TMP+2*r+1}, 0xffff0000, v{RAW+4*j+r}")
        for r in range(4): a(f"v_pk_mul_f32 {vr(TMP+2*r,2)}, {vr(TMP+2*r,2)}, {vr(T+4,2)} op_sel_hi:[1,0]")
        for r in range(4): a(f"v_cvt_pk_bf16_f32 v{QP+4*j+r}, v{TMP+2*r}, v{TMP+2*r+1}")
        if j == 5:
            a("s_waitcnt vmcnt(14)")
            for jj in range(8): a(kread(0, jj))
    a("s_waitcnt lgkmcnt(2)")
    assert not k1
    a(f"s_cmp_eq_u32 s{S_W}, 3")
    a("s_cbranch_scc1 L_q2")
    for j in range(4, 8): a(f"ds_write_b128 v{V_LIN}, {vr(QP + 4*j, 4)} offset:{XO + j*1024}")
    a.label("L_q2")
    for c in range(4):
        for h in range(2):
            S = vr(V_S + 4*h, 4)
            a(f"{M16} {S}, {Kf(c)}, {vr(QP + 16*h + 4*c, 4)}, {S if c else '0'}")
    a(f"v_and_b32 v{T}, 15, v{L}")
    a(f"s_lshl_b32 s42, s{S_W}, 9")
    a(f"s_add_u32 s42, s42, {CI_AREA}")
    a(f"v_lshlrev_b32 v{T}, 4, v{T}")
    a(f"v_add_u32 v{T+1}, s42, v{T}")
    a(f"v_add_u32 v{T+5}, {CI_AREA}, v{T}")
    a("s_nop 2")
    for h in range(2):
        a(f"v_max3_f32 v{V_P+h}, v{V_S+4*h}, v{V_S+4*h+1}, v{V_S+4*h+2}")
    for h in range(2):
        a(f"v_max_f32 v{V_P+h}, v{V_P+h}, v{V_S+4*h+3}")
    for sw in ("v_permlane16_swap_b32", "v_permlane32_swap_b32"):
        for h in range(2): a(f"v_mov_b32 v{V_P+2+h}, v{V_P+h}")
        a("s_nop 1")
        for h in range(2): a(f"{sw} v{V_P+h}, v{V_P+2+h}")
        a("s_nop 0")
        for h in range(2): a(f"v_max_f32 v{V_P+h}, v{V_P+h}, v{V_P+2+h}")
    a(f"s_cmp_eq_u32 s{S_FB}, 0")
    a("s_cbranch_scc1 L_q3")
    for h in range(2): a(f"v_mov_b32 v{V_P+h}, v{V_KEEP+h}")
    a.label("L_q3")
    for h in range(2):
        for r in range(4): a(f"v_sub_f32 v{V_S+4*h+r}, 0, v{V_P+h}")
    a(f"ds_write_b128 v{T+1}, {vr(V_S,4)}")
    a(f"s_cmp_eq_u32 s{S_W}, 3")
    a("s_cbranch_scc1 L_q4")
    a(f"ds_write_b128 v{T+1}, {vr(V_S+4,4)} offset:256")
    a.label("L_q4")
    a(f"v_lshlrev_b32 v{T}, 4, v{L}")
    a(f"v_add_u32 v{T+2}, {2*REG}, v{T}")
    a(f"v_add_u32 v{T}, {XO}, v{T}")
    a(f"v_add_u32 v{T+2}, {XO}, v{T+2}")
    a("s_waitcnt lgkmcnt(0)")
    a("s_barrier")
    stamp()
    def qreads(u):
        w, h = u // 2, u % 2
        ad = T if w < 2 else T + 2
        out = [f"ds_read_b128 {vr(V_CI+4*u,4)}, v{T+5} offset:{u*256}"]
        out += [f"ds_read_b128 {Qf(u,c)}, v{ad} offset:{(w&1)*REG + h*4096 + c*1024}" for c in range(4)]
        return out
    for x in qreads(0) + qreads(1): a(x)
    v1 = [dma(SRD_V, S_VA, p) for p in range(4)] + [dma(SRD_V, S_VB, p) for p in range(4)]
    a(m0(VB(1)))
    a("s_waitcnt vmcnt(8) lgkmcnt(5)")
    for j in range(8):
        a(qk(0, j))
        for x in vread(0, j): a(x)
    for p in range(4): a(v1[p])
    a(m0(VB(1) + 4096)); a("s_nop 0")
    for p in range(4, 8): a(v1[p])
    for s in (S_KA, S_KB, S_VA, S_VB): a(f"s_add_u32 s{s}, s{s}, 0x2000")
    for e in range(5): a(ex(e))
    a(cv(0)); a(cv(1))
    stamp()

    def xw(u, dt):
        j, b = dt // 2, dt % 2
        return f"ds_write_b128 v{V_LIN}, {Of(u, dt)} offset:{((u*3 + j-1)*2 + b)*1024}"
    def lw(u): return f"ds_write_b32 v{T+3}, a{A_L+4*u} offset:{LTAB(u)}"

    def tile(t, kind):
        par = t & 1
        first, last = kind == "first", kind == "last"
        for u in range(7):
            ext = {g: [] for g in range(17)}
            post = {g: [] for g in range(17)}
            if not last:
                if u < 4:
                    s_, so, buf = ((SRD_K, S_KA, KB(par)), (SRD_K, S_KB, KB(par) + 4096), (SRD_V, S_VA, VB(par)), (SRD_V, S_VB, VB(par) + 4096))[u]
                    ext[4].append(m0(buf))
                    for p, g in enumerate((5, 7, 9, 10)): ext[g].append(dma(s_, so, p))
                if u == 4:
                    ext[4] += [f"s_add_u32 s{S_KA}, s{S_KA}, 0x2000", f"s_add_u32 s{S_KB}, s{S_KB}, 0x2000"]
                    ext[5] += [f"s_add_u32 s{S_VA}, s{S_VA}, 0x2000", f"s_add_u32 s{S_VB}, s{S_VB}, 0x2000"]
                    if kind == "even": ext[7] += [f"s_sub_u32 s{S_CNT}, s{S_CNT}, 1"]
                    if kind == "odd":
                        ext[7] += [f"s_cmp_eq_u32 s{S_CNT}, 1", f"s_cselect_b32 s{SRD_K+2}, 0, 0x10000"]
                        ext[8] += [f"s_mov_b32 s{SRD_V+2}, s{SRD_K+2}"]
                if u == 5:
                    ext[4].append("s_waitcnt vmcnt(24)")
                    for i, g in enumerate((5, 6, 8, 9)): ext[g] += [kread(par ^ 1, 2*i), kread(par ^ 1, 2*i+1)]
                    ext[7].append("s_waitcnt vmcnt(16)")
                    if first: ext[7].append("s_barrier")
                    ext[10] += vread(par ^ 1, 3)
                    post[16].append("s_waitcnt lgkmcnt(2)")
                if u == 6:
                    for g, dt in zip((4, 5, 6, 7, 8, 9, 10), (4, 5, 6, 7, 0, 1, 2)): ext[g] += vread(par ^ 1, dt)
                if first and u < 5:
                    q = qreads(u + 2)
                    ext[6] += q[0:2]; ext[8] += q[2:5]
                    post[16].append("s_waitcnt lgkmcnt(0)")
            if u == 0: ext[4].append("s_waitcnt lgkmcnt(0)")
            if last:
                if u == 0:
                    ext[5].append("s_waitcnt vmcnt(0)")
                    post[6] += [f"v_and_b32 v{T+3}, 15, v{L}", f"v_lshlrev_b32 v{T+3}, 4, v{T+3}"]
                    post[7] += [f"s_lshl_b32 s42, s{S_W}, 2", f"s_add_u32 s42, s42, {LT0}"]
                    post[8] += [f"v_add_u32 v{T+3}, s42, v{T+3}"]
                else:
                    for g, dt in zip((4, 5, 6, 7, 8, 9), range(2, 8)): ext[g].append(xw(u - 1, dt))
                    ext[10].append(lw(u - 1))
            fin = last and u == 6
            if first and u == 0: a("s_waitcnt lgkmcnt(15)")
            order = [2, 3, 4, 5, 6, 7, -1, 0, 1] if fin else [0, 1, 2, 3, 4, 5, 6, 7, -1]
            for g in range(17):
                if g < 8:
                    if not fin: a(qk((u + 1) % 7, g))
                else:
                    dt = order[g - 8]
                    a(pv(u, dt, par, first) if dt >= 0 else sm(u, first))
                for x in ext[g]: a(x)
                if g < 3: a(ex(5 + g))
                elif g == 3:
                    if fin: a("s_nop 0")
                    a(cv(2)); a(cv(3))
                elif not fin:
                    if 11 <= g <= 15: a(ex(g - 11))
                    elif g == 16: a(cv(0)); a(cv(1))
                for x in post[g]: a(x)

    a.c("tile 0"); tile(0, "first")
    a(f"s_mov_b32 s{S_CNT}, 3")
    stamp()
    a.raw(".p2align 6")
    a.label("L_loop")
    i0 = len(a.l)
    a.c("tile odd"); tile(1, "odd")
    a.c("tile even"); tile(2, "even")
    a(f"s_cmp_lg_u32 s{S_CNT}, 0")
    a("s_cbranch_scc1 L_loop")
    i1 = len(a.l)
    stamp()
    a.c("tile 7"); tile(7, "last")
    PK = V_K
    a("s_nop 1")
    for j in range(1, 4):
        for b in range(2):
            o = V_O6 + 4 * (2*j + b - 2)
            for h in range(2): a(f"v_cvt_pk_bf16_f32 v{PK + 4*(j-1) + 2*b + h}, v{o+2*h}, v{o+2*h+1}")
        a(f"ds_write_b128 v{V_LIN}, {vr(PK + 4*(j-1), 4)} offset:{36864 + (j-1)*1024}")
    a(lw(6))
    a(f"v_lshlrev_b32 v{T+4}, 4, v{L}")
    for j in range(1, 4):
        a(f"s_xor_b32 s42, s{S_W}, {j}")
        a(f"s_mul_i32 s{42+j}, s42, {REG}")
        a(f"v_add_u32 v{T+j-1}, s{42+j}, v{T+4}")
    a(f"v_and_b32 v{T+4}, 0xf0, v{T+4}")
    a(f"v_add_u32 v{T+4}, {LT0}, v{T+4}")
    a(f"v_and_b32 v{V_S+4}, 15, v{L}")
    a(f"v_mul_u32_u24 v{V_S+4}, 80, v{V_S+4}")
    a(f"v_lshrrev_b32 v{V_S+5}, 4, v{L}")
    a(f"v_lshl_add_u32 v{V_S+4}, v{V_S+5}, 3, v{V_S+4}")
    a(f"v_add_u32 v{V_S}, s43, v{V_S+4}")
    a(f"v_lshrrev_b32 v{V_S+4}, 2, v{L}")
    a(f"v_and_b32 v{V_S+5}, 3, v{L}")
    a(f"v_lshlrev_b32 v{V_S+5}, 4, v{V_S+5}")
    a(f"v_lshl_add_u32 v{V_S+2}, v{V_S+4}, 8, v{V_S+5}")
    a(f"v_mul_u32_u24 v{V_S+4}, 80, v{V_S+4}")
    a(f"v_add3_u32 v{V_S+1}, v{V_S+4}, v{V_S+5}, s43")
    a(f"s_lshl_b32 s42, s{S_W}, 6")
    a(f"v_add_u32 v{V_S+2}, s42, v{V_S+2}")
    a("s_waitcnt lgkmcnt(0)")
    a("s_barrier")
    if not dbg: stamp()
    XB = lambda u: V_K + 24 * (u % 4)
    PB = lambda u: 236 + 4 * (u % 2)
    RB = lambda u: 244 + 4 * (u % 3)
    q = []
    def lds(x, tag): a(x); q.append(tag)
    def wait(tag):
        idx = max(i for i, t in enumerate(q) if t == tag)
        n = len(q) - 1 - idx
        assert n <= 15
        a(f"s_waitcnt lgkmcnt({n})")
    def xreads(u):
        for j in range(1, 4):
            if u < 6:
                for b in range(2): lds(f"ds_read_b128 {vr(XB(u) + 8*(j-1) + 4*b, 4)}, v{T+j-1} offset:{((u*3 + j-1)*2 + b)*1024}", ("x", u))
            else:
                lds(f"ds_read_b128 {vr(XB(u) + 8*(j-1) + 4, 4)}, v{T+j-1} offset:{36864 + (j-1)*1024}", ("x", u))
    for u in range(7): lds(f"ds_read_b128 {vr(V_CI+4*u,4)}, v{T+4} offset:{LTAB(u)}", "l")
    xreads(0)
    wait("l")
    xreads(1)
    for u in range(7): a(f"v_pk_add_f32 {vr(V_CI+4*u,2)}, {vr(V_CI+4*u,2)}, {vr(V_CI+4*u+2,2)}")
    for u in range(7): a(f"v_add_f32 v{V_CI+4*u}, v{V_CI+4*u}, v{V_CI+4*u+1}")
    for u in range(7): a(f"v_rcp_f32 v{V_CI+4*u+2}, v{V_CI+4*u}")
    a(f"v_add_f32 v{V_CI+1}, v{V_CI}, v{V_CI+4}")
    for u in range(2, 7): a(f"v_add_f32 v{V_CI+1}, v{V_CI+1}, v{V_CI+4*u}")
    a(f"s_mov_b32 s36, {hex(f2u(THRESH))}")
    a(f"v_cmp_ngt_f32 vcc, s36, v{V_CI+1}")
    a(f"s_cmp_lg_u32 s{S_FB}, 0")
    a("s_cbranch_scc1 L_ok")
    a("s_cbranch_vccnz L_fallback")
    a.label("L_ok")
    def finish(u):
        wait(("r", u))
        a(f"s_movk_i32 s36, {u*4096}")
        a(f"buffer_store_dwordx4 {vr(RB(u),4)}, v{V_S+2}, {srd(SRD_O)}, s36 offen{(' '+sflags) if sflags else ''}")
    for u in range(7):
        wait(("x", u))
        if u >= 1: lds(f"ds_read_b128 {vr(RB(u-1),4)}, v{V_S+1} offset:{((u-1)%6)*6144}", ("r", u-1))
        if u + 2 < 7: xreads(u + 2)
        X = XB(u); O = V_OWN + 8*u
        if u == 6:
            for j in range(3):
                for r in range(4):
                    src = X + 8*j + 4 + r
                    if r < 3:
                        a(f"v_lshlrev_b32 v{X+8*j+2*r}, 16, v{src}")
                        a(f"v_and_b32 v{X+8*j+2*r+1}, 0xffff0000, v{src}")
                    else:
                        a(f"v_lshlrev_b32 v{X+8*j+6}, 16, v{src}")
                        a(f"v_and_b32 v{X+8*j+7}, 0xffff0000, v{src}")
        for r in range(0, 8, 2):
            a(f"v_pk_add_f32 {vr(O+r,2)}, {vr(O+r,2)}, {vr(X+r,2)}")
            a(f"v_pk_add_f32 {vr(X+8+r,2)}, {vr(X+8+r,2)}, {vr(X+16+r,2)}")
        for r in range(0, 8, 2): a(f"v_pk_add_f32 {vr(O+r,2)}, {vr(O+r,2)}, {vr(X+8+r,2)}")
        for r in range(0, 8, 2): a(f"v_pk_mul_f32 {vr(O+r,2)}, {vr(O+r,2)}, {vr(V_CI+4*u+2,2)} op_sel_hi:[1,0]")
        for r in range(4): a(f"v_cvt_pk_bf16_f32 v{PB(u)+r}, v{O+2*r}, v{O+2*r+1}")
        if u >= 1: finish(u - 1)
        for b in range(2): lds(f"ds_write_b64 v{V_S}, {vr(PB(u)+2*b,2)} offset:{(u%6)*6144 + 32*b}", ("w", u))
    lds(f"ds_read_b128 {vr(RB(6),4)}, v{V_S+1} offset:0", ("r", 6))
    finish(6)
    if diag:
        a("s_waitcnt vmcnt(0)")
        if dbg: stamp()
        a("s_waitcnt lgkmcnt(0)")
        a("s_mov_b32 s36, s46"); a("s_mov_b32 s37, s47"); a("s_mov_b32 s38, %d" % (256 if dbg else 0x100000)); a("s_mov_b32 s39, 0x20000")
        if dbg:
            a("s_and_b32 s40, s2, 127"); a(f"s_add_u32 s40, s40, s{S_W}"); a("s_cmp_lg_u32 s40, 0"); a("s_cbranch_scc1 L_end")
            a("s_lshr_b32 s40, s2, 7"); a("s_lshl_b32 s40, s40, 5")
        else:
            a("s_memrealtime s[80:81]"); a("s_memtime s[82:83]"); a("s_waitcnt lgkmcnt(0)")
            a("s_lshl_b32 s40, s2, 2"); a(f"s_add_u32 s40, s40, s{S_W}"); a("s_lshl_b32 s40, s40, 8")
        a(f"v_mov_b32 v4, s40")
        a(f"v_cmp_eq_u32 vcc, 0, v{L}")
        a("s_and_saveexec_b64 s[42:43], vcc")
        if dbg:
            for i in range(8):
                a(f"s_sub_u32 s41, s{S_STAMP+16+14}, s{S_STAMP+16}" if i == 0 else f"s_sub_u32 s41, s{S_STAMP+2*i}, s{S_STAMP}")
                a("v_mov_b32 v6, s41"); a(f"buffer_store_dword v6, v4, s[36:39], 0 offen offset:{4*i}"); a("s_nop 1")
        else:
            slots = [(S_STAMP+2*i, i) for i in range(8)] + [(80, 8)] + [(S_STAMP+16+2*i, 16+i) for i in range(8)] + [(82, 24)]
            for s, i in slots:
                a(f"v_mov_b32 v6, s{s}"); a(f"v_mov_b32 v7, s{s+1}"); a(f"buffer_store_dwordx2 v[6:7], v4, s[36:39], 0 offen offset:{8*i}"); a("s_nop 1")
    a.label("L_end")
    a("s_endpgm")
    iend = len(a.l)
    a.label("L_fallback")
    a("s_waitcnt vmcnt(0) lgkmcnt(0)")
    a("s_barrier")
    a(f"s_mov_b32 s{S_FB}, 1")
    a(f"s_mov_b32 s{SRD_K+2}, 0x10000")
    a(f"s_mov_b32 s{SRD_V+2}, 0x10000")
    a(f"s_mov_b32 s{S_KA}, 0")
    MX = V_OWN
    for u in range(7): a(f"v_mov_b32 v{MX+u}, 0xff800000")
    a.label("L_fb1")
    a(m0(0)); a(f"s_add_u32 s{S_KB}, s{S_KA}, 128")
    for p in range(4): a(dma(SRD_K, S_KA, p))
    a(m0(4096)); a("s_nop 0")
    for p in range(4): a(dma(SRD_K, S_KB, p))
    a("s_waitcnt vmcnt(0)")
    for j in range(8): a(kread(0, j))
    a("s_waitcnt lgkmcnt(0)")
    for u in range(7):
        for j in range(8): a(qk(u, j, zero=True))
        a("s_nop 7")
        for r in range(0, 8, 2): a(f"v_max3_f32 v{MX+u}, v{MX+u}, v{V_S+r}, v{V_S+r+1}")
    a(f"s_add_u32 s{S_KA}, s{S_KA}, 0x2000")
    a(f"s_cmp_lt_u32 s{S_KA}, 0x10000")
    a("s_cbranch_scc1 L_fb1")
    for sw in ("v_permlane16_swap_b32", "v_permlane32_swap_b32"):
        for u in range(7): a(f"v_mov_b32 v{MX+8+u}, v{MX+u}")
        a("s_nop 1")
        for u in range(7): a(f"{sw} v{MX+u}, v{MX+8+u}")
        a("s_nop 1")
        for u in range(7): a(f"v_max_f32 v{MX+u}, v{MX+u}, v{MX+8+u}")
    for u in range(7): a(f"ds_write_b32 v{T+3}, v{MX+u} offset:{LTAB(u)}")
    a("s_waitcnt lgkmcnt(0)")
    a("s_barrier")
    a(f"s_and_b32 s42, s{S_W}, 1"); a("s_lshl_b32 s42, s42, 9")
    a(f"s_lshr_b32 s43, s{S_W}, 1"); a(f"s_mul_i32 s43, s43, {REG}"); a("s_add_u32 s42, s42, s43")
    a(f"v_add_u32 v{T+4}, s42, v{T+4}")
    for h in range(2): a(f"ds_read_b128 {vr(V_S+4*h,4)}, v{T+4} offset:{256*h}")
    a("s_waitcnt lgkmcnt(0)")
    for h in range(2):
        a(f"v_max3_f32 v{V_KEEP+h}, v{V_S+4*h}, v{V_S+4*h+1}, v{V_S+4*h+2}")
        a(f"v_max_f32 v{V_KEEP+h}, v{V_KEEP+h}, v{V_S+4*h+3}")
    a("s_barrier")
    a("s_branch L_start")
    lin = a.l[:i1] + a.l[i0:i1] + a.l[i1:iend]
    bad = hz.check(lin) + hz.check(a.l[iend:])
    for b in bad: print("HAZARD", b, file=sys.stderr)
    a.raw('.section .rodata,"a"'); a.raw(".p2align 6"); a.raw(f".amdhsa_kernel {NAME}_kernel")
    a.raw("  .amdhsa_next_free_vgpr 512"); a.raw("  .amdhsa_next_free_sgpr 102"); a.raw("  .amdhsa_accum_offset 256")
    a.raw("  .amdhsa_group_segment_fixed_size 0"); a.raw("  .amdhsa_kernarg_size 48"); a.raw("  .amdhsa_user_sgpr_count 2")
    a.raw("  .amdhsa_user_sgpr_kernarg_segment_ptr 1"); a.raw("  .amdhsa_system_sgpr_workgroup_id_x 1"); a.raw(".end_amdhsa_kernel")
    return a.text()

if __name__ == "__main__":
    ap = argparse.ArgumentParser()
    ap.add_argument("-o", default=f"kB.s")
    ap.add_argument("--diag", action="store_true"); ap.add_argument("--dbg", action="store_true")
    ap.add_argument("--flags", default=""); ap.add_argument("--sflags", default="")
    args = ap.parse_args()
    open(args.o, "w").write(gen(diag=args.diag, dbg=args.dbg, flags=args.flags, sflags=args.sflags))
```

```python
import sys, struct, argparse
import hz
NAME = "standalone__gqa_softmax__near_ridge"
def f2u(x): return struct.unpack("<I", struct.pack("<f", x))[0]
class Asm:
    def __init__(self): self.l = []
    def __call__(self, s): self.l.append("    " + s)
    def label(self, s): self.l.append(s + ":")
    def c(self, s): self.l.append("    ; " + s)
    def raw(self, s): self.l.append(s)
    def text(self): return "\n".join(self.l) + "\n"
def vr(b, n=1): return f"v{b}" if n == 1 else f"v[{b}:{b+n-1}]"
def ar(b, n=1): return f"a{b}" if n == 1 else f"a[{b}:{b+n-1}]"
def srd(b): return f"s[{b}:{b+3}]"

V_LANE, V_LIN, V_KEEP, V_VOFF, V_AK, V_AV, V_T = 0, 1, 2, 4, 8, 10, 14
V_S, V_P, V_CI, V_OWN, V_O6, V_K, V_V, V_Q = 20, 28, 32, 60, 116, 140, 172, 224
A_O, A_L, A_ONE, A_Q = 0, 144, 172, 176
S_W = 3
SRD_Q, SRD_K, SRD_V, SRD_O = 12, 16, 20, 24
S_KA, S_KB, S_VA, S_VB = 28, 29, 30, 31
S_FB, S_WB, S_CNT = 33, 34, 35
S_STAMP = 48
REG = 40960
KB = lambda par: par * 8192
VB = lambda par: 16384 + par * 8192
XO = 32768
CI_AREA = 3 * REG + XO + 6144
LT0 = 39936
def LTAB(u): return u * 256 if u < 4 else REG + (u - 4) * 256
SCALE = (128 ** -0.5) * 1.4426950408889634
THRESH = 2.0 ** 40

def Qf(u, c):
    i = 4 * u + c
    return vr(V_Q + 4 * i, 4) if i < 8 else ar(A_Q + 4 * (i - 8), 4)
def Kf(j): return vr(V_K + 4 * j, 4)
def Vbase(dt, par): return V_V + 4 * dt if dt < 3 else V_V + 12 + 20 * par + 4 * (dt - 3)
def Of(u, dt):
    if dt < 2: return vr(V_OWN + 8 * u + 4 * dt, 4)
    if u == 6: return vr(V_O6 + 4 * (dt - 2), 4)
    return ar(A_O + 24 * u + 4 * (dt - 2), 4)
M16 = "v_mfma_f32_16x16x32_bf16"
def qk(u, j, zero=False):
    kt, c = j // 4, j % 4
    S = vr(V_S + 4 * kt, 4)
    cc = S if c else ("0" if zero else vr(V_CI + 4 * u, 4))
    return f"{M16} {S}, {Kf(j)}, {Qf(u, c)}, {cc}"
def pv(u, dt, par, first):
    o = Of(u, dt)
    return f"{M16} {o}, {vr(Vbase(dt, par), 4)}, {vr(V_P, 4)}, {'0' if first else o}"
def sm(u, first):
    o = ar(A_L + 4 * u, 4)
    return f"{M16} {o}, {ar(A_ONE, 4)}, {vr(V_P, 4)}, {'0' if first else o}"
def ex(e): return f"v_exp_f32 v{V_S+e}, v{V_S+e}"
def cv(i): return f"v_cvt_pk_bf16_f32 v{V_P+i}, v{V_S+2*i}, v{V_S+2*i+1}"
def kread(par, j, base=None, dst=None):
    kt, c = j // 4, j % 4
    off = (KB(par) if base is None else base) + (c >> 1) * 4096 + kt * 2048
    return f"ds_read_b128 {dst or Kf(j)}, v{V_AK + (c & 1)} offset:{off}"
def vread(par, dt):
    b = Vbase(dt, par)
    return [f"ds_read_b64_tr_b16 {vr(b + 2*h, 2)}, v{V_AV + (dt & 3)} offset:{VB(par) + (dt >> 2) * 4096 + h * 2048}" for h in range(2)]

def gen(diag=False, dbg=False, flags="", sflags="", direct_store=False, spin=None):
    a = Asm()
    fl = (" " + flags) if flags else ""
    def dma(s, soff, p): return f"buffer_load_dwordx4 v{V_VOFF+p}, {srd(s)}, s{soff} offen offset:{p*1024}{fl} lds"
    def m0(off): return f"s_add_u32 m0, s{S_WB}, {off}"
    nst = [0]
    def stamp():
        if diag:
            a(f"s_memrealtime s[{S_STAMP+2*nst[0]}:{S_STAMP+2*nst[0]+1}]")
            a(f"s_memtime s[{S_STAMP+16+2*nst[0]}:{S_STAMP+16+2*nst[0]+1}]")
            nst[0] += 1
    a.raw(open("cdna_kernels/%s.s.ref" % NAME).read().split("; Override launch")[0].rstrip())
    a.raw("; @launch grid=(256,1,1) block=(256,1,1) lds=163840")
    a.raw('.amdgcn_target "amdgcn-amd-amdhsa--gfx950"')
    a.raw(".text"); a.raw(f".globl {NAME}_kernel"); a.raw(".p2align 8"); a.raw(f".type {NAME}_kernel,@function")
    a.label(f"{NAME}_kernel")
    a("s_cmp_ge_u32 s2, 256")
    a("s_cbranch_scc1 L_end")
    a("s_load_dwordx8 s[4:11], s[0:1], 0")
    if diag:
        a("s_load_dwordx2 s[46:47], s[0:1], %d" % (32 if dbg else 40))
        stamp()
    T = V_T
    L = V_LANE
    a(f"v_lshrrev_b32 v{T}, 6, v0")
    a(f"v_and_b32 v{L}, 63, v0")
    a(f"v_readfirstlane_b32 s{S_W}, v{T}")
    a("s_and_b32 s36, s2, 7")
    a("s_lshr_b32 s37, s2, 3")
    a("s_lshl_b32 s36, s36, 5")
    a("s_add_u32 s36, s36, s37")
    a("s_lshr_b32 s37, s36, 2")
    a("s_mul_i32 s38, s36, 28672")
    a("s_lshl_b32 s39, s37, 18")
    a(f"s_lshl_b32 s40, s{S_W}, 16")
    a("s_add_u32 s39, s39, s40")
    a(f"s_mul_i32 s{S_WB}, s{S_W}, {REG}")
    a(f"s_mov_b32 s{S_FB}, 0")
    a(f"v_lshrrev_b32 v{T}, 4, v{L}")
    a(f"v_lshlrev_b32 v{T}, 1, v{T}")
    a(f"v_and_b32 v{T+1}, 7, v{L}")
    a(f"v_xor_b32 v{T}, v{T}, v{T+1}")
    a(f"v_lshlrev_b32 v{T}, 4, v{T}")
    a(f"v_lshrrev_b32 v{T+1}, 3, v{L}")
    a(f"v_lshl_add_u32 v{V_VOFF}, v{T+1}, 8, v{T}")
    a(f"v_xor_b32 v{V_VOFF+1}, 16, v{V_VOFF}")
    a(f"v_add_u32 v{V_VOFF+1}, 0x400, v{V_VOFF+1}")
    a(f"v_add_u32 v{V_VOFF+2}, 0x800, v{V_VOFF}")
    a(f"v_add_u32 v{V_VOFF+3}, 0x800, v{V_VOFF+1}")
    a("s_waitcnt lgkmcnt(0)")
    for base, src, off, num in ((SRD_Q, 4, 38, 28672), (SRD_K, 6, 39, 0x10000), (SRD_V, 8, 39, 0x10000), (SRD_O, 10, 38, 28672)):
        a(f"s_add_u32 s{base}, s{src}, s{off}")
        a(f"s_addc_u32 s{base+1}, s{src+1}, 0")
        a(f"s_mov_b32 s{base+2}, {num}")
        a(f"s_mov_b32 s{base+3}, 0x20000")
    a.label("L_start")
    a(f"s_lshl_b32 s40, s{S_W}, 13")
    a("s_add_u32 s41, s40, 128")
    a(m0(XO)); a(f"s_mov_b32 s{S_KA}, 0")
    for p in (0, 1): a(dma(SRD_Q, 40, p))
    a(m0(XO + 4096)); a(f"s_movk_i32 s{S_KB}, 128")
    for p in (0, 1): a(dma(SRD_Q, 41, p))
    a(f"s_cmp_eq_u32 s{S_W}, 3")
    a("s_cbranch_scc1 L_q1")
    for p in (2, 3): a(dma(SRD_Q, 41, p))
    a(m0(XO)); a("s_nop 0")
    for p in (2, 3): a(dma(SRD_Q, 40, p))
    a.label("L_q1")
    a(m0(KB(0))); a(f"s_lshr_b32 s{S_VA}, s{S_W}, 1")
    for p in range(4): a(dma(SRD_K, S_KA, p))
    a(m0(KB(0) + 4096)); a(f"s_lshl_b32 s{S_VA}, s{S_VA}, 7")
    for p in range(4): a(dma(SRD_K, S_KB, p))
    a(f"s_xor_b32 s{S_VB}, s{S_VA}, 128")
    a(f"v_and_b32 v{T}, 15, v{L}")
    a(f"v_and_b32 v{T+1}, 6, v{T}")
    a(f"v_lshrrev_b32 v{T+2}, 3, v{T}")
    a(f"v_or_b32 v{T+1}, v{T+1}, v{T+2}")
    a(f"v_lshrrev_b32 v{T+2}, 4, v{L}")
    a(f"v_lshlrev_b32 v{T+2}, 1, v{T+2}")
    a(f"v_xor_b32 v{T+1}, v{T+1}, v{T+2}")
    a(f"v_lshlrev_b32 v{T+1}, 4, v{T+1}")
    a(f"v_lshl_add_u32 v{T+1}, v{T}, 7, v{T+1}")
    a(f"v_add_u32 v{V_AK}, s{S_WB}, v{T+1}")
    a(f"v_xor_b32 v{V_AK+1}, 16, v{V_AK}")
    a(f"v_lshrrev_b32 v{T}, 2, v{L}")
    a(f"v_and_b32 v{T+1}, 6, v{T}")
    a(f"v_lshrrev_b32 v{T+2}, 3, v{T}")
    a(f"v_or_b32 v{T+1}, v{T+1}, v{T+2}")
    a(f"v_bfe_u32 v{T+2}, v{L}, 1, 1")
    a(f"v_xor_b32 v{T+1}, v{T+1}, v{T+2}")
    a(f"s_and_b32 s42, s{S_W}, 1")
    a("s_lshl_b32 s42, s42, 2")
    a(f"v_xor_b32 v{T+1}, s42, v{T+1}")
    a(f"v_lshlrev_b32 v{T+1}, 4, v{T+1}")
    a(f"v_lshl_add_u32 v{T+1}, v{T}, 7, v{T+1}")
    a(f"v_and_b32 v{T+2}, 1, v{L}")
    a(f"v_lshl_add_u32 v{T+1}, v{T+2}, 3, v{T+1}")
    a(f"v_add_u32 v{V_AV}, s{S_WB}, v{T+1}")
    for k in range(1, 4): a(f"v_xor_b32 v{V_AV+k}, {32*k}, v{V_AV}")
    a(f"v_lshlrev_b32 v{T}, 4, v{L}")
    a(f"v_add_u32 v{V_LIN}, s{S_WB}, v{T}")
    a(f"v_and_b32 v{T}, 3, v{L}")
    a(f"v_mov_b32 v{T+1}, 0x3f803f80")
    a(f"v_cmp_eq_u32 vcc, 0, v{T}")
    a(f"v_mov_b32 v{T+4}, {hex(f2u(SCALE))}")
    a(m0(VB(0)))
    a(f"v_cndmask_b32 v{T+1}, 0, v{T+1}, vcc")
    for r in range(4): a(f"v_accvgpr_write_b32 a{A_ONE+r}, v{T+1}")
    for p in range(4): a(dma(SRD_V, S_VA, p))
    a(m0(VB(0) + 4096)); a("s_nop 0")
    for p in range(4): a(dma(SRD_V, S_VB, p))
    for s in (S_KA, S_KB, S_VA, S_VB): a(f"s_add_u32 s{s}, s{s}, 0x2000")
    stamp()
    RAW, QP, TMP = V_V, V_OWN, V_O6
    a("s_waitcnt vmcnt(16)")
    stamp()
    for j in range(8): a(kread(0, j, base=XO, dst=vr(RAW + 4*j, 4)))
    k1 = [m0(KB(1))] + [dma(SRD_K, S_KA, p) for p in range(4)] + [m0(KB(1) + 4096)] + [dma(SRD_K, S_KB, p) for p in range(4)]
    for j in range(8):
        if j in (0, 4): a(k1.pop(0))
        a(f"s_waitcnt lgkmcnt({7-j})" if j < 4 else ("s_waitcnt lgkmcnt(0)" if j == 4 else "s_nop 0"))
        a(k1.pop(0))
        if j >= 4:
            a(f"ds_write_b128 v{V_LIN}, {vr(QP + 4*(j-4), 4)} offset:{XO + (j-4)*1024}")
        for r in range(4):
            a(f"v_lshlrev_b32 v{TMP+2*r}, 16, v{RAW+4*j+r}")
            a(f"v_and_b32 v{TMP+2*r+1}, 0xffff0000, v{RAW+4*j+r}")
        for r in range(4): a(f"v_pk_mul_f32 {vr(TMP+2*r,2)}, {vr(TMP+2*r,2)}, {vr(T+4,2)} op_sel_hi:[1,0]")
        for r in range(4): a(f"v_cvt_pk_bf16_f32 v{QP+4*j+r}, v{TMP+2*r}, v{TMP+2*r+1}")
        if j == 5:
            a("s_waitcnt vmcnt(14)")
            for jj in range(8): a(kread(0, jj))
    a("s_waitcnt lgkmcnt(2)")
    assert not k1
    a(f"s_cmp_eq_u32 s{S_W}, 3")
    a("s_cbranch_scc1 L_q2")
    for j in range(4, 8): a(f"ds_write_b128 v{V_LIN}, {vr(QP + 4*j, 4)} offset:{XO + j*1024}")
    a.label("L_q2")
    for c in range(4):
        for h in range(2):
            S = vr(V_S + 4*h, 4)
            a(f"{M16} {S}, {Kf(c)}, {vr(QP + 16*h + 4*c, 4)}, {S if c else '0'}")
    a(f"v_and_b32 v{T}, 15, v{L}")
    a(f"s_lshl_b32 s42, s{S_W}, 9")
    a(f"s_add_u32 s42, s42, {CI_AREA}")
    a(f"v_lshlrev_b32 v{T}, 4, v{T}")
    a(f"v_add_u32 v{T+1}, s42, v{T}")
    a(f"v_add_u32 v{T+5}, {CI_AREA}, v{T}")
    a("s_nop 2")
    for h in range(2):
        a(f"v_max3_f32 v{V_P+h}, v{V_S+4*h}, v{V_S+4*h+1}, v{V_S+4*h+2}")
    for h in range(2):
        a(f"v_max_f32 v{V_P+h}, v{V_P+h}, v{V_S+4*h+3}")
    for sw in ("v_permlane16_swap_b32", "v_permlane32_swap_b32"):
        for h in range(2): a(f"v_mov_b32 v{V_P+2+h}, v{V_P+h}")
        a("s_nop 1")
        for h in range(2): a(f"{sw} v{V_P+h}, v{V_P+2+h}")
        a("s_nop 0")
        for h in range(2): a(f"v_max_f32 v{V_P+h}, v{V_P+h}, v{V_P+2+h}")
    a(f"s_cmp_eq_u32 s{S_FB}, 0")
    a("s_cbranch_scc1 L_q3")
    for h in range(2): a(f"v_mov_b32 v{V_P+h}, v{V_KEEP+h}")
    a.label("L_q3")
    for h in range(2):
        for r in range(4): a(f"v_sub_f32 v{V_S+4*h+r}, 0, v{V_P+h}")
    a(f"ds_write_b128 v{T+1}, {vr(V_S,4)}")
    a(f"s_cmp_eq_u32 s{S_W}, 3")
    a("s_cbranch_scc1 L_q4")
    a(f"ds_write_b128 v{T+1}, {vr(V_S+4,4)} offset:256")
    a.label("L_q4")
    a(f"v_lshlrev_b32 v{T}, 4, v{L}")
    a(f"v_add_u32 v{T+2}, {2*REG}, v{T}")
    a(f"v_add_u32 v{T}, {XO}, v{T}")
    a(f"v_add_u32 v{T+2}, {XO}, v{T+2}")
    a("s_waitcnt lgkmcnt(0)")
    a("s_barrier")
    stamp()
    def qreads(u):
        w, h = u // 2, u % 2
        ad = T if w < 2 else T + 2
        out = [f"ds_read_b128 {vr(V_CI+4*u,4)}, v{T+5} offset:{u*256}"]
        out += [f"ds_read_b128 {Qf(u,c)}, v{ad} offset:{(w&1)*REG + h*4096 + c*1024}" for c in range(4)]
        return out
    for x in qreads(0) + qreads(1): a(x)
    v1 = [dma(SRD_V, S_VA, p) for p in range(4)] + [dma(SRD_V, S_VB, p) for p in range(4)]
    a(m0(VB(1)))
    a("s_waitcnt vmcnt(8) lgkmcnt(5)")
    for j in range(8):
        a(qk(0, j))
        for x in vread(0, j): a(x)
    for p in range(4): a(v1[p])
    a(m0(VB(1) + 4096)); a("s_nop 0")
    for p in range(4, 8): a(v1[p])
    for s in (S_KA, S_KB, S_VA, S_VB): a(f"s_add_u32 s{s}, s{s}, 0x2000")
    for e in range(5): a(ex(e))
    a(cv(0)); a(cv(1))
    stamp()

    def xw(u, dt):
        j, b = dt // 2, dt % 2
        return f"ds_write_b128 v{V_LIN}, {Of(u, dt)} offset:{((u*3 + j-1)*2 + b)*1024}"
    def lw(u): return f"ds_write_b32 v{T+3}, a{A_L+4*u} offset:{LTAB(u)}"

    def tile(t, kind):
        par = t & 1
        first, last = kind == "first", kind == "last"
        for u in range(7):
            ext = {g: [] for g in range(17)}
            post = {g: [] for g in range(17)}
            if not last:
                if u < 4:
                    s_, so, buf = ((SRD_K, S_KA, KB(par)), (SRD_K, S_KB, KB(par) + 4096), (SRD_V, S_VA, VB(par)), (SRD_V, S_VB, VB(par) + 4096))[u]
                    ext[4].append(m0(buf))
                    for p, g in enumerate((5, 7, 9, 10)): ext[g].append(dma(s_, so, p))
                if u == 4:
                    ext[4] += [f"s_add_u32 s{S_KA}, s{S_KA}, 0x2000", f"s_add_u32 s{S_KB}, s{S_KB}, 0x2000"]
                    ext[5] += [f"s_add_u32 s{S_VA}, s{S_VA}, 0x2000", f"s_add_u32 s{S_VB}, s{S_VB}, 0x2000"]
                    if kind == "even": ext[7] += [f"s_sub_u32 s{S_CNT}, s{S_CNT}, 1"]
                    if kind == "odd":
                        ext[7] += [f"s_cmp_eq_u32 s{S_CNT}, 1", f"s_cselect_b32 s{SRD_K+2}, 0, 0x10000"]
                        ext[8] += [f"s_mov_b32 s{SRD_V+2}, s{SRD_K+2}"]
                if u == 5:
                    ext[4].append("s_waitcnt vmcnt(24)")
                    for i, g in enumerate((5, 6, 8, 9)): ext[g] += [kread(par ^ 1, 2*i), kread(par ^ 1, 2*i+1)]
                    ext[7].append("s_waitcnt vmcnt(16)")
                    if first: ext[7].append("s_barrier")
                    ext[10] += vread(par ^ 1, 3)
                    post[16].append("s_waitcnt lgkmcnt(2)")
                if u == 6:
                    for g, dt in zip((4, 5, 6, 7, 8, 9, 10), (4, 5, 6, 7, 0, 1, 2)): ext[g] += vread(par ^ 1, dt)
                if first and u < 5:
                    q = qreads(u + 2)
                    ext[6] += q[0:2]; ext[8] += q[2:5]
                    post[16].append("s_waitcnt lgkmcnt(0)")
            if u == 0: ext[4].append("s_waitcnt lgkmcnt(0)")
            if last:
                if u == 0:
                    ext[5].append("s_waitcnt vmcnt(0)")
                    post[6] += [f"v_and_b32 v{T+3}, 15, v{L}", f"v_lshlrev_b32 v{T+3}, 4, v{T+3}"]
                    post[7] += [f"s_lshl_b32 s42, s{S_W}, 2", f"s_add_u32 s42, s42, {LT0}"]
                    post[8] += [f"v_add_u32 v{T+3}, s42, v{T+3}"]
                else:
                    for g, dt in zip((4, 5, 6, 7, 8, 9), range(2, 8)): ext[g].append(xw(u - 1, dt))
                    ext[10].append(lw(u - 1))
            fin = last and u == 6
            if first and u == 0: a("s_waitcnt lgkmcnt(15)")
            order = [2, 3, 4, 5, 6, 7, -1, 0, 1] if fin else [0, 1, 2, 3, 4, 5, 6, 7, -1]
            for g in range(17):
                if g < 8:
                    if not fin: a(qk((u + 1) % 7, g))
                else:
                    dt = order[g - 8]
                    a(pv(u, dt, par, first) if dt >= 0 else sm(u, first))
                for x in ext[g]: a(x)
                if g < 3: a(ex(5 + g))
                elif g == 3:
                    if fin: a("s_nop 0")
                    a(cv(2)); a(cv(3))
                elif not fin:
                    if 11 <= g <= 15: a(ex(g - 11))
                    elif g == 16: a(cv(0)); a(cv(1))
                for x in post[g]: a(x)

    a.c("tile 0"); tile(0, "first")
    a(f"s_mov_b32 s{S_CNT}, 3")
    stamp()
    a.raw(".p2align 6")
    a.label("L_loop")
    i0 = len(a.l)
    a.c("tile odd"); tile(1, "odd")
    a.c("tile even"); tile(2, "even")
    a(f"s_cmp_lg_u32 s{S_CNT}, 0")
    a("s_cbranch_scc1 L_loop")
    i1 = len(a.l)
    stamp()
    a.c("tile 7"); tile(7, "last")
    PK = V_K
    a("s_nop 1")
    for j in range(1, 4):
        for b in range(2):
            o = V_O6 + 4 * (2*j + b - 2)
            for h in range(2): a(f"v_cvt_pk_bf16_f32 v{PK + 4*(j-1) + 2*b + h}, v{o+2*h}, v{o+2*h+1}")
        a(f"ds_write_b128 v{V_LIN}, {vr(PK + 4*(j-1), 4)} offset:{36864 + (j-1)*1024}")
    a(lw(6))
    a(f"v_lshlrev_b32 v{T+4}, 4, v{L}")
    for j in range(1, 4):
        a(f"s_xor_b32 s42, s{S_W}, {j}")
        a(f"s_mul_i32 s{42+j}, s42, {REG}")
        a(f"v_add_u32 v{T+j-1}, s{42+j}, v{T+4}")
    a(f"v_and_b32 v{T+4}, 0xf0, v{T+4}")
    a(f"v_add_u32 v{T+4}, {LT0}, v{T+4}")
    a(f"v_and_b32 v{V_S+4}, 15, v{L}")
    a(f"v_mul_u32_u24 v{V_S+4}, 80, v{V_S+4}")
    a(f"v_lshrrev_b32 v{V_S+5}, 4, v{L}")
    a(f"v_lshl_add_u32 v{V_S+4}, v{V_S+5}, 3, v{V_S+4}")
    a(f"v_add_u32 v{V_S}, s43, v{V_S+4}")
    a(f"v_lshrrev_b32 v{V_S+4}, 2, v{L}")
    a(f"v_and_b32 v{V_S+5}, 3, v{L}")
    a(f"v_lshlrev_b32 v{V_S+5}, 4, v{V_S+5}")
    a(f"v_lshl_add_u32 v{V_S+2}, v{V_S+4}, 8, v{V_S+5}")
    a(f"v_mul_u32_u24 v{V_S+4}, 80, v{V_S+4}")
    a(f"v_add3_u32 v{V_S+1}, v{V_S+4}, v{V_S+5}, s43")
    a(f"s_lshl_b32 s42, s{S_W}, 6")
    a(f"v_add_u32 v{V_S+2}, s42, v{V_S+2}")
    a("s_waitcnt lgkmcnt(0)")
    a("s_barrier")
    if not dbg: stamp()
    XB = lambda u: V_K + 24 * (u % 4)
    PB = lambda u: 236 + 4 * (u % 2)
    RB = lambda u: 244 + 4 * (u % 3)
    q = []
    def lds(x, tag): a(x); q.append(tag)
    def wait(tag):
        idx = max(i for i, t in enumerate(q) if t == tag)
        n = len(q) - 1 - idx
        assert n <= 15
        a(f"s_waitcnt lgkmcnt({n})")
    def xreads(u):
        for j in range(1, 4):
            if u < 6:
                for b in range(2): lds(f"ds_read_b128 {vr(XB(u) + 8*(j-1) + 4*b, 4)}, v{T+j-1} offset:{((u*3 + j-1)*2 + b)*1024}", ("x", u))
            else:
                lds(f"ds_read_b128 {vr(XB(u) + 8*(j-1) + 4, 4)}, v{T+j-1} offset:{36864 + (j-1)*1024}", ("x", u))
    for u in range(7): lds(f"ds_read_b128 {vr(V_CI+4*u,4)}, v{T+4} offset:{LTAB(u)}", "l")
    xreads(0)
    wait("l")
    xreads(1)
    for u in range(7): a(f"v_pk_add_f32 {vr(V_CI+4*u,2)}, {vr(V_CI+4*u,2)}, {vr(V_CI+4*u+2,2)}")
    for u in range(7): a(f"v_add_f32 v{V_CI+4*u}, v{V_CI+4*u}, v{V_CI+4*u+1}")
    for u in range(7): a(f"v_rcp_f32 v{V_CI+4*u+2}, v{V_CI+4*u}")
    a(f"v_add_f32 v{V_CI+1}, v{V_CI}, v{V_CI+4}")
    for u in range(2, 7): a(f"v_add_f32 v{V_CI+1}, v{V_CI+1}, v{V_CI+4*u}")
    a(f"s_mov_b32 s36, {hex(f2u(THRESH))}")
    a(f"v_cmp_ngt_f32 vcc, s36, v{V_CI+1}")
    a(f"s_cmp_lg_u32 s{S_FB}, 0")
    a("s_cbranch_scc1 L_ok")
    a("s_cbranch_vccnz L_fallback")
    a.label("L_ok")
    def finish(u):
        wait(("r", u))
        a(f"s_movk_i32 s36, {u*4096}")
        a(f"buffer_store_dwordx4 {vr(RB(u),4)}, v{V_S+2}, {srd(SRD_O)}, s36 offen{(' '+sflags) if sflags else ''}")
    for u in range(7):
        wait(("x", u))
        if u >= 1: lds(f"ds_read_b128 {vr(RB(u-1),4)}, v{V_S+1} offset:{((u-1)%6)*6144}", ("r", u-1))
        if u + 2 < 7: xreads(u + 2)
        X = XB(u); O = V_OWN + 8*u
        if u == 6:
            for j in range(3):
                for r in range(4):
                    src = X + 8*j + 4 + r
                    if r < 3:
                        a(f"v_lshlrev_b32 v{X+8*j+2*r}, 16, v{src}")
                        a(f"v_and_b32 v{X+8*j+2*r+1}, 0xffff0000, v{src}")
                    else:
                        a(f"v_lshlrev_b32 v{X+8*j+6}, 16, v{src}")
                        a(f"v_and_b32 v{X+8*j+7}, 0xffff0000, v{src}")
        for r in range(0, 8, 2):
            a(f"v_pk_add_f32 {vr(O+r,2)}, {vr(O+r,2)}, {vr(X+r,2)}")
            a(f"v_pk_add_f32 {vr(X+8+r,2)}, {vr(X+8+r,2)}, {vr(X+16+r,2)}")
        for r in range(0, 8, 2): a(f"v_pk_add_f32 {vr(O+r,2)}, {vr(O+r,2)}, {vr(X+8+r,2)}")
        for r in range(0, 8, 2): a(f"v_pk_mul_f32 {vr(O+r,2)}, {vr(O+r,2)}, {vr(V_CI+4*u+2,2)} op_sel_hi:[1,0]")
        for r in range(4): a(f"v_cvt_pk_bf16_f32 v{PB(u)+r}, v{O+2*r}, v{O+2*r+1}")
        if u >= 1: finish(u - 1)
        for b in range(2): lds(f"ds_write_b64 v{V_S}, {vr(PB(u)+2*b,2)} offset:{(u%6)*6144 + 32*b}", ("w", u))
    lds(f"ds_read_b128 {vr(RB(6),4)}, v{V_S+1} offset:0", ("r", 6))
    finish(6)
    if diag and spin:
        i, j, mult = spin
        a("s_waitcnt vmcnt(0)")
        a("s_memrealtime s[80:81]"); a("s_waitcnt lgkmcnt(0)")
        sj = 80 if j == 8 else S_STAMP + 2*j
        a(f"s_sub_u32 s84, s{sj}, s{S_STAMP+2*i}")
        a(f"s_mul_i32 s84, s84, {mult}")
        a("s_min_u32 s84, s84, 20000")
        a.label("L_spin")
        a("s_memrealtime s[82:83]"); a("s_waitcnt lgkmcnt(0)")
        a("s_sub_u32 s85, s82, s80")
        a("s_cmp_lt_u32 s85, s84")
        a("s_cbranch_scc1 L_spin")
    elif diag:
        a("s_waitcnt vmcnt(0)")
        if dbg: stamp()
        a("s_waitcnt lgkmcnt(0)")
        a("s_mov_b32 s36, s46"); a("s_mov_b32 s37, s47"); a("s_mov_b32 s38, %d" % (256 if dbg else 0x100000)); a("s_mov_b32 s39, 0x20000")
        if dbg:
            a("s_and_b32 s40, s2, 127"); a(f"s_add_u32 s40, s40, s{S_W}"); a("s_cmp_lg_u32 s40, 0"); a("s_cbranch_scc1 L_end")
            a("s_lshr_b32 s40, s2, 7"); a("s_lshl_b32 s40, s40, 5")
        else:
            a("s_memrealtime s[80:81]"); a("s_memtime s[82:83]"); a("s_waitcnt lgkmcnt(0)")
            a("s_lshl_b32 s40, s2, 2"); a(f"s_add_u32 s40, s40, s{S_W}"); a("s_lshl_b32 s40, s40, 8")
        a(f"v_mov_b32 v4, s40")
        a(f"v_cmp_eq_u32 vcc, 0, v{L}")
        a("s_and_saveexec_b64 s[42:43], vcc")
        if dbg:
            for i in range(8):
                a(f"s_sub_u32 s41, s{S_STAMP+16+14}, s{S_STAMP+16}" if i == 0 else f"s_sub_u32 s41, s{S_STAMP+2*i}, s{S_STAMP}")
                a("v_mov_b32 v6, s41"); a(f"buffer_store_dword v6, v4, s[36:39], 0 offen offset:{4*i}"); a("s_nop 1")
        else:
            slots = [(S_STAMP+2*i, i) for i in range(8)] + [(80, 8)] + [(S_STAMP+16+2*i, 16+i) for i in range(8)] + [(82, 24)]
            for s, i in slots:
                a(f"v_mov_b32 v6, s{s}"); a(f"v_mov_b32 v7, s{s+1}"); a(f"buffer_store_dwordx2 v[6:7], v4, s[36:39], 0 offen offset:{8*i}"); a("s_nop 1")
    a.label("L_end")
    a("s_endpgm")
    iend = len(a.l)
    a.label("L_fallback")
    a("s_waitcnt vmcnt(0) lgkmcnt(0)")
    a("s_barrier")
    a(f"s_mov_b32 s{S_FB}, 1")
    a(f"s_mov_b32 s{SRD_K+2}, 0x10000")
    a(f"s_mov_b32 s{SRD_V+2}, 0x10000")
    a(f"s_mov_b32 s{S_KA}, 0")
    MX = V_OWN
    for u in range(7): a(f"v_mov_b32 v{MX+u}, 0xff800000")
    a.label("L_fb1")
    a(m0(0)); a(f"s_add_u32 s{S_KB}, s{S_KA}, 128")
    for p in range(4): a(dma(SRD_K, S_KA, p))
    a(m0(4096)); a("s_nop 0")
    for p in range(4): a(dma(SRD_K, S_KB, p))
    a("s_waitcnt vmcnt(0)")
    for j in range(8): a(kread(0, j))
    a("s_waitcnt lgkmcnt(0)")
    for u in range(7):
        for j in range(8): a(qk(u, j, zero=True))
        a("s_nop 7")
        for r in range(0, 8, 2): a(f"v_max3_f32 v{MX+u}, v{MX+u}, v{V_S+r}, v{V_S+r+1}")
    a(f"s_add_u32 s{S_KA}, s{S_KA}, 0x2000")
    a(f"s_cmp_lt_u32 s{S_KA}, 0x10000")
    a("s_cbranch_scc1 L_fb1")
    for sw in ("v_permlane16_swap_b32", "v_permlane32_swap_b32"):
        for u in range(7): a(f"v_mov_b32 v{MX+8+u}, v{MX+u}")
        a("s_nop 1")
        for u in range(7): a(f"{sw} v{MX+u}, v{MX+8+u}")
        a("s_nop 1")
        for u in range(7): a(f"v_max_f32 v{MX+u}, v{MX+u}, v{MX+8+u}")
    for u in range(7): a(f"ds_write_b32 v{T+3}, v{MX+u} offset:{LTAB(u)}")
    a("s_waitcnt lgkmcnt(0)")
    a("s_barrier")
    a(f"s_and_b32 s42, s{S_W}, 1"); a("s_lshl_b32 s42, s42, 9")
    a(f"s_lshr_b32 s43, s{S_W}, 1"); a(f"s_mul_i32 s43, s43, {REG}"); a("s_add_u32 s42, s42, s43")
    a(f"v_add_u32 v{T+4}, s42, v{T+4}")
    for h in range(2): a(f"ds_read_b128 {vr(V_S+4*h,4)}, v{T+4} offset:{256*h}")
    a("s_waitcnt lgkmcnt(0)")
    for h in range(2):
        a(f"v_max3_f32 v{V_KEEP+h}, v{V_S+4*h}, v{V_S+4*h+1}, v{V_S+4*h+2}")
        a(f"v_max_f32 v{V_KEEP+h}, v{V_KEEP+h}, v{V_S+4*h+3}")
    a("s_barrier")
    a("s_branch L_start")
    lin = a.l[:i1] + a.l[i0:i1] + a.l[i1:iend]
    bad = hz.check(lin) + hz.check(a.l[iend:])
    for b in bad: print("HAZARD", b, file=sys.stderr)
    a.raw('.section .rodata,"a"'); a.raw(".p2align 6"); a.raw(f".amdhsa_kernel {NAME}_kernel")
    a.raw("  .amdhsa_next_free_vgpr 512"); a.raw("  .amdhsa_next_free_sgpr 102"); a.raw("  .amdhsa_accum_offset 256")
    a.raw("  .amdhsa_group_segment_fixed_size 0"); a.raw("  .amdhsa_kernarg_size 48"); a.raw("  .amdhsa_user_sgpr_count 2")
    a.raw("  .amdhsa_user_sgpr_kernarg_segment_ptr 1"); a.raw("  .amdhsa_system_sgpr_workgroup_id_x 1"); a.raw(".end_amdhsa_kernel")
    return a.text()

if __name__ == "__main__":
    ap = argparse.ArgumentParser()
    ap.add_argument("-o", default=f"kB.s")
    ap.add_argument("--diag", action="store_true"); ap.add_argument("--dbg", action="store_true")
    ap.add_argument("--spin", default=None); ap.add_argument("--flags", default=""); ap.add_argument("--sflags", default="")
    args = ap.parse_args()
    open(args.o, "w").write(gen(diag=args.diag, dbg=args.dbg, flags=args.flags, sflags=args.sflags, spin=tuple(map(int, args.spin.split(','))) if args.spin else None))
```

```python
import sys, struct, argparse
import hz
NAME = "standalone__gqa_softmax__near_ridge"
def f2u(x): return struct.unpack("<I", struct.pack("<f", x))[0]
def vr(b, n=1): return f"v{b}" if n == 1 else f"v[{b}:{b+n-1}]"
def ar(b, n=1): return f"a{b}" if n == 1 else f"a[{b}:{b+n-1}]"
def srd(b): return f"s[{b}:{b+3}]"

V_LANE, V_LIN, V_KEEP, V_VOFF, V_AK, V_AV, V_T = 0, 1, 2, 4, 8, 10, 14
V_S, V_P, V_CI, V_OWN, V_O6, V_K, V_V, V_Q = 20, 28, 32, 60, 116, 140, 172, 224
A_O, A_L, A_ONE, A_Q = 0, 144, 172, 176
S_W = 3
SRD_Q, SRD_K, SRD_V, SRD_O = 12, 16, 20, 24
S_MK0, S_MK1, S_MV0, S_MV1 = 28, 29, 30, 31
S_Y, S_FB, S_WB, S_CNT = 32, 33, 34, 35
S_SO, S_Y0 = 44, 45
S_STAMP = 48
REG = 40960
KB = lambda par: par * 8192
VB = lambda par: 16384 + par * 8192
XO = 32768
XOFF = XO
S_FBM = 88
CI_AREA = 3 * REG + XO + 6144
LT0 = 39936
def LTAB(u): return u * 256 if u < 4 else REG + (u - 4) * 256
SCALE = (128 ** -0.5) * 1.4426950408889634
THRESH = 2.0 ** 40
M16 = "v_mfma_f32_16x16x32_bf16"

def Qf(u, c):
    i = 4 * u + c
    return vr(V_Q + 4 * i, 4) if i < 8 else ar(A_Q + 4 * (i - 8), 4)
def Kf(j): return vr(V_K + 4 * j, 4)
def Vbase(dt, par): return V_V + 4 * dt if dt < 3 else V_V + 12 + 20 * par + 4 * (dt - 3)
def Of(u, dt):
    if dt < 2: return vr(V_OWN + 8 * u + 4 * dt, 4)
    if u == 6: return vr(V_O6 + 4 * (dt - 2), 4)
    return ar(A_O + 24 * u + 4 * (dt - 2), 4)
def qk(u, j, zero=False):
    kt, c = j // 4, j % 4
    S = vr(V_S + 4 * kt, 4)
    cc = S if c else ("0" if zero else vr(V_CI + 4 * u, 4))
    return f"{M16} {S}, {Kf(j)}, {Qf(u, c)}, {cc}"
def pv(u, dt, par, first):
    o = Of(u, dt)
    return f"{M16} {o}, {vr(Vbase(dt, par), 4)}, {vr(V_P, 4)}, {'0' if first else o}"
def sm(u, first):
    o = ar(A_L + 4 * u, 4)
    return f"{M16} {o}, {ar(A_ONE, 4)}, {vr(V_P, 4)}, {'0' if first else o}"
def ex(e): return f"v_exp_f32 v{V_S+e}, v{V_S+e}"
def cv(i): return f"v_cvt_pk_bf16_f32 v{V_P+i}, v{V_S+2*i}, v{V_S+2*i+1}"
def kread(par, j, base=None, dst=None):
    kt, c = j // 4, j % 4
    off = (KB(par) if base is None else base) + (c >> 1) * 4096 + kt * 2048
    return f"ds_read_b128 {dst or Kf(j)}, v{V_AK + (c & 1)} offset:{off}"
def vread(par, dt):
    b = Vbase(dt, par)
    return [f"ds_read_b64_tr_b16 {vr(b + 2*h, 2)}, v{V_AV + (dt & 3)} offset:{VB(par) + (dt >> 2) * 4096 + h * 2048}" for h in range(2)]

class Gen:
    def __init__(self):
        self.l = []; self.vq = []; self.lq = []; self.ldone = 0
    def __call__(self, s):
        if isinstance(s, tuple):
            if s[0] == "L": self.l.append("    " + s[1]); self.lq.append(s[2])
            elif s[0] == "V":
                tg = s[2]
                if isinstance(tg, tuple) and tg[1] >= 2:
                    kv, x, hf = tg
                    need = ([("k", x-2)] if x > 2 else ["k0a", "k0b"]) if kv == "K" else [("v", x-2, dt) for dt in range(4*hf, 4*hf+4)]
                    for n in need:
                        idx = [i for i, t in enumerate(self.lq) if t == n]
                        assert idx and max(idx) < self.ldone, ("LDS WAR", tg, n)
                self.l.append("    " + s[1]); self.vq.append(s[2])
            elif s[0] == "W":
                parts = []
                for q, tags, nm, mx in ((self.vq, s[1], "vmcnt", 63), (self.lq, s[2], "lgkmcnt", 15)):
                    if tags is None: continue
                    if tags == "all": n = 0
                    else:
                        idx = [i for i, t in enumerate(q) if t in tags]
                        assert idx, ("no such tag", tags)
                        n = len(q) - 1 - max(idx)
                    if nm == "lgkmcnt": self.ldone = max(self.ldone, len(q) - min(n, mx))
                    parts.append(f"{nm}({min(n, mx)})")
                self.l.append("    s_waitcnt " + " ".join(parts))
        else:
            assert not (s.startswith("ds_") or s.startswith("buffer_")) or self.free, s
            self.l.append("    " + s)
    free = False
    def label(self, s): self.l.append(s + ":")
    def c(self, s): self.l.append("    ; " + s)
    def raw(self, s): self.l.append(s)

def gen(diag=False, dbg=False, flags="", sflags="sc1", spin=None, rot="pair", n0=12, mix=1, vsch=(2, 2, 2, 2, 0), t0extra=0, pace=2, bars=(), fine='c', burst=8):
    a = Gen()
    fl = (" " + flags) if flags else ""
    def dma(s, soff, p, tag): return ("V", f"buffer_load_dwordx4 v{V_VOFF+p}, {srd(s)}, s{soff} offen offset:{p*1024}{fl} lds", tag)
    def m0(off): return f"s_add_u32 m0, s{S_WB}, {off}"
    def Ls(texts, tag): return [("L", t, tag) for t in texts]
    nst = [0]
    def stamp(kind="c"):
        if diag and kind in fine and nst[0] < 8:
            a(f"s_memrealtime s[{S_STAMP+2*nst[0]}:{S_STAMP+2*nst[0]+1}]")
            a(f"s_memtime s[{S_STAMP+16+2*nst[0]}:{S_STAMP+16+2*nst[0]+1}]")
            nst[0] += 1
    GROUPS = (("V", 1), ("K", 0), ("K", 1), ("V", 0))
    stream = []
    for x in range(1, 10):
        for gi, (kv, hf) in enumerate(GROUPS):
            s_, buf, mk = (SRD_K, KB(x & 1), S_MK0 + hf) if kv == "K" else (SRD_V, VB(x & 1), S_MV0 + hf)
            for p in range(4):
                pre = []
                if p == 0:
                    if gi == 0: pre += [("Y", x)]
                    pre += [m0(buf + hf * 4096), f"s_xor_b32 s{S_SO}, s{S_Y}, s{mk}"]
                stream.append((pre, dma(s_, S_SO, p, (kv, x, hf)), x))
    spos = [0]
    def expand(pre):
        out = []
        for y in pre:
            if isinstance(y, tuple) and y[0] == "Y":
                out += [f"s_add_u32 s{S_Y}, s{S_Y}, 0x2000", f"s_and_b32 s{S_Y}, s{S_Y}, 0xffff"]
                if y[1] % 2 == 0 and y[1] >= 4:
                    out += [f"s_cmp_eq_u32 s{S_Y}, s{S_Y0}", f"s_cselect_b32 s{SRD_K+2}, 0, 0x10000", f"s_mov_b32 s{SRD_V+2}, s{SRD_K+2}"]
            else: out.append(y)
        return out
    def nextpre():
        pre, d, x = stream[spos[0]]
        stream[spos[0]] = ([], d, x)
        return expand(pre)
    def nextdma():
        pre, d, x = stream[spos[0]]
        spos[0] += 1
        out = expand(pre)
        return out + [d]

    a.raw(open("cdna_kernels/%s.s.ref" % NAME).read().split("; Override launch")[0].rstrip())
    a.raw("; @launch grid=(256,1,1) block=(256,1,1) lds=163840")
    a.raw('.amdgcn_target "amdgcn-amd-amdhsa--gfx950"')
    a.raw(".text"); a.raw(f".globl {NAME}_kernel"); a.raw(".p2align 8"); a.raw(f".type {NAME}_kernel,@function")
    a.label(f"{NAME}_kernel")
    a("s_cmp_ge_u32 s2, 256")
    a("s_cbranch_scc1 L_end")
    a("s_load_dwordx8 s[4:11], s[0:1], 0")
    if diag:
        a("s_load_dwordx2 s[46:47], s[0:1], %d" % (32 if dbg else 40))
        stamp(fine[0])
    T = V_T; L = V_LANE
    a(f"v_lshrrev_b32 v{T}, 6, v0")
    a(f"v_and_b32 v{L}, 63, v0")
    a(f"v_readfirstlane_b32 s{S_W}, v{T}")
    a("s_and_b32 s36, s2, 7")
    a("s_lshr_b32 s37, s2, 3")
    a("s_lshl_b32 s36, s36, 5")
    a("s_add_u32 s36, s36, s37")
    a("s_lshr_b32 s37, s36, 2")
    a("s_mul_i32 s38, s36, 28672")
    a("s_lshl_b32 s39, s37, 18")
    a(f"s_lshl_b32 s40, s{S_W}, 16")
    a("s_add_u32 s39, s39, s40")
    a(f"s_mul_i32 s{S_WB}, s{S_W}, {REG}")
    a(f"s_mov_b32 s{S_FB}, 0")
    a(f"s_mov_b64 s[{S_FBM}:{S_FBM+1}], 0")
    rm, sm_ = {"none": (0, 0), "pair": (1, 1), "pair0": (0, 1), "quad": (3, 3), "quad0": (0, 3), "pair7": (7, 1), "none7": (7, 0)}[rot]
    a(f"s_and_b32 s{S_Y0}, s37, {rm}"); a(f"s_lshl_b32 s{S_Y0}, s{S_Y0}, 13")
    a(f"s_and_b32 s{S_MK0}, s36, {sm_}"); a(f"s_lshl_b32 s{S_MK0}, s{S_MK0}, 13")
    a(f"s_or_b32 s{S_MK1}, s{S_MK0}, 128")
    a(f"s_lshr_b32 s{S_MV0}, s{S_W}, 1"); a(f"s_lshl_b32 s{S_MV0}, s{S_MV0}, 7"); a(f"s_or_b32 s{S_MV0}, s{S_MV0}, s{S_MK0}")
    a(f"s_xor_b32 s{S_MV1}, s{S_MV0}, 128")
    a(f"v_lshrrev_b32 v{T}, 4, v{L}")
    a(f"v_lshlrev_b32 v{T}, 1, v{T}")
    a(f"v_and_b32 v{T+1}, 7, v{L}")
    a(f"v_xor_b32 v{T}, v{T}, v{T+1}")
    a(f"v_lshlrev_b32 v{T}, 4, v{T}")
    a(f"v_lshrrev_b32 v{T+1}, 3, v{L}")
    a(f"v_lshl_add_u32 v{V_VOFF}, v{T+1}, 8, v{T}")
    a(f"v_xor_b32 v{V_VOFF+1}, 16, v{V_VOFF}")
    a(f"v_add_u32 v{V_VOFF+1}, 0x400, v{V_VOFF+1}")
    a(f"v_add_u32 v{V_VOFF+2}, 0x800, v{V_VOFF}")
    a(f"v_add_u32 v{V_VOFF+3}, 0x800, v{V_VOFF+1}")
    a(f"v_and_b32 v{T}, 15, v{L}")
    a(f"v_and_b32 v{T+1}, 6, v{T}")
    a(f"v_lshrrev_b32 v{T+2}, 3, v{T}")
    a(f"v_or_b32 v{T+1}, v{T+1}, v{T+2}")
    a(f"v_lshrrev_b32 v{T+2}, 4, v{L}")
    a(f"v_lshlrev_b32 v{T+2}, 1, v{T+2}")
    a(f"v_xor_b32 v{T+1}, v{T+1}, v{T+2}")
    a(f"v_lshlrev_b32 v{T+1}, 4, v{T+1}")
    a(f"v_lshl_add_u32 v{T+1}, v{T}, 7, v{T+1}")
    a(f"v_add_u32 v{V_AK}, s{S_WB}, v{T+1}")
    a(f"v_xor_b32 v{V_AK+1}, 16, v{V_AK}")
    a(f"v_lshlrev_b32 v{T}, 4, v{L}")
    a(f"v_add_u32 v{V_LIN}, s{S_WB}, v{T}")
    a(f"v_mov_b32 v{T+4}, {hex(f2u(SCALE))}")
    a(f"v_lshrrev_b32 v{T}, 2, v{L}")
    a(f"v_and_b32 v{T+1}, 6, v{T}")
    a(f"v_lshrrev_b32 v{T+2}, 3, v{T}")
    a(f"v_or_b32 v{T+1}, v{T+1}, v{T+2}")
    a(f"v_bfe_u32 v{T+2}, v{L}, 1, 1")
    a(f"v_xor_b32 v{T+1}, v{T+1}, v{T+2}")
    a(f"s_and_b32 s42, s{S_W}, 1")
    a("s_lshl_b32 s42, s42, 2")
    a(f"v_xor_b32 v{T+1}, s42, v{T+1}")
    a(f"v_lshlrev_b32 v{T+1}, 4, v{T+1}")
    a(f"v_lshl_add_u32 v{T+1}, v{T}, 7, v{T+1}")
    a(f"v_and_b32 v{T+2}, 1, v{L}")
    a(f"v_lshl_add_u32 v{T+1}, v{T+2}, 3, v{T+1}")
    a(f"v_add_u32 v{V_AV}, s{S_WB}, v{T+1}")
    for k in range(1, 4): a(f"v_xor_b32 v{V_AV+k}, {32*k}, v{V_AV}")
    a("s_waitcnt lgkmcnt(0)")
    for base, src, off, num in ((SRD_Q, 4, 38, 28672), (SRD_K, 6, 39, 0x10000), (SRD_V, 8, 39, 0x10000), (SRD_O, 10, 38, 28672)):
        a(f"s_add_u32 s{base}, s{src}, s{off}")
        a(f"s_addc_u32 s{base+1}, s{src+1}, 0")
        a(f"s_mov_b32 s{base+2}, {num}")
        a(f"s_mov_b32 s{base+3}, 0x20000")
    a.label("L_start")
    a(f"v_mov_b32 v{T+4}, {hex(f2u(SCALE))}")
    a(f"s_lshl_b32 s40, s{S_W}, 13")
    a("s_add_u32 s41, s40, 128")
    a(f"s_mov_b32 s{S_Y}, s{S_Y0}")
    a(f"s_xor_b32 s42, s{S_Y}, s{S_MK0}")
    a(f"s_xor_b32 s43, s{S_Y}, s{S_MK1}")
    a(f"s_cmp_eq_u32 s{S_W}, 3")
    a(f"s_cselect_b32 s36, 0x4000, 0")
    a(f"s_add_u32 s36, s36, s{S_WB}")
    a(f"s_add_u32 s36, s36, {XO}")
    qa = [(m0(XO), SRD_Q, 40, (0, 1), "Qa"), (m0(XO + 4096), SRD_Q, 41, (0, 1), "Qa"),
          ("s_add_u32 m0, s36, 4096", SRD_Q, 41, (2, 3), "Qb"), ("s_mov_b32 m0, s36", SRD_Q, 40, (2, 3), "Qb")]
    ka = [(m0(KB(0)), SRD_K, 42, (0, 1), "K0a"), (m0(KB(0) + 4096), SRD_K, 43, (0, 1), "K0a"),
          (m0(KB(0) + 4096), SRD_K, 43, (2, 3), "K0b"), (m0(KB(0)), SRD_K, 42, (2, 3), "K0b")]
    seq = {0: qa + ka, 1: qa[:2] + ka[:2] + qa[2:] + ka[2:], 2: ka[:2] + qa + ka[2:]}[mix]
    last = None
    late = []
    for i_, (mm, s_, so, ps, tag) in enumerate(seq):
        if i_ >= burst:
            late += [(mm, dma(s_, so, p, tag)) for p in ps]
            continue
        if mm != last: a(mm); a("s_nop 0"); last = mm
        for p in ps: a(dma(s_, so, p, tag))
    RAW, QP, TMP = V_V, V_OWN, V_O6
    left = [n0]
    def more(n=1):
        for _ in range(n):
            if left[0] > 0:
                for x in nextdma(): a(x)
                left[0] -= 1
    v0 = [0]
    def v0dma(n=1):
        for _ in range(n):
            if late:
                mm, d = late.pop(0)
                a(mm); a("s_nop 0"); a(d)
                continue
            j = v0[0]
            if j >= 8: return
            if j % 4 == 0:
                a(m0(VB(0) + (j // 4) * 4096)); a(f"s_xor_b32 s{S_SO}, s{S_Y}, s{S_MV0 + j // 4}")
            a(dma(SRD_V, S_SO, j % 4, ("V", 0, j // 4)))
            v0[0] += 1
    def qoff(h, c): return XO + (c >> 1) * 4096 + h * 2048 + (c & 1) * 1024
    a(f"v_and_b32 v{T}, 15, v{L}")
    a(f"s_lshl_b32 s90, s{S_W}, 9")
    a(f"s_add_u32 s90, s90, {CI_AREA}")
    a(f"v_lshlrev_b32 v{T}, 4, v{T}")
    a(f"v_add_u32 v{T+1}, s90, v{T}")
    a(f"v_add_u32 v{T+5}, {CI_AREA}, v{T}")
    a(f"s_sub_u32 s91, s36, {XO}")
    a(f"s_mov_b32 s92, {XO}")
    a(f"v_lshlrev_b32 v{T}, 4, v{L}")
    a(f"v_add_u32 v{T+3}, s91, v{T}")
    def prescale(h, hook):
        for c in range(4): a(("L", kread(0, 4*h + c, base=XO, dst=vr(RAW + 16*h + 4*c, 4)), ("raw", h, c)))
        hook(-1)
        for c in range(4):
            j = 4*h + c
            a(("W", None, [("raw", h, c if c == 0 else 3)]) if c < 2 else "s_nop 0")
            if c >= 1: a(("L", f"ds_write_b128 v{V_LIN if h == 0 else T+3}, {vr(QP + 4*(j-1), 4)} offset:{qoff(h, c-1)}", "qw"))
            hook(c)
            for r in range(4):
                a(f"v_lshlrev_b32 v{TMP+2*r}, 16, v{RAW+4*j+r}")
                a(f"v_and_b32 v{TMP+2*r+1}, 0xffff0000, v{RAW+4*j+r}")
            for r in range(4): a(f"v_pk_mul_f32 {vr(TMP+2*r,2)}, {vr(TMP+2*r,2)}, {vr(T+4,2)} op_sel_hi:[1,0]")
            for r in range(4): a(f"v_cvt_pk_bf16_f32 v{QP+4*j+r}, v{TMP+2*r}, v{TMP+2*r+1}")
    def prepass(h, hook, fill):
        S = vr(V_S + 4*h, 4); M = V_P + 2*h
        for c in range(4):
            a(f"{M16} {S}, {Kf(c)}, {vr(QP + 16*h + 4*c, 4)}, {S if c else '0'}")
            if c == 0: a(("L", f"ds_write_b128 v{V_LIN if h == 0 else T+3}, {vr(QP + 16*h + 12, 4)} offset:{qoff(h, 3)}", "qw"))
        n = len(a.l); hook(); n = len(a.l) - n
        while n < 8:
            if fill: a(fill.pop(0)); n += 1
            else: a(f"s_nop {7-n}"); n = 8
        a(f"v_max3_f32 v{M}, v{V_S+4*h}, v{V_S+4*h+1}, v{V_S+4*h+2}")
        a(f"v_max_f32 v{M}, v{M}, v{V_S+4*h+3}")
        for sw in ("v_permlane16_swap_b32", "v_permlane32_swap_b32"):
            a(f"v_mov_b32 v{M+1}, v{M}")
            a("s_nop 1")
            a(f"{sw} v{M}, v{M+1}")
            a("s_nop 0")
            a(f"v_max_f32 v{M}, v{M}, v{M+1}")
        a(f"v_cndmask_b32 v{M}, v{M}, v{V_KEEP+h}, s[{S_FBM}:{S_FBM+1}]")
        for r in range(4): a(f"v_sub_f32 v{V_S+4*h+r}, 0, v{M}")
        a(("L", f"ds_write_b128 v{T+1}, {S} offset:{256*h}", "ciw"))
    stamp("p")
    a(("W", ["Qa"], None))
    stamp(); stamp("p")
    def hk_a(c):
        if c == -1: v0dma(vsch[4])
        if c == 2 and mix:
            a(("W", ["K0a"], None))
            for jj in range(4): a(("L", kread(0, jj), "k0a"))
    prescale(0, hk_a)
    fill = [f"v_and_b32 v{T}, 3, v{L}", f"v_mov_b32 v{T+2}, 0x3f803f80", f"v_cmp_eq_u32 vcc, 0, v{T}", "s_nop 0", f"v_lshl_add_u32 v{T}, v{L}, 4, s92",
            f"v_cndmask_b32 v{T+2}, 0, v{T+2}, vcc"] + [f"v_accvgpr_write_b32 a{A_ONE+r}, v{T+2}" for r in range(4)] + \
           [f"v_add_u32 v{T+2}, {2*REG}, v{T}"]
    if mix:
        a(("W", None, ["k0a"]))
        prepass(0, lambda: v0dma(vsch[0]), fill)
    for x in fill: a(x)
    fill = []
    a("s_nop 0")
    v0dma(vsch[1])
    stamp("p")
    a(("W", ["Qb"], None))
    stamp("p")
    def hk_b(c):
        if c == -1: v0dma(vsch[2])
        if c == 2:
            v0dma(vsch[3])
            if not mix:
                a(("W", ["K0a"], None))
                for jj in range(4): a(("L", kread(0, jj), "k0a"))
    prescale(1, hk_b)
    stamp("p")
    if not mix:
        a(("W", None, ["k0a"]))
        prepass(0, lambda: None, fill)
    else: a("s_nop 0")
    prepass(1, lambda: (v0dma(16), more(pace)), fill)
    v0dma(8)
    stamp(); stamp("p")
    a(("W", None, "all"))
    a("s_barrier")
    stamp(); stamp("p")
    def qreads(u):
        w, h = u // 2, u % 2
        ad = T if w < 2 else T + 2
        out = [f"ds_read_b128 {vr(V_CI+4*u,4)}, v{T+5} offset:{u*256}"]
        out += [f"ds_read_b128 {Qf(u,c)}, v{ad} offset:{(w&1)*REG + qoff(h, c) - XOFF}" for c in range(4)]
        return Ls(out, ("q", u))
    for x in qreads(0): a(x)
    a(("W", ["K0b"], None))
    for jj in range(4, 8): a(("L", kread(0, jj), "k0b"))
    for x in qreads(1): a(x)
    a(("W", None, [("q", 0)]))
    for j in range(8):
        if j == 4: a(("W", None, ["k0b"]))
        a(qk(0, j))
        if j in (0, 7): more()
    more(64)
    a(("W", [("V", 0, 0)], None))
    for dt in range(4):
        for x in Ls(vread(0, dt), ("v", 0, dt)): a(x)
    for e in range(5): a(ex(e))
    a(cv(0)); a(cv(1))
    stamp()

    def xw(u, dt):
        j, b = dt // 2, dt % 2
        return ("L", f"ds_write_b128 v{V_LIN}, {Of(u, dt)} offset:{((u*3 + j-1)*2 + b)*1024}", "xw")
    def lw(u): return ("L", f"ds_write_b32 v{T+3}, a{A_L+4*u} offset:{LTAB(u)}", "xw")

    def tile(t):
        par = t & 1; nx = par ^ 1
        first, last = t == 0, t == 7
        for u in range(7):
            ext = {g: [] for g in range(17)}
            post = {g: [] for g in range(17)}
            dgaps = []; sgaps = []
            if not last:
                dgaps, sgaps = {0: ((5, 8, 10), (4, 6, 7, 9)), 1: ((5, 10), (4, 6, 7, 8, 9)), 2: ((5, 8, 10), (4, 6, 7, 9)), 3: ((5, 10), (4, 6, 7, 8, 9)),
                                4: ((5, 10), (4,)), 5: ((5, 10), (4,)), 6: ((5, 7), (4,))}[u]
                if u == 3: ext[9].append(("W", [("V", t+1, 1)], None)); sgaps = (4, 6, 7, 8)
                if u == 4:
                    for g, dt in zip((6, 7, 8, 9), (4, 5, 6, 7)): ext[g] += Ls(vread(nx, dt), ("v", t+1, dt))
                    post[16].append(("W", [("K", t+1, 0), ("K", t+1, 1)], None))
                if u == 5:
                    for i, g in enumerate((6, 7, 8, 9)): ext[g] += Ls([kread(nx, 2*i), kread(nx, 2*i+1)], ("k", t+1))
                    post[16].append(("W", [("V", t+1, 0)], [("k", t+1)]))
                    if first: post[16].append("s_barrier")
                if u == 6:
                    for g, dt in zip((6, 8, 9, 10), (3, 0, 1, 2)): ext[g] += Ls(vread(nx, dt), ("v", t+1, dt))
                if first:
                    if u == 0:
                        dgaps, sgaps = (), ()
                        ext[3].append(("W", [("V", 0, 1)], None))
                        for g, dt in zip((4, 5, 6, 7), (4, 5, 6, 7)): ext[g] += Ls(vread(0, dt), ("v", 0, dt))
                        post[7].append(("W", None, [("v", 0, 3)]))
                        q = qreads(2); ext[8] += q[0:2]; ext[9] += q[2:4]; ext[10] += q[4:5]
                        post[11].append(("W", None, [("v", 0, 7)]))
                    elif u < 4:
                        q = qreads(u + 2); ext[6] += q[0:2]; ext[7] += q[2:4]; ext[9] += q[4:5]
                        dgaps, sgaps = (5, 8, 10), (4,)
                        if u == 3:
                            q = qreads(6); ext[11] += q[0:1]; ext[12] += q[1:2]; ext[13] += q[2:3]; ext[14] += q[3:4]; ext[15] += q[4:5]
                    if u == 4: dgaps = (5, 10, 13)
                    if u < 5: post[16].append(("W", None, [("q", u + 2)]))
                    xs = [(0, 1), (0, 13), (1, 1), (2, 1), (3, 1), (4, 1), (5, 1), (6, 1), (1, 13), (2, 13), (5, 13), (6, 13)][:t0extra]
                    dgaps = tuple(sorted(set(dgaps) | set(g for (uu, g) in xs if uu == u)))
            if u == 0 and not first: ext[6].append(("W", None, "all")); sgaps = tuple(g for g in sgaps if g != 6)
            if last:
                if u == 0:
                    ext[5].append(("W", "all", None))
                    post[6] += [f"v_and_b32 v{T+3}, 15, v{L}"]
                    post[7] += [f"s_lshl_b32 s42, s{S_W}, 2", f"s_add_u32 s42, s42, {LT0}"]
                    post[8] += [f"v_lshl_add_u32 v{T+3}, v{T+3}, 4, s42"]
                else:
                    gs = (2, 5, 8, 10, 13, 16) if u < 6 else (4, 5, 6, 7, 8, 10)
                    for g, dt in zip(gs, range(2, 8)): ext[g].append(xw(u - 1, dt))
                    ext[7 if u < 6 else 12].append(lw(u - 1))
            fin = last and u == 6
            if first: stamp("t")
            if last: stamp("e")
            if first and u == 0: a(("W", None, [("q", 1)]))
            order = [2, 3, 4, 5, 6, 7, -1, 0, 1] if fin else [0, 1, 2, 3, 4, 5, 6, 7, -1]
            pend = []
            for g in range(17):
                if g < 8:
                    if not fin: a(qk((u + 1) % 7, g))
                else:
                    dt = order[g - 8]
                    a(pv(u, dt, par, first) if dt >= 0 else sm(u, first))
                if g in dgaps:
                    for x in self_pend: a(x)
                    self_pend.clear()
                    for x in nextdma(): a(x)
                if g in sgaps:
                    if not self_pend: self_pend.extend(nextpre())
                    for x in self_pend[:2]: a(x)
                    del self_pend[:2]
                for x in ext[g]: a(x)
                if g < 3: a(ex(5 + g))
                elif g == 3:
                    if fin: a("s_nop 0")
                    a(cv(2)); a(cv(3))
                elif not fin:
                    if 11 <= g <= 15: a(ex(g - 11))
                    elif g == 16: a(cv(0)); a(cv(1))
                for x in post[g]: a(x)
    self_pend = []
    a.c("tile 0"); tile(0)
    a(f"s_mov_b32 s{S_CNT}, 3")
    stamp()
    a.raw(".p2align 6")
    a.label("L_loop")
    i0 = len(a.l)
    bodies = []
    for t in range(1, 7):
        b = len(a.l); tile(t); bodies.append(a.l[b:])
    for t in (2, 4):
        for k in (0, 1):
            if bodies[t + k] != bodies[k]:
                for x, y in zip(bodies[k], bodies[t + k]):
                    if x != y: print("LOOP MISMATCH", t + k + 1, x, "|", y, file=sys.stderr)
                assert len(bodies[k]) == len(bodies[t+k]), "loop bodies differ in length"
    del a.l[i0:]
    a.l += bodies[4] + bodies[5]
    a(f"s_sub_u32 s{S_CNT}, s{S_CNT}, 1")
    a(f"s_cmp_lg_u32 s{S_CNT}, 0")
    a("s_cbranch_scc1 L_loop")
    i1 = len(a.l)
    assert stream[spos[0]][2] >= 8, "stream not fully issued"
    stamp()
    a.c("tile 7"); tile(7)
    PK = V_K
    a("s_nop 1")
    for j in range(1, 4):
        for b in range(2):
            o = V_O6 + 4 * (2*j + b - 2)
            for h in range(2): a(f"v_cvt_pk_bf16_f32 v{PK + 4*(j-1) + 2*b + h}, v{o+2*h}, v{o+2*h+1}")
        a(("L", f"ds_write_b128 v{V_LIN}, {vr(PK + 4*(j-1), 4)} offset:{36864 + (j-1)*1024}", "xw"))
    a(lw(6))
    a(f"v_lshlrev_b32 v{T+4}, 4, v{L}")
    for j in range(1, 4):
        a(f"s_xor_b32 s42, s{S_W}, {j}")
        a(f"s_mul_i32 s{36+j}, s42, {REG}")
        a(f"v_add_u32 v{T+j-1}, s{36+j}, v{T+4}")
    a(f"v_and_b32 v{T+4}, 0xf0, v{T+4}")
    a(f"v_add_u32 v{T+4}, {LT0}, v{T+4}")
    a(f"v_bfe_u32 v{V_S+4}, v{L}, 1, 2")
    a(f"v_lshrrev_b32 v{V_S+5}, 5, v{L}")
    a(f"v_xor_b32 v{V_S+4}, v{V_S+4}, v{V_S+5}")
    a(f"v_lshlrev_b32 v{V_S+4}, 4, v{V_S+4}")
    a(f"v_and_b32 v{V_S+5}, 15, v{L}")
    a(f"v_lshl_add_u32 v{V_S+4}, v{V_S+5}, 6, v{V_S+4}")
    a(f"v_bfe_u32 v{V_S+5}, v{L}, 4, 1")
    a(f"v_lshl_add_u32 v{V_S+4}, v{V_S+5}, 3, v{V_S+4}")
    a(f"v_add_u32 v{V_S}, s37, v{V_S+4}")
    a(f"v_xor_b32 v{V_S+3}, 32, v{V_S}")
    a(f"v_bfe_u32 v{V_S+4}, v{L}, 3, 2")
    a(f"v_and_b32 v{V_S+5}, 3, v{L}")
    a(f"v_xor_b32 v{V_S+4}, v{V_S+4}, v{V_S+5}")
    a(f"v_lshrrev_b32 v{V_S+5}, 2, v{L}")
    a(f"v_lshlrev_b32 v{V_S+5}, 8, v{V_S+5}")
    a(f"v_lshl_add_u32 v{V_S+4}, v{V_S+4}, 4, v{V_S+5}")
    a(f"s_lshl_b32 s42, s{S_W}, 6")
    a(f"v_add_u32 v{V_S+2}, s42, v{V_S+4}")
    a(("W", None, "all"))
    a("s_barrier")
    if not dbg: stamp()
    XB = lambda u: V_K + 24 * (u % 3)
    PB = lambda u: 212 + 4 * (u % 2)
    RB = lambda u: V_O6 + 4 * (u % 3)
    def xreads(u):
        for j in range(1, 4):
            if u < 6:
                for b in range(2): a(("L", f"ds_read_b128 {vr(XB(u) + 8*(j-1) + 4*b, 4)}, v{T+j-1} offset:{((u*3 + j-1)*2 + b)*1024}", ("x", u)))
            else:
                a(("L", f"ds_read_b128 {vr(XB(u) + 8*(j-1) + 4, 4)}, v{T+j-1} offset:{36864 + (j-1)*1024}", ("x", u)))
    for u in range(7): a(("L", f"ds_read_b128 {vr(V_CI+4*u,4)}, v{T+4} offset:{LTAB(u)}", "l"))
    xreads(0)
    a(("W", None, ["l"]))
    xreads(1)
    for u in range(7): a(f"v_pk_add_f32 {vr(V_CI+4*u,2)}, {vr(V_CI+4*u,2)}, {vr(V_CI+4*u+2,2)}")
    for u in range(7): a(f"v_add_f32 v{V_CI+4*u}, v{V_CI+4*u}, v{V_CI+4*u+1}")
    for u in range(7): a(f"v_rcp_f32 v{V_CI+4*u+2}, v{V_CI+4*u}")
    def finish(u):
        a(("W", None, [("r", u)]))
        a(f"s_movk_i32 s36, {u*4096}")
        a(("V", f"buffer_store_dwordx4 {vr(RB(u),4)}, v{V_S+2}, {srd(SRD_O)}, s36 offen{(' '+sflags) if sflags else ''}", "st"))
    for u in range(7):
        a(("W", None, [("x", u)]))
        if u + 2 < 7: xreads(u + 2)
        X = XB(u); O = V_OWN + 8*u
        if u == 6:
            for j in range(3):
                for r in range(4):
                    src = X + 8*j + 4 + r
                    a(f"v_lshlrev_b32 v{X+8*j+2*r}, 16, v{src}")
                    a(f"v_and_b32 v{X+8*j+2*r+1}, 0xffff0000, v{src}")
        for r in range(0, 8, 2):
            a(f"v_pk_add_f32 {vr(O+r,2)}, {vr(O+r,2)}, {vr(X+r,2)}")
            a(f"v_pk_add_f32 {vr(X+8+r,2)}, {vr(X+8+r,2)}, {vr(X+16+r,2)}")
        for r in range(0, 8, 2): a(f"v_pk_add_f32 {vr(O+r,2)}, {vr(O+r,2)}, {vr(X+8+r,2)}")
        for r in range(0, 8, 2): a(f"v_pk_mul_f32 {vr(O+r,2)}, {vr(O+r,2)}, {vr(V_CI+4*u+2,2)} op_sel_hi:[1,0]")
        for r in range(4): a(f"v_cvt_pk_bf16_f32 v{PB(u)+r}, v{O+2*r}, v{O+2*r+1}")
        if u >= 1: finish(u - 1)
        for b in range(2): a(("L", f"ds_write_b64 v{V_S+3*b}, {vr(PB(u)+2*b,2)} offset:{(u%6)*6144}", ("w", u)))
        a(("L", f"ds_read_b128 {vr(RB(u),4)}, v{T} offset:{(u%6)*6144}", ("r", u)))
    a(f"v_add_f32 v{V_CI+1}, v{V_CI}, v{V_CI+4}")
    for u in range(2, 7): a(f"v_add_f32 v{V_CI+1}, v{V_CI+1}, v{V_CI+4*u}")
    a(f"s_mov_b32 s37, {hex(f2u(THRESH))}")
    a(f"v_cmp_ngt_f32 vcc, s37, v{V_CI+1}")
    finish(6)
    a(f"s_cmp_lg_u32 s{S_FB}, 0")
    a("s_cbranch_scc1 L_ok")
    a("s_cbranch_vccnz L_fallback")
    a.label("L_ok")
    a.free = True
    if diag and spin:
        i, j, mult = spin
        a("s_waitcnt vmcnt(0)")
        a("s_memrealtime s[80:81]"); a("s_waitcnt lgkmcnt(0)")
        sj = 80 if j == 8 else S_STAMP + 2*j
        a(f"s_sub_u32 s84, s{sj}, s{S_STAMP+2*i}"); a(f"s_mul_i32 s84, s84, {mult}"); a("s_min_u32 s84, s84, 20000")
        a.label("L_spin")
        a("s_memrealtime s[82:83]"); a("s_waitcnt lgkmcnt(0)")
        a("s_sub_u32 s85, s82, s80"); a("s_cmp_lt_u32 s85, s84"); a("s_cbranch_scc1 L_spin")
    elif diag:
        a("s_memrealtime s[84:85]"); a("s_memtime s[86:87]")
        a("s_waitcnt vmcnt(0)")
        a("s_mov_b32 s36, s46"); a("s_mov_b32 s37, s47"); a("s_mov_b32 s38, 0x100000"); a("s_mov_b32 s39, 0x20000")
        a("s_memrealtime s[80:81]"); a("s_memtime s[82:83]"); a("s_waitcnt lgkmcnt(0)")
        a("s_lshl_b32 s40, s2, 2"); a(f"s_add_u32 s40, s40, s{S_W}"); a("s_lshl_b32 s40, s40, 8")
        a(f"v_mov_b32 v4, s40")
        a(f"v_cmp_eq_u32 vcc, 0, v{L}")
        a("s_and_saveexec_b64 s[42:43], vcc")
        slots = [(S_STAMP+2*i, i) for i in range(8)] + [(84, 8), (80, 9)] + [(S_STAMP+16+2*i, 16+i) for i in range(8)] + [(86, 24), (82, 25)]
        for s, i in slots:
            a(f"v_mov_b32 v6, s{s}"); a(f"v_mov_b32 v7, s{s+1}"); a(f"buffer_store_dwordx2 v[6:7], v4, s[36:39], 0 offen offset:{8*i}"); a("s_nop 1")
    a.label("L_end")
    a("s_endpgm")
    iend = len(a.l)
    a.label("L_fallback")
    a("s_waitcnt vmcnt(0) lgkmcnt(0)")
    a("s_barrier")
    a(f"s_mov_b32 s{S_FB}, 1")
    a(f"s_mov_b64 s[{S_FBM}:{S_FBM+1}], -1")
    a(f"s_mov_b32 s{SRD_K+2}, 0x10000")
    a(f"s_mov_b32 s{SRD_V+2}, 0x10000")
    a("s_mov_b32 s42, 0")
    MX = V_OWN
    for u in range(7): a(f"v_mov_b32 v{MX+u}, 0xff800000")
    a.label("L_fb1")
    a(m0(0)); a("s_add_u32 s43, s42, 128")
    for p in range(4): a(dma(SRD_K, 42, p, "f")[1])
    a(m0(4096)); a("s_nop 0")
    for p in range(4): a(dma(SRD_K, 43, p, "f")[1])
    a("s_waitcnt vmcnt(0)")
    for j in range(8): a(kread(0, j))
    a("s_waitcnt lgkmcnt(0)")
    for u in range(7):
        for j in range(8): a(qk(u, j, zero=True))
        a("s_nop 7")
        for r in range(0, 8, 2): a(f"v_max3_f32 v{MX+u}, v{MX+u}, v{V_S+r}, v{V_S+r+1}")
    a("s_add_u32 s42, s42, 0x2000")
    a("s_cmp_lt_u32 s42, 0x10000")
    a("s_cbranch_scc1 L_fb1")
    for sw in ("v_permlane16_swap_b32", "v_permlane32_swap_b32"):
        for u in range(7): a(f"v_mov_b32 v{MX+8+u}, v{MX+u}")
        a("s_nop 1")
        for u in range(7): a(f"{sw} v{MX+u}, v{MX+8+u}")
        a("s_nop 1")
        for u in range(7): a(f"v_max_f32 v{MX+u}, v{MX+u}, v{MX+8+u}")
    for u in range(7): a(f"ds_write_b32 v{T+3}, v{MX+u} offset:{LTAB(u)}")
    a("s_waitcnt lgkmcnt(0)")
    a("s_barrier")
    a(f"s_and_b32 s42, s{S_W}, 1"); a("s_lshl_b32 s42, s42, 9")
    a(f"s_lshr_b32 s43, s{S_W}, 1"); a(f"s_mul_i32 s43, s43, {REG}"); a("s_add_u32 s42, s42, s43")
    a(f"v_add_u32 v{T+4}, s42, v{T+4}")
    for h in range(2): a(f"ds_read_b128 {vr(V_S+4*h,4)}, v{T+4} offset:{256*h}")
    a("s_waitcnt lgkmcnt(0)")
    for h in range(2):
        a(f"v_max3_f32 v{V_KEEP+h}, v{V_S+4*h}, v{V_S+4*h+1}, v{V_S+4*h+2}")
        a(f"v_max_f32 v{V_KEEP+h}, v{V_KEEP+h}, v{V_S+4*h+3}")
    a("s_barrier")
    a("s_branch L_start")
    lin = a.l[:i1] + a.l[i0:i1] + a.l[i1:iend]
    bad = hz.check(lin) + hz.check(a.l[iend:])
    for b in bad: print("HAZARD", b, file=sys.stderr)
    a.raw('.section .rodata,"a"'); a.raw(".p2align 6"); a.raw(f".amdhsa_kernel {NAME}_kernel")
    a.raw("  .amdhsa_next_free_vgpr 512"); a.raw("  .amdhsa_next_free_sgpr 102"); a.raw("  .amdhsa_accum_offset 256")
    a.raw("  .amdhsa_group_segment_fixed_size 0"); a.raw("  .amdhsa_kernarg_size 48"); a.raw("  .amdhsa_user_sgpr_count 2")
    a.raw("  .amdhsa_user_sgpr_kernarg_segment_ptr 1"); a.raw("  .amdhsa_system_sgpr_workgroup_id_x 1"); a.raw(".end_amdhsa_kernel")
    return "\n".join(a.l) + "\n"

if __name__ == "__main__":
    ap = argparse.ArgumentParser()
    ap.add_argument("-o", default=f"kC.s")
    ap.add_argument("--diag", action="store_true"); ap.add_argument("--dbg", action="store_true")
    ap.add_argument("--spin", default=None); ap.add_argument("--flags", default=""); ap.add_argument("--sflags", default="sc1")
    ap.add_argument("--rot", default="pair"); ap.add_argument("--n0", type=int, default=12); ap.add_argument("--mix", type=int, default=1); ap.add_argument("--vsch", default="2,2,2,2,0")
    ap.add_argument("--t0extra", type=int, default=0); ap.add_argument("--pace", type=int, default=2); ap.add_argument("--bars", default=""); ap.add_argument("--fine", default="c"); ap.add_argument("--burst", type=int, default=8)
    args = ap.parse_args()
    open(args.o, "w").write(gen(diag=args.diag, dbg=args.dbg, flags=args.flags, sflags=args.sflags, rot=args.rot, n0=args.n0, mix=args.mix, vsch=tuple(map(int, args.vsch.split(','))), t0extra=args.t0extra, pace=args.pace, fine=args.fine, burst=args.burst, bars=tuple(int(x) for x in args.bars.split(',') if x),
                                spin=tuple(map(int, args.spin.split(','))) if args.spin else None))
```

```python
import sys, struct, argparse
import hz
NAME = "standalone__gqa_softmax__near_ridge"
def f2u(x): return struct.unpack("<I", struct.pack("<f", x))[0]
def vr(b, n=1): return f"v{b}" if n == 1 else f"v[{b}:{b+n-1}]"
def ar(b, n=1): return f"a{b}" if n == 1 else f"a[{b}:{b+n-1}]"
def srd(b): return f"s[{b}:{b+3}]"

V_LANE, V_LIN, V_KEEP, V_VOFF, V_AK, V_AV, V_T = 0, 1, 2, 4, 8, 10, 14
V_S, V_P, V_CI, V_OWN, V_O6, V_K, V_V, V_Q = 20, 28, 32, 60, 116, 140, 172, 224
A_O, A_L, A_ONE, A_Q = 0, 144, 172, 176
S_W = 3
SRD_Q, SRD_K, SRD_V, SRD_O = 12, 16, 20, 24
S_MK0, S_MK1, S_MV0, S_MV1 = 28, 29, 30, 31
S_Y, S_FB, S_WB, S_CNT = 32, 33, 34, 35
S_SO, S_Y0 = 44, 45
S_STAMP = 48
REG = 40960
KB = lambda par: par * 8192
VB = lambda par: 16384 + par * 8192
XO = 32768
XOFF = XO
S_FBM = 88
CI_AREA = 3 * REG + XO + 6144
LT0 = 39936
def LTAB(u): return u * 256 if u < 4 else REG + (u - 4) * 256
SCALE = (128 ** -0.5) * 1.4426950408889634
THRESH = 2.0 ** 40
M16 = "v_mfma_f32_16x16x32_bf16"

def Qf(u, c):
    i = 4 * u + c
    return vr(V_Q + 4 * i, 4) if i < 8 else ar(A_Q + 4 * (i - 8), 4)
def Kf(j): return vr(V_K + 4 * j, 4)
def Vbase(dt, par): return V_V + 4 * dt if dt < 3 else V_V + 12 + 20 * par + 4 * (dt - 3)
def Of(u, dt):
    if dt < 2: return vr(V_OWN + 8 * u + 4 * dt, 4)
    if u == 6: return vr(V_O6 + 4 * (dt - 2), 4)
    return ar(A_O + 24 * u + 4 * (dt - 2), 4)
def qk(u, j, zero=False):
    kt, c = j // 4, j % 4
    S = vr(V_S + 4 * kt, 4)
    cc = S if c else ("0" if zero else vr(V_CI + 4 * u, 4))
    return f"{M16} {S}, {Kf(j)}, {Qf(u, c)}, {cc}"
def pv(u, dt, par, first):
    o = Of(u, dt)
    return f"{M16} {o}, {vr(Vbase(dt, par), 4)}, {vr(V_P, 4)}, {'0' if first else o}"
def sm(u, first):
    o = ar(A_L + 4 * u, 4)
    return f"{M16} {o}, {ar(A_ONE, 4)}, {vr(V_P, 4)}, {'0' if first else o}"
def ex(e): return f"v_exp_f32 v{V_S+e}, v{V_S+e}"
def cv(i): return f"v_cvt_pk_bf16_f32 v{V_P+i}, v{V_S+2*i}, v{V_S+2*i+1}"
def kread(par, j, base=None, dst=None):
    kt, c = j // 4, j % 4
    off = (KB(par) if base is None else base) + (c >> 1) * 4096 + kt * 2048
    return f"ds_read_b128 {dst or Kf(j)}, v{V_AK + (c & 1)} offset:{off}"
def vread(par, dt):
    b = Vbase(dt, par)
    return [f"ds_read_b64_tr_b16 {vr(b + 2*h, 2)}, v{V_AV + (dt & 3)} offset:{VB(par) + (dt >> 2) * 4096 + h * 2048}" for h in range(2)]

class Gen:
    def __init__(self):
        self.l = []; self.vq = []; self.lq = []; self.ldone = 0
    def __call__(self, s):
        if isinstance(s, tuple):
            if s[0] == "L": self.l.append("    " + s[1]); self.lq.append(s[2])
            elif s[0] == "V":
                tg = s[2]
                if isinstance(tg, tuple) and tg[1] >= 2:
                    kv, x, hf = tg
                    need = ([("k", x-2)] if x > 2 else ["k0a", "k0b"]) if kv == "K" else [("v", x-2, dt) for dt in range(4*hf, 4*hf+4)]
                    for n in need:
                        idx = [i for i, t in enumerate(self.lq) if t == n]
                        assert idx and max(idx) < self.ldone, ("LDS WAR", tg, n)
                self.l.append("    " + s[1]); self.vq.append(s[2])
            elif s[0] == "W":
                parts = []
                for q, tags, nm, mx in ((self.vq, s[1], "vmcnt", 63), (self.lq, s[2], "lgkmcnt", 15)):
                    if tags is None: continue
                    if tags == "all": n = 0
                    else:
                        idx = [i for i, t in enumerate(q) if t in tags]
                        assert idx, ("no such tag", tags)
                        n = len(q) - 1 - max(idx)
                    if nm == "lgkmcnt": self.ldone = max(self.ldone, len(q) - min(n, mx))
                    parts.append(f"{nm}({min(n, mx)})")
                self.l.append("    s_waitcnt " + " ".join(parts))
        else:
            assert not (s.startswith("ds_") or s.startswith("buffer_")) or self.free, s
            self.l.append("    " + s)
    free = False
    def label(self, s): self.l.append(s + ":")
    def c(self, s): self.l.append("    ; " + s)
    def raw(self, s): self.l.append(s)

def gen(diag=False, dbg=False, flags="", sflags="sc1", spin=None, rot="pair", n0=12, mix=1, vsch=(2, 2, 2, 2, 0), t0extra=0, pace=2, bars=(), fine='c', burst=8, touch=0, tpos=1):
    a = Gen()
    fl = (" " + flags) if flags else ""
    def dma(s, soff, p, tag): return ("V", f"buffer_load_dwordx4 v{V_VOFF+p}, {srd(s)}, s{soff} offen offset:{p*1024}{fl} lds", tag)
    def m0(off): return f"s_add_u32 m0, s{S_WB}, {off}"
    def Ls(texts, tag): return [("L", t, tag) for t in texts]
    nst = [0]
    def stamp(kind="c"):
        if diag and kind in fine and nst[0] < 8:
            a(f"s_memrealtime s[{S_STAMP+2*nst[0]}:{S_STAMP+2*nst[0]+1}]")
            a(f"s_memtime s[{S_STAMP+16+2*nst[0]}:{S_STAMP+16+2*nst[0]+1}]")
            nst[0] += 1
    GROUPS = (("V", 1), ("K", 0), ("K", 1), ("V", 0))
    stream = []
    for x in range(1, 10):
        for gi, (kv, hf) in enumerate(GROUPS):
            s_, buf, mk = (SRD_K, KB(x & 1), S_MK0 + hf) if kv == "K" else (SRD_V, VB(x & 1), S_MV0 + hf)
            for p in range(4):
                pre = []
                if p == 0:
                    if gi == 0: pre += [("Y", x)]
                    pre += [m0(buf + hf * 4096), f"s_xor_b32 s{S_SO}, s{S_Y}, s{mk}"]
                stream.append((pre, dma(s_, S_SO, p, (kv, x, hf)), x))
    spos = [0]
    def expand(pre):
        out = []
        for y in pre:
            if isinstance(y, tuple) and y[0] == "Y":
                out += [f"s_add_u32 s{S_Y}, s{S_Y}, 0x2000", f"s_and_b32 s{S_Y}, s{S_Y}, 0xffff"]
                if y[1] % 2 == 0 and y[1] >= 4:
                    out += [f"s_cmp_eq_u32 s{S_Y}, s{S_Y0}", f"s_cselect_b32 s{SRD_K+2}, 0, 0x10000", f"s_mov_b32 s{SRD_V+2}, s{SRD_K+2}"]
            else: out.append(y)
        return out
    def nextpre():
        pre, d, x = stream[spos[0]]
        stream[spos[0]] = ([], d, x)
        return expand(pre)
    def nextdma():
        pre, d, x = stream[spos[0]]
        spos[0] += 1
        out = expand(pre)
        return out + [d]

    a.raw(open("cdna_kernels/%s.s.ref" % NAME).read().split("; Override launch")[0].rstrip())
    a.raw("; @launch grid=(256,1,1) block=(256,1,1) lds=163840")
    a.raw('.amdgcn_target "amdgcn-amd-amdhsa--gfx950"')
    a.raw(".text"); a.raw(f".globl {NAME}_kernel"); a.raw(".p2align 8"); a.raw(f".type {NAME}_kernel,@function")
    a.label(f"{NAME}_kernel")
    a("s_cmp_ge_u32 s2, 256")
    a("s_cbranch_scc1 L_end")
    a("s_load_dwordx8 s[4:11], s[0:1], 0")
    if diag:
        a("s_load_dwordx2 s[46:47], s[0:1], %d" % (32 if dbg else 40))
        stamp(fine[0])
    T = V_T; L = V_LANE
    a(f"v_lshrrev_b32 v{T}, 6, v0")
    a(f"v_and_b32 v{L}, 63, v0")
    a(f"v_readfirstlane_b32 s{S_W}, v{T}")
    a("s_and_b32 s36, s2, 7")
    a("s_lshr_b32 s37, s2, 3")
    a("s_lshl_b32 s36, s36, 5")
    a("s_add_u32 s36, s36, s37")
    a("s_lshr_b32 s37, s36, 2")
    a("s_mul_i32 s38, s36, 28672")
    a("s_lshl_b32 s39, s37, 18")
    a(f"s_lshl_b32 s40, s{S_W}, 16")
    a("s_add_u32 s39, s39, s40")
    a(f"s_mul_i32 s{S_WB}, s{S_W}, {REG}")
    a(f"s_mov_b32 s{S_FB}, 0")
    a(f"s_mov_b64 s[{S_FBM}:{S_FBM+1}], 0")
    rm, sm_ = {"none": (0, 0), "pair": (1, 1), "pair0": (0, 1), "quad": (3, 3), "quad0": (0, 3), "pair7": (7, 1), "none7": (7, 0)}[rot]
    a(f"s_and_b32 s{S_Y0}, s37, {rm}"); a(f"s_lshl_b32 s{S_Y0}, s{S_Y0}, 13")
    a(f"s_and_b32 s{S_MK0}, s36, {sm_}"); a(f"s_lshl_b32 s{S_MK0}, s{S_MK0}, 13")
    a(f"s_or_b32 s{S_MK1}, s{S_MK0}, 128")
    a(f"s_lshr_b32 s{S_MV0}, s{S_W}, 1"); a(f"s_lshl_b32 s{S_MV0}, s{S_MV0}, 7"); a(f"s_or_b32 s{S_MV0}, s{S_MV0}, s{S_MK0}")
    a(f"s_xor_b32 s{S_MV1}, s{S_MV0}, 128")
    a(f"v_lshrrev_b32 v{T}, 4, v{L}")
    a(f"v_lshlrev_b32 v{T}, 1, v{T}")
    a(f"v_and_b32 v{T+1}, 7, v{L}")
    a(f"v_xor_b32 v{T}, v{T}, v{T+1}")
    a(f"v_lshlrev_b32 v{T}, 4, v{T}")
    a(f"v_lshrrev_b32 v{T+1}, 3, v{L}")
    a(f"v_lshl_add_u32 v{V_VOFF}, v{T+1}, 8, v{T}")
    a(f"v_xor_b32 v{V_VOFF+1}, 16, v{V_VOFF}")
    a(f"v_add_u32 v{V_VOFF+1}, 0x400, v{V_VOFF+1}")
    a(f"v_add_u32 v{V_VOFF+2}, 0x800, v{V_VOFF}")
    a(f"v_add_u32 v{V_VOFF+3}, 0x800, v{V_VOFF+1}")
    a(f"v_and_b32 v{T}, 15, v{L}")
    a(f"v_and_b32 v{T+1}, 6, v{T}")
    a(f"v_lshrrev_b32 v{T+2}, 3, v{T}")
    a(f"v_or_b32 v{T+1}, v{T+1}, v{T+2}")
    a(f"v_lshrrev_b32 v{T+2}, 4, v{L}")
    a(f"v_lshlrev_b32 v{T+2}, 1, v{T+2}")
    a(f"v_xor_b32 v{T+1}, v{T+1}, v{T+2}")
    a(f"v_lshlrev_b32 v{T+1}, 4, v{T+1}")
    a(f"v_lshl_add_u32 v{T+1}, v{T}, 7, v{T+1}")
    a(f"v_add_u32 v{V_AK}, s{S_WB}, v{T+1}")
    a(f"v_xor_b32 v{V_AK+1}, 16, v{V_AK}")
    a(f"v_lshlrev_b32 v{T}, 4, v{L}")
    a(f"v_add_u32 v{V_LIN}, s{S_WB}, v{T}")
    a(f"v_mov_b32 v{T+4}, {hex(f2u(SCALE))}")
    a(f"v_lshrrev_b32 v{T}, 2, v{L}")
    a(f"v_and_b32 v{T+1}, 6, v{T}")
    a(f"v_lshrrev_b32 v{T+2}, 3, v{T}")
    a(f"v_or_b32 v{T+1}, v{T+1}, v{T+2}")
    a(f"v_bfe_u32 v{T+2}, v{L}, 1, 1")
    a(f"v_xor_b32 v{T+1}, v{T+1}, v{T+2}")
    a(f"s_and_b32 s42, s{S_W}, 1")
    a("s_lshl_b32 s42, s42, 2")
    a(f"v_xor_b32 v{T+1}, s42, v{T+1}")
    a(f"v_lshlrev_b32 v{T+1}, 4, v{T+1}")
    a(f"v_lshl_add_u32 v{T+1}, v{T}, 7, v{T+1}")
    a(f"v_and_b32 v{T+2}, 1, v{L}")
    a(f"v_lshl_add_u32 v{T+1}, v{T+2}, 3, v{T+1}")
    a(f"v_add_u32 v{V_AV}, s{S_WB}, v{T+1}")
    for k in range(1, 4): a(f"v_xor_b32 v{V_AV+k}, {32*k}, v{V_AV}")
    a("s_waitcnt lgkmcnt(0)")
    for base, src, off, num in ((SRD_Q, 4, 38, 28672), (SRD_K, 6, 39, 0x10000), (SRD_V, 8, 39, 0x10000), (SRD_O, 10, 38, 28672)):
        a(f"s_add_u32 s{base}, s{src}, s{off}")
        a(f"s_addc_u32 s{base+1}, s{src+1}, 0")
        a(f"s_mov_b32 s{base+2}, {num}")
        a(f"s_mov_b32 s{base+3}, 0x20000")
    a.label("L_start")
    a(f"v_mov_b32 v{T+4}, {hex(f2u(SCALE))}")
    a(f"s_lshl_b32 s40, s{S_W}, 13")
    a("s_add_u32 s41, s40, 128")
    a(f"s_mov_b32 s{S_Y}, s{S_Y0}")
    a(f"s_xor_b32 s42, s{S_Y}, s{S_MK0}")
    a(f"s_xor_b32 s43, s{S_Y}, s{S_MK1}")
    a(f"s_cmp_eq_u32 s{S_W}, 3")
    a(f"s_cselect_b32 s36, 0x4000, 0")
    a(f"s_add_u32 s36, s36, s{S_WB}")
    a(f"s_add_u32 s36, s36, {XO}")
    qa = [(m0(XO), SRD_Q, 40, (0, 1), "Qa"), (m0(XO + 4096), SRD_Q, 41, (0, 1), "Qa"),
          ("s_add_u32 m0, s36, 4096", SRD_Q, 41, (2, 3), "Qb"), ("s_mov_b32 m0, s36", SRD_Q, 40, (2, 3), "Qb")]
    ka = [(m0(KB(0)), SRD_K, 42, (0, 1), "K0a"), (m0(KB(0) + 4096), SRD_K, 43, (0, 1), "K0a"),
          (m0(KB(0) + 4096), SRD_K, 43, (2, 3), "K0b"), (m0(KB(0)), SRD_K, 42, (2, 3), "K0b")]
    seq = {0: qa + ka, 1: qa[:2] + ka[:2] + qa[2:] + ka[2:], 2: ka[:2] + qa + ka[2:]}[mix]
    last = None
    late = []
    for i_, (mm, s_, so, ps, tag) in enumerate(seq):
        if i_ >= burst:
            late += [(mm, dma(s_, so, p, tag)) for p in ps]
            continue
        if mm != last: a(mm); a("s_nop 0"); last = mm
        for p in ps: a(dma(s_, so, p, tag))
        if i_ == tpos:
            if touch & 1: a(("V", f"buffer_load_dword v{V_CI}, off, {srd(SRD_V)}, 0", "touch"))
            if touch & 2: a(("V", f"buffer_load_dword v{V_CI+1}, off, {srd(SRD_O)}, 0", "touch"))
            if touch & 4: a(("V", f"buffer_load_dword v{V_CI+2}, off, {srd(SRD_K)}, 0", "touch"))
    RAW, QP, TMP = V_V, V_OWN, V_O6
    left = [n0]
    def more(n=1):
        for _ in range(n):
            if left[0] > 0:
                for x in nextdma(): a(x)
                left[0] -= 1
    v0 = [0]
    def v0dma(n=1):
        for _ in range(n):
            if late:
                mm, d = late.pop(0)
                a(mm); a("s_nop 0"); a(d)
                continue
            j = v0[0]
            if j >= 8: return
            if j % 4 == 0:
                a(m0(VB(0) + (j // 4) * 4096)); a(f"s_xor_b32 s{S_SO}, s{S_Y}, s{S_MV0 + j // 4}")
            a(dma(SRD_V, S_SO, j % 4, ("V", 0, j // 4)))
            v0[0] += 1
    def qoff(h, c): return XO + (c >> 1) * 4096 + h * 2048 + (c & 1) * 1024
    a(f"v_and_b32 v{T}, 15, v{L}")
    a(f"s_lshl_b32 s90, s{S_W}, 9")
    a(f"s_add_u32 s90, s90, {CI_AREA}")
    a(f"v_lshlrev_b32 v{T}, 4, v{T}")
    a(f"v_add_u32 v{T+1}, s90, v{T}")
    a(f"v_add_u32 v{T+5}, {CI_AREA}, v{T}")
    a(f"s_sub_u32 s91, s36, {XO}")
    a(f"s_mov_b32 s92, {XO}")
    a(f"v_lshlrev_b32 v{T}, 4, v{L}")
    a(f"v_add_u32 v{T+3}, s91, v{T}")
    def prescale(h, hook):
        for c in range(4): a(("L", kread(0, 4*h + c, base=XO, dst=vr(RAW + 16*h + 4*c, 4)), ("raw", h, c)))
        hook(-1)
        for c in range(4):
            j = 4*h + c
            a(("W", None, [("raw", h, c if c == 0 else 3)]) if c < 2 else "s_nop 0")
            if c >= 1: a(("L", f"ds_write_b128 v{V_LIN if h == 0 else T+3}, {vr(QP + 4*(j-1), 4)} offset:{qoff(h, c-1)}", "qw"))
            hook(c)
            for r in range(4):
                a(f"v_lshlrev_b32 v{TMP+2*r}, 16, v{RAW+4*j+r}")
                a(f"v_and_b32 v{TMP+2*r+1}, 0xffff0000, v{RAW+4*j+r}")
            for r in range(4): a(f"v_pk_mul_f32 {vr(TMP+2*r,2)}, {vr(TMP+2*r,2)}, {vr(T+4,2)} op_sel_hi:[1,0]")
            for r in range(4): a(f"v_cvt_pk_bf16_f32 v{QP+4*j+r}, v{TMP+2*r}, v{TMP+2*r+1}")
    def prepass(h, hook, fill):
        S = vr(V_S + 4*h, 4); M = V_P + 2*h
        for c in range(4):
            a(f"{M16} {S}, {Kf(c)}, {vr(QP + 16*h + 4*c, 4)}, {S if c else '0'}")
            if c == 0: a(("L", f"ds_write_b128 v{V_LIN if h == 0 else T+3}, {vr(QP + 16*h + 12, 4)} offset:{qoff(h, 3)}", "qw"))
        n = len(a.l); hook(); n = len(a.l) - n
        while n < 8:
            if fill: a(fill.pop(0)); n += 1
            else: a(f"s_nop {7-n}"); n = 8
        a(f"v_max3_f32 v{M}, v{V_S+4*h}, v{V_S+4*h+1}, v{V_S+4*h+2}")
        a(f"v_max_f32 v{M}, v{M}, v{V_S+4*h+3}")
        for sw in ("v_permlane16_swap_b32", "v_permlane32_swap_b32"):
            a(f"v_mov_b32 v{M+1}, v{M}")
            a("s_nop 1")
            a(f"{sw} v{M}, v{M+1}")
            a("s_nop 0")
            a(f"v_max_f32 v{M}, v{M}, v{M+1}")
        a(f"v_cndmask_b32 v{M}, v{M}, v{V_KEEP+h}, s[{S_FBM}:{S_FBM+1}]")
        for r in range(4): a(f"v_sub_f32 v{V_S+4*h+r}, 0, v{M}")
        a(("L", f"ds_write_b128 v{T+1}, {S} offset:{256*h}", "ciw"))
    stamp("p")
    a(("W", ["Qa"], None))
    stamp(); stamp("p")
    def hk_a(c):
        if c == -1: v0dma(vsch[4])
        if c == 2 and mix:
            a(("W", ["K0a"], None))
            for jj in range(4): a(("L", kread(0, jj), "k0a"))
    prescale(0, hk_a)
    fill = [f"v_and_b32 v{T}, 3, v{L}", f"v_mov_b32 v{T+2}, 0x3f803f80", f"v_cmp_eq_u32 vcc, 0, v{T}", "s_nop 0", f"v_lshl_add_u32 v{T}, v{L}, 4, s92",
            f"v_cndmask_b32 v{T+2}, 0, v{T+2}, vcc"] + [f"v_accvgpr_write_b32 a{A_ONE+r}, v{T+2}" for r in range(4)] + \
           [f"v_add_u32 v{T+2}, {2*REG}, v{T}"]
    if mix:
        a(("W", None, ["k0a"]))
        prepass(0, lambda: v0dma(vsch[0]), fill)
    for x in fill: a(x)
    fill = []
    a("s_nop 0")
    v0dma(vsch[1])
    stamp("p")
    a(("W", ["Qb"], None))
    stamp("p")
    def hk_b(c):
        if c == -1: v0dma(vsch[2])
        if c == 2:
            v0dma(vsch[3])
            if not mix:
                a(("W", ["K0a"], None))
                for jj in range(4): a(("L", kread(0, jj), "k0a"))
    prescale(1, hk_b)
    stamp("p")
    if not mix:
        a(("W", None, ["k0a"]))
        prepass(0, lambda: None, fill)
    else: a("s_nop 0")
    prepass(1, lambda: (v0dma(16), more(pace)), fill)
    v0dma(8)
    stamp(); stamp("p")
    a(("W", None, "all"))
    a("s_barrier")
    stamp(); stamp("p")
    def qreads(u):
        w, h = u // 2, u % 2
        ad = T if w < 2 else T + 2
        out = [f"ds_read_b128 {vr(V_CI+4*u,4)}, v{T+5} offset:{u*256}"]
        out += [f"ds_read_b128 {Qf(u,c)}, v{ad} offset:{(w&1)*REG + qoff(h, c) - XOFF}" for c in range(4)]
        return Ls(out, ("q", u))
    for x in qreads(0): a(x)
    a(("W", ["K0b"], None))
    for jj in range(4, 8): a(("L", kread(0, jj), "k0b"))
    for x in qreads(1): a(x)
    a(("W", None, [("q", 0)]))
    for j in range(8):
        if j == 4: a(("W", None, ["k0b"]))
        a(qk(0, j))
        if j in (0, 7): more()
    more(64)
    a(("W", [("V", 0, 0)], None))
    for dt in range(4):
        for x in Ls(vread(0, dt), ("v", 0, dt)): a(x)
    for e in range(5): a(ex(e))
    a(cv(0)); a(cv(1))
    stamp()

    def xw(u, dt):
        j, b = dt // 2, dt % 2
        return ("L", f"ds_write_b128 v{V_LIN}, {Of(u, dt)} offset:{((u*3 + j-1)*2 + b)*1024}", "xw")
    def lw(u): return ("L", f"ds_write_b32 v{T+3}, a{A_L+4*u} offset:{LTAB(u)}", "xw")

    def tile(t):
        par = t & 1; nx = par ^ 1
        first, last = t == 0, t == 7
        for u in range(7):
            ext = {g: [] for g in range(17)}
            post = {g: [] for g in range(17)}
            dgaps = []; sgaps = []
            if not last:
                dgaps, sgaps = {0: ((5, 8, 10), (4, 6, 7, 9)), 1: ((5, 10), (4, 6, 7, 8, 9)), 2: ((5, 8, 10), (4, 6, 7, 9)), 3: ((5, 10), (4, 6, 7, 8, 9)),
                                4: ((5, 10), (4,)), 5: ((5, 10), (4,)), 6: ((5, 7), (4,))}[u]
                if u == 3: ext[9].append(("W", [("V", t+1, 1)], None)); sgaps = (4, 6, 7, 8)
                if u == 4:
                    for g, dt in zip((6, 7, 8, 9), (4, 5, 6, 7)): ext[g] += Ls(vread(nx, dt), ("v", t+1, dt))
                    post[16].append(("W", [("K", t+1, 0), ("K", t+1, 1)], None))
                if u == 5:
                    for i, g in enumerate((6, 7, 8, 9)): ext[g] += Ls([kread(nx, 2*i), kread(nx, 2*i+1)], ("k", t+1))
                    post[16].append(("W", [("V", t+1, 0)], [("k", t+1)]))
                    if first: post[16].append("s_barrier")
                if u == 6:
                    for g, dt in zip((6, 8, 9, 10), (3, 0, 1, 2)): ext[g] += Ls(vread(nx, dt), ("v", t+1, dt))
                if first:
                    if u == 0:
                        dgaps, sgaps = (), ()
                        ext[3].append(("W", [("V", 0, 1)], None))
                        for g, dt in zip((4, 5, 6, 7), (4, 5, 6, 7)): ext[g] += Ls(vread(0, dt), ("v", 0, dt))
                        post[7].append(("W", None, [("v", 0, 3)]))
                        q = qreads(2); ext[8] += q[0:2]; ext[9] += q[2:4]; ext[10] += q[4:5]
                        post[11].append(("W", None, [("v", 0, 7)]))
                    elif u < 4:
                        q = qreads(u + 2); ext[6] += q[0:2]; ext[7] += q[2:4]; ext[9] += q[4:5]
                        dgaps, sgaps = (5, 8, 10), (4,)
                        if u == 3:
                            q = qreads(6); ext[11] += q[0:1]; ext[12] += q[1:2]; ext[13] += q[2:3]; ext[14] += q[3:4]; ext[15] += q[4:5]
                    if u == 4: dgaps = (5, 10, 13)
                    if u < 5: post[16].append(("W", None, [("q", u + 2)]))
                    xs = [(0, 1), (0, 13), (1, 1), (2, 1), (3, 1), (4, 1), (5, 1), (6, 1), (1, 13), (2, 13), (5, 13), (6, 13)][:t0extra]
                    dgaps = tuple(sorted(set(dgaps) | set(g for (uu, g) in xs if uu == u)))
            if u == 0 and not first: ext[6].append(("W", None, "all")); sgaps = tuple(g for g in sgaps if g != 6)
            if last:
                if u == 0:
                    ext[5].append(("W", "all", None))
                    post[6] += [f"v_and_b32 v{T+3}, 15, v{L}"]
                    post[7] += [f"s_lshl_b32 s42, s{S_W}, 2", f"s_add_u32 s42, s42, {LT0}"]
                    post[8] += [f"v_lshl_add_u32 v{T+3}, v{T+3}, 4, s42"]
                else:
                    gs = (2, 5, 8, 10, 13, 16) if u < 6 else (4, 5, 6, 7, 8, 10)
                    for g, dt in zip(gs, range(2, 8)): ext[g].append(xw(u - 1, dt))
                    ext[7 if u < 6 else 12].append(lw(u - 1))
            fin = last and u == 6
            if first: stamp("t")
            if last: stamp("e")
            if first and u == 0: a(("W", None, [("q", 1)]))
            order = [2, 3, 4, 5, 6, 7, -1, 0, 1] if fin else [0, 1, 2, 3, 4, 5, 6, 7, -1]
            pend = []
            for g in range(17):
                if g < 8:
                    if not fin: a(qk((u + 1) % 7, g))
                else:
                    dt = order[g - 8]
                    a(pv(u, dt, par, first) if dt >= 0 else sm(u, first))
                if g in dgaps:
                    for x in self_pend: a(x)
                    self_pend.clear()
                    for x in nextdma(): a(x)
                if g in sgaps:
                    if not self_pend: self_pend.extend(nextpre())
                    for x in self_pend[:2]: a(x)
                    del self_pend[:2]
                for x in ext[g]: a(x)
                if g < 3: a(ex(5 + g))
                elif g == 3:
                    if fin: a("s_nop 0")
                    a(cv(2)); a(cv(3))
                elif not fin:
                    if 11 <= g <= 15: a(ex(g - 11))
                    elif g == 16: a(cv(0)); a(cv(1))
                for x in post[g]: a(x)
    self_pend = []
    a.c("tile 0"); tile(0)
    a(f"s_mov_b32 s{S_CNT}, 3")
    stamp()
    a.raw(".p2align 6")
    a.label("L_loop")
    i0 = len(a.l)
    bodies = []
    for t in range(1, 7):
        b = len(a.l); tile(t); bodies.append(a.l[b:])
    for t in (2, 4):
        for k in (0, 1):
            if bodies[t + k] != bodies[k]:
                for x, y in zip(bodies[k], bodies[t + k]):
                    if x != y: print("LOOP MISMATCH", t + k + 1, x, "|", y, file=sys.stderr)
                assert len(bodies[k]) == len(bodies[t+k]), "loop bodies differ in length"
    del a.l[i0:]
    a.l += bodies[4] + bodies[5]
    a(f"s_sub_u32 s{S_CNT}, s{S_CNT}, 1")
    a(f"s_cmp_lg_u32 s{S_CNT}, 0")
    a("s_cbranch_scc1 L_loop")
    i1 = len(a.l)
    assert stream[spos[0]][2] >= 8, "stream not fully issued"
    stamp()
    a.c("tile 7"); tile(7)
    PK = V_K
    a("s_nop 1")
    for j in range(1, 4):
        for b in range(2):
            o = V_O6 + 4 * (2*j + b - 2)
            for h in range(2): a(f"v_cvt_pk_bf16_f32 v{PK + 4*(j-1) + 2*b + h}, v{o+2*h}, v{o+2*h+1}")
        a(("L", f"ds_write_b128 v{V_LIN}, {vr(PK + 4*(j-1), 4)} offset:{36864 + (j-1)*1024}", "xw"))
    a(lw(6))
    a(f"v_lshlrev_b32 v{T+4}, 4, v{L}")
    for j in range(1, 4):
        a(f"s_xor_b32 s42, s{S_W}, {j}")
        a(f"s_mul_i32 s{36+j}, s42, {REG}")
        a(f"v_add_u32 v{T+j-1}, s{36+j}, v{T+4}")
    a(f"v_and_b32 v{T+4}, 0xf0, v{T+4}")
    a(f"v_add_u32 v{T+4}, {LT0}, v{T+4}")
    a(f"v_bfe_u32 v{V_S+4}, v{L}, 1, 2")
    a(f"v_lshrrev_b32 v{V_S+5}, 5, v{L}")
    a(f"v_xor_b32 v{V_S+4}, v{V_S+4}, v{V_S+5}")
    a(f"v_lshlrev_b32 v{V_S+4}, 4, v{V_S+4}")
    a(f"v_and_b32 v{V_S+5}, 15, v{L}")
    a(f"v_lshl_add_u32 v{V_S+4}, v{V_S+5}, 6, v{V_S+4}")
    a(f"v_bfe_u32 v{V_S+5}, v{L}, 4, 1")
    a(f"v_lshl_add_u32 v{V_S+4}, v{V_S+5}, 3, v{V_S+4}")
    a(f"v_add_u32 v{V_S}, s37, v{V_S+4}")
    a(f"v_xor_b32 v{V_S+3}, 32, v{V_S}")
    a(f"v_bfe_u32 v{V_S+4}, v{L}, 3, 2")
    a(f"v_and_b32 v{V_S+5}, 3, v{L}")
    a(f"v_xor_b32 v{V_S+4}, v{V_S+4}, v{V_S+5}")
    a(f"v_lshrrev_b32 v{V_S+5}, 2, v{L}")
    a(f"v_lshlrev_b32 v{V_S+5}, 8, v{V_S+5}")
    a(f"v_lshl_add_u32 v{V_S+4}, v{V_S+4}, 4, v{V_S+5}")
    a(f"s_lshl_b32 s42, s{S_W}, 6")
    a(f"v_add_u32 v{V_S+2}, s42, v{V_S+4}")
    a(("W", None, "all"))
    a("s_barrier")
    if not dbg: stamp()
    XB = lambda u: V_K + 24 * (u % 3)
    PB = lambda u: 212 + 4 * (u % 2)
    RB = lambda u: V_O6 + 4 * (u % 3)
    def xreads(u):
        for j in range(1, 4):
            if u < 6:
                for b in range(2): a(("L", f"ds_read_b128 {vr(XB(u) + 8*(j-1) + 4*b, 4)}, v{T+j-1} offset:{((u*3 + j-1)*2 + b)*1024}", ("x", u)))
            else:
                a(("L", f"ds_read_b128 {vr(XB(u) + 8*(j-1) + 4, 4)}, v{T+j-1} offset:{36864 + (j-1)*1024}", ("x", u)))
    for u in range(7): a(("L", f"ds_read_b128 {vr(V_CI+4*u,4)}, v{T+4} offset:{LTAB(u)}", "l"))
    xreads(0)
    a(("W", None, ["l"]))
    xreads(1)
    for u in range(7): a(f"v_pk_add_f32 {vr(V_CI+4*u,2)}, {vr(V_CI+4*u,2)}, {vr(V_CI+4*u+2,2)}")
    for u in range(7): a(f"v_add_f32 v{V_CI+4*u}, v{V_CI+4*u}, v{V_CI+4*u+1}")
    for u in range(7): a(f"v_rcp_f32 v{V_CI+4*u+2}, v{V_CI+4*u}")
    def finish(u):
        a(("W", None, [("r", u)]))
        a(f"s_movk_i32 s36, {u*4096}")
        a(("V", f"buffer_store_dwordx4 {vr(RB(u),4)}, v{V_S+2}, {srd(SRD_O)}, s36 offen{(' '+sflags) if sflags else ''}", "st"))
    for u in range(7):
        a(("W", None, [("x", u)]))
        if u + 2 < 7: xreads(u + 2)
        X = XB(u); O = V_OWN + 8*u
        if u == 6:
            for j in range(3):
                for r in range(4):
                    src = X + 8*j + 4 + r
                    a(f"v_lshlrev_b32 v{X+8*j+2*r}, 16, v{src}")
                    a(f"v_and_b32 v{X+8*j+2*r+1}, 0xffff0000, v{src}")
        for r in range(0, 8, 2):
            a(f"v_pk_add_f32 {vr(O+r,2)}, {vr(O+r,2)}, {vr(X+r,2)}")
            a(f"v_pk_add_f32 {vr(X+8+r,2)}, {vr(X+8+r,2)}, {vr(X+16+r,2)}")
        for r in range(0, 8, 2): a(f"v_pk_add_f32 {vr(O+r,2)}, {vr(O+r,2)}, {vr(X+8+r,2)}")
        for r in range(0, 8, 2): a(f"v_pk_mul_f32 {vr(O+r,2)}, {vr(O+r,2)}, {vr(V_CI+4*u+2,2)} op_sel_hi:[1,0]")
        for r in range(4): a(f"v_cvt_pk_bf16_f32 v{PB(u)+r}, v{O+2*r}, v{O+2*r+1}")
        if u >= 1: finish(u - 1)
        for b in range(2): a(("L", f"ds_write_b64 v{V_S+3*b}, {vr(PB(u)+2*b,2)} offset:{(u%6)*6144}", ("w", u)))
        a(("L", f"ds_read_b128 {vr(RB(u),4)}, v{T} offset:{(u%6)*6144}", ("r", u)))
    a(f"v_add_f32 v{V_CI+1}, v{V_CI}, v{V_CI+4}")
    for u in range(2, 7): a(f"v_add_f32 v{V_CI+1}, v{V_CI+1}, v{V_CI+4*u}")
    a(f"s_mov_b32 s37, {hex(f2u(THRESH))}")
    a(f"v_cmp_ngt_f32 vcc, s37, v{V_CI+1}")
    finish(6)
    a(f"s_cmp_lg_u32 s{S_FB}, 0")
    a("s_cbranch_scc1 L_ok")
    a("s_cbranch_vccnz L_fallback")
    a.label("L_ok")
    a.free = True
    if diag and spin:
        i, j, mult = spin
        a("s_waitcnt vmcnt(0)")
        a("s_memrealtime s[80:81]"); a("s_waitcnt lgkmcnt(0)")
        sj = 80 if j == 8 else S_STAMP + 2*j
        a(f"s_sub_u32 s84, s{sj}, s{S_STAMP+2*i}"); a(f"s_mul_i32 s84, s84, {mult}"); a("s_min_u32 s84, s84, 20000")
        a.label("L_spin")
        a("s_memrealtime s[82:83]"); a("s_waitcnt lgkmcnt(0)")
        a("s_sub_u32 s85, s82, s80"); a("s_cmp_lt_u32 s85, s84"); a("s_cbranch_scc1 L_spin")
    elif diag:
        a("s_memrealtime s[84:85]"); a("s_memtime s[86:87]")
        a("s_waitcnt vmcnt(0)")
        a("s_mov_b32 s36, s46"); a("s_mov_b32 s37, s47"); a("s_mov_b32 s38, 0x100000"); a("s_mov_b32 s39, 0x20000")
        a("s_memrealtime s[80:81]"); a("s_memtime s[82:83]"); a("s_waitcnt lgkmcnt(0)")
        a("s_lshl_b32 s40, s2, 2"); a(f"s_add_u32 s40, s40, s{S_W}"); a("s_lshl_b32 s40, s40, 8")
        a(f"v_mov_b32 v4, s40")
        a(f"v_cmp_eq_u32 vcc, 0, v{L}")
        a("s_and_saveexec_b64 s[42:43], vcc")
        slots = [(S_STAMP+2*i, i) for i in range(8)] + [(84, 8), (80, 9)] + [(S_STAMP+16+2*i, 16+i) for i in range(8)] + [(86, 24), (82, 25)]
        for s, i in slots:
            a(f"v_mov_b32 v6, s{s}"); a(f"v_mov_b32 v7, s{s+1}"); a(f"buffer_store_dwordx2 v[6:7], v4, s[36:39], 0 offen offset:{8*i}"); a("s_nop 1")
    a.label("L_end")
    a("s_endpgm")
    iend = len(a.l)
    a.label("L_fallback")
    a("s_waitcnt vmcnt(0) lgkmcnt(0)")
    a("s_barrier")
    a(f"s_mov_b32 s{S_FB}, 1")
    a(f"s_mov_b64 s[{S_FBM}:{S_FBM+1}], -1")
    a(f"s_mov_b32 s{SRD_K+2}, 0x10000")
    a(f"s_mov_b32 s{SRD_V+2}, 0x10000")
    a("s_mov_b32 s42, 0")
    MX = V_OWN
    for u in range(7): a(f"v_mov_b32 v{MX+u}, 0xff800000")
    a.label("L_fb1")
    a(m0(0)); a("s_add_u32 s43, s42, 128")
    for p in range(4): a(dma(SRD_K, 42, p, "f")[1])
    a(m0(4096)); a("s_nop 0")
    for p in range(4): a(dma(SRD_K, 43, p, "f")[1])
    a("s_waitcnt vmcnt(0)")
    for j in range(8): a(kread(0, j))
    a("s_waitcnt lgkmcnt(0)")
    for u in range(7):
        for j in range(8): a(qk(u, j, zero=True))
        a("s_nop 7")
        for r in range(0, 8, 2): a(f"v_max3_f32 v{MX+u}, v{MX+u}, v{V_S+r}, v{V_S+r+1}")
    a("s_add_u32 s42, s42, 0x2000")
    a("s_cmp_lt_u32 s42, 0x10000")
    a("s_cbranch_scc1 L_fb1")
    for sw in ("v_permlane16_swap_b32", "v_permlane32_swap_b32"):
        for u in range(7): a(f"v_mov_b32 v{MX+8+u}, v{MX+u}")
        a("s_nop 1")
        for u in range(7): a(f"{sw} v{MX+u}, v{MX+8+u}")
        a("s_nop 1")
        for u in range(7): a(f"v_max_f32 v{MX+u}, v{MX+u}, v{MX+8+u}")
    for u in range(7): a(f"ds_write_b32 v{T+3}, v{MX+u} offset:{LTAB(u)}")
    a("s_waitcnt lgkmcnt(0)")
    a("s_barrier")
    a(f"s_and_b32 s42, s{S_W}, 1"); a("s_lshl_b32 s42, s42, 9")
    a(f"s_lshr_b32 s43, s{S_W}, 1"); a(f"s_mul_i32 s43, s43, {REG}"); a("s_add_u32 s42, s42, s43")
    a(f"v_add_u32 v{T+4}, s42, v{T+4}")
    for h in range(2): a(f"ds_read_b128 {vr(V_S+4*h,4)}, v{T+4} offset:{256*h}")
    a("s_waitcnt lgkmcnt(0)")
    for h in range(2):
        a(f"v_max3_f32 v{V_KEEP+h}, v{V_S+4*h}, v{V_S+4*h+1}, v{V_S+4*h+2}")
        a(f"v_max_f32 v{V_KEEP+h}, v{V_KEEP+h}, v{V_S+4*h+3}")
    a("s_barrier")
    a("s_branch L_start")
    lin = a.l[:i1] + a.l[i0:i1] + a.l[i1:iend]
    bad = hz.check(lin) + hz.check(a.l[iend:])
    for b in bad: print("HAZARD", b, file=sys.stderr)
    a.raw('.section .rodata,"a"'); a.raw(".p2align 6"); a.raw(f".amdhsa_kernel {NAME}_kernel")
    a.raw("  .amdhsa_next_free_vgpr 512"); a.raw("  .amdhsa_next_free_sgpr 102"); a.raw("  .amdhsa_accum_offset 256")
    a.raw("  .amdhsa_group_segment_fixed_size 0"); a.raw("  .amdhsa_kernarg_size 48"); a.raw("  .amdhsa_user_sgpr_count 2")
    a.raw("  .amdhsa_user_sgpr_kernarg_segment_ptr 1"); a.raw("  .amdhsa_system_sgpr_workgroup_id_x 1"); a.raw(".end_amdhsa_kernel")
    return "\n".join(a.l) + "\n"

if __name__ == "__main__":
    ap = argparse.ArgumentParser()
    ap.add_argument("-o", default=f"kC.s")
    ap.add_argument("--diag", action="store_true"); ap.add_argument("--dbg", action="store_true")
    ap.add_argument("--spin", default=None); ap.add_argument("--flags", default=""); ap.add_argument("--sflags", default="sc1")
    ap.add_argument("--rot", default="pair"); ap.add_argument("--n0", type=int, default=12); ap.add_argument("--mix", type=int, default=1); ap.add_argument("--vsch", default="2,2,2,2,0")
    ap.add_argument("--t0extra", type=int, default=0); ap.add_argument("--pace", type=int, default=2); ap.add_argument("--bars", default=""); ap.add_argument("--fine", default="c"); ap.add_argument("--burst", type=int, default=8); ap.add_argument("--touch", type=int, default=0); ap.add_argument("--tpos", type=int, default=1)
    args = ap.parse_args()
    open(args.o, "w").write(gen(diag=args.diag, dbg=args.dbg, flags=args.flags, sflags=args.sflags, rot=args.rot, n0=args.n0, mix=args.mix, vsch=tuple(map(int, args.vsch.split(','))), t0extra=args.t0extra, pace=args.pace, fine=args.fine, burst=args.burst, touch=args.touch, tpos=args.tpos, bars=tuple(int(x) for x in args.bars.split(',') if x),
                                spin=tuple(map(int, args.spin.split(','))) if args.spin else None))
```

```python
import sys, struct, argparse
import hz
NAME = "standalone__gqa_softmax__near_ridge"
def f2u(x): return struct.unpack("<I", struct.pack("<f", x))[0]
def vr(b, n=1): return f"v{b}" if n == 1 else f"v[{b}:{b+n-1}]"
def ar(b, n=1): return f"a{b}" if n == 1 else f"a[{b}:{b+n-1}]"
def srd(b): return f"s[{b}:{b+3}]"

V_LANE, V_LIN, V_KEEP, V_VOFF, V_AK, V_AV = 0, 1, 2, 4, 8, 10
V_QA0, V_X0, V_QA1, V_X1, V_ST, V_CIR = 14, 15, 16, 17, 18, 19
V_S, V_P, V_CI, V_OWN, V_OTH = 20, 28, 32, 60, 116
A_O7, A_L, A_ONE, A_K, A_V, A_Q = 0, 28, 56, 60, 92, 144
V_XR, V_LW, V_LR, V_CHK = 4, 7, 8, 9
A_SEL = A_V + 12
def A_X(u): return A_Q + 16 * (u % 2)
S_W = 3
SRD_Q, SRD_K, SRD_V, SRD_O = 12, 16, 20, 24
S_MK0, S_MK1, S_MV0, S_MV1 = 28, 29, 30, 31
S_Y, S_FB, S_WB, S_CNT = 32, 33, 34, 35
S_SO = 44
S_STAMP = 48
S_FBM = 88
S_XR = 90
S_LWO = 93
REG = 40960
KB = lambda par: par * 8192
VB = lambda par: 16384 + par * 8192
XO = 32768
CI_AREA = 3 * REG + XO + 6144
LT0 = 39936
def LTAB(u): return u * 256 if u < 4 else REG + (u - 4) * 256
SCALE = (128 ** -0.5) * 1.4426950408889634
THRESH = 2.0 ** 40
M16 = "v_mfma_f32_16x16x32_bf16"

def Qf(u, c): return ar(A_Q + 16 * u + 4 * c, 4)
def Kf(j): return ar(A_K + 4 * j, 4)
def Vbase(dt, par): return A_V + 4 * dt if dt < 3 else A_V + 12 + 20 * par + 4 * (dt - 3)
def Ov(u, dt): return V_OWN + 8 * u + 4 * dt if dt < 2 else V_OTH + 20 * u + 4 * (dt - 2)
def Of(u, dt): return ar(A_O7 + 4 * u, 4) if dt == 7 else vr(Ov(u, dt), 4)
def qk(u, j, zero=False):
    kt, c = j // 4, j % 4
    S = vr(V_S + 4 * kt, 4)
    cc = S if c else ("0" if zero else vr(V_CI + 4 * u, 4))
    return f"{M16} {S}, {Kf(j)}, {Qf(u, c)}, {cc}"
def pv(u, dt, par, first):
    o = Of(u, dt)
    return f"{M16} {o}, {ar(Vbase(dt, par), 4)}, {vr(V_P, 4)}, {'0' if first else o}"
def sm(u, first):
    o = ar(A_L + 4 * u, 4)
    return f"{M16} {o}, {ar(A_ONE, 4)}, {vr(V_P, 4)}, {'0' if first else o}"
def ex(e): return f"v_exp_f32 v{V_S+e}, v{V_S+e}"
def cv(i): return f"v_cvt_pk_bf16_f32 v{V_P+i}, v{V_S+2*i}, v{V_S+2*i+1}"
def kread(par, j, base=None, dst=None):
    kt, c = j // 4, j % 4
    off = (KB(par) if base is None else base) + (c >> 1) * 4096 + kt * 2048
    return f"ds_read_b128 {dst or Kf(j)}, v{V_AK + (c & 1)} offset:{off}"
def vread(par, dt):
    b = Vbase(dt, par)
    return [f"ds_read_b64_tr_b16 {ar(b + 2*h, 2)}, v{V_AV + (dt & 3)} offset:{VB(par) + (dt >> 2) * 4096 + h * 2048}" for h in range(2)]

class Gen:
    def __init__(self):
        self.l = []; self.vq = []; self.lq = []; self.ldone = 0; self.free = False
    def __call__(self, s):
        if isinstance(s, list):
            for x in s: self(x)
        elif isinstance(s, tuple):
            if s[0] == "L": self.l.append("    " + s[1]); self.lq.append(s[2])
            elif s[0] == "V":
                tg = s[2]
                if isinstance(tg, tuple) and tg[0] in "KV" and tg[1] >= 2:
                    kv, x, hf = tg
                    need = ([("k", x-2)] if x > 2 else ["k0a", "k0b"]) if kv == "K" else [("v", x-2, dt) for dt in range(4*hf, 4*hf+4)]
                    for n in need:
                        idx = [i for i, t in enumerate(self.lq) if t == n]
                        assert idx and max(idx) < self.ldone, ("LDS WAR", tg, n)
                self.l.append("    " + s[1]); self.vq.append(s[2])
            elif s[0] == "W":
                parts = []
                for q, tags, nm, mx in ((self.vq, s[1], "vmcnt", 63), (self.lq, s[2], "lgkmcnt", 15)):
                    if tags is None: continue
                    if tags == "all": n = 0
                    else:
                        idx = [i for i, t in enumerate(q) if t in tags]
                        assert idx, ("no such tag", tags)
                        n = len(q) - 1 - max(idx)
                    if nm == "lgkmcnt": self.ldone = max(self.ldone, len(q) - min(n, mx))
                    parts.append(f"{nm}({min(n, mx)})")
                self.l.append("    s_waitcnt " + " ".join(parts))
        else:
            assert not (s.startswith("ds_") or s.startswith("buffer_")) or self.free, s
            self.l.append("    " + s)
    def label(self, s): self.l.append(s + ":")
    def c(self, s): self.l.append("    ; " + s)
    def raw(self, s): self.l.append(s)

def gen(diag=False, flags="", sflags="sc1", spin=None, n0=8, mix=1, vsch=(2, 2, 2, 2, 0), t0extra=4, pace=2, fine='c', cgap=14, wg=(4, 5, 6, 7, 8, 9, 10)):
    a = Gen()
    fl = (" " + flags) if flags else ""
    def dma(s, soff, p, tag): return ("V", f"buffer_load_dwordx4 v{V_VOFF+p}, {srd(s)}, s{soff} offen offset:{p*1024}{fl} lds", tag)
    def m0(off): return f"s_add_u32 m0, s{S_WB}, {off}"
    def Ls(texts, tag): return [("L", t, tag) for t in texts]
    nst = [0]
    def stamp(kind="c"):
        if diag and kind in fine and nst[0] < 8:
            a(f"s_memrealtime s[{S_STAMP+2*nst[0]}:{S_STAMP+2*nst[0]+1}]")
            a(f"s_memtime s[{S_STAMP+16+2*nst[0]}:{S_STAMP+16+2*nst[0]+1}]")
            nst[0] += 1
    GROUPS = (("V", 1), ("K", 0), ("K", 1), ("V", 0))
    stream = []
    for x in range(1, 10):
        for gi, (kv, hf) in enumerate(GROUPS):
            s_, buf = (SRD_K, KB(x & 1)) if kv == "K" else (SRD_V, VB(x & 1))
            for p in range(4):
                pre = []; so = S_SO
                if kv == "K" and hf == 0: so = S_Y
                if p == 0:
                    if gi == 0: pre += [("Y", x)]
                    pre += [m0(buf + hf * 4096)]
                    if kv == "V": pre += [f"s_or_b32 s{S_SO}, s{S_Y}, s{S_MV0+hf}"]
                    elif hf == 1: pre += [f"s_or_b32 s{S_SO}, s{S_Y}, 128"]
                    else: pre += [("CNT", x)]
                stream.append((pre, dma(s_, so, p, (kv, x, hf)), x))
    spos = [0]
    def expand(pre):
        out = []
        for y in pre:
            if isinstance(y, tuple) and y[0] == "Y":
                out += [f"s_add_u32 s{S_Y}, s{S_Y}, 0x2000"]
                if y[1] % 2 == 0 and y[1] >= 4:
                    out += [f"s_cmp_lt_u32 s{S_Y}, 0x10000", f"s_cselect_b32 s{SRD_K+2}, 0x10000, 0", f"s_mov_b32 s{SRD_V+2}, s{SRD_K+2}"]
            elif isinstance(y, tuple): out += ["s_nop 0"]
            else: out.append(y)
        return out
    def nextpre():
        pre, d, x = stream[spos[0]]
        stream[spos[0]] = ([], d, x)
        return expand(pre)
    def nextdma():
        pre, d, x = stream[spos[0]]
        spos[0] += 1
        return expand(pre) + [d]

    a.raw(open("cdna_kernels/%s.s.ref" % NAME).read().split("; Override launch")[0].rstrip())
    a.raw("; @launch grid=(256,1,1) block=(256,1,1) lds=163840")
    a.raw('.amdgcn_target "amdgcn-amd-amdhsa--gfx950"')
    a.raw(".text"); a.raw(f".globl {NAME}_kernel"); a.raw(".p2align 8"); a.raw(f".type {NAME}_kernel,@function")
    a.label(f"{NAME}_kernel")
    a("s_cmp_ge_u32 s2, 256")
    a("s_cbranch_scc1 L_end")
    a("s_load_dwordx8 s[4:11], s[0:1], 0")
    if diag:
        a("s_load_dwordx2 s[46:47], s[0:1], 40")
        stamp(fine[0])
    L = V_LANE
    T = V_S
    a(f"v_lshrrev_b32 v{T}, 6, v0")
    a(f"v_and_b32 v{L}, 63, v0")
    a(f"v_readfirstlane_b32 s{S_W}, v{T}")
    a("s_and_b32 s36, s2, 7")
    a("s_lshr_b32 s37, s2, 3")
    a("s_lshl_b32 s36, s36, 5")
    a("s_add_u32 s36, s36, s37")
    a("s_lshr_b32 s37, s36, 2")
    a("s_mul_i32 s38, s36, 28672")
    a("s_lshl_b32 s39, s37, 18")
    a(f"s_lshl_b32 s40, s{S_W}, 16")
    a("s_add_u32 s39, s39, s40")
    a(f"s_mul_i32 s{S_WB}, s{S_W}, {REG}")
    a(f"s_mov_b32 s{S_FB}, 0")
    a(f"s_mov_b64 s[{S_FBM}:{S_FBM+1}], 0")
    a(f"s_lshr_b32 s{S_MV0}, s{S_W}, 1"); a(f"s_lshl_b32 s{S_MV0}, s{S_MV0}, 7")
    a(f"s_xor_b32 s{S_MV1}, s{S_MV0}, 128")
    for base, num in ((SRD_Q, 28672), (SRD_O, 28672)):
        a(f"s_mov_b32 s{base+2}, {num}")
    for base in (SRD_Q, SRD_K, SRD_V, SRD_O): a(f"s_mov_b32 s{base+3}, 0x20000")
    a(f"s_lshl_b32 s40, s{S_W}, 13")
    a("s_add_u32 s41, s40, 128")
    a("s_movk_i32 s43, 128")
    a(f"s_cmp_eq_u32 s{S_W}, 3")
    a(f"s_cselect_b32 s45, 0x4000, 0")
    a(f"s_add_u32 s45, s45, s{S_WB}")
    a.label("L_start")
    a(f"s_mov_b32 s{SRD_K+2}, 0x10000")
    a(f"s_mov_b32 s{SRD_V+2}, 0x10000")
    a(f"s_mov_b32 s{S_Y}, 0")
    a(f"v_lshrrev_b32 v{T}, 4, v{L}")
    a(f"v_lshlrev_b32 v{T}, 1, v{T}")
    a(f"v_and_b32 v{T+1}, 7, v{L}")
    a(f"v_xor_b32 v{T}, v{T}, v{T+1}")
    a(f"v_lshlrev_b32 v{T}, 4, v{T}")
    a(f"v_lshrrev_b32 v{T+1}, 3, v{L}")
    a(f"v_lshl_add_u32 v{V_VOFF}, v{T+1}, 8, v{T}")
    a(f"v_xor_b32 v{V_VOFF+1}, 16, v{V_VOFF}")
    a(f"v_add_u32 v{V_VOFF+1}, 0x400, v{V_VOFF+1}")
    a(f"v_add_u32 v{V_VOFF+2}, 0x800, v{V_VOFF}")
    a(f"v_add_u32 v{V_VOFF+3}, 0x800, v{V_VOFF+1}")
    a(f"v_and_b32 v{T}, 15, v{L}")
    a(f"v_and_b32 v{T+1}, 6, v{T}")
    a(f"v_lshrrev_b32 v{T+2}, 3, v{T}")
    a(f"v_or_b32 v{T+1}, v{T+1}, v{T+2}")
    a(f"v_lshrrev_b32 v{T+2}, 4, v{L}")
    a(f"v_lshlrev_b32 v{T+2}, 1, v{T+2}")
    a(f"v_xor_b32 v{T+1}, v{T+1}, v{T+2}")
    a(f"v_lshlrev_b32 v{T+1}, 4, v{T+1}")
    a(f"v_lshl_add_u32 v{T+1}, v{T}, 7, v{T+1}")
    a(f"v_add_u32 v{V_AK}, s{S_WB}, v{T+1}")
    a(f"v_xor_b32 v{V_AK+1}, 16, v{V_AK}")
    a(f"v_lshl_add_u32 v{V_LIN}, v{L}, 4, s{S_WB}")
    CIW, QWB, SC = V_CI + 24, V_CI + 25, V_CI + 26
    a(f"v_mov_b32 v{SC}, {hex(f2u(SCALE))}")
    a(f"v_lshl_add_u32 v{QWB}, v{L}, 4, s45")
    a(f"s_lshl_b32 s42, s{S_W}, 9")
    a(f"v_lshlrev_b32 v{T+3}, 4, v{T}")
    a(f"v_add_u32 v{V_CIR}, {CI_AREA}, v{T+3}")
    a(f"v_add_u32 v{CIW}, s42, v{V_CIR}")
    a(f"v_lshlrev_b32 v{T+3}, 4, v{L}")
    a(f"v_add_u32 v{V_QA0}, {XO}, v{T+3}")
    a(f"v_add_u32 v{V_QA1}, {2*REG + XO}, v{T+3}")
    for j in range(1, 4):
        a(f"s_xor_b32 s42, s{S_W}, {j}")
        a(f"s_mul_i32 s{S_XR+j-1}, s42, {REG}")
    a(f"s_lshl_b32 s{S_LWO}, s{S_W}, 2")
    a(f"s_sub_u32 s{S_LWO}, s{S_LWO}, {CI_AREA - LT0}")
    a(f"v_lshrrev_b32 v{T+1}, 4, v{L}")
    a(f"v_lshrrev_b32 v{T+2}, 2, v{T}")
    a(f"v_cmp_eq_u32 vcc, v{T+1}, v{T+2}")
    a(f"v_and_b32 v{T+2}, 1, v{L}")
    a(f"v_lshlrev_b32 v{T+2}, 4, v{T+2}")
    a(f"v_mov_b32 v{T+3}, 0x3f80")
    a(f"v_lshlrev_b32 v{T+3}, v{T+2}, v{T+3}")
    a(f"v_cndmask_b32 v{T+3}, 0, v{T+3}, vcc")
    a(f"v_and_b32 v{T+2}, 2, v{L}")
    a(f"v_cmp_eq_u32 vcc, 0, v{T+2}")
    a(f"v_bfe_u32 v{T+4}, v{L}, 4, 1")
    a(f"v_lshrrev_b32 v{T+5}, 5, v{L}")
    a(f"v_cndmask_b32 v{V_X0}, 0, v{T+3}, vcc")
    a(f"v_sub_u32 v{V_X1}, v{T+3}, v{V_X0}")
    a(f"v_lshl_add_u32 v{T+4}, v{T+4}, 1, v{T+5}")
    a(f"v_lshlrev_b32 v{T+4}, 4, v{T+4}")
    a(f"v_lshl_add_u32 v{T+4}, v{T}, 8, v{T+4}")
    a(f"s_lshl_b32 s42, s{S_W}, 6")
    a(f"v_add_u32 v{V_ST}, s42, v{T+4}")
    a(f"v_and_b32 v{T+2}, 3, v{L}")
    a(f"v_cmp_eq_u32 vcc, 0, v{T+2}")
    a(f"v_lshrrev_b32 v{T}, 2, v{L}")
    a(f"v_and_b32 v{T+1}, 6, v{T}")
    a(f"v_lshrrev_b32 v{T+2}, 3, v{T}")
    a(f"v_or_b32 v{T+1}, v{T+1}, v{T+2}")
    a(f"v_bfe_u32 v{T+2}, v{L}, 1, 1")
    a(f"v_xor_b32 v{T+1}, v{T+1}, v{T+2}")
    a(f"s_and_b32 s42, s{S_W}, 1")
    a("s_lshl_b32 s42, s42, 2")
    a(f"v_xor_b32 v{T+1}, s42, v{T+1}")
    a(f"v_lshlrev_b32 v{T+1}, 4, v{T+1}")
    a(f"v_lshl_add_u32 v{T+1}, v{T}, 7, v{T+1}")
    a(f"v_and_b32 v{T+2}, 1, v{L}")
    a(f"v_lshl_add_u32 v{T+1}, v{T+2}, 3, v{T+1}")
    a(f"v_add_u32 v{V_AV}, s{S_WB}, v{T+1}")
    for k in range(1, 4): a(f"v_xor_b32 v{V_AV+k}, {32*k}, v{V_AV}")
    a(f"v_mov_b32 v{T+2}, 0x3f803f80")
    a(f"v_cndmask_b32 v{T+2}, 0, v{T+2}, vcc")
    for r in range(4): a(f"v_accvgpr_write_b32 a{A_ONE+r}, v{T+2}")

    a(m0(XO))
    a("s_waitcnt lgkmcnt(0)")
    def base(b, src, off): return [f"s_add_u32 s{b}, s{src}, s{off}", f"s_addc_u32 s{b+1}, s{src+1}, 0"]
    a(base(SRD_Q, 4, 38))
    qa = [(m0(XO), SRD_Q, 40, (0, 1), "Qa"), (m0(XO + 4096), SRD_Q, 41, (0, 1), "Qa"),
          (f"s_add_u32 m0, s45, {XO + 4096}", SRD_Q, 41, (2, 3), "Qb"), (f"s_add_u32 m0, s45, {XO}", SRD_Q, 40, (2, 3), "Qb")]
    ka = [(m0(KB(0)), SRD_K, S_Y, (0, 1), "K0a"), (m0(KB(0) + 4096), SRD_K, 43, (0, 1), "K0a"),
          (m0(KB(0) + 4096), SRD_K, 43, (2, 3), "K0b"), (m0(KB(0)), SRD_K, S_Y, (2, 3), "K0b")]
    seq = {0: qa + ka, 1: qa[:2] + ka[:2] + qa[2:] + ka[2:]}[mix]
    last = m0(XO)
    for i_, (mm, s_, so, ps, tag) in enumerate(seq):
        if mm != last:
            a(mm); last = mm
            if i_ == 1: a(base(SRD_K, 6, 39))
            else: a("s_nop 0")
        for p in ps: a(dma(s_, so, p, tag))
    a(base(SRD_V, 8, 39)); a(base(SRD_O, 10, 38))
    RAW, QP, TMP = V_OTH, V_OWN, V_OTH + 32
    left = [n0]
    def more(n=1):
        for _ in range(n):
            if left[0] > 0: a(nextdma()); left[0] -= 1
    v0 = [0]
    def v0dma(n=1):
        for _ in range(n):
            j = v0[0]
            if j >= 8: return
            if j % 4 == 0: a(m0(VB(0) + (j // 4) * 4096)); a("s_nop 0")
            a(dma(SRD_V, S_MV0 + j // 4, j % 4, ("V", 0, j // 4)))
            v0[0] += 1
    def qoff(h, c): return XO + (c >> 1) * 4096 + h * 2048 + (c & 1) * 1024
    def qw(h, c): return ("L", f"ds_write_b128 v{V_LIN if h == 0 else QWB}, {vr(QP + 16*h + 4*c, 4)} offset:{qoff(h, c)}", "qw")
    def scale_ops(j):
        o = []
        for r in range(4):
            o += [f"v_lshlrev_b32 v{TMP+2*r}, 16, v{RAW+4*j+r}", f"v_and_b32 v{TMP+2*r+1}, 0xffff0000, v{RAW+4*j+r}"]
        o += [f"v_pk_mul_f32 {vr(TMP+2*r,2)}, {vr(TMP+2*r,2)}, {vr(SC,2)} op_sel_hi:[1,0]" for r in range(4)]
        o += [f"v_cvt_pk_bf16_f32 v{QP+4*j+r}, v{TMP+2*r}, v{TMP+2*r+1}" for r in range(4)]
        return o
    def red_ops(h):
        S = V_S + 4*h; M = V_P + 2*h
        o = [f"v_max3_f32 v{M}, v{S}, v{S+1}, v{S+2}", f"v_max_f32 v{M}, v{M}, v{S+3}"]
        for sw in ("v_permlane16_swap_b32", "v_permlane32_swap_b32"):
            o += [f"v_mov_b32 v{M+1}, v{M}", f"{sw} v{M}, v{M+1}", f"v_max_f32 v{M}, v{M}, v{M+1}"]
        o += [f"v_mul_f32 v{M}, v{M}, v{SC}", f"v_cndmask_b32 v{M}, v{M}, v{V_KEEP+h}, s[{S_FBM}:{S_FBM+1}]"]
        o += [f"v_sub_f32 v{S+r}, 0, v{M}" for r in range(4)]
        return o
    def part(h, d0, d1):
        for c in range(4): a(("L", kread(0, 4*h + c, base=XO, dst=vr(RAW + 16*h + 4*c, 4)), ("raw", h, c)))
        if h == 0:
            a(("W", ["K0a"], None))
            for jj in range(4): a(("L", kread(0, jj), "k0a"))
        v0dma(d0)
        a(("W", None, [("raw", h, 0)]))
        a(scale_ops(4*h))
        a(("W", None, [("raw", h, 3), "k0a"]))
        S = vr(V_S + 4*h, 4)
        o1 = scale_ops(4*h + 1)
        for c in range(4):
            a(f"{M16} {S}, {Kf(c)}, {vr(RAW + 16*h + 4*c, 4)}, {S if c else '0'}")
            if c == 0: a(qw(h, 0))
            else: a(o1[:2]); del o1[:2]
        a(o1)
        a(qw(h, 1)); v0dma(d1)
        red = red_ops(h)
        for c in (2, 3):
            o = scale_ops(4*h + c)
            while o:
                a(o[:2]); del o[:2]
                if red: a(red.pop(0))
            a(qw(h, c))
        a(red)
        a(("L", f"ds_write_b128 v{CIW}, {S} offset:{256*h}", "ciw"))
    stamp("p")
    a(("W", ["Qa"], None))
    stamp(); stamp("p")
    part(0, vsch[0], vsch[1])
    v0dma(vsch[2])
    stamp("p")
    a(("W", ["Qb"], None))
    stamp("p")
    part(1, vsch[3], vsch[4])
    v0dma(8); more(pace)
    a(f"s_cmp_eq_u32 s{S_FB}, 1")
    stamp(); stamp("p")
    a(("W", None, "all"))
    a("s_barrier")
    a("s_cbranch_scc1 L_pass1")
    stamp(); stamp("p")
    def qreads(u):
        w, h = u // 2, u % 2
        ad = V_QA0 if w < 2 else V_QA1
        out = [f"ds_read_b128 {vr(V_CI+4*u,4)}, v{V_CIR} offset:{u*256}"]
        out += [f"ds_read_b128 {Qf(u,c)}, v{ad} offset:{(w&1)*REG + qoff(h, c) - XO}" for c in range(4)]
        return Ls(out, ("q", u))
    a(qreads(0))
    a(("W", ["K0b"], None))
    for jj in range(4, 8): a(("L", kread(0, jj), "k0b"))
    a(qreads(1))
    more()
    a(("W", None, [("q", 0)]))
    for j in range(8):
        if j == 4: a(("W", None, ["k0b"]))
        a(qk(0, j))
        if j in (2, 5, 7): more()
    more(64)
    a(("W", [("V", 0, 0)], None))
    for dt in range(4): a(Ls(vread(0, dt), ("v", 0, dt)))
    for e in range(5): a(ex(e))
    a(cv(0)); a(cv(1))
    stamp()

    pend = []
    def emit_step(u, par, first, fin, ext, post, dgaps=(), sgaps=()):
        order = [2, 3, 4, 5, 6, 7, -1, 0, 1] if fin else [0, 1, 2, 3, 4, 5, 6, 7, -1]
        for g in range(17):
            if g < 8:
                if not fin: a(qk((u + 1) % 7, g))
            else:
                dt = order[g - 8]
                a(pv(u, dt, par, first) if dt >= 0 else sm(u, first))
            if g in dgaps:
                a(list(pend)); pend.clear()
                a(nextdma())
            room = 2 - len(ext[g])
            if g in sgaps and room > 0:
                if not pend: pend.extend(nextpre())
                a(pend[:room]); del pend[:room]
            a(ext[g])
            if g < 3: a(ex(5 + g))
            elif g == 3:
                if fin: a("s_nop 0")
                a(cv(2)); a(cv(3))
            elif not fin:
                if 11 <= g <= 15: a(ex(g - 11))
                elif g == 16: a(cv(0)); a(cv(1))
            a(post[g])

    def tile(t):
        par = t & 1; nx = par ^ 1
        first = t == 0
        for u in range(7):
            ext = {g: [] for g in range(17)}; post = {g: [] for g in range(17)}
            dgaps, sgaps = {0: ((5, 8, 10), (4, 6, 7, 9)), 1: ((5, 10), (4, 6, 7, 8, 9)), 2: ((5, 8, 10), (4, 6, 7, 9)), 3: ((5, 10), (4, 6, 7, 8, 9)),
                            4: ((5, 9), (7,)), 5: ((5, 9), (7,)), 6: ((4, 7), (5,))}[u]
            if u == 0 and not first: ext[6].append(("W", None, "all"))
            if u == 3: ext[9].append(("W", [("V", t+1, 1)], None))
            if u == 4:
                for g, dt in zip((4, 6, 8, 10), (4, 5, 6, 7)): ext[g] += Ls(vread(nx, dt), ("v", t+1, dt))
                post[16].append(("W", [("K", t+1, 0), ("K", t+1, 1)], None))
            if u == 5:
                for i, g in enumerate((4, 6, 8, 10)): ext[g] += Ls([kread(nx, 2*i), kread(nx, 2*i+1)], ("k", t+1))
                post[16].append(("W", [("V", t+1, 0)], [("k", t+1)]))
                if first: post[16].append("s_barrier")
            if u == 6:
                for g, dt in zip((6, 8, 9, 10), (3, 0, 1, 2)): ext[g] += Ls(vread(nx, dt), ("v", t+1, dt))
            if t % 2 == 0 and t > 0 and u == 1: ext[8].append(f"s_sub_u32 s{S_CNT}, s{S_CNT}, 1")
            if first:
                if u == 0:
                    dgaps, sgaps = (), ()
                    ext[3].append(("W", [("V", 0, 1)], None))
                    for g, dt in zip((4, 5, 6, 7), (4, 5, 6, 7)): ext[g] += Ls(vread(0, dt), ("v", 0, dt))
                    post[7].append(("W", None, [("v", 0, 3)]))
                    q = qreads(2); ext[8] += q[0:2]; ext[9] += q[2:4]; ext[10] += q[4:5]
                    post[11].append(("W", None, [("v", 0, 7)]))
                elif u < 4:
                    q = qreads(u + 2); ext[6] += q[0:2]; ext[7] += q[2:4]; ext[9] += q[4:5]
                    dgaps, sgaps = (5, 8, 10), (4,)
                    if u == 3:
                        q = qreads(6)
                        for i in range(5): ext[11 + i] += q[i:i+1]
                if u == 4: dgaps = (5, 9, 13)
                if u < 5: post[16].append(("W", None, [("q", u + 2)]))
                xs = [(0, 1), (0, 13), (1, 1), (2, 1), (3, 1), (4, 1), (5, 1), (6, 1), (1, 13), (2, 13), (5, 13), (6, 13)][:t0extra]
                dgaps = tuple(sorted(set(dgaps) | set(g for (uu, g) in xs if uu == u)))
                stamp("t")
                if u == 0: a(("W", None, [("q", 1)]))
            emit_step(u, par, first, False, ext, post, dgaps, sgaps)

    a.c("tile 0"); tile(0)
    a(f"s_mov_b32 s{S_CNT}, 3")
    stamp()
    a.raw(".p2align 6")
    a.label("L_loop")
    i0 = len(a.l)
    bodies = []
    for t in range(1, 7):
        b = len(a.l); tile(t); bodies.append(a.l[b:])
    for t in (2, 4):
        for k in (0, 1):
            assert bodies[t + k] == bodies[k], [(x, y) for x, y in zip(bodies[k], bodies[t + k]) if x != y][:4]
    del a.l[i0:]
    a.l += bodies[4] + bodies[5]
    a(f"s_cmp_lg_u32 s{S_CNT}, 0")
    a("s_cbranch_scc1 L_loop")
    i1 = len(a.l)
    assert stream[spos[0]][2] >= 8, "stream not fully issued"
    stamp()

    def blk(u, j): return (u * 3 + j - 1) * 1024
    def pk(u, j):
        o = Ov(u, 2*j); p = Ov(u, 2*j+1) if j < 3 else Ov(u, 3)
        return [f"v_cvt_pk_bf16_f32 v{o+r}, v{(o, p)[r//2] + 2*(r%2)}, v{(o, p)[r//2] + 2*(r%2) + 1}" for r in range(4)]
    def acc(u): return [f"v_accvgpr_read_b32 v{Ov(u,3)+r}, a{A_O7+4*u+r}" for r in range(4)]
    def xw(u, j): return ("L", f"ds_write_b128 v{V_LIN}, {vr(Ov(u, 2*j), 4)} offset:{blk(u, j)}", ("xw", u))
    def lw(u): return ("L", f"ds_write_b32 v{V_LW}, a{A_L+4*u} offset:{LTAB(u)}", ("xw", u))
    def R(u):
        o = [("L", f"ds_read_b128 {ar(A_X(u) + 4*(j-1), 4)}, v{V_XR+j-1} offset:{blk(u, j)}", ("x", u)) for j in range(1, 4)]
        return o + [("L", f"ds_read_b128 {vr(V_CI+4*u,4)}, v{V_LR} offset:{LTAB(u)}", ("x", u))]
    def cmb(u):
        return [f"{M16} {Of(u, b)}, {ar(A_SEL + 2 - 2*b, 4)}, {ar(A_X(u) + 4*j, 4)}, {Of(u, b)}" for b in range(2) for j in range(3)]
    def ladd(u):
        c = V_CI + 4*u
        return [f"v_add_f32 v{c}, v{c}, v{c+1}", f"v_add_f32 v{c+2}, v{c+2}, v{c+3}", f"v_add_f32 v{c}, v{c}, v{c+2}"]
    def lrcp(u):
        c = V_CI + 4*u
        return [f"v_rcp_f32 v{c+1}, v{c}", f"v_add_f32 v{V_CHK}, v{V_CHK}, v{c}" if u else f"v_mov_b32 v{V_CHK}, v{c}"]
    def mul(u, b): return [f"v_mul_f32 v{Ov(u,b)+r}, v{Ov(u,b)+r}, v{V_CI+4*u+1}" for r in range(4)]
    def swp(u): return [f"v_permlane16_swap_b32 v{Ov(u,0)+r}, v{Ov(u,0)+2+r}" for r in range(2)]
    def sto(u): return f"s_movk_i32 s36, {u*4096}"
    def ST(u): return ("V", f"buffer_store_dwordx4 {vr(Ov(u,0),4)}, v{V_ST}, {srd(SRD_O)}, s36 offen{(' '+sflags) if sflags else ''}", "st")
    def seq(mf, fill):
        for i, m in enumerate(mf):
            if m: a(m)
            a(fill.get(i, []))
    a.c("tile 7")
    for u in range(6):
        stamp("e")
        w = u - 1; f = u - 2
        mf = [qk(u + 1, g) for g in range(8)] + (cmb(f) if f >= 0 else [None] * 6) + [pv(u, dt, 1, False) for dt in range(8)] + [sm(u, False)]
        F = {i: [] for i in range(23)}
        if f >= 0:
            r = R(f); F[0] += r[0:2]; F[1] += r[2:4]
        if w >= 0: F[2 if f >= 0 else 3] += [lw(w)]
        for g in range(3): F[g] += [ex(5 + g)]
        F[3] += [cv(2), cv(3)]
        if u == 0:
            F[4] += [("W", "all", "all"), f"v_add_u32 v{V_LW}, s{S_LWO}, v{V_CIR}"]
            F[5] += [f"v_lshl_add_u32 v{V_XR+j}, v{L}, 4, s{S_XR+j}" for j in range(2)]
            F[6] += [f"v_lshl_add_u32 v{V_XR+2}, v{L}, 4, s{S_XR+2}", f"v_subrev_u32 v{V_LR}, {CI_AREA - LT0}, v{V_CIR}"]
            sel = [f"v_accvgpr_write_b32 a{A_SEL+r}, {x}" for r, x in enumerate(("0", "0", f"v{V_X0}", f"v{V_X1}", "0", "0"))]
            F[7] += sel[0:2]; F[14] += sel[2:4]; F[15] += sel[4:6]
        if f >= 0:
            F[4] += pk(w, 1); F[5] += [xw(w, 1)]; F[6] += pk(w, 2); F[7] += acc(w) + [("W", None, [("x", f)])]
            F[8] += [xw(w, 2)]; F[9] += pk(w, 3); F[10] += ladd(f); F[11] += lrcp(f); F[12] += [xw(w, 3)]
            F[13] += [ex(0)]; F[14] += [ex(1)]; F[15] += [ex(2)]; F[16] += [ex(3)]
            F[17] += mul(f, 0); F[18] += mul(f, 1); F[19] += pk(f, 0)
            F[20] += [("W", None, [("xw", w)]), "s_barrier", ex(4)]
            F[21] += swp(f) + [sto(f)]
            F[22] += [ST(f), cv(0), cv(1)]
        else:
            if w >= 0:
                F[4] += pk(w, 1); F[5] += [xw(w, 1)]; F[6] += pk(w, 2); F[7] += acc(w)
                F[14] += [xw(w, 2)]; F[15] += pk(w, 3); F[17] += [xw(w, 3)]
            for i, g in enumerate((17, 18, 19, 20, 21) if w < 0 else (16, 18, 19, 20, 21)): F[g] += [ex(i)]
            F[22] += [cv(0), cv(1)]
            if w >= 0: F[22] += [("W", None, [("xw", w)]), "s_barrier"]
        seq(mf, F)
    stamp("e")
    a(R(4))
    a([ex(5), ex(6), ex(7)] + pk(5, 1)[:1] + [cv(2), cv(3)] + pk(5, 1)[1:])
    mf = [pv(6, dt, 1, False) for dt in range(2, 8)] + [sm(6, False), pv(6, 0, 1, False), pv(6, 1, 1, False)] + cmb(4)
    F = {0: [xw(5, 1)], 1: [lw(5)] + pk(5, 2), 2: acc(5), 3: [xw(5, 2)], 4: pk(5, 3), 5: [("W", None, [("x", 4)])] + ladd(4), 6: [xw(5, 3)], 7: pk(6, 1), 8: lrcp(4),
         9: [xw(6, 1)], 10: pk(6, 2), 11: acc(6), 12: [xw(6, 2)], 13: pk(6, 3), 14: [lw(6), xw(6, 3)]}
    seq(mf, F)
    a(mul(4, 0))
    a(("W", None, [("xw", 6)])); a("s_barrier")
    stamp()
    a(R(5)); a(R(6))
    a(mul(4, 1)); a(pk(4, 0)); a(sto(4)); a("s_nop 0"); a(swp(4)); a("s_nop 0"); a(ST(4))
    a(("W", None, [("x", 5)]))
    F = {0: ladd(5), 1: lrcp(5), 2: [("W", None, [("x", 6)])] + ladd(6), 3: lrcp(6), 4: [f"s_mov_b32 s37, {hex(f2u(THRESH))}", f"s_cmp_lg_u32 s{S_FB}, 0"],
         5: [f"v_cmp_ngt_f32 vcc, s37, v{V_CHK}", sto(5)], 6: mul(5, 0)[:2], 7: mul(5, 0)[2:], 8: ["s_nop 1"], 9: mul(5, 1), 10: pk(5, 0), 11: mul(6, 0)[:2] + swp(5)}
    seq(cmb(5) + cmb(6), F)
    a("s_nop 0"); a(ST(5)); a(mul(6, 0)[2:]); a(sto(6)); a(mul(6, 1)); a(pk(6, 0)); a("s_nop 1"); a(swp(6)); a("s_nop 0"); a(ST(6))
    a("s_cbranch_scc1 L_ok")
    a("s_cbranch_vccnz L_fallback")
    a.label("L_ok")
    a.free = True
    if diag and spin:
        i, j, mult = spin
        a("s_waitcnt vmcnt(0)")
        a("s_memrealtime s[80:81]"); a("s_waitcnt lgkmcnt(0)")
        sj = 80 if j == 8 else S_STAMP + 2*j
        a(f"s_sub_u32 s84, s{sj}, s{S_STAMP+2*i}"); a(f"s_mul_i32 s84, s84, {mult}"); a("s_min_u32 s84, s84, 20000")
        a.label("L_spin")
        a("s_memrealtime s[82:83]"); a("s_waitcnt lgkmcnt(0)")
        a("s_sub_u32 s85, s82, s80"); a("s_cmp_lt_u32 s85, s84"); a("s_cbranch_scc1 L_spin")
    elif diag:
        a("s_memrealtime s[84:85]"); a("s_memtime s[86:87]")
        a("s_waitcnt vmcnt(0)")
        a("s_mov_b32 s36, s46"); a("s_mov_b32 s37, s47"); a("s_mov_b32 s38, 0x100000"); a("s_mov_b32 s39, 0x20000")
        a("s_memrealtime s[80:81]"); a("s_memtime s[82:83]"); a("s_waitcnt lgkmcnt(0)")
        a("s_lshl_b32 s40, s2, 2"); a(f"s_add_u32 s40, s40, s{S_W}"); a("s_lshl_b32 s40, s40, 8")
        a(f"v_mov_b32 v4, s40")
        a(f"v_cmp_eq_u32 vcc, 0, v{L}")
        a("s_and_saveexec_b64 s[42:43], vcc")
        slots = [(S_STAMP+2*i, i) for i in range(8)] + [(84, 8), (80, 9)] + [(S_STAMP+16+2*i, 16+i) for i in range(8)] + [(86, 24), (82, 25)]
        for s, i in slots:
            a(f"v_mov_b32 v6, s{s}"); a(f"v_mov_b32 v7, s{s+1}"); a(f"buffer_store_dwordx2 v[6:7], v4, s[36:39], 0 offen offset:{8*i}"); a("s_nop 1")
    a.label("L_end")
    a("s_endpgm")
    iend = len(a.l)
    a.label("L_fallback")
    a("s_waitcnt vmcnt(0) lgkmcnt(0)")
    a("s_barrier")
    a(f"s_mov_b32 s{S_FB}, 1")
    a("s_branch L_start")
    a.label("L_pass1")
    for u in range(7):
        for x in qreads(u)[1:]: a(x[1])
        a("s_waitcnt lgkmcnt(0)")
    a("s_waitcnt vmcnt(0)")
    a("s_barrier")
    a("s_mov_b32 s42, 0")
    MX = V_OWN
    for u in range(7): a(f"v_mov_b32 v{MX+u}, 0xff800000")
    a.label("L_fb1")
    a(m0(0)); a(f"s_add_u32 s{S_SO}, s42, 128")
    for p in range(4): a(dma(SRD_K, 42, p, "f")[1])
    a(m0(4096)); a("s_nop 0")
    for p in range(4): a(dma(SRD_K, S_SO, p, "f")[1])
    a("s_waitcnt vmcnt(0)")
    for j in range(8): a(kread(0, j))
    a("s_waitcnt lgkmcnt(0)")
    for u in range(7):
        for j in range(8): a(qk(u, j, zero=True))
        a("s_nop 7")
        for r in range(0, 8, 2): a(f"v_max3_f32 v{MX+u}, v{MX+u}, v{V_S+r}, v{V_S+r+1}")
    a("s_add_u32 s42, s42, 0x2000")
    a("s_cmp_lt_u32 s42, 0x10000")
    a("s_cbranch_scc1 L_fb1")
    for sw in ("v_permlane16_swap_b32", "v_permlane32_swap_b32"):
        for u in range(7): a(f"v_mov_b32 v{MX+8+u}, v{MX+u}")
        a("s_nop 1")
        for u in range(7): a(f"{sw} v{MX+u}, v{MX+8+u}")
        a("s_nop 1")
        for u in range(7): a(f"v_max_f32 v{MX+u}, v{MX+u}, v{MX+8+u}")
    a(f"v_add_u32 v{V_P}, s{S_LWO}, v{V_CIR}")
    for u in range(7): a(f"ds_write_b32 v{V_P}, v{MX+u} offset:{LTAB(u)}")
    a("s_waitcnt lgkmcnt(0)")
    a("s_barrier")
    a(f"s_and_b32 s42, s{S_W}, 1"); a("s_lshl_b32 s42, s42, 9")
    a(f"s_lshr_b32 s36, s{S_W}, 1"); a(f"s_mul_i32 s36, s36, {REG}"); a("s_add_u32 s42, s42, s36")
    a(f"s_sub_u32 s42, s42, {CI_AREA - LT0}")
    a(f"v_add_u32 v{V_P}, s42, v{V_CIR}")
    for h in range(2): a(f"ds_read_b128 {vr(V_S+4*h,4)}, v{V_P} offset:{256*h}")
    a("s_waitcnt lgkmcnt(0)")
    for h in range(2):
        a(f"v_max3_f32 v{V_KEEP+h}, v{V_S+4*h}, v{V_S+4*h+1}, v{V_S+4*h+2}")
        a(f"v_max_f32 v{V_KEEP+h}, v{V_KEEP+h}, v{V_S+4*h+3}")
    a(f"s_mov_b32 s{S_FB}, 2")
    a(f"s_mov_b64 s[{S_FBM}:{S_FBM+1}], -1")
    a("s_barrier")
    a("s_branch L_start")
    lin = a.l[:i1] + a.l[i0:i1] + a.l[i1:iend]
    bad = hz.check(lin) + hz.check(a.l[iend:])
    for b in bad: print("HAZARD", b, file=sys.stderr)
    a.raw('.section .rodata,"a"'); a.raw(".p2align 6"); a.raw(f".amdhsa_kernel {NAME}_kernel")
    a.raw("  .amdhsa_next_free_vgpr 512"); a.raw("  .amdhsa_next_free_sgpr 102"); a.raw("  .amdhsa_accum_offset 256")
    a.raw("  .amdhsa_group_segment_fixed_size 0"); a.raw("  .amdhsa_kernarg_size 48"); a.raw("  .amdhsa_user_sgpr_count 2")
    a.raw("  .amdhsa_user_sgpr_kernarg_segment_ptr 1"); a.raw("  .amdhsa_system_sgpr_workgroup_id_x 1"); a.raw(".end_amdhsa_kernel")
    return "\n".join(a.l) + "\n"

if __name__ == "__main__":
    ap = argparse.ArgumentParser()
    ap.add_argument("-o", default=f"kE.s")
    ap.add_argument("--diag", action="store_true")
    ap.add_argument("--spin", default=None); ap.add_argument("--flags", default=""); ap.add_argument("--sflags", default="sc1")
    ap.add_argument("--n0", type=int, default=8); ap.add_argument("--mix", type=int, default=1); ap.add_argument("--vsch", default="2,2,2,2,0")
    ap.add_argument("--t0extra", type=int, default=4); ap.add_argument("--pace", type=int, default=2); ap.add_argument("--fine", default="c")
    ap.add_argument("--cgap", type=int, default=14); ap.add_argument("--wg", default="4,5,6,7,8,9,10")
    args = ap.parse_args()
    tup = lambda s: tuple(map(int, s.split(',')))
    open(args.o, "w").write(gen(diag=args.diag, flags=args.flags, sflags=args.sflags, n0=args.n0, mix=args.mix, vsch=tup(args.vsch), t0extra=args.t0extra,
                                pace=args.pace, fine=args.fine, cgap=args.cgap, wg=tup(args.wg), spin=tup(args.spin) if args.spin else None))
```

```python
import sys, struct, argparse
import hz
NAME = "standalone__gqa_softmax__near_ridge"
def f2u(x): return struct.unpack("<I", struct.pack("<f", x))[0]
def vr(b, n=1): return f"v{b}" if n == 1 else f"v[{b}:{b+n-1}]"
def ar(b, n=1): return f"a{b}" if n == 1 else f"a[{b}:{b+n-1}]"
def srd(b): return f"s[{b}:{b+3}]"

V_LANE, V_LIN, V_KEEP, V_VOFF, V_AK, V_AV = 0, 1, 2, 4, 8, 10
V_QA0, V_X0, V_QA1, V_X1, V_ST, V_CIR = 14, 15, 16, 17, 18, 19
V_S, V_P, V_CI, V_OWN, V_OTH = 20, 28, 32, 60, 116
A_O7, A_L, A_ONE, A_K, A_V, A_Q = 0, 28, 56, 60, 92, 144
V_XR, V_LW, V_LR, V_CHK = 4, 7, 8, 9
A_SEL = A_V + 12
def A_X(u): return A_Q + 16 * (u % 2)
S_W = 3
SRD_Q, SRD_K, SRD_V, SRD_O = 12, 16, 20, 24
S_MK0, S_MK1, S_MV0, S_MV1 = 28, 29, 30, 31
S_Y, S_FB, S_WB, S_CNT = 32, 33, 34, 35
S_SO = 44
S_STAMP = 48
S_FBM = 88
S_XR = 90
S_LWO = 93
REG = 40960
KB = lambda par: par * 8192
VB = lambda par: 16384 + par * 8192
XO = 32768
CI_AREA = 3 * REG + XO + 6144
LT0 = 39936
def LTAB(u): return u * 256 if u < 4 else REG + (u - 4) * 256
SCALE = (128 ** -0.5) * 1.4426950408889634
THRESH = 2.0 ** 40
M16 = "v_mfma_f32_16x16x32_bf16"

def Qf(u, c): return ar(A_Q + 16 * u + 4 * c, 4)
def Kf(j): return ar(A_K + 4 * j, 4)
def Vbase(dt, par): return A_V + 4 * dt if dt < 3 else A_V + 12 + 20 * par + 4 * (dt - 3)
def Ov(u, dt): return V_OWN + 8 * u + 4 * dt if dt < 2 else V_OTH + 20 * u + 4 * (dt - 2)
def Of(u, dt): return ar(A_O7 + 4 * u, 4) if dt == 7 else vr(Ov(u, dt), 4)
def qk(u, j, zero=False):
    kt, c = j // 4, j % 4
    S = vr(V_S + 4 * kt, 4)
    cc = S if c else ("0" if zero else vr(V_CI + 4 * u, 4))
    return f"{M16} {S}, {Kf(j)}, {Qf(u, c)}, {cc}"
def pv(u, dt, par, first):
    o = Of(u, dt)
    return f"{M16} {o}, {ar(Vbase(dt, par), 4)}, {vr(V_P, 4)}, {'0' if first else o}"
def sm(u, first):
    o = ar(A_L + 4 * u, 4)
    return f"{M16} {o}, {ar(A_ONE, 4)}, {vr(V_P, 4)}, {'0' if first else o}"
def ex(e): return f"v_exp_f32 v{V_S+e}, v{V_S+e}"
def cv(i): return f"v_cvt_pk_bf16_f32 v{V_P+i}, v{V_S+2*i}, v{V_S+2*i+1}"
def kread(par, j, base=None, dst=None):
    kt, c = j // 4, j % 4
    off = (KB(par) if base is None else base) + (c >> 1) * 4096 + kt * 2048
    return f"ds_read_b128 {dst or Kf(j)}, v{V_AK + (c & 1)} offset:{off}"
def vread(par, dt):
    b = Vbase(dt, par)
    return [f"ds_read_b64_tr_b16 {ar(b + 2*h, 2)}, v{V_AV + (dt & 3)} offset:{VB(par) + (dt >> 2) * 4096 + h * 2048}" for h in range(2)]

class Gen:
    def __init__(self):
        self.l = []; self.vq = []; self.lq = []; self.ldone = 0; self.free = False
    def __call__(self, s):
        if isinstance(s, list):
            for x in s: self(x)
        elif isinstance(s, tuple):
            if s[0] == "L": self.l.append("    " + s[1]); self.lq.append(s[2])
            elif s[0] == "V":
                tg = s[2]
                if isinstance(tg, tuple) and tg[0] in "KV" and tg[1] >= 2:
                    kv, x, hf = tg
                    need = ([("k", x-2)] if x > 2 else ["k0a", "k0b"]) if kv == "K" else [("v", x-2, dt) for dt in range(4*hf, 4*hf+4)]
                    for n in need:
                        idx = [i for i, t in enumerate(self.lq) if t == n]
                        assert idx and max(idx) < self.ldone, ("LDS WAR", tg, n)
                self.l.append("    " + s[1]); self.vq.append(s[2])
            elif s[0] == "W":
                parts = []
                for q, tags, nm, mx in ((self.vq, s[1], "vmcnt", 63), (self.lq, s[2], "lgkmcnt", 15)):
                    if tags is None: continue
                    if tags == "all": n = 0
                    else:
                        idx = [i for i, t in enumerate(q) if t in tags]
                        assert idx, ("no such tag", tags)
                        n = len(q) - 1 - max(idx)
                    if nm == "lgkmcnt": self.ldone = max(self.ldone, len(q) - min(n, mx))
                    parts.append(f"{nm}({min(n, mx)})")
                self.l.append("    s_waitcnt " + " ".join(parts))
        else:
            assert not (s.startswith("ds_") or s.startswith("buffer_")) or self.free, s
            self.l.append("    " + s)
    def label(self, s): self.l.append(s + ":")
    def c(self, s): self.l.append("    ; " + s)
    def raw(self, s): self.l.append(s)

def sizes(lines):
    import subprocess, tempfile, os, re
    with tempfile.TemporaryDirectory() as d:
        src = [l for l in lines]
        src.insert(src.index("L_end:"), "L_pg1:\nL_pg2:")
        open(d + "/t.s", "w").write("\n".join(src) + "\n")
        subprocess.run(["clang", "-x", "assembler", "-target", "amdgcn-amd-amdhsa", "-mcpu=gfx950", "-c", d + "/t.s", "-o", d + "/t.o"], check=True)
        out = subprocess.run(["llvm-objdump", "-d", "--mcpu=gfx950", d + "/t.o"], capture_output=True, text=True).stdout
    return [(int(m.group(2), 16), m.group(1)) for m in re.finditer(r"^\t(\S+).*// ([0-9A-F]+):", out, re.M)]
def add_stubs(lines, head):
    lines = list(lines)
    for pg in (1, 2):
        tmp = [l for l in lines if not l.startswith("L_pg")]
        ins = [x for x in sizes(tmp) if x[0] >= head]
        mf = [off for off, mn in ins if mn.startswith("v_mfma")]
        target = (pg + (1 if head else 0)) * 4096
        k = next(i for i, off in enumerate(mf) if off >= target - 8)
        assert mf[k] + 8 < target + 60, (mf[k], target)
        idx = [i for i, l in enumerate(lines) if l.strip().startswith("v_mfma")][k]
        lines[idx + 1:idx + 1] = [f"L_pg{pg}:", "    s_cbranch_execz L_back"]
    return lines

def gen(diag=False, flags="", sflags="nt", spin=None, n0=8, mix=1, vsch=(2, 2, 2, 2, 0), t0extra=4, pace=2, fine='c', cgap=14, pref=1, align=12, head=3584, warm=1, wg=(4, 5, 6, 7, 8, 9, 10)):
    a = Gen()
    fl = (" " + flags) if flags else ""
    def dma(s, soff, p, tag): return ("V", f"buffer_load_dwordx4 v{V_VOFF+p}, {srd(s)}, s{soff} offen offset:{p*1024}{fl} lds", tag)
    def m0(off): return f"s_add_u32 m0, s{S_WB}, {off}"
    def Ls(texts, tag): return [("L", t, tag) for t in texts]
    nst = [0]
    def stamp(kind="c"):
        if diag and kind in fine and nst[0] < 8:
            a(f"s_memrealtime s[{S_STAMP+2*nst[0]}:{S_STAMP+2*nst[0]+1}]")
            a(f"s_memtime s[{S_STAMP+16+2*nst[0]}:{S_STAMP+16+2*nst[0]+1}]")
            nst[0] += 1
    GROUPS = (("V", 1), ("K", 0), ("K", 1), ("V", 0))
    stream = []
    for x in range(1, 10):
        for gi, (kv, hf) in enumerate(GROUPS):
            s_, buf = (SRD_K, KB(x & 1)) if kv == "K" else (SRD_V, VB(x & 1))
            for p in range(4):
                pre = []; so = S_SO
                if kv == "K" and hf == 0: so = S_Y
                if p == 0:
                    if gi == 0: pre += [("Y", x)]
                    pre += [m0(buf + hf * 4096)]
                    if kv == "V": pre += [f"s_or_b32 s{S_SO}, s{S_Y}, s{S_MV0+hf}"]
                    elif hf == 1: pre += [f"s_or_b32 s{S_SO}, s{S_Y}, 128"]
                    else: pre += [("CNT", x)]
                stream.append((pre, dma(s_, so, p, (kv, x, hf)), x))
    spos = [0]
    def expand(pre):
        out = []
        for y in pre:
            if isinstance(y, tuple) and y[0] == "Y":
                out += [f"s_add_u32 s{S_Y}, s{S_Y}, 0x2000"]
                if y[1] % 2 == 0 and y[1] >= 4:
                    out += [f"s_cmp_lt_u32 s{S_Y}, 0x10000", f"s_cselect_b32 s{SRD_K+2}, 0x10000, 0", f"s_mov_b32 s{SRD_V+2}, s{SRD_K+2}"]
            elif isinstance(y, tuple): out += ["s_nop 0"]
            else: out.append(y)
        return out
    def nextpre():
        pre, d, x = stream[spos[0]]
        stream[spos[0]] = ([], d, x)
        return expand(pre)
    def nextdma():
        pre, d, x = stream[spos[0]]
        spos[0] += 1
        return expand(pre) + [d]

    a.raw(open("cdna_kernels/%s.s.ref" % NAME).read().split("; Override launch")[0].rstrip())
    a.raw("; @launch grid=(256,1,1) block=(256,1,1) lds=163840")
    a.raw('.amdgcn_target "amdgcn-amd-amdhsa--gfx950"')
    a.raw(".text"); a.raw(f".globl {NAME}_kernel"); a.raw(f".p2align {align}"); a.raw(f".fill {head // 4}, 4, 0xbf810000"); a.raw(".p2align 8"); a.raw(f".type {NAME}_kernel,@function")
    a.label(f"{NAME}_kernel")
    a("s_load_dwordx8 s[4:11], s[0:1], 0")
    a("s_cmp_ge_u32 s2, 256")
    a("s_cbranch_scc1 L_end")
    if diag:
        a("s_load_dwordx2 s[46:47], s[0:1], 40")
        stamp(fine[0])
    L = V_LANE
    T = V_S
    a(f"v_lshrrev_b32 v{T}, 6, v0")
    a(f"v_and_b32 v{L}, 63, v0")
    a(f"v_readfirstlane_b32 s{S_W}, v{T}")
    a("s_and_b32 s36, s2, 7")
    a("s_lshr_b32 s37, s2, 3")
    a("s_lshl_b32 s36, s36, 5")
    a("s_add_u32 s36, s36, s37")
    a("s_mul_i32 s38, s36, 28672")
    a(f"s_mul_i32 s{S_WB}, s{S_W}, {REG}")
    a(f"s_movk_i32 s{SRD_Q+2}, 28672")
    a(f"s_mov_b32 s{SRD_Q+3}, 0x20000")
    a(f"s_lshl_b32 s40, s{S_W}, 13")
    a(f"s_mov_b32 s{S_FB}, 0")
    a(f"s_mov_b64 s[{S_FBM}:{S_FBM+1}], 0")
    a.label("L_start")
    a(f"v_lshrrev_b32 v{T}, 3, v{L}")
    a(f"v_and_b32 v{T+1}, 6, v{T}")
    a(f"v_xor_b32 v{T+1}, v{T+1}, v{L}")
    a(f"v_and_b32 v{T+1}, 7, v{T+1}")
    a(f"v_lshlrev_b32 v{T+1}, 4, v{T+1}")
    a(f"v_lshl_add_u32 v{V_VOFF}, v{T}, 8, v{T+1}")
    a(f"v_xor_b32 v{V_VOFF+1}, 16, v{V_VOFF}")
    a(f"v_add_u32 v{V_VOFF+1}, 0x400, v{V_VOFF+1}")
    a(m0(XO))
    a("s_add_u32 s41, s40, 128")
    a("s_lshr_b32 s39, s36, 2")
    a("s_lshl_b32 s39, s39, 18")
    a(f"s_lshl_b32 s42, s{S_W}, 16")
    a("s_add_u32 s39, s39, s42")
    a(f"s_mov_b32 s{SRD_K+2}, 0x10000")
    a(f"s_mov_b32 s{SRD_K+3}, 0x20000")
    a(f"s_mov_b32 s{S_Y}, 0")
    a("s_movk_i32 s43, 128")
    stamp("k")
    a("s_waitcnt lgkmcnt(0)")
    stamp("k")
    def base(b, src, off): return [f"s_add_u32 s{b}, s{src}, s{off}", f"s_addc_u32 s{b+1}, s{src+1}, 0"]
    a(base(SRD_Q, 4, 38))
    for p in (0, 1): a(dma(SRD_Q, 40, p, "Qa"))
    a(m0(XO + 4096)); a(base(SRD_K, 6, 39))
    for p in (0, 1): a(dma(SRD_Q, 41, p, "Qa"))
    if pref:
        a("s_getpc_b64 s[94:95]")
        a.label("L_pc")
        a(f"s_lshl_b32 s42, s{S_W}, 5")
        a("s_add_u32 s42, s42, s37")
        a("s_lshl_b32 s42, s42, 7")
        a(f"s_sub_u32 s94, s94, L_pc-{NAME}_kernel")
        a("s_subb_u32 s95, s95, 0")
        a("s_load_dword s96, s[94:95], s42")
        if pref > 1:
            a("s_add_u32 s42, s42, 0x4000")
            a("s_load_dword s97, s[94:95], s42")
    a(m0(KB(0)))
    a(f"s_cmp_eq_u32 s{S_W}, 3")
    for p in (0, 1): a(dma(SRD_K, S_Y, p, "K0a"))
    a(f"s_cselect_b32 s45, 0x4000, 0")
    a(m0(KB(0) + 4096))
    a(f"s_add_u32 s45, s45, s{S_WB}")
    for p in (0, 1): a(dma(SRD_K, 43, p, "K0a"))
    a(f"v_add_u32 v{V_VOFF+2}, 0x800, v{V_VOFF}")
    a(f"v_add_u32 v{V_VOFF+3}, 0x800, v{V_VOFF+1}")
    a(f"s_add_u32 m0, s45, {XO + 4096}"); a("s_nop 0")
    for p in (2, 3): a(dma(SRD_Q, 41, p, "Qb"))
    a(f"s_add_u32 m0, s45, {XO}"); a("s_nop 0")
    for p in (2, 3): a(dma(SRD_Q, 40, p, "Qb"))
    a(base(SRD_V, 8, 39)); a(base(SRD_O, 10, 38))
    a(f"s_mov_b32 s{SRD_V+2}, 0x10000"); a(f"s_mov_b32 s{SRD_V+3}, 0x20000")
    a(f"s_movk_i32 s{SRD_O+2}, 28672"); a(f"s_mov_b32 s{SRD_O+3}, 0x20000")
    if warm:
        a("s_mov_b64 exec, 0")
        for w in (1, 2):
            a(f"s_cmp_eq_u32 s{S_W}, {w}")
            a(f"s_cbranch_scc1 L_pg{w}")
        a.label("L_back")
        a("s_mov_b64 exec, -1")
    a(f"s_lshr_b32 s{S_MV0}, s{S_W}, 1"); a(f"s_lshl_b32 s{S_MV0}, s{S_MV0}, 7")
    a(f"s_xor_b32 s{S_MV1}, s{S_MV0}, 128")
    a(f"v_and_b32 v{T}, 15, v{L}")
    a(f"v_and_b32 v{T+1}, 6, v{T}")
    a(f"v_lshrrev_b32 v{T+2}, 3, v{T}")
    a(f"v_or_b32 v{T+1}, v{T+1}, v{T+2}")
    a(f"v_lshrrev_b32 v{T+2}, 4, v{L}")
    a(f"v_lshlrev_b32 v{T+2}, 1, v{T+2}")
    a(f"v_xor_b32 v{T+1}, v{T+1}, v{T+2}")
    a(f"v_lshlrev_b32 v{T+1}, 4, v{T+1}")
    a(f"v_lshl_add_u32 v{T+1}, v{T}, 7, v{T+1}")
    a(f"v_add_u32 v{V_AK}, s{S_WB}, v{T+1}")
    a(f"v_xor_b32 v{V_AK+1}, 16, v{V_AK}")
    a(f"v_lshl_add_u32 v{V_LIN}, v{L}, 4, s{S_WB}")
    CIW, QWB, SC = V_CI + 24, V_CI + 25, V_CI + 26
    a(f"v_mov_b32 v{SC}, {hex(f2u(SCALE))}")
    a(f"v_lshl_add_u32 v{QWB}, v{L}, 4, s45")
    a(f"s_lshl_b32 s42, s{S_W}, 9")
    a(f"v_lshlrev_b32 v{T+3}, 4, v{T}")
    a(f"v_add_u32 v{V_CIR}, {CI_AREA}, v{T+3}")
    a(f"v_add_u32 v{CIW}, s42, v{V_CIR}")
    a(f"v_lshlrev_b32 v{T+3}, 4, v{L}")
    a(f"v_add_u32 v{V_QA0}, {XO}, v{T+3}")
    a(f"v_add_u32 v{V_QA1}, {2*REG + XO}, v{T+3}")
    for j in range(1, 4):
        a(f"s_xor_b32 s42, s{S_W}, {j}")
        a(f"s_mul_i32 s{S_XR+j-1}, s42, {REG}")
    a(f"s_lshl_b32 s{S_LWO}, s{S_W}, 2")
    a(f"s_sub_u32 s{S_LWO}, s{S_LWO}, {CI_AREA - LT0}")
    a(f"v_lshrrev_b32 v{T+1}, 4, v{L}")
    a(f"v_lshrrev_b32 v{T+2}, 2, v{T}")
    a(f"v_cmp_eq_u32 vcc, v{T+1}, v{T+2}")
    a(f"v_and_b32 v{T+2}, 1, v{L}")
    a(f"v_lshlrev_b32 v{T+2}, 4, v{T+2}")
    a(f"v_mov_b32 v{T+3}, 0x3f80")
    a(f"v_lshlrev_b32 v{T+3}, v{T+2}, v{T+3}")
    a(f"v_cndmask_b32 v{T+3}, 0, v{T+3}, vcc")
    a(f"v_and_b32 v{T+2}, 2, v{L}")
    a(f"v_cmp_eq_u32 vcc, 0, v{T+2}")
    a(f"v_bfe_u32 v{T+4}, v{L}, 4, 1")
    a(f"v_lshrrev_b32 v{T+5}, 5, v{L}")
    a(f"v_cndmask_b32 v{V_X0}, 0, v{T+3}, vcc")
    a(f"v_sub_u32 v{V_X1}, v{T+3}, v{V_X0}")
    a(f"v_lshl_add_u32 v{T+4}, v{T+4}, 1, v{T+5}")
    a(f"v_lshlrev_b32 v{T+4}, 4, v{T+4}")
    a(f"v_lshl_add_u32 v{T+4}, v{T}, 8, v{T+4}")
    a(f"s_lshl_b32 s42, s{S_W}, 6")
    a(f"v_add_u32 v{V_ST}, s42, v{T+4}")
    a(f"v_and_b32 v{T+2}, 3, v{L}")
    a(f"v_cmp_eq_u32 vcc, 0, v{T+2}")
    a(f"v_lshrrev_b32 v{T}, 2, v{L}")
    a(f"v_and_b32 v{T+1}, 6, v{T}")
    a(f"v_lshrrev_b32 v{T+2}, 3, v{T}")
    a(f"v_or_b32 v{T+1}, v{T+1}, v{T+2}")
    a(f"v_bfe_u32 v{T+2}, v{L}, 1, 1")
    a(f"v_xor_b32 v{T+1}, v{T+1}, v{T+2}")
    a(f"s_and_b32 s42, s{S_W}, 1")
    a("s_lshl_b32 s42, s42, 2")
    a(f"v_xor_b32 v{T+1}, s42, v{T+1}")
    a(f"v_lshlrev_b32 v{T+1}, 4, v{T+1}")
    a(f"v_lshl_add_u32 v{T+1}, v{T}, 7, v{T+1}")
    a(f"v_and_b32 v{T+2}, 1, v{L}")
    a(f"v_lshl_add_u32 v{T+1}, v{T+2}, 3, v{T+1}")
    a(f"v_add_u32 v{V_AV}, s{S_WB}, v{T+1}")
    for k in range(1, 4): a(f"v_xor_b32 v{V_AV+k}, {32*k}, v{V_AV}")
    a(f"v_mov_b32 v{T+2}, 0x3f803f80")
    a(f"v_cndmask_b32 v{T+2}, 0, v{T+2}, vcc")
    for r in range(4): a(f"v_accvgpr_write_b32 a{A_ONE+r}, v{T+2}")

    a(m0(KB(0) + 4096)); a("s_nop 0")
    for p in (2, 3): a(dma(SRD_K, 43, p, "K0b"))
    a(m0(KB(0))); a("s_nop 0")
    for p in (2, 3): a(dma(SRD_K, S_Y, p, "K0b"))

    RAW, QP, TMP = V_OTH, V_OWN, V_OTH + 32
    left = [n0]
    def more(n=1):
        for _ in range(n):
            if left[0] > 0: a(nextdma()); left[0] -= 1
    v0 = [0]
    def v0dma(n=1):
        for _ in range(n):
            j = v0[0]
            if j >= 8: return
            if j % 4 == 0: a(m0(VB(0) + (j // 4) * 4096)); a("s_nop 0")
            a(dma(SRD_V, S_MV0 + j // 4, j % 4, ("V", 0, j // 4)))
            v0[0] += 1
    def qoff(h, c): return XO + (c >> 1) * 4096 + h * 2048 + (c & 1) * 1024
    def qw(h, c): return ("L", f"ds_write_b128 v{V_LIN if h == 0 else QWB}, {vr(QP + 16*h + 4*c, 4)} offset:{qoff(h, c)}", "qw")
    def scale_ops(j):
        o = []
        for r in range(4):
            o += [f"v_lshlrev_b32 v{TMP+2*r}, 16, v{RAW+4*j+r}", f"v_and_b32 v{TMP+2*r+1}, 0xffff0000, v{RAW+4*j+r}"]
        o += [f"v_pk_mul_f32 {vr(TMP+2*r,2)}, {vr(TMP+2*r,2)}, {vr(SC,2)} op_sel_hi:[1,0]" for r in range(4)]
        o += [f"v_cvt_pk_bf16_f32 v{QP+4*j+r}, v{TMP+2*r}, v{TMP+2*r+1}" for r in range(4)]
        return o
    def red_ops(h):
        S = V_S + 4*h; M = V_P + 2*h
        o = [f"v_max3_f32 v{M}, v{S}, v{S+1}, v{S+2}", f"v_max_f32 v{M}, v{M}, v{S+3}"]
        for sw in ("v_permlane16_swap_b32", "v_permlane32_swap_b32"):
            o += [f"v_mov_b32 v{M+1}, v{M}", f"{sw} v{M}, v{M+1}", f"v_max_f32 v{M}, v{M}, v{M+1}"]
        o += [f"v_mul_f32 v{M}, v{M}, v{SC}", f"v_cndmask_b32 v{M}, v{M}, v{V_KEEP+h}, s[{S_FBM}:{S_FBM+1}]"]
        o += [f"v_sub_f32 v{S+r}, 0, v{M}" for r in range(4)]
        return o
    def part(h, d0, d1):
        for c in range(4): a(("L", kread(0, 4*h + c, base=XO, dst=vr(RAW + 16*h + 4*c, 4)), ("raw", h, c)))
        if h == 0:
            a(("W", ["K0a"], None))
            for jj in range(4): a(("L", kread(0, jj), "k0a"))
        v0dma(d0)
        a(("W", None, [("raw", h, 0)]))
        a(scale_ops(4*h))
        a(("W", None, [("raw", h, 3), "k0a"]))
        S = vr(V_S + 4*h, 4)
        o1 = scale_ops(4*h + 1)
        for c in range(4):
            a(f"{M16} {S}, {Kf(c)}, {vr(RAW + 16*h + 4*c, 4)}, {S if c else '0'}")
            if c == 0: a(qw(h, 0))
            else: a(o1[:2]); del o1[:2]
        a(o1)
        a(qw(h, 1)); v0dma(d1)
        red = red_ops(h)
        for c in (2, 3):
            o = scale_ops(4*h + c)
            while o:
                a(o[:2]); del o[:2]
                if red: a(red.pop(0))
            a(qw(h, c))
        a(red)
        a(("L", f"ds_write_b128 v{CIW}, {S} offset:{256*h}", "ciw"))
    stamp("p")
    a(("W", ["Qa"], None))
    stamp(); stamp("p")
    part(0, vsch[0], vsch[1])
    v0dma(vsch[2])
    stamp("p")
    a(("W", ["Qb"], None))
    stamp("p")
    part(1, vsch[3], vsch[4])
    v0dma(8); more(pace)
    a(f"s_cmp_eq_u32 s{S_FB}, 1")
    stamp(); stamp("p")
    a(("W", None, "all"))
    a("s_barrier")
    a("s_cbranch_scc1 L_pass1")
    stamp(); stamp("p")
    def qreads(u):
        w, h = u // 2, u % 2
        ad = V_QA0 if w < 2 else V_QA1
        out = [f"ds_read_b128 {vr(V_CI+4*u,4)}, v{V_CIR} offset:{u*256}"]
        out += [f"ds_read_b128 {Qf(u,c)}, v{ad} offset:{(w&1)*REG + qoff(h, c) - XO}" for c in range(4)]
        return Ls(out, ("q", u))
    a(qreads(0))
    a(("W", ["K0b"], None))
    for jj in range(4, 8): a(("L", kread(0, jj), "k0b"))
    a(qreads(1))
    more()
    a(("W", None, [("q", 0)]))
    for j in range(8):
        if j == 4: a(("W", None, ["k0b"]))
        a(qk(0, j))
        if j in (2, 5, 7): more()
    more(64)
    a(("W", [("V", 0, 0)], None))
    for dt in range(4): a(Ls(vread(0, dt), ("v", 0, dt)))
    for e in range(5): a(ex(e))
    a(cv(0)); a(cv(1))
    stamp()

    pend = []
    def emit_step(u, par, first, fin, ext, post, dgaps=(), sgaps=()):
        order = [2, 3, 4, 5, 6, 7, -1, 0, 1] if fin else [0, 1, 2, 3, 4, 5, 6, 7, -1]
        for g in range(17):
            if g < 8:
                if not fin: a(qk((u + 1) % 7, g))
            else:
                dt = order[g - 8]
                a(pv(u, dt, par, first) if dt >= 0 else sm(u, first))
            if g in dgaps:
                a(list(pend)); pend.clear()
                a(nextdma())
            room = 2 - len(ext[g])
            if g in sgaps and room > 0:
                if not pend: pend.extend(nextpre())
                a(pend[:room]); del pend[:room]
            a(ext[g])
            if g < 3: a(ex(5 + g))
            elif g == 3:
                if fin: a("s_nop 0")
                a(cv(2)); a(cv(3))
            elif not fin:
                if 11 <= g <= 15: a(ex(g - 11))
                elif g == 16: a(cv(0)); a(cv(1))
            a(post[g])

    def tile(t):
        par = t & 1; nx = par ^ 1
        first = t == 0
        for u in range(7):
            ext = {g: [] for g in range(17)}; post = {g: [] for g in range(17)}
            dgaps, sgaps = {0: ((5, 8, 10), (4, 6, 7, 9)), 1: ((5, 10), (4, 6, 7, 8, 9)), 2: ((5, 8, 10), (4, 6, 7, 9)), 3: ((5, 10), (4, 6, 7, 8, 9)),
                            4: ((5, 9), (7,)), 5: ((5, 9), (7,)), 6: ((4, 7), (5,))}[u]
            if u == 0 and not first: ext[6].append(("W", None, "all"))
            if u == 3: ext[9].append(("W", [("V", t+1, 1)], None))
            if u == 4:
                for g, dt in zip((4, 6, 8, 10), (4, 5, 6, 7)): ext[g] += Ls(vread(nx, dt), ("v", t+1, dt))
                post[16].append(("W", [("K", t+1, 0), ("K", t+1, 1)], None))
            if u == 5:
                for i, g in enumerate((4, 6, 8, 10)): ext[g] += Ls([kread(nx, 2*i), kread(nx, 2*i+1)], ("k", t+1))
                post[16].append(("W", [("V", t+1, 0)], [("k", t+1)]))
                if first: post[16].append("s_barrier")
            if u == 6:
                for g, dt in zip((6, 8, 9, 10), (3, 0, 1, 2)): ext[g] += Ls(vread(nx, dt), ("v", t+1, dt))
            if t % 2 == 0 and t > 0 and u == 1: ext[8].append(f"s_sub_u32 s{S_CNT}, s{S_CNT}, 1")
            if first:
                if u == 0:
                    dgaps, sgaps = (), ()
                    ext[3].append(("W", [("V", 0, 1)], None))
                    for g, dt in zip((4, 5, 6, 7), (4, 5, 6, 7)): ext[g] += Ls(vread(0, dt), ("v", 0, dt))
                    post[7].append(("W", None, [("v", 0, 3)]))
                    q = qreads(2); ext[8] += q[0:2]; ext[9] += q[2:4]; ext[10] += q[4:5]
                    post[11].append(("W", None, [("v", 0, 7)]))
                elif u < 4:
                    q = qreads(u + 2); ext[6] += q[0:2]; ext[7] += q[2:4]; ext[9] += q[4:5]
                    dgaps, sgaps = (5, 8, 10), (4,)
                    if u == 3:
                        q = qreads(6)
                        for i in range(5): ext[11 + i] += q[i:i+1]
                if u == 4: dgaps = (5, 9, 13)
                if u < 5: post[16].append(("W", None, [("q", u + 2)]))
                xs = [(0, 1), (0, 13), (1, 1), (2, 1), (3, 1), (4, 1), (5, 1), (6, 1), (1, 13), (2, 13), (5, 13), (6, 13)][:t0extra]
                dgaps = tuple(sorted(set(dgaps) | set(g for (uu, g) in xs if uu == u)))
                stamp("t")
                if u == 0: a(("W", None, [("q", 1)]))
            emit_step(u, par, first, False, ext, post, dgaps, sgaps)

    a.c("tile 0"); tile(0)
    a(f"s_mov_b32 s{S_CNT}, 3")
    stamp()
    a.raw(".p2align 6")
    a.label("L_loop")
    i0 = len(a.l)
    bodies = []
    for t in range(1, 7):
        b = len(a.l); tile(t); bodies.append(a.l[b:])
    for t in (2, 4):
        for k in (0, 1):
            assert bodies[t + k] == bodies[k], [(x, y) for x, y in zip(bodies[k], bodies[t + k]) if x != y][:4]
    del a.l[i0:]
    a.l += bodies[4] + bodies[5]
    a(f"s_cmp_lg_u32 s{S_CNT}, 0")
    a("s_cbranch_scc1 L_loop")
    i1 = len(a.l)
    assert stream[spos[0]][2] >= 8, "stream not fully issued"
    stamp()

    def blk(u, j): return (u * 3 + j - 1) * 1024
    def pk(u, j):
        o = Ov(u, 2*j); p = Ov(u, 2*j+1) if j < 3 else Ov(u, 3)
        return [f"v_cvt_pk_bf16_f32 v{o+r}, v{(o, p)[r//2] + 2*(r%2)}, v{(o, p)[r//2] + 2*(r%2) + 1}" for r in range(4)]
    def acc(u): return [f"v_accvgpr_read_b32 v{Ov(u,3)+r}, a{A_O7+4*u+r}" for r in range(4)]
    def xw(u, j): return ("L", f"ds_write_b128 v{V_LIN}, {vr(Ov(u, 2*j), 4)} offset:{blk(u, j)}", ("xw", u))
    def lw(u): return ("L", f"ds_write_b32 v{V_LW}, a{A_L+4*u} offset:{LTAB(u)}", ("xw", u))
    def R(u):
        o = [("L", f"ds_read_b128 {ar(A_X(u) + 4*(j-1), 4)}, v{V_XR+j-1} offset:{blk(u, j)}", ("x", u)) for j in range(1, 4)]
        return o + [("L", f"ds_read_b128 {vr(V_CI+4*u,4)}, v{V_LR} offset:{LTAB(u)}", ("x", u))]
    def cmb(u):
        return [f"{M16} {Of(u, b)}, {ar(A_SEL + 2 - 2*b, 4)}, {ar(A_X(u) + 4*j, 4)}, {Of(u, b)}" for b in range(2) for j in range(3)]
    def ladd(u):
        c = V_CI + 4*u
        return [f"v_add_f32 v{c}, v{c}, v{c+1}", f"v_add_f32 v{c+2}, v{c+2}, v{c+3}", f"v_add_f32 v{c}, v{c}, v{c+2}"]
    def lrcp(u):
        c = V_CI + 4*u
        return [f"v_rcp_f32 v{c+1}, v{c}", f"v_add_f32 v{V_CHK}, v{V_CHK}, v{c}" if u else f"v_mov_b32 v{V_CHK}, v{c}"]
    def mul(u, b): return [f"v_mul_f32 v{Ov(u,b)+r}, v{Ov(u,b)+r}, v{V_CI+4*u+1}" for r in range(4)]
    def swp(u): return [f"v_permlane16_swap_b32 v{Ov(u,0)+r}, v{Ov(u,0)+2+r}" for r in range(2)]
    def sto(u): return f"s_movk_i32 s98, {u*4096}"
    def ST(u): return ("V", f"buffer_store_dwordx4 {vr(Ov(u,0),4)}, v{V_ST}, {srd(SRD_O)}, s98 offen{(' '+sflags) if sflags else ''}", "st")
    def seq(mf, fill):
        for i, m in enumerate(mf):
            if m: a(m)
            a(fill.get(i, []))
    a.c("tile 7")
    for u in range(6):
        stamp("e")
        w = u - 1; f = u - 2
        mf = [qk(u + 1, g) for g in range(8)] + (cmb(f) if f >= 0 else [None] * 6) + [pv(u, dt, 1, False) for dt in range(8)] + [sm(u, False)]
        F = {i: [] for i in range(23)}
        if f >= 0:
            r = R(f); F[0] += r[0:2]; F[1] += r[2:4]
        if w >= 0: F[2 if f >= 0 else 3] += [lw(w)]
        for g in range(3): F[g] += [ex(5 + g)]
        F[3] += [cv(2), cv(3)]
        if u == 0:
            F[4] += [("W", "all", "all"), f"v_add_u32 v{V_LW}, s{S_LWO}, v{V_CIR}"]
            F[5] += [f"v_lshl_add_u32 v{V_XR+j}, v{L}, 4, s{S_XR+j}" for j in range(2)]
            F[6] += [f"v_lshl_add_u32 v{V_XR+2}, v{L}, 4, s{S_XR+2}", f"v_subrev_u32 v{V_LR}, {CI_AREA - LT0}, v{V_CIR}"]
            sel = [f"v_accvgpr_write_b32 a{A_SEL+r}, {x}" for r, x in enumerate(("0", "0", f"v{V_X0}", f"v{V_X1}", "0", "0"))]
            F[7] += sel[0:2]; F[14] += sel[2:4]; F[15] += sel[4:6]
        if f >= 0:
            F[4] += pk(w, 1); F[5] += [xw(w, 1)]; F[6] += pk(w, 2); F[7] += acc(w) + [("W", None, [("x", f)])]
            F[8] += [xw(w, 2)]; F[9] += pk(w, 3); F[10] += ladd(f); F[11] += lrcp(f); F[12] += [xw(w, 3)]
            F[13] += [ex(0)]; F[14] += [ex(1)]; F[15] += [ex(2)]; F[16] += [ex(3)]
            F[17] += mul(f, 0); F[18] += mul(f, 1); F[19] += pk(f, 0)
            F[20] += [("W", None, [("xw", w)]), "s_barrier", ex(4)]
            F[21] += swp(f) + [sto(f)]
            F[22] += [ST(f), cv(0), cv(1)]
        else:
            if w >= 0:
                F[4] += pk(w, 1); F[5] += [xw(w, 1)]; F[6] += pk(w, 2); F[7] += acc(w)
                F[14] += [xw(w, 2)]; F[15] += pk(w, 3); F[17] += [xw(w, 3)]
            for i, g in enumerate((17, 18, 19, 20, 21) if w < 0 else (16, 18, 19, 20, 21)): F[g] += [ex(i)]
            F[22] += [cv(0), cv(1)]
            if w >= 0: F[22] += [("W", None, [("xw", w)]), "s_barrier"]
        seq(mf, F)
    stamp("e")
    a(R(4))
    a([ex(5), ex(6), ex(7)] + pk(5, 1)[:1] + [cv(2), cv(3)] + pk(5, 1)[1:])
    mf = [pv(6, dt, 1, False) for dt in range(2, 8)] + [sm(6, False), pv(6, 0, 1, False), pv(6, 1, 1, False)] + cmb(4)
    F = {0: [xw(5, 1)], 1: [lw(5)] + pk(5, 2), 2: acc(5), 3: [xw(5, 2)], 4: pk(5, 3), 5: [("W", None, [("x", 4)])] + ladd(4), 6: [xw(5, 3)], 7: pk(6, 1), 8: lrcp(4),
         9: [xw(6, 1)], 10: pk(6, 2), 11: acc(6), 12: [xw(6, 2)], 13: pk(6, 3), 14: [lw(6), xw(6, 3)]}
    seq(mf, F)
    a(mul(4, 0))
    a(("W", None, [("xw", 6)])); a("s_barrier")
    stamp()
    a(R(5)); a(R(6))
    a(mul(4, 1)); a(pk(4, 0)); a(sto(4)); a("s_nop 0"); a(swp(4)); a("s_nop 0"); a(ST(4))
    a(("W", None, [("x", 5)]))
    F = {0: ladd(5), 1: lrcp(5), 2: [("W", None, [("x", 6)])] + ladd(6), 3: lrcp(6), 4: [f"s_mov_b32 s99, {hex(f2u(THRESH))}", f"s_cmp_lg_u32 s{S_FB}, 0"],
         5: [f"v_cmp_ngt_f32 vcc, s99, v{V_CHK}", sto(5)], 6: mul(5, 0)[:2], 7: mul(5, 0)[2:], 8: ["s_nop 1"], 9: mul(5, 1), 10: pk(5, 0), 11: mul(6, 0)[:2] + swp(5)}
    seq(cmb(5) + cmb(6), F)
    a("s_nop 0"); a(ST(5)); a(mul(6, 0)[2:]); a(sto(6)); a(mul(6, 1)); a(pk(6, 0)); a("s_nop 1"); a(swp(6)); a("s_nop 0"); a(ST(6))
    a("s_cbranch_scc1 L_ok")
    a("s_cbranch_vccnz L_fallback")
    a.label("L_ok")
    a.free = True
    if diag and spin:
        i, j, mult = spin
        a("s_waitcnt vmcnt(0)")
        a(f"s_lshl_b32 s84, s2, 2"); a(f"s_add_u32 s84, s84, s{S_W}"); a("s_cmp_lg_u32 s84, 401"); a("s_cbranch_scc1 L_end")
        a("s_memrealtime s[80:81]"); a("s_waitcnt lgkmcnt(0)")
        sj = 80 if j == 8 else S_STAMP + 2*j
        a(f"s_sub_u32 s84, s{sj}, s{S_STAMP+2*i}"); a(f"s_mul_i32 s84, s84, {mult}"); a("s_min_u32 s84, s84, 20000")
        a.label("L_spin")
        a("s_memrealtime s[82:83]"); a("s_waitcnt lgkmcnt(0)")
        a("s_sub_u32 s85, s82, s80"); a("s_cmp_lt_u32 s85, s84"); a("s_cbranch_scc1 L_spin")
    elif diag:
        a("s_memrealtime s[84:85]"); a("s_memtime s[86:87]")
        a("s_waitcnt vmcnt(0)")
        a("s_mov_b32 s36, s46"); a("s_mov_b32 s37, s47"); a("s_mov_b32 s38, 0x100000"); a("s_mov_b32 s39, 0x20000")
        a("s_memrealtime s[80:81]"); a("s_memtime s[82:83]"); a("s_waitcnt lgkmcnt(0)")
        a("s_lshl_b32 s40, s2, 2"); a(f"s_add_u32 s40, s40, s{S_W}"); a("s_lshl_b32 s40, s40, 8")
        a(f"v_mov_b32 v4, s40")
        a(f"v_cmp_eq_u32 vcc, 0, v{L}")
        a("s_and_saveexec_b64 s[42:43], vcc")
        slots = [(S_STAMP+2*i, i) for i in range(8)] + [(84, 8), (80, 9)] + [(S_STAMP+16+2*i, 16+i) for i in range(8)] + [(86, 24), (82, 25)]
        for s, i in slots:
            a(f"v_mov_b32 v6, s{s}"); a(f"v_mov_b32 v7, s{s+1}"); a(f"buffer_store_dwordx2 v[6:7], v4, s[36:39], 0 offen offset:{8*i}"); a("s_nop 1")
    a.label("L_end")
    a("s_endpgm")
    iend = len(a.l)
    a.label("L_fallback")
    a("s_waitcnt vmcnt(0) lgkmcnt(0)")
    a("s_barrier")
    a(f"s_mov_b32 s{S_FB}, 1")
    a("s_branch L_start")
    a.label("L_pass1")
    for u in range(7):
        for x in qreads(u)[1:]: a(x[1])
        a("s_waitcnt lgkmcnt(0)")
    a("s_waitcnt vmcnt(0)")
    a("s_barrier")
    a("s_mov_b32 s42, 0")
    MX = V_OWN
    for u in range(7): a(f"v_mov_b32 v{MX+u}, 0xff800000")
    a.label("L_fb1")
    a(m0(0)); a(f"s_add_u32 s{S_SO}, s42, 128")
    for p in range(4): a(dma(SRD_K, 42, p, "f")[1])
    a(m0(4096)); a("s_nop 0")
    for p in range(4): a(dma(SRD_K, S_SO, p, "f")[1])
    a("s_waitcnt vmcnt(0)")
    for j in range(8): a(kread(0, j))
    a("s_waitcnt lgkmcnt(0)")
    for u in range(7):
        for j in range(8): a(qk(u, j, zero=True))
        a("s_nop 7")
        for r in range(0, 8, 2): a(f"v_max3_f32 v{MX+u}, v{MX+u}, v{V_S+r}, v{V_S+r+1}")
    a("s_add_u32 s42, s42, 0x2000")
    a("s_cmp_lt_u32 s42, 0x10000")
    a("s_cbranch_scc1 L_fb1")
    for sw in ("v_permlane16_swap_b32", "v_permlane32_swap_b32"):
        for u in range(7): a(f"v_mov_b32 v{MX+8+u}, v{MX+u}")
        a("s_nop 1")
        for u in range(7): a(f"{sw} v{MX+u}, v{MX+8+u}")
        a("s_nop 1")
        for u in range(7): a(f"v_max_f32 v{MX+u}, v{MX+u}, v{MX+8+u}")
    a(f"v_add_u32 v{V_P}, s{S_LWO}, v{V_CIR}")
    for u in range(7): a(f"ds_write_b32 v{V_P}, v{MX+u} offset:{LTAB(u)}")
    a("s_waitcnt lgkmcnt(0)")
    a("s_barrier")
    a(f"s_and_b32 s42, s{S_W}, 1"); a("s_lshl_b32 s42, s42, 9")
    a(f"s_lshr_b32 s98, s{S_W}, 1"); a(f"s_mul_i32 s98, s98, {REG}"); a("s_add_u32 s42, s42, s98")
    a(f"s_sub_u32 s42, s42, {CI_AREA - LT0}")
    a(f"v_add_u32 v{V_P}, s42, v{V_CIR}")
    for h in range(2): a(f"ds_read_b128 {vr(V_S+4*h,4)}, v{V_P} offset:{256*h}")
    a("s_waitcnt lgkmcnt(0)")
    for h in range(2):
        a(f"v_max3_f32 v{V_KEEP+h}, v{V_S+4*h}, v{V_S+4*h+1}, v{V_S+4*h+2}")
        a(f"v_max_f32 v{V_KEEP+h}, v{V_KEEP+h}, v{V_S+4*h+3}")
    a(f"s_mov_b32 s{S_FB}, 2")
    a(f"s_mov_b64 s[{S_FBM}:{S_FBM+1}], -1")
    a("s_barrier")
    a("s_branch L_start")
    lin = a.l[:i1] + a.l[i0:i1] + a.l[i1:iend]
    bad = hz.check(lin) + hz.check(a.l[iend:])
    for b in bad: print("HAZARD", b, file=sys.stderr)
    if pref: a.raw(f".fill ({16384 * pref} - (. - {NAME}_kernel)) / 4, 4, 0xbf810000")
    a.raw('.section .rodata,"a"'); a.raw(".p2align 6"); a.raw(f".amdhsa_kernel {NAME}_kernel")
    a.raw("  .amdhsa_next_free_vgpr 512"); a.raw("  .amdhsa_next_free_sgpr 102"); a.raw("  .amdhsa_accum_offset 256")
    a.raw("  .amdhsa_group_segment_fixed_size 0"); a.raw("  .amdhsa_kernarg_size 48"); a.raw("  .amdhsa_user_sgpr_count 2")
    a.raw("  .amdhsa_user_sgpr_kernarg_segment_ptr 1"); a.raw("  .amdhsa_system_sgpr_workgroup_id_x 1"); a.raw(".end_amdhsa_kernel")
    if warm: a.l = add_stubs(a.l, head)
    return "\n".join(a.l) + "\n"

if __name__ == "__main__":
    ap = argparse.ArgumentParser()
    ap.add_argument("-o", default=f"kG.s")
    ap.add_argument("--diag", action="store_true")
    ap.add_argument("--spin", default=None); ap.add_argument("--flags", default=""); ap.add_argument("--sflags", default="nt")
    ap.add_argument("--n0", type=int, default=8); ap.add_argument("--mix", type=int, default=1); ap.add_argument("--vsch", default="2,2,2,2,0")
    ap.add_argument("--t0extra", type=int, default=4); ap.add_argument("--pace", type=int, default=2); ap.add_argument("--fine", default="c")
    ap.add_argument("--cgap", type=int, default=14); ap.add_argument("--pref", type=int, default=1); ap.add_argument("--align", type=int, default=12); ap.add_argument("--head", type=int, default=3584); ap.add_argument("--warm", type=int, default=1); ap.add_argument("--wg", default="4,5,6,7,8,9,10")
    args = ap.parse_args()
    tup = lambda s: tuple(map(int, s.split(',')))
    open(args.o, "w").write(gen(diag=args.diag, flags=args.flags, sflags=args.sflags, n0=args.n0, mix=args.mix, vsch=tup(args.vsch), t0extra=args.t0extra,
                                pace=args.pace, fine=args.fine, cgap=args.cgap, pref=args.pref, align=args.align, head=args.head, warm=args.warm, wg=tup(args.wg), spin=tup(args.spin) if args.spin else None))
```

```python
import sys, struct, argparse
import hz
NAME = "standalone__gqa_softmax__near_ridge"
def f2u(x): return struct.unpack("<I", struct.pack("<f", x))[0]
def vr(b, n=1): return f"v{b}" if n == 1 else f"v[{b}:{b+n-1}]"
def ar(b, n=1): return f"a{b}" if n == 1 else f"a[{b}:{b+n-1}]"
def srd(b): return f"s[{b}:{b+3}]"

V_LANE, V_LIN, V_KEEP, V_VOFF, V_AK, V_AV = 0, 1, 2, 4, 8, 10
V_QA0, V_X0, V_QA1, V_X1, V_ST, V_CIR = 14, 15, 16, 17, 18, 19
V_S, V_P, V_CI, V_OWN, V_OTH = 20, 28, 32, 60, 116
A_O7, A_L, A_ONE, A_K, A_V, A_Q = 0, 28, 56, 60, 92, 144
V_XR, V_LW, V_LR, V_CHK = 4, 7, 8, 9
A_SEL = A_V + 12
def A_X(u): return A_Q + 16 * (u % 2)
S_W = 3
SRD_Q, SRD_K, SRD_V, SRD_O = 12, 16, 20, 24
S_MK0, S_MK1, S_MV0, S_MV1 = 28, 29, 30, 31
S_Y, S_FB, S_WB, S_CNT = 32, 33, 34, 35
S_SO = 44
S_STAMP = 48
S_FBM = 88
S_XR = 90
S_LWO = 93
S_Y0 = 100
S_K0 = 101
REG = 40960
KB = lambda par: par * 8192
VB = lambda par: 16384 + par * 8192
XO = 32768
CI_AREA = 3 * REG + XO + 6144
LT0 = 39936
def LTAB(u): return u * 256 if u < 4 else REG + (u - 4) * 256
SCALE = (128 ** -0.5) * 1.4426950408889634
THRESH = 2.0 ** 40
M16 = "v_mfma_f32_16x16x32_bf16"

def Qf(u, c): return ar(A_Q + 16 * u + 4 * c, 4)
def Kf(j): return ar(A_K + 4 * j, 4)
def Vbase(dt, par): return A_V + 4 * dt if dt < 3 else A_V + 12 + 20 * par + 4 * (dt - 3)
def Ov(u, dt): return V_OWN + 8 * u + 4 * dt if dt < 2 else V_OTH + 20 * u + 4 * (dt - 2)
def Of(u, dt): return ar(A_O7 + 4 * u, 4) if dt == 7 else vr(Ov(u, dt), 4)
def qk(u, j, zero=False):
    kt, c = j // 4, j % 4
    S = vr(V_S + 4 * kt, 4)
    cc = S if c else ("0" if zero else vr(V_CI + 4 * u, 4))
    return f"{M16} {S}, {Kf(j)}, {Qf(u, c)}, {cc}"
def pv(u, dt, par, first):
    o = Of(u, dt)
    return f"{M16} {o}, {ar(Vbase(dt, par), 4)}, {vr(V_P, 4)}, {'0' if first else o}"
def sm(u, first):
    o = ar(A_L + 4 * u, 4)
    return f"{M16} {o}, {ar(A_ONE, 4)}, {vr(V_P, 4)}, {'0' if first else o}"
def ex(e): return f"v_exp_f32 v{V_S+e}, v{V_S+e}"
def cv(i): return f"v_cvt_pk_bf16_f32 v{V_P+i}, v{V_S+2*i}, v{V_S+2*i+1}"
def kread(par, j, base=None, dst=None):
    kt, c = j // 4, j % 4
    off = (KB(par) if base is None else base) + (c >> 1) * 4096 + kt * 2048
    return f"ds_read_b128 {dst or Kf(j)}, v{V_AK + (c & 1)} offset:{off}"
def vread(par, dt):
    b = Vbase(dt, par)
    return [f"ds_read_b64_tr_b16 {ar(b + 2*h, 2)}, v{V_AV + (dt & 3)} offset:{VB(par) + (dt >> 2) * 4096 + h * 2048}" for h in range(2)]

class Gen:
    def __init__(self):
        self.l = []; self.vq = []; self.lq = []; self.ldone = 0; self.free = False
    def __call__(self, s):
        if isinstance(s, list):
            for x in s: self(x)
        elif isinstance(s, tuple):
            if s[0] == "L": self.l.append("    " + s[1]); self.lq.append(s[2])
            elif s[0] == "V":
                tg = s[2]
                if isinstance(tg, tuple) and tg[0] in "KV" and tg[1] >= 2:
                    kv, x, hf = tg
                    need = ([("k", x-2)] if x > 2 else ["k0a", "k0b"]) if kv == "K" else [("v", x-2, dt) for dt in range(4*hf, 4*hf+4)]
                    for n in need:
                        idx = [i for i, t in enumerate(self.lq) if t == n]
                        assert idx and max(idx) < self.ldone, ("LDS WAR", tg, n)
                self.l.append("    " + s[1]); self.vq.append(s[2])
            elif s[0] == "W":
                parts = []
                for q, tags, nm, mx in ((self.vq, s[1], "vmcnt", 63), (self.lq, s[2], "lgkmcnt", 15)):
                    if tags is None: continue
                    if tags == "all": n = 0
                    else:
                        idx = [i for i, t in enumerate(q) if t in tags]
                        assert idx, ("no such tag", tags)
                        n = len(q) - 1 - max(idx)
                    if nm == "lgkmcnt": self.ldone = max(self.ldone, len(q) - min(n, mx))
                    parts.append(f"{nm}({min(n, mx)})")
                self.l.append("    s_waitcnt " + " ".join(parts))
        else:
            assert not (s.startswith("ds_") or s.startswith("buffer_")) or self.free, s
            self.l.append("    " + s)
    def label(self, s): self.l.append(s + ":")
    def c(self, s): self.l.append("    ; " + s)
    def raw(self, s): self.l.append(s)

def sizes(lines):
    import subprocess, tempfile, os, re
    with tempfile.TemporaryDirectory() as d:
        src = [l for l in lines]
        src.insert(src.index("L_end:"), "L_pg1:\nL_pg2:")
        open(d + "/t.s", "w").write("\n".join(src) + "\n")
        subprocess.run(["clang", "-x", "assembler", "-target", "amdgcn-amd-amdhsa", "-mcpu=gfx950", "-c", d + "/t.s", "-o", d + "/t.o"], check=True)
        out = subprocess.run(["llvm-objdump", "-d", "--mcpu=gfx950", d + "/t.o"], capture_output=True, text=True).stdout
    return [(int(m.group(2), 16), m.group(1)) for m in re.finditer(r"^\t(\S+).*// ([0-9A-F]+):", out, re.M)]
def add_stubs(lines, head):
    lines = list(lines)
    for pg in (1, 2):
        tmp = [l for l in lines if not l.startswith("L_pg")]
        ins = [x for x in sizes(tmp) if x[0] >= head]
        mf = [off for off, mn in ins if mn.startswith("v_mfma")]
        target = (pg + (1 if head else 0)) * 4096
        k = next(i for i, off in enumerate(mf) if off >= target - 8)
        assert mf[k] + 8 < target + 60, (mf[k], target)
        idx = [i for i, l in enumerate(lines) if l.strip().startswith("v_mfma")][k]
        lines[idx + 1:idx + 1] = [f"L_pg{pg}:", "    s_cbranch_execz L_back"]
    return lines

def gen(diag=False, flags="", sflags="nt", spin=None, n0=8, mix=1, vsch=(2, 2, 2, 2, 0), t0extra=4, pace=2, fine='c', cgap=14, pref=1, align=12, head=3584, warm=1, rot=(0, 0), wg=(4, 5, 6, 7, 8, 9, 10)):
    a = Gen()
    fl = (" " + flags) if flags else ""
    def dma(s, soff, p, tag): return ("V", f"buffer_load_dwordx4 v{V_VOFF+p}, {srd(s)}, s{soff} offen offset:{p*1024}{fl} lds", tag)
    def m0(off): return f"s_add_u32 m0, s{S_WB}, {off}"
    def Ls(texts, tag): return [("L", t, tag) for t in texts]
    nst = [0]
    def stamp(kind="c"):
        if diag and kind in fine and nst[0] < 8:
            a(f"s_memrealtime s[{S_STAMP+2*nst[0]}:{S_STAMP+2*nst[0]+1}]")
            a(f"s_memtime s[{S_STAMP+16+2*nst[0]}:{S_STAMP+16+2*nst[0]+1}]")
            nst[0] += 1
    GROUPS = (("V", 1), ("K", 0), ("K", 1), ("V", 0))
    stream = []
    for x in range(1, 10):
        for gi, (kv, hf) in enumerate(GROUPS):
            s_, buf = (SRD_K, KB(x & 1)) if kv == "K" else (SRD_V, VB(x & 1))
            for p in range(4):
                pre = []; so = S_SO
                if p == 0:
                    if gi == 0: pre += [("Y", x)]
                    pre += [m0(buf + hf * 4096), f"s_xor_b32 s{S_SO}, s{S_Y}, s{(S_MK0 if kv == 'K' else S_MV0) + hf}"]
                stream.append((pre, dma(s_, so, p, (kv, x, hf)), x))
    spos = [0]
    def expand(pre):
        out = []
        for y in pre:
            if isinstance(y, tuple) and y[0] == "Y":
                out += [f"s_add_u32 s{S_Y}, s{S_Y}, 0x2000", f"s_and_b32 s{S_Y}, s{S_Y}, 0xffff"]
                if y[1] % 2 == 0 and y[1] >= 4:
                    out += [f"s_cmp_lg_u32 s{S_Y}, s{S_Y0}", f"s_cselect_b32 s{SRD_K+2}, 0x10000, 0", f"s_mov_b32 s{SRD_V+2}, s{SRD_K+2}"]
            elif isinstance(y, tuple): out += ["s_nop 0"]
            else: out.append(y)
        return out
    def nextpre():
        pre, d, x = stream[spos[0]]
        stream[spos[0]] = ([], d, x)
        return expand(pre)
    def nextdma():
        pre, d, x = stream[spos[0]]
        spos[0] += 1
        return expand(pre) + [d]

    a.raw(open("cdna_kernels/%s.s.ref" % NAME).read().split("; Override launch")[0].rstrip())
    a.raw("; @launch grid=(256,1,1) block=(256,1,1) lds=163840")
    a.raw('.amdgcn_target "amdgcn-amd-amdhsa--gfx950"')
    a.raw(".text"); a.raw(f".globl {NAME}_kernel"); a.raw(f".p2align {align}"); a.raw(f".fill {head // 4}, 4, 0xbf810000"); a.raw(".p2align 8"); a.raw(f".type {NAME}_kernel,@function")
    a.label(f"{NAME}_kernel")
    a("s_load_dwordx8 s[4:11], s[0:1], 0")
    a("s_cmp_ge_u32 s2, 256")
    a("s_cbranch_scc1 L_end")
    if diag:
        a("s_load_dwordx2 s[46:47], s[0:1], 40")
        stamp(fine[0])
    L = V_LANE
    T = V_S
    a(f"v_lshrrev_b32 v{T}, 6, v0")
    a(f"v_and_b32 v{L}, 63, v0")
    a(f"v_readfirstlane_b32 s{S_W}, v{T}")
    a("s_and_b32 s36, s2, 7")
    a("s_lshr_b32 s37, s2, 3")
    a("s_lshl_b32 s36, s36, 5")
    a("s_add_u32 s36, s36, s37")
    a("s_mul_i32 s38, s36, 28672")
    a(f"s_mul_i32 s{S_WB}, s{S_W}, {REG}")
    a(f"s_movk_i32 s{SRD_Q+2}, 28672")
    a(f"s_mov_b32 s{SRD_Q+3}, 0x20000")
    a(f"s_lshl_b32 s40, s{S_W}, 13")
    a(f"s_mov_b32 s{S_FB}, 0")
    a(f"s_mov_b64 s[{S_FBM}:{S_FBM+1}], 0")
    a.label("L_start")
    a(f"v_lshrrev_b32 v{T}, 3, v{L}")
    a(f"v_and_b32 v{T+1}, 6, v{T}")
    a(f"v_xor_b32 v{T+1}, v{T+1}, v{L}")
    a(f"v_and_b32 v{T+1}, 7, v{T+1}")
    a(f"v_lshlrev_b32 v{T+1}, 4, v{T+1}")
    a(f"v_lshl_add_u32 v{V_VOFF}, v{T}, 8, v{T+1}")
    a(f"v_xor_b32 v{V_VOFF+1}, 16, v{V_VOFF}")
    a(f"v_add_u32 v{V_VOFF+1}, 0x400, v{V_VOFF+1}")
    a(m0(XO))
    a("s_add_u32 s41, s40, 128")
    a("s_lshr_b32 s39, s36, 2")
    a(f"s_and_b32 s{S_Y0}, s39, {rot[0]}")
    a(f"s_lshl_b32 s{S_Y0}, s{S_Y0}, 13")
    a(f"s_and_b32 s{S_MK0}, s36, {rot[1]}")
    a(f"s_lshl_b32 s{S_MK0}, s{S_MK0}, 13")
    a("s_lshl_b32 s39, s39, 18")
    a(f"s_lshl_b32 s42, s{S_W}, 16")
    a("s_add_u32 s39, s39, s42")
    a(f"s_mov_b32 s{SRD_K+2}, 0x10000")
    a(f"s_mov_b32 s{SRD_K+3}, 0x20000")
    a(f"s_mov_b32 s{S_Y}, s{S_Y0}")
    a(f"s_xor_b32 s{S_K0}, s{S_Y0}, s{S_MK0}")
    a(f"s_or_b32 s43, s{S_K0}, 128")
    stamp("k")
    a("s_waitcnt lgkmcnt(0)")
    stamp("k")
    def base(b, src, off): return [f"s_add_u32 s{b}, s{src}, s{off}", f"s_addc_u32 s{b+1}, s{src+1}, 0"]
    a(base(SRD_Q, 4, 38))
    for p in (0, 1): a(dma(SRD_Q, 40, p, "Qa"))
    a(m0(XO + 4096)); a(base(SRD_K, 6, 39))
    for p in (0, 1): a(dma(SRD_Q, 41, p, "Qa"))
    if pref:
        a("s_getpc_b64 s[94:95]")
        a.label("L_pc")
        a(f"s_lshl_b32 s42, s{S_W}, 5")
        a("s_add_u32 s42, s42, s37")
        a("s_lshl_b32 s42, s42, 7")
        a(f"s_sub_u32 s94, s94, L_pc-{NAME}_kernel")
        a("s_subb_u32 s95, s95, 0")
        a("s_load_dword s96, s[94:95], s42")
        if pref > 1:
            a("s_add_u32 s42, s42, 0x4000")
            a("s_load_dword s97, s[94:95], s42")
    a(m0(KB(0)))
    a(f"s_cmp_eq_u32 s{S_W}, 3")
    for p in (0, 1): a(dma(SRD_K, S_K0, p, "K0a"))
    a(f"s_cselect_b32 s45, 0x4000, 0")
    a(m0(KB(0) + 4096))
    a(f"s_add_u32 s45, s45, s{S_WB}")
    for p in (0, 1): a(dma(SRD_K, 43, p, "K0a"))
    a(f"v_add_u32 v{V_VOFF+2}, 0x800, v{V_VOFF}")
    a(f"v_add_u32 v{V_VOFF+3}, 0x800, v{V_VOFF+1}")
    a(f"s_add_u32 m0, s45, {XO + 4096}"); a("s_nop 0")
    for p in (2, 3): a(dma(SRD_Q, 41, p, "Qb"))
    a(f"s_add_u32 m0, s45, {XO}"); a("s_nop 0")
    for p in (2, 3): a(dma(SRD_Q, 40, p, "Qb"))
    a(base(SRD_V, 8, 39)); a(base(SRD_O, 10, 38))
    a(f"s_mov_b32 s{SRD_V+2}, 0x10000"); a(f"s_mov_b32 s{SRD_V+3}, 0x20000")
    a(f"s_movk_i32 s{SRD_O+2}, 28672"); a(f"s_mov_b32 s{SRD_O+3}, 0x20000")
    if warm:
        a("s_mov_b64 exec, 0")
        for w in (1, 2):
            a(f"s_cmp_eq_u32 s{S_W}, {w}")
            a(f"s_cbranch_scc1 L_pg{w}")
        a.label("L_back")
        a("s_mov_b64 exec, -1")
    a(f"s_lshr_b32 s{S_MV0}, s{S_W}, 1"); a(f"s_lshl_b32 s{S_MV0}, s{S_MV0}, 7")
    a(f"s_or_b32 s{S_MV0}, s{S_MV0}, s{S_MK0}")
    a(f"s_xor_b32 s{S_MV1}, s{S_MV0}, 128")
    a(f"s_or_b32 s{S_MK1}, s{S_MK0}, 128")
    a(f"v_and_b32 v{T}, 15, v{L}")
    a(f"v_and_b32 v{T+1}, 6, v{T}")
    a(f"v_lshrrev_b32 v{T+2}, 3, v{T}")
    a(f"v_or_b32 v{T+1}, v{T+1}, v{T+2}")
    a(f"v_lshrrev_b32 v{T+2}, 4, v{L}")
    a(f"v_lshlrev_b32 v{T+2}, 1, v{T+2}")
    a(f"v_xor_b32 v{T+1}, v{T+1}, v{T+2}")
    a(f"v_lshlrev_b32 v{T+1}, 4, v{T+1}")
    a(f"v_lshl_add_u32 v{T+1}, v{T}, 7, v{T+1}")
    a(f"v_add_u32 v{V_AK}, s{S_WB}, v{T+1}")
    a(f"v_xor_b32 v{V_AK+1}, 16, v{V_AK}")
    a(f"v_lshl_add_u32 v{V_LIN}, v{L}, 4, s{S_WB}")
    CIW, QWB, SC = V_CI + 24, V_CI + 25, V_CI + 26
    a(f"v_mov_b32 v{SC}, {hex(f2u(SCALE))}")
    a(f"v_lshl_add_u32 v{QWB}, v{L}, 4, s45")
    a(f"s_lshl_b32 s42, s{S_W}, 9")
    a(f"v_lshlrev_b32 v{T+3}, 4, v{T}")
    a(f"v_add_u32 v{V_CIR}, {CI_AREA}, v{T+3}")
    a(f"v_add_u32 v{CIW}, s42, v{V_CIR}")
    a(f"v_lshlrev_b32 v{T+3}, 4, v{L}")
    a(f"v_add_u32 v{V_QA0}, {XO}, v{T+3}")
    a(f"v_add_u32 v{V_QA1}, {2*REG + XO}, v{T+3}")
    for j in range(1, 4):
        a(f"s_xor_b32 s42, s{S_W}, {j}")
        a(f"s_mul_i32 s{S_XR+j-1}, s42, {REG}")
    a(f"s_lshl_b32 s{S_LWO}, s{S_W}, 2")
    a(f"s_sub_u32 s{S_LWO}, s{S_LWO}, {CI_AREA - LT0}")
    a(f"v_lshrrev_b32 v{T+1}, 4, v{L}")
    a(f"v_lshrrev_b32 v{T+2}, 2, v{T}")
    a(f"v_cmp_eq_u32 vcc, v{T+1}, v{T+2}")
    a(f"v_and_b32 v{T+2}, 1, v{L}")
    a(f"v_lshlrev_b32 v{T+2}, 4, v{T+2}")
    a(f"v_mov_b32 v{T+3}, 0x3f80")
    a(f"v_lshlrev_b32 v{T+3}, v{T+2}, v{T+3}")
    a(f"v_cndmask_b32 v{T+3}, 0, v{T+3}, vcc")
    a(f"v_and_b32 v{T+2}, 2, v{L}")
    a(f"v_cmp_eq_u32 vcc, 0, v{T+2}")
    a(f"v_bfe_u32 v{T+4}, v{L}, 4, 1")
    a(f"v_lshrrev_b32 v{T+5}, 5, v{L}")
    a(f"v_cndmask_b32 v{V_X0}, 0, v{T+3}, vcc")
    a(f"v_sub_u32 v{V_X1}, v{T+3}, v{V_X0}")
    a(f"v_lshl_add_u32 v{T+4}, v{T+4}, 1, v{T+5}")
    a(f"v_lshlrev_b32 v{T+4}, 4, v{T+4}")
    a(f"v_lshl_add_u32 v{T+4}, v{T}, 8, v{T+4}")
    a(f"s_lshl_b32 s42, s{S_W}, 6")
    a(f"v_add_u32 v{V_ST}, s42, v{T+4}")
    a(f"v_and_b32 v{T+2}, 3, v{L}")
    a(f"v_cmp_eq_u32 vcc, 0, v{T+2}")
    a(f"v_lshrrev_b32 v{T}, 2, v{L}")
    a(f"v_and_b32 v{T+1}, 6, v{T}")
    a(f"v_lshrrev_b32 v{T+2}, 3, v{T}")
    a(f"v_or_b32 v{T+1}, v{T+1}, v{T+2}")
    a(f"v_bfe_u32 v{T+2}, v{L}, 1, 1")
    a(f"v_xor_b32 v{T+1}, v{T+1}, v{T+2}")
    a(f"s_and_b32 s42, s{S_W}, 1")
    a("s_lshl_b32 s42, s42, 2")
    a(f"v_xor_b32 v{T+1}, s42, v{T+1}")
    a(f"v_lshlrev_b32 v{T+1}, 4, v{T+1}")
    a(f"v_lshl_add_u32 v{T+1}, v{T}, 7, v{T+1}")
    a(f"v_and_b32 v{T+2}, 1, v{L}")
    a(f"v_lshl_add_u32 v{T+1}, v{T+2}, 3, v{T+1}")
    a(f"v_add_u32 v{V_AV}, s{S_WB}, v{T+1}")
    for k in range(1, 4): a(f"v_xor_b32 v{V_AV+k}, {32*k}, v{V_AV}")
    a(f"v_mov_b32 v{T+2}, 0x3f803f80")
    a(f"v_cndmask_b32 v{T+2}, 0, v{T+2}, vcc")
    for r in range(4): a(f"v_accvgpr_write_b32 a{A_ONE+r}, v{T+2}")

    a(m0(KB(0) + 4096)); a("s_nop 0")
    for p in (2, 3): a(dma(SRD_K, 43, p, "K0b"))
    a(m0(KB(0))); a("s_nop 0")
    for p in (2, 3): a(dma(SRD_K, S_K0, p, "K0b"))

    RAW, QP, TMP = V_OTH, V_OWN, V_OTH + 32
    left = [n0]
    def more(n=1):
        for _ in range(n):
            if left[0] > 0: a(nextdma()); left[0] -= 1
    v0 = [0]
    def v0dma(n=1):
        for _ in range(n):
            j = v0[0]
            if j >= 8: return
            if j % 4 == 0: a(m0(VB(0) + (j // 4) * 4096)); a(f"s_xor_b32 s{S_SO}, s{S_Y}, s{S_MV0 + j // 4}")
            a(dma(SRD_V, S_SO, j % 4, ("V", 0, j // 4)))
            v0[0] += 1
    def qoff(h, c): return XO + (c >> 1) * 4096 + h * 2048 + (c & 1) * 1024
    def qw(h, c): return ("L", f"ds_write_b128 v{V_LIN if h == 0 else QWB}, {vr(QP + 16*h + 4*c, 4)} offset:{qoff(h, c)}", "qw")
    def scale_ops(j):
        o = []
        for r in range(4):
            o += [f"v_lshlrev_b32 v{TMP+2*r}, 16, v{RAW+4*j+r}", f"v_and_b32 v{TMP+2*r+1}, 0xffff0000, v{RAW+4*j+r}"]
        o += [f"v_pk_mul_f32 {vr(TMP+2*r,2)}, {vr(TMP+2*r,2)}, {vr(SC,2)} op_sel_hi:[1,0]" for r in range(4)]
        o += [f"v_cvt_pk_bf16_f32 v{QP+4*j+r}, v{TMP+2*r}, v{TMP+2*r+1}" for r in range(4)]
        return o
    def red_ops(h):
        S = V_S + 4*h; M = V_P + 2*h
        o = [f"v_max3_f32 v{M}, v{S}, v{S+1}, v{S+2}", f"v_max_f32 v{M}, v{M}, v{S+3}"]
        for sw in ("v_permlane16_swap_b32", "v_permlane32_swap_b32"):
            o += [f"v_mov_b32 v{M+1}, v{M}", f"{sw} v{M}, v{M+1}", f"v_max_f32 v{M}, v{M}, v{M+1}"]
        o += [f"v_mul_f32 v{M}, v{M}, v{SC}", f"v_cndmask_b32 v{M}, v{M}, v{V_KEEP+h}, s[{S_FBM}:{S_FBM+1}]"]
        o += [f"v_sub_f32 v{S+r}, 0, v{M}" for r in range(4)]
        return o
    def part(h, d0, d1):
        for c in range(4): a(("L", kread(0, 4*h + c, base=XO, dst=vr(RAW + 16*h + 4*c, 4)), ("raw", h, c)))
        if h == 0:
            a(("W", ["K0a"], None))
            for jj in range(4): a(("L", kread(0, jj), "k0a"))
        v0dma(d0)
        a(("W", None, [("raw", h, 0)]))
        a(scale_ops(4*h))
        a(("W", None, [("raw", h, 3), "k0a"]))
        S = vr(V_S + 4*h, 4)
        o1 = scale_ops(4*h + 1)
        for c in range(4):
            a(f"{M16} {S}, {Kf(c)}, {vr(RAW + 16*h + 4*c, 4)}, {S if c else '0'}")
            if c == 0: a(qw(h, 0))
            else: a(o1[:2]); del o1[:2]
        a(o1)
        a(qw(h, 1)); v0dma(d1)
        red = red_ops(h)
        for c in (2, 3):
            o = scale_ops(4*h + c)
            while o:
                a(o[:2]); del o[:2]
                if red: a(red.pop(0))
            a(qw(h, c))
        a(red)
        a(("L", f"ds_write_b128 v{CIW}, {S} offset:{256*h}", "ciw"))
    stamp("p")
    a(("W", ["Qa"], None))
    stamp(); stamp("p")
    part(0, vsch[0], vsch[1])
    v0dma(vsch[2])
    stamp("p")
    a(("W", ["Qb"], None))
    stamp("p")
    part(1, vsch[3], vsch[4])
    v0dma(8); more(pace)
    a(f"s_cmp_eq_u32 s{S_FB}, 1")
    stamp(); stamp("p")
    a(("W", None, "all"))
    a("s_barrier")
    a("s_cbranch_scc1 L_pass1")
    stamp(); stamp("p")
    def qreads(u):
        w, h = u // 2, u % 2
        ad = V_QA0 if w < 2 else V_QA1
        out = [f"ds_read_b128 {vr(V_CI+4*u,4)}, v{V_CIR} offset:{u*256}"]
        out += [f"ds_read_b128 {Qf(u,c)}, v{ad} offset:{(w&1)*REG + qoff(h, c) - XO}" for c in range(4)]
        return Ls(out, ("q", u))
    a(qreads(0))
    a(("W", ["K0b"], None))
    for jj in range(4, 8): a(("L", kread(0, jj), "k0b"))
    a(qreads(1))
    more()
    a(("W", None, [("q", 0)]))
    for j in range(8):
        if j == 4: a(("W", None, ["k0b"]))
        a(qk(0, j))
        if j in (2, 5, 7): more()
    more(64)
    a(("W", [("V", 0, 0)], None))
    for dt in range(4): a(Ls(vread(0, dt), ("v", 0, dt)))
    for e in range(5): a(ex(e))
    a(cv(0)); a(cv(1))
    stamp()

    pend = []
    def emit_step(u, par, first, fin, ext, post, dgaps=(), sgaps=()):
        order = [2, 3, 4, 5, 6, 7, -1, 0, 1] if fin else [0, 1, 2, 3, 4, 5, 6, 7, -1]
        for g in range(17):
            if g < 8:
                if not fin: a(qk((u + 1) % 7, g))
            else:
                dt = order[g - 8]
                a(pv(u, dt, par, first) if dt >= 0 else sm(u, first))
            if g in dgaps:
                a(list(pend)); pend.clear()
                a(nextdma())
            room = 2 - len(ext[g])
            if g in sgaps and room > 0:
                if not pend: pend.extend(nextpre())
                a(pend[:room]); del pend[:room]
            a(ext[g])
            if g < 3: a(ex(5 + g))
            elif g == 3:
                if fin: a("s_nop 0")
                a(cv(2)); a(cv(3))
            elif not fin:
                if 11 <= g <= 15: a(ex(g - 11))
                elif g == 16: a(cv(0)); a(cv(1))
            a(post[g])

    def tile(t):
        par = t & 1; nx = par ^ 1
        first = t == 0
        for u in range(7):
            ext = {g: [] for g in range(17)}; post = {g: [] for g in range(17)}
            dgaps, sgaps = {0: ((5, 8, 10), (4, 6, 7, 9)), 1: ((5, 10), (4, 6, 7, 8, 9)), 2: ((5, 8, 10), (4, 6, 7, 9)), 3: ((5, 10), (4, 6, 7, 8, 9)),
                            4: ((5, 9), (7,)), 5: ((5, 9), (7,)), 6: ((4, 7), (5,))}[u]
            if u == 0 and not first: ext[6].append(("W", None, "all"))
            if u == 3: ext[9].append(("W", [("V", t+1, 1)], None))
            if u == 4:
                for g, dt in zip((4, 6, 8, 10), (4, 5, 6, 7)): ext[g] += Ls(vread(nx, dt), ("v", t+1, dt))
                post[16].append(("W", [("K", t+1, 0), ("K", t+1, 1)], None))
            if u == 5:
                for i, g in enumerate((4, 6, 8, 10)): ext[g] += Ls([kread(nx, 2*i), kread(nx, 2*i+1)], ("k", t+1))
                post[16].append(("W", [("V", t+1, 0)], [("k", t+1)]))
                if first: post[16].append("s_barrier")
            if u == 6:
                for g, dt in zip((6, 8, 9, 10), (3, 0, 1, 2)): ext[g] += Ls(vread(nx, dt), ("v", t+1, dt))
            if t % 2 == 0 and t > 0 and u == 1: ext[8].append(f"s_sub_u32 s{S_CNT}, s{S_CNT}, 1")
            if first:
                if u == 0:
                    dgaps, sgaps = (), ()
                    ext[3].append(("W", [("V", 0, 1)], None))
                    for g, dt in zip((4, 5, 6, 7), (4, 5, 6, 7)): ext[g] += Ls(vread(0, dt), ("v", 0, dt))
                    post[7].append(("W", None, [("v", 0, 3)]))
                    q = qreads(2); ext[8] += q[0:2]; ext[9] += q[2:4]; ext[10] += q[4:5]
                    post[11].append(("W", None, [("v", 0, 7)]))
                elif u < 4:
                    q = qreads(u + 2); ext[6] += q[0:2]; ext[7] += q[2:4]; ext[9] += q[4:5]
                    dgaps, sgaps = (5, 8, 10), (4,)
                    if u == 3:
                        q = qreads(6)
                        for i in range(5): ext[11 + i] += q[i:i+1]
                if u == 4: dgaps = (5, 9, 13)
                if u < 5: post[16].append(("W", None, [("q", u + 2)]))
                xs = [(0, 1), (0, 13), (1, 1), (2, 1), (3, 1), (4, 1), (5, 1), (6, 1), (1, 13), (2, 13), (5, 13), (6, 13)][:t0extra]
                dgaps = tuple(sorted(set(dgaps) | set(g for (uu, g) in xs if uu == u)))
                stamp("t")
                if u == 0: a(("W", None, [("q", 1)]))
            emit_step(u, par, first, False, ext, post, dgaps, sgaps)

    a.c("tile 0"); tile(0)
    a(f"s_mov_b32 s{S_CNT}, 3")
    stamp()
    a.raw(".p2align 6")
    a.label("L_loop")
    i0 = len(a.l)
    bodies = []
    for t in range(1, 7):
        b = len(a.l); tile(t); bodies.append(a.l[b:])
    for t in (2, 4):
        for k in (0, 1):
            assert bodies[t + k] == bodies[k], [(x, y) for x, y in zip(bodies[k], bodies[t + k]) if x != y][:4]
    del a.l[i0:]
    a.l += bodies[4] + bodies[5]
    a(f"s_cmp_lg_u32 s{S_CNT}, 0")
    a("s_cbranch_scc1 L_loop")
    i1 = len(a.l)
    assert stream[spos[0]][2] >= 8, "stream not fully issued"
    stamp()

    def blk(u, j): return (u * 3 + j - 1) * 1024
    def pk(u, j):
        o = Ov(u, 2*j); p = Ov(u, 2*j+1) if j < 3 else Ov(u, 3)
        return [f"v_cvt_pk_bf16_f32 v{o+r}, v{(o, p)[r//2] + 2*(r%2)}, v{(o, p)[r//2] + 2*(r%2) + 1}" for r in range(4)]
    def acc(u): return [f"v_accvgpr_read_b32 v{Ov(u,3)+r}, a{A_O7+4*u+r}" for r in range(4)]
    def xw(u, j): return ("L", f"ds_write_b128 v{V_LIN}, {vr(Ov(u, 2*j), 4)} offset:{blk(u, j)}", ("xw", u))
    def lw(u): return ("L", f"ds_write_b32 v{V_LW}, a{A_L+4*u} offset:{LTAB(u)}", ("xw", u))
    def R(u):
        o = [("L", f"ds_read_b128 {ar(A_X(u) + 4*(j-1), 4)}, v{V_XR+j-1} offset:{blk(u, j)}", ("x", u)) for j in range(1, 4)]
        return o + [("L", f"ds_read_b128 {vr(V_CI+4*u,4)}, v{V_LR} offset:{LTAB(u)}", ("x", u))]
    def cmb(u):
        return [f"{M16} {Of(u, b)}, {ar(A_SEL + 2 - 2*b, 4)}, {ar(A_X(u) + 4*j, 4)}, {Of(u, b)}" for b in range(2) for j in range(3)]
    def ladd(u):
        c = V_CI + 4*u
        return [f"v_add_f32 v{c}, v{c}, v{c+1}", f"v_add_f32 v{c+2}, v{c+2}, v{c+3}", f"v_add_f32 v{c}, v{c}, v{c+2}"]
    def lrcp(u):
        c = V_CI + 4*u
        return [f"v_rcp_f32 v{c+1}, v{c}", f"v_add_f32 v{V_CHK}, v{V_CHK}, v{c}" if u else f"v_mov_b32 v{V_CHK}, v{c}"]
    def mul(u, b): return [f"v_mul_f32 v{Ov(u,b)+r}, v{Ov(u,b)+r}, v{V_CI+4*u+1}" for r in range(4)]
    def swp(u): return [f"v_permlane16_swap_b32 v{Ov(u,0)+r}, v{Ov(u,0)+2+r}" for r in range(2)]
    def sto(u): return f"s_movk_i32 s98, {u*4096}"
    def ST(u): return ("V", f"buffer_store_dwordx4 {vr(Ov(u,0),4)}, v{V_ST}, {srd(SRD_O)}, s98 offen{(' '+sflags) if sflags else ''}", "st")
    def seq(mf, fill):
        for i, m in enumerate(mf):
            if m: a(m)
            a(fill.get(i, []))
    a.c("tile 7")
    for u in range(6):
        stamp("e")
        w = u - 1; f = u - 2
        mf = [qk(u + 1, g) for g in range(8)] + (cmb(f) if f >= 0 else [None] * 6) + [pv(u, dt, 1, False) for dt in range(8)] + [sm(u, False)]
        F = {i: [] for i in range(23)}
        if f >= 0:
            r = R(f); F[0] += r[0:2]; F[1] += r[2:4]
        if w >= 0: F[2 if f >= 0 else 3] += [lw(w)]
        for g in range(3): F[g] += [ex(5 + g)]
        F[3] += [cv(2), cv(3)]
        if u == 0:
            F[4] += [("W", "all", "all"), f"v_add_u32 v{V_LW}, s{S_LWO}, v{V_CIR}"]
            F[5] += [f"v_lshl_add_u32 v{V_XR+j}, v{L}, 4, s{S_XR+j}" for j in range(2)]
            F[6] += [f"v_lshl_add_u32 v{V_XR+2}, v{L}, 4, s{S_XR+2}", f"v_subrev_u32 v{V_LR}, {CI_AREA - LT0}, v{V_CIR}"]
            sel = [f"v_accvgpr_write_b32 a{A_SEL+r}, {x}" for r, x in enumerate(("0", "0", f"v{V_X0}", f"v{V_X1}", "0", "0"))]
            F[7] += sel[0:2]; F[14] += sel[2:4]; F[15] += sel[4:6]
        if f >= 0:
            F[4] += pk(w, 1); F[5] += [xw(w, 1)]; F[6] += pk(w, 2); F[7] += acc(w) + [("W", None, [("x", f)])]
            F[8] += [xw(w, 2)]; F[9] += pk(w, 3); F[10] += ladd(f); F[11] += lrcp(f); F[12] += [xw(w, 3)]
            F[13] += [ex(0)]; F[14] += [ex(1)]; F[15] += [ex(2)]; F[16] += [ex(3)]
            F[17] += mul(f, 0); F[18] += mul(f, 1); F[19] += pk(f, 0)
            F[20] += [("W", None, [("xw", w)]), "s_barrier", ex(4)]
            F[21] += swp(f) + [sto(f)]
            F[22] += [ST(f), cv(0), cv(1)]
        else:
            if w >= 0:
                F[4] += pk(w, 1); F[5] += [xw(w, 1)]; F[6] += pk(w, 2); F[7] += acc(w)
                F[14] += [xw(w, 2)]; F[15] += pk(w, 3); F[17] += [xw(w, 3)]
            for i, g in enumerate((17, 18, 19, 20, 21) if w < 0 else (16, 18, 19, 20, 21)): F[g] += [ex(i)]
            F[22] += [cv(0), cv(1)]
            if w >= 0: F[22] += [("W", None, [("xw", w)]), "s_barrier"]
        seq(mf, F)
    stamp("e")
    a(R(4))
    a([ex(5), ex(6), ex(7)] + pk(5, 1)[:1] + [cv(2), cv(3)] + pk(5, 1)[1:])
    mf = [pv(6, dt, 1, False) for dt in range(2, 8)] + [sm(6, False), pv(6, 0, 1, False), pv(6, 1, 1, False)] + cmb(4)
    F = {0: [xw(5, 1)], 1: [lw(5)] + pk(5, 2), 2: acc(5), 3: [xw(5, 2)], 4: pk(5, 3), 5: [("W", None, [("x", 4)])] + ladd(4), 6: [xw(5, 3)], 7: pk(6, 1), 8: lrcp(4),
         9: [xw(6, 1)], 10: pk(6, 2), 11: acc(6), 12: [xw(6, 2)], 13: pk(6, 3), 14: [lw(6), xw(6, 3)]}
    seq(mf, F)
    a(mul(4, 0))
    a(("W", None, [("xw", 6)])); a("s_barrier")
    stamp()
    a(R(5)); a(R(6))
    a(mul(4, 1)); a(pk(4, 0)); a(sto(4)); a("s_nop 0"); a(swp(4)); a("s_nop 0"); a(ST(4))
    a(("W", None, [("x", 5)]))
    F = {0: ladd(5), 1: lrcp(5), 2: [("W", None, [("x", 6)])] + ladd(6), 3: lrcp(6), 4: [f"s_mov_b32 s99, {hex(f2u(THRESH))}", f"s_cmp_lg_u32 s{S_FB}, 0"],
         5: [f"v_cmp_ngt_f32 vcc, s99, v{V_CHK}", sto(5)], 6: mul(5, 0)[:2], 7: mul(5, 0)[2:], 8: ["s_nop 1"], 9: mul(5, 1), 10: pk(5, 0), 11: mul(6, 0)[:2] + swp(5)}
    seq(cmb(5) + cmb(6), F)
    a("s_nop 0"); a(ST(5)); a(mul(6, 0)[2:]); a(sto(6)); a(mul(6, 1)); a(pk(6, 0)); a("s_nop 1"); a(swp(6)); a("s_nop 0"); a(ST(6))
    a("s_cbranch_scc1 L_ok")
    a("s_cbranch_vccnz L_fallback")
    a.label("L_ok")
    a.free = True
    if diag and spin:
        i, j, mult = spin
        a("s_waitcnt vmcnt(0)")
        a(f"s_lshl_b32 s84, s2, 2"); a(f"s_add_u32 s84, s84, s{S_W}"); a("s_cmp_lg_u32 s84, 401"); a("s_cbranch_scc1 L_end")
        a("s_memrealtime s[80:81]"); a("s_waitcnt lgkmcnt(0)")
        sj = 80 if j == 8 else S_STAMP + 2*j
        a(f"s_sub_u32 s84, s{sj}, s{S_STAMP+2*i}"); a(f"s_mul_i32 s84, s84, {mult}"); a("s_min_u32 s84, s84, 20000")
        a.label("L_spin")
        a("s_memrealtime s[82:83]"); a("s_waitcnt lgkmcnt(0)")
        a("s_sub_u32 s85, s82, s80"); a("s_cmp_lt_u32 s85, s84"); a("s_cbranch_scc1 L_spin")
    elif diag:
        a("s_memrealtime s[84:85]"); a("s_memtime s[86:87]")
        a("s_waitcnt vmcnt(0)")
        a("s_mov_b32 s36, s46"); a("s_mov_b32 s37, s47"); a("s_mov_b32 s38, 0x100000"); a("s_mov_b32 s39, 0x20000")
        a("s_memrealtime s[80:81]"); a("s_memtime s[82:83]"); a("s_waitcnt lgkmcnt(0)")
        a("s_lshl_b32 s40, s2, 2"); a(f"s_add_u32 s40, s40, s{S_W}"); a("s_lshl_b32 s40, s40, 8")
        a(f"v_mov_b32 v4, s40")
        a(f"v_cmp_eq_u32 vcc, 0, v{L}")
        a("s_and_saveexec_b64 s[42:43], vcc")
        slots = [(S_STAMP+2*i, i) for i in range(8)] + [(84, 8), (80, 9)] + [(S_STAMP+16+2*i, 16+i) for i in range(8)] + [(86, 24), (82, 25)]
        for s, i in slots:
            a(f"v_mov_b32 v6, s{s}"); a(f"v_mov_b32 v7, s{s+1}"); a(f"buffer_store_dwordx2 v[6:7], v4, s[36:39], 0 offen offset:{8*i}"); a("s_nop 1")
    a.label("L_end")
    a("s_endpgm")
    iend = len(a.l)
    a.label("L_fallback")
    a("s_waitcnt vmcnt(0) lgkmcnt(0)")
    a("s_barrier")
    a(f"s_mov_b32 s{S_FB}, 1")
    a("s_branch L_start")
    a.label("L_pass1")
    for u in range(7):
        for x in qreads(u)[1:]: a(x[1])
        a("s_waitcnt lgkmcnt(0)")
    a("s_waitcnt vmcnt(0)")
    a("s_barrier")
    a("s_mov_b32 s42, 0")
    MX = V_OWN
    for u in range(7): a(f"v_mov_b32 v{MX+u}, 0xff800000")
    a.label("L_fb1")
    a(m0(0)); a(f"s_add_u32 s{S_SO}, s42, 128")
    for p in range(4): a(dma(SRD_K, 42, p, "f")[1])
    a(m0(4096)); a("s_nop 0")
    for p in range(4): a(dma(SRD_K, S_SO, p, "f")[1])
    a("s_waitcnt vmcnt(0)")
    for j in range(8): a(kread(0, j))
    a("s_waitcnt lgkmcnt(0)")
    for u in range(7):
        for j in range(8): a(qk(u, j, zero=True))
        a("s_nop 7")
        for r in range(0, 8, 2): a(f"v_max3_f32 v{MX+u}, v{MX+u}, v{V_S+r}, v{V_S+r+1}")
    a("s_add_u32 s42, s42, 0x2000")
    a("s_cmp_lt_u32 s42, 0x10000")
    a("s_cbranch_scc1 L_fb1")
    for sw in ("v_permlane16_swap_b32", "v_permlane32_swap_b32"):
        for u in range(7): a(f"v_mov_b32 v{MX+8+u}, v{MX+u}")
        a("s_nop 1")
        for u in range(7): a(f"{sw} v{MX+u}, v{MX+8+u}")
        a("s_nop 1")
        for u in range(7): a(f"v_max_f32 v{MX+u}, v{MX+u}, v{MX+8+u}")
    a(f"v_add_u32 v{V_P}, s{S_LWO}, v{V_CIR}")
    for u in range(7): a(f"ds_write_b32 v{V_P}, v{MX+u} offset:{LTAB(u)}")
    a("s_waitcnt lgkmcnt(0)")
    a("s_barrier")
    a(f"s_and_b32 s42, s{S_W}, 1"); a("s_lshl_b32 s42, s42, 9")
    a(f"s_lshr_b32 s98, s{S_W}, 1"); a(f"s_mul_i32 s98, s98, {REG}"); a("s_add_u32 s42, s42, s98")
    a(f"s_sub_u32 s42, s42, {CI_AREA - LT0}")
    a(f"v_add_u32 v{V_P}, s42, v{V_CIR}")
    for h in range(2): a(f"ds_read_b128 {vr(V_S+4*h,4)}, v{V_P} offset:{256*h}")
    a("s_waitcnt lgkmcnt(0)")
    for h in range(2):
        a(f"v_max3_f32 v{V_KEEP+h}, v{V_S+4*h}, v{V_S+4*h+1}, v{V_S+4*h+2}")
        a(f"v_max_f32 v{V_KEEP+h}, v{V_KEEP+h}, v{V_S+4*h+3}")
    a(f"s_mov_b32 s{S_FB}, 2")
    a(f"s_mov_b64 s[{S_FBM}:{S_FBM+1}], -1")
    a("s_barrier")
    a("s_branch L_start")
    lin = a.l[:i1] + a.l[i0:i1] + a.l[i1:iend]
    bad = hz.check(lin) + hz.check(a.l[iend:])
    for b in bad: print("HAZARD", b, file=sys.stderr)
    if pref: a.raw(f".fill ({16384 * pref} - (. - {NAME}_kernel)) / 4, 4, 0xbf810000")
    a.raw('.section .rodata,"a"'); a.raw(".p2align 6"); a.raw(f".amdhsa_kernel {NAME}_kernel")
    a.raw("  .amdhsa_next_free_vgpr 512"); a.raw("  .amdhsa_next_free_sgpr 102"); a.raw("  .amdhsa_accum_offset 256")
    a.raw("  .amdhsa_group_segment_fixed_size 0"); a.raw("  .amdhsa_kernarg_size 48"); a.raw("  .amdhsa_user_sgpr_count 2")
    a.raw("  .amdhsa_user_sgpr_kernarg_segment_ptr 1"); a.raw("  .amdhsa_system_sgpr_workgroup_id_x 1"); a.raw(".end_amdhsa_kernel")
    if warm: a.l = add_stubs(a.l, head)
    return "\n".join(a.l) + "\n"

if __name__ == "__main__":
    ap = argparse.ArgumentParser()
    ap.add_argument("-o", default=f"kG.s")
    ap.add_argument("--diag", action="store_true")
    ap.add_argument("--spin", default=None); ap.add_argument("--flags", default=""); ap.add_argument("--sflags", default="nt")
    ap.add_argument("--n0", type=int, default=8); ap.add_argument("--mix", type=int, default=1); ap.add_argument("--vsch", default="2,2,2,2,0")
    ap.add_argument("--t0extra", type=int, default=4); ap.add_argument("--pace", type=int, default=2); ap.add_argument("--fine", default="c")
    ap.add_argument("--cgap", type=int, default=14); ap.add_argument("--pref", type=int, default=1); ap.add_argument("--align", type=int, default=12); ap.add_argument("--head", type=int, default=3584); ap.add_argument("--warm", type=int, default=1); ap.add_argument("--rot", default="0,0"); ap.add_argument("--wg", default="4,5,6,7,8,9,10")
    args = ap.parse_args()
    tup = lambda s: tuple(map(int, s.split(',')))
    open(args.o, "w").write(gen(diag=args.diag, flags=args.flags, sflags=args.sflags, n0=args.n0, mix=args.mix, vsch=tup(args.vsch), t0extra=args.t0extra,
                                pace=args.pace, fine=args.fine, cgap=args.cgap, pref=args.pref, align=args.align, head=args.head, warm=args.warm, rot=tup(args.rot), wg=tup(args.wg), spin=tup(args.spin) if args.spin else None))
```

```python
import sys, struct, argparse
import hz
NAME = "standalone__gqa_softmax__near_ridge"
def f2u(x): return struct.unpack("<I", struct.pack("<f", x))[0]
def vr(b, n=1): return f"v{b}" if n == 1 else f"v[{b}:{b+n-1}]"
def ar(b, n=1): return f"a{b}" if n == 1 else f"a[{b}:{b+n-1}]"
def srd(b): return f"s[{b}:{b+3}]"

V_LANE, V_LIN, V_KEEP, V_VOFF, V_AK, V_AV = 0, 1, 2, 4, 8, 10
V_QA0, V_X0, V_QA1, V_X1, V_ST, V_CIR = 14, 15, 16, 17, 18, 19
V_S, V_P, V_CI, V_OWN, V_OTH = 20, 28, 32, 60, 116
A_O7, A_L, A_ONE, A_K, A_V, A_Q = 0, 28, 56, 60, 92, 144
V_XR, V_LW, V_LR, V_CHK = 4, 7, 8, 9
A_SEL = A_V + 12
def A_X(u): return A_Q + 16 * (u % 2)
S_W = 3
SRD_Q, SRD_K, SRD_V, SRD_O = 12, 16, 20, 24
S_MK0, S_MK1, S_MV0, S_MV1 = 28, 29, 30, 31
S_Y, S_FB, S_WB, S_CNT = 32, 33, 34, 35
S_SO = 44
S_STAMP = 48
S_FBM = 88
S_XR = 90
S_LWO = 93
S_Y0 = 100
S_K0 = 101
REG = 40960
KB = lambda par: par * 8192
VB = lambda par: 16384 + par * 8192
XO = 32768
CI_AREA = 3 * REG + XO + 6144
LT0 = 39936
def LTAB(u): return u * 256 if u < 4 else REG + (u - 4) * 256
SCALE = (128 ** -0.5) * 1.4426950408889634
THRESH = 2.0 ** 40
M16 = "v_mfma_f32_16x16x32_bf16"

def Qf(u, c): return ar(A_Q + 16 * u + 4 * c, 4)
def Kf(j): return ar(A_K + 4 * j, 4)
def Vbase(dt, par): return A_V + 4 * dt if dt < 3 else A_V + 12 + 20 * par + 4 * (dt - 3)
def Ov(u, dt): return V_OWN + 8 * u + 4 * dt if dt < 2 else V_OTH + 20 * u + 4 * (dt - 2)
def Of(u, dt): return ar(A_O7 + 4 * u, 4) if dt == 7 else vr(Ov(u, dt), 4)
def qk(u, j, zero=False):
    kt, c = j // 4, j % 4
    S = vr(V_S + 4 * kt, 4)
    cc = S if c else ("0" if zero else vr(V_CI + 4 * u, 4))
    return f"{M16} {S}, {Kf(j)}, {Qf(u, c)}, {cc}"
def pv(u, dt, par, first):
    o = Of(u, dt)
    return f"{M16} {o}, {ar(Vbase(dt, par), 4)}, {vr(V_P, 4)}, {'0' if first else o}"
def sm(u, first):
    o = ar(A_L + 4 * u, 4)
    return f"{M16} {o}, {ar(A_ONE, 4)}, {vr(V_P, 4)}, {'0' if first else o}"
def ex(e): return f"v_exp_f32 v{V_S+e}, v{V_S+e}"
def cv(i): return f"v_cvt_pk_bf16_f32 v{V_P+i}, v{V_S+2*i}, v{V_S+2*i+1}"
def kread(par, j, base=None, dst=None):
    kt, c = j // 4, j % 4
    off = (KB(par) if base is None else base) + (c >> 1) * 4096 + kt * 2048
    return f"ds_read_b128 {dst or Kf(j)}, v{V_AK + (c & 1)} offset:{off}"
def vread(par, dt):
    b = Vbase(dt, par)
    return [f"ds_read_b64_tr_b16 {ar(b + 2*h, 2)}, v{V_AV + (dt & 3)} offset:{VB(par) + (dt >> 2) * 4096 + h * 2048}" for h in range(2)]

class Gen:
    def __init__(self):
        self.l = []; self.vq = []; self.lq = []; self.ldone = 0; self.free = False
    def __call__(self, s):
        if isinstance(s, list):
            for x in s: self(x)
        elif isinstance(s, tuple):
            if s[0] == "L": self.l.append("    " + s[1]); self.lq.append(s[2])
            elif s[0] == "V":
                tg = s[2]
                if isinstance(tg, tuple) and tg[0] in "KV" and tg[1] >= 2:
                    kv, x, hf = tg
                    need = ([("k", x-2)] if x > 2 else ["k0a", "k0b"]) if kv == "K" else [("v", x-2, dt) for dt in range(4*hf, 4*hf+4)]
                    for n in need:
                        idx = [i for i, t in enumerate(self.lq) if t == n]
                        assert idx and max(idx) < self.ldone, ("LDS WAR", tg, n)
                self.l.append("    " + s[1]); self.vq.append(s[2])
            elif s[0] == "W":
                parts = []
                for q, tags, nm, mx in ((self.vq, s[1], "vmcnt", 63), (self.lq, s[2], "lgkmcnt", 15)):
                    if tags is None: continue
                    if tags == "all": n = 0
                    else:
                        idx = [i for i, t in enumerate(q) if t in tags]
                        assert idx, ("no such tag", tags)
                        n = len(q) - 1 - max(idx)
                    if nm == "lgkmcnt": self.ldone = max(self.ldone, len(q) - min(n, mx))
                    parts.append(f"{nm}({min(n, mx)})")
                self.l.append("    s_waitcnt " + " ".join(parts))
        else:
            assert not (s.startswith("ds_") or s.startswith("buffer_")) or self.free, s
            self.l.append("    " + s)
    def label(self, s): self.l.append(s + ":")
    def c(self, s): self.l.append("    ; " + s)
    def raw(self, s): self.l.append(s)

def sizes(lines):
    import subprocess, tempfile, os, re
    with tempfile.TemporaryDirectory() as d:
        src = [l for l in lines]
        src.insert(src.index("L_end:"), "L_pg1:\nL_pg2:")
        open(d + "/t.s", "w").write("\n".join(src) + "\n")
        subprocess.run(["clang", "-x", "assembler", "-target", "amdgcn-amd-amdhsa", "-mcpu=gfx950", "-c", d + "/t.s", "-o", d + "/t.o"], check=True)
        out = subprocess.run(["llvm-objdump", "-d", "--mcpu=gfx950", d + "/t.o"], capture_output=True, text=True).stdout
    return [(int(m.group(2), 16), m.group(1)) for m in re.finditer(r"^\t(\S+).*// ([0-9A-F]+):", out, re.M)]
def add_stubs(lines, head):
    lines = list(lines)
    for pg in (1, 2):
        tmp = [l for l in lines if not l.startswith("L_pg")]
        ins = [x for x in sizes(tmp) if x[0] >= head]
        mf = [off for off, mn in ins if mn.startswith("v_mfma")]
        target = (pg + (1 if head else 0)) * 4096
        k = next(i for i, off in enumerate(mf) if off >= target - 8)
        assert mf[k] + 8 < target + 60, (mf[k], target)
        idx = [i for i, l in enumerate(lines) if l.strip().startswith("v_mfma")][k]
        lines[idx + 1:idx + 1] = [f"L_pg{pg}:", "    s_cbranch_execz L_back"]
    return lines

def gen(diag=False, flags="", sflags="nt", spin=None, n0=8, mix=1, vsch=(2, 2, 2, 2, 0), t0extra=4, pace=2, fine='c', cgap=14, pref=1, align=12, head=3584, warm=1, rot=(0, 0), wg=(4, 5, 6, 7, 8, 9, 10)):
    a = Gen()
    fl = (" " + flags) if flags else ""
    def dma(s, soff, p, tag): return ("V", f"buffer_load_dwordx4 v{V_VOFF+p}, {srd(s)}, s{soff} offen offset:{p*1024}{fl} lds", tag)
    def m0(off): return f"s_add_u32 m0, s{S_WB}, {off}"
    def Ls(texts, tag): return [("L", t, tag) for t in texts]
    nst = [0]
    def stamp(kind="c"):
        if diag and kind in fine and nst[0] < 8:
            a(f"s_memrealtime s[{S_STAMP+2*nst[0]}:{S_STAMP+2*nst[0]+1}]")
            a(f"s_memtime s[{S_STAMP+16+2*nst[0]}:{S_STAMP+16+2*nst[0]+1}]")
            nst[0] += 1
    GROUPS = (("V", 1), ("K", 0), ("K", 1), ("V", 0))
    stream = []
    for x in range(1, 10):
        for gi, (kv, hf) in enumerate(GROUPS):
            s_, buf = (SRD_K, KB(x & 1)) if kv == "K" else (SRD_V, VB(x & 1))
            for p in range(4):
                pre = []; so = S_SO
                if p == 0:
                    if gi == 0: pre += [("Y", x)]
                    pre += [m0(buf + hf * 4096), f"s_xor_b32 s{S_SO}, s{S_Y}, s{(S_MK0 if kv == 'K' else S_MV0) + hf}"]
                stream.append((pre, dma(s_, so, p, (kv, x, hf)), x))
    spos = [0]
    def expand(pre):
        out = []
        for y in pre:
            if isinstance(y, tuple) and y[0] == "Y":
                out += [f"s_add_u32 s{S_Y}, s{S_Y}, 0x2000", f"s_and_b32 s{S_Y}, s{S_Y}, 0xffff"]
                if y[1] % 2 == 0 and y[1] >= 4:
                    out += [f"s_cmp_lg_u32 s{S_Y}, s{S_Y0}", f"s_cselect_b32 s{SRD_K+2}, 0x10000, 0", f"s_mov_b32 s{SRD_V+2}, s{SRD_K+2}"]
            elif isinstance(y, tuple): out += ["s_nop 0"]
            else: out.append(y)
        return out
    def nextpre():
        pre, d, x = stream[spos[0]]
        stream[spos[0]] = ([], d, x)
        return expand(pre)
    def nextdma():
        pre, d, x = stream[spos[0]]
        spos[0] += 1
        return expand(pre) + [d]

    a.raw(open("cdna_kernels/%s.s.ref" % NAME).read().split("; Override launch")[0].rstrip())
    a.raw("; @launch grid=(256,1,1) block=(256,1,1) lds=163840")
    a.raw('.amdgcn_target "amdgcn-amd-amdhsa--gfx950"')
    a.raw(".text"); a.raw(f".globl {NAME}_kernel"); a.raw(f".p2align {align}"); a.raw(f".fill {head // 4}, 4, 0xbf810000"); a.raw(".p2align 8"); a.raw(f".type {NAME}_kernel,@function")
    a.label(f"{NAME}_kernel")
    a("s_load_dwordx8 s[4:11], s[0:1], 0")
    a("s_cmp_ge_u32 s2, 256")
    a("s_cbranch_scc1 L_end")
    if diag:
        a("s_load_dwordx2 s[46:47], s[0:1], 40")
        stamp(fine[0])
    L = V_LANE
    T = V_S
    a(f"v_lshrrev_b32 v{T}, 6, v0")
    a(f"v_and_b32 v{L}, 63, v0")
    a(f"v_readfirstlane_b32 s{S_W}, v{T}")
    a("s_and_b32 s36, s2, 7")
    a("s_lshr_b32 s37, s2, 3")
    a("s_lshl_b32 s36, s36, 5")
    a("s_add_u32 s36, s36, s37")
    a("s_mul_i32 s38, s36, 28672")
    a(f"s_mul_i32 s{S_WB}, s{S_W}, {REG}")
    a(f"s_movk_i32 s{SRD_Q+2}, 28672")
    a(f"s_mov_b32 s{SRD_Q+3}, 0x20000")
    a(f"s_lshl_b32 s40, s{S_W}, 13")
    a(f"s_mov_b32 s{S_FB}, 0")
    a(f"s_mov_b64 s[{S_FBM}:{S_FBM+1}], 0")
    a.label("L_start")
    a(f"v_lshrrev_b32 v{T}, 3, v{L}")
    a(f"v_and_b32 v{T+1}, 6, v{T}")
    a(f"v_xor_b32 v{T+1}, v{T+1}, v{L}")
    a(f"v_and_b32 v{T+1}, 7, v{T+1}")
    a(f"v_lshlrev_b32 v{T+1}, 4, v{T+1}")
    a(f"v_lshl_add_u32 v{V_VOFF}, v{T}, 8, v{T+1}")
    a(f"v_xor_b32 v{V_VOFF+1}, 16, v{V_VOFF}")
    a(f"v_add_u32 v{V_VOFF+1}, 0x400, v{V_VOFF+1}")
    a(m0(XO))
    a("s_add_u32 s41, s40, 128")
    a("s_lshr_b32 s39, s36, 2")
    a(f"s_and_b32 s{S_Y0}, s39, {rot[0]}")
    a(f"s_lshl_b32 s{S_Y0}, s{S_Y0}, 13")
    a(f"s_and_b32 s{S_MK0}, s36, {rot[1]}")
    a(f"s_lshl_b32 s{S_MK0}, s{S_MK0}, 13")
    a("s_lshl_b32 s39, s39, 18")
    a(f"s_lshl_b32 s42, s{S_W}, 16")
    a("s_add_u32 s39, s39, s42")
    a(f"s_mov_b32 s{SRD_K+2}, 0x10000")
    a(f"s_mov_b32 s{SRD_K+3}, 0x20000")
    a(f"s_mov_b32 s{S_Y}, s{S_Y0}")
    a(f"s_xor_b32 s{S_K0}, s{S_Y0}, s{S_MK0}")
    a(f"s_or_b32 s43, s{S_K0}, 128")
    stamp("k")
    a("s_waitcnt lgkmcnt(0)")
    stamp("k")
    def base(b, src, off): return [f"s_add_u32 s{b}, s{src}, s{off}", f"s_addc_u32 s{b+1}, s{src+1}, 0"]
    a(base(SRD_Q, 4, 38))
    for p in (0, 1): a(dma(SRD_Q, 40, p, "Qa"))
    a(m0(XO + 4096)); a(base(SRD_K, 6, 39))
    for p in (0, 1): a(dma(SRD_Q, 41, p, "Qa"))
    if pref:
        a("s_getpc_b64 s[94:95]")
        a.label("L_pc")
        a(f"s_lshl_b32 s42, s{S_W}, 5")
        a("s_add_u32 s42, s42, s37")
        a("s_lshl_b32 s42, s42, 7")
        a(f"s_sub_u32 s94, s94, L_pc-{NAME}_kernel")
        a("s_subb_u32 s95, s95, 0")
        a("s_load_dword s96, s[94:95], s42")
        if pref > 1:
            a("s_add_u32 s42, s42, 0x4000")
            a("s_load_dword s97, s[94:95], s42")
    a(m0(KB(0)))
    a(f"s_cmp_eq_u32 s{S_W}, 3")
    for p in (0, 1): a(dma(SRD_K, S_K0, p, "K0a"))
    a(f"s_cselect_b32 s45, 0x4000, 0")
    a(m0(KB(0) + 4096))
    a(f"s_add_u32 s45, s45, s{S_WB}")
    for p in (0, 1): a(dma(SRD_K, 43, p, "K0a"))
    a(f"v_add_u32 v{V_VOFF+2}, 0x800, v{V_VOFF}")
    a(f"v_add_u32 v{V_VOFF+3}, 0x800, v{V_VOFF+1}")
    a(f"s_add_u32 m0, s45, {XO + 4096}"); a("s_nop 0")
    for p in (2, 3): a(dma(SRD_Q, 41, p, "Qb"))
    a(f"s_add_u32 m0, s45, {XO}"); a("s_nop 0")
    for p in (2, 3): a(dma(SRD_Q, 40, p, "Qb"))
    a(base(SRD_V, 8, 39)); a(base(SRD_O, 10, 38))
    a(f"s_mov_b32 s{SRD_V+2}, 0x10000"); a(f"s_mov_b32 s{SRD_V+3}, 0x20000")
    a(f"s_movk_i32 s{SRD_O+2}, 28672"); a(f"s_mov_b32 s{SRD_O+3}, 0x20000")
    if warm:
        a("s_mov_b64 exec, 0")
        for w in (1, 2):
            a(f"s_cmp_eq_u32 s{S_W}, {w}")
            a(f"s_cbranch_scc1 L_pg{w}")
        a.label("L_back")
        a("s_mov_b64 exec, -1")
    a(f"s_lshr_b32 s{S_MV0}, s{S_W}, 1"); a(f"s_lshl_b32 s{S_MV0}, s{S_MV0}, 7")
    a(f"s_or_b32 s{S_MV0}, s{S_MV0}, s{S_MK0}")
    a(f"s_xor_b32 s{S_MV1}, s{S_MV0}, 128")
    a(f"s_or_b32 s{S_MK1}, s{S_MK0}, 128")
    a(f"v_and_b32 v{T}, 15, v{L}")
    a(f"v_and_b32 v{T+1}, 6, v{T}")
    a(f"v_lshrrev_b32 v{T+2}, 3, v{T}")
    a(f"v_or_b32 v{T+1}, v{T+1}, v{T+2}")
    a(f"v_lshrrev_b32 v{T+2}, 4, v{L}")
    a(f"v_lshlrev_b32 v{T+2}, 1, v{T+2}")
    a(f"v_xor_b32 v{T+1}, v{T+1}, v{T+2}")
    a(f"v_lshlrev_b32 v{T+1}, 4, v{T+1}")
    a(f"v_lshl_add_u32 v{T+1}, v{T}, 7, v{T+1}")
    a(f"v_add_u32 v{V_AK}, s{S_WB}, v{T+1}")
    a(f"v_xor_b32 v{V_AK+1}, 16, v{V_AK}")
    a(f"v_lshl_add_u32 v{V_LIN}, v{L}, 4, s{S_WB}")
    CIW, QWB, SC = V_CI + 24, V_CI + 25, V_CI + 26
    a(f"v_mov_b32 v{SC}, {hex(f2u(SCALE))}")
    a(f"v_lshl_add_u32 v{QWB}, v{L}, 4, s45")
    a(f"s_lshl_b32 s42, s{S_W}, 9")
    a(f"v_lshlrev_b32 v{T+3}, 4, v{T}")
    a(f"v_add_u32 v{V_CIR}, {CI_AREA}, v{T+3}")
    a(f"v_add_u32 v{CIW}, s42, v{V_CIR}")
    a(f"v_lshlrev_b32 v{T+3}, 4, v{L}")
    a(f"v_add_u32 v{V_QA0}, {XO}, v{T+3}")
    a(f"v_add_u32 v{V_QA1}, {2*REG + XO}, v{T+3}")
    for j in range(1, 4):
        a(f"s_xor_b32 s42, s{S_W}, {j}")
        a(f"s_mul_i32 s{S_XR+j-1}, s42, {REG}")
    a(f"s_lshl_b32 s{S_LWO}, s{S_W}, 2")
    a(f"s_sub_u32 s{S_LWO}, s{S_LWO}, {CI_AREA - LT0}")
    a(f"v_lshrrev_b32 v{T+1}, 4, v{L}")
    a(f"v_lshrrev_b32 v{T+2}, 2, v{T}")
    a(f"v_cmp_eq_u32 vcc, v{T+1}, v{T+2}")
    a(f"v_and_b32 v{T+2}, 1, v{L}")
    a(f"v_lshlrev_b32 v{T+2}, 4, v{T+2}")
    a(f"v_mov_b32 v{T+3}, 0x3f80")
    a(f"v_lshlrev_b32 v{T+3}, v{T+2}, v{T+3}")
    a(f"v_cndmask_b32 v{T+3}, 0, v{T+3}, vcc")
    a(f"v_and_b32 v{T+2}, 2, v{L}")
    a(f"v_cmp_eq_u32 vcc, 0, v{T+2}")
    a(f"v_bfe_u32 v{T+4}, v{L}, 4, 1")
    a(f"v_lshrrev_b32 v{T+5}, 5, v{L}")
    a(f"v_cndmask_b32 v{V_X0}, 0, v{T+3}, vcc")
    a(f"v_sub_u32 v{V_X1}, v{T+3}, v{V_X0}")
    a(f"v_lshl_add_u32 v{T+4}, v{T+4}, 1, v{T+5}")
    a(f"v_lshlrev_b32 v{T+4}, 4, v{T+4}")
    a(f"v_lshl_add_u32 v{T+4}, v{T}, 8, v{T+4}")
    a(f"s_lshl_b32 s42, s{S_W}, 6")
    a(f"v_add_u32 v{V_ST}, s42, v{T+4}")
    a(f"v_and_b32 v{T+2}, 3, v{L}")
    a(f"v_cmp_eq_u32 vcc, 0, v{T+2}")
    a(f"v_lshrrev_b32 v{T}, 2, v{L}")
    a(f"v_and_b32 v{T+1}, 6, v{T}")
    a(f"v_lshrrev_b32 v{T+2}, 3, v{T}")
    a(f"v_or_b32 v{T+1}, v{T+1}, v{T+2}")
    a(f"v_bfe_u32 v{T+2}, v{L}, 1, 1")
    a(f"v_xor_b32 v{T+1}, v{T+1}, v{T+2}")
    a(f"s_and_b32 s42, s{S_W}, 1")
    a("s_lshl_b32 s42, s42, 2")
    a(f"v_xor_b32 v{T+1}, s42, v{T+1}")
    a(f"v_lshlrev_b32 v{T+1}, 4, v{T+1}")
    a(f"v_lshl_add_u32 v{T+1}, v{T}, 7, v{T+1}")
    a(f"v_and_b32 v{T+2}, 1, v{L}")
    a(f"v_lshl_add_u32 v{T+1}, v{T+2}, 3, v{T+1}")
    a(f"v_add_u32 v{V_AV}, s{S_WB}, v{T+1}")
    for k in range(1, 4): a(f"v_xor_b32 v{V_AV+k}, {32*k}, v{V_AV}")
    a(f"v_mov_b32 v{T+2}, 0x3f803f80")
    a(f"v_cndmask_b32 v{T+2}, 0, v{T+2}, vcc")
    for r in range(4): a(f"v_accvgpr_write_b32 a{A_ONE+r}, v{T+2}")

    a(m0(KB(0) + 4096)); a("s_nop 0")
    for p in (2, 3): a(dma(SRD_K, 43, p, "K0b"))
    a(m0(KB(0))); a("s_nop 0")
    for p in (2, 3): a(dma(SRD_K, S_K0, p, "K0b"))

    RAW, QP, TMP = V_OTH, V_OWN, V_OTH + 32
    left = [n0]
    def more(n=1):
        for _ in range(n):
            if left[0] > 0: a(nextdma()); left[0] -= 1
    v0 = [0]
    def v0dma(n=1):
        for _ in range(n):
            j = v0[0]
            if j >= 8: return
            if j % 4 == 0: a(m0(VB(0) + (j // 4) * 4096)); a(f"s_xor_b32 s{S_SO}, s{S_Y}, s{S_MV0 + j // 4}")
            a(dma(SRD_V, S_SO, j % 4, ("V", 0, j // 4)))
            v0[0] += 1
    def qoff(h, c): return XO + (c >> 1) * 4096 + h * 2048 + (c & 1) * 1024
    def qw(h, c): return ("L", f"ds_write_b128 v{V_LIN if h == 0 else QWB}, {vr(QP + 16*h + 4*c, 4)} offset:{qoff(h, c)}", "qw")
    def scale_ops(j):
        o = []
        for r in range(4):
            o += [f"v_lshlrev_b32 v{TMP+2*r}, 16, v{RAW+4*j+r}", f"v_and_b32 v{TMP+2*r+1}, 0xffff0000, v{RAW+4*j+r}"]
        o += [f"v_pk_mul_f32 {vr(TMP+2*r,2)}, {vr(TMP+2*r,2)}, {vr(SC,2)} op_sel_hi:[1,0]" for r in range(4)]
        o += [f"v_cvt_pk_bf16_f32 v{QP+4*j+r}, v{TMP+2*r}, v{TMP+2*r+1}" for r in range(4)]
        return o
    def red_ops(h):
        S = V_S + 4*h; M = V_P + 2*h
        o = [f"v_max3_f32 v{M}, v{S}, v{S+1}, v{S+2}", f"v_max_f32 v{M}, v{M}, v{S+3}"]
        for sw in ("v_permlane16_swap_b32", "v_permlane32_swap_b32"):
            o += [f"v_mov_b32 v{M+1}, v{M}", f"{sw} v{M}, v{M+1}", f"v_max_f32 v{M}, v{M}, v{M+1}"]
        o += [f"v_mul_f32 v{M}, v{M}, v{SC}", f"v_cndmask_b32 v{M}, v{M}, v{V_KEEP+h}, s[{S_FBM}:{S_FBM+1}]"]
        o += [f"v_sub_f32 v{S+r}, 0, v{M}" for r in range(4)]
        return o
    def part(h, d0, d1):
        for c in range(4): a(("L", kread(0, 4*h + c, base=XO, dst=vr(RAW + 16*h + 4*c, 4)), ("raw", h, c)))
        if h == 0:
            a(("W", ["K0a"], None))
            for jj in range(4): a(("L", kread(0, jj), "k0a"))
        v0dma(d0)
        a(("W", None, [("raw", h, 0)]))
        a(scale_ops(4*h))
        a(("W", None, [("raw", h, 3), "k0a"]))
        S = vr(V_S + 4*h, 4)
        o1 = scale_ops(4*h + 1)
        for c in range(4):
            a(f"{M16} {S}, {Kf(c)}, {vr(RAW + 16*h + 4*c, 4)}, {S if c else '0'}")
            if c == 0: a(qw(h, 0))
            else: a(o1[:2]); del o1[:2]
        a(o1)
        a(qw(h, 1)); v0dma(d1)
        red = red_ops(h)
        for c in (2, 3):
            o = scale_ops(4*h + c)
            while o:
                a(o[:2]); del o[:2]
                if red: a(red.pop(0))
            a(qw(h, c))
        a(red)
        a(("L", f"ds_write_b128 v{CIW}, {S} offset:{256*h}", "ciw"))
    stamp("p")
    a(("W", ["Qa"], None))
    stamp(); stamp("p")
    part(0, vsch[0], vsch[1])
    v0dma(vsch[2])
    stamp("p")
    a(("W", ["Qb"], None))
    stamp("p")
    part(1, vsch[3], vsch[4])
    v0dma(8); more(pace)
    a(f"s_cmp_eq_u32 s{S_FB}, 1")
    stamp(); stamp("p")
    a(("W", None, "all"))
    a("s_barrier")
    a("s_cbranch_scc1 L_pass1")
    stamp(); stamp("p")
    def qreads(u):
        w, h = u // 2, u % 2
        ad = V_QA0 if w < 2 else V_QA1
        out = [f"ds_read_b128 {vr(V_CI+4*u,4)}, v{V_CIR} offset:{u*256}"]
        out += [f"ds_read_b128 {Qf(u,c)}, v{ad} offset:{(w&1)*REG + qoff(h, c) - XO}" for c in range(4)]
        return Ls(out, ("q", u))
    a(qreads(0))
    a(("W", ["K0b"], None))
    for jj in range(4, 8): a(("L", kread(0, jj), "k0b"))
    a(qreads(1))
    more()
    a(("W", None, [("q", 0)]))
    for j in range(8):
        if j == 4: a(("W", None, ["k0b"]))
        a(qk(0, j))
        if j in (2, 5, 7): more()
    more(64)
    a(("W", [("V", 0, 0)], None))
    for dt in range(4): a(Ls(vread(0, dt), ("v", 0, dt)))
    for e in range(5): a(ex(e))
    a(cv(0)); a(cv(1))
    stamp()

    pend = []
    def emit_step(u, par, first, fin, ext, post, dgaps=(), sgaps=()):
        order = [2, 3, 4, 5, 6, 7, -1, 0, 1] if fin else [0, 1, 2, 3, 4, 5, 6, 7, -1]
        for g in range(17):
            if g < 8:
                if not fin: a(qk((u + 1) % 7, g))
            else:
                dt = order[g - 8]
                a(pv(u, dt, par, first) if dt >= 0 else sm(u, first))
            if g in dgaps:
                a(list(pend)); pend.clear()
                a(nextdma())
            room = 2 - len(ext[g])
            if g in sgaps and room > 0:
                if not pend: pend.extend(nextpre())
                a(pend[:room]); del pend[:room]
            a(ext[g])
            if g < 3: a(ex(5 + g))
            elif g == 3:
                if fin: a("s_nop 0")
                a(cv(2)); a(cv(3))
            elif not fin:
                if 11 <= g <= 15: a(ex(g - 11))
                elif g == 16: a(cv(0)); a(cv(1))
            a(post[g])

    def tile(t):
        par = t & 1; nx = par ^ 1
        first = t == 0
        for u in range(7):
            ext = {g: [] for g in range(17)}; post = {g: [] for g in range(17)}
            dgaps, sgaps = {0: ((5, 8, 10), (4, 6, 7, 9)), 1: ((5, 10), (4, 6, 7, 8, 9)), 2: ((5, 8, 10), (4, 6, 7, 9)), 3: ((5, 10), (4, 6, 7, 8, 9)),
                            4: ((5, 9), (7,)), 5: ((5, 9), (7,)), 6: ((4, 7), (5,))}[u]
            if u == 0 and not first: ext[6].append(("W", None, "all"))
            if u == 3: ext[9].append(("W", [("V", t+1, 1)], None))
            if u == 4:
                for g, dt in zip((4, 6, 8, 10), (4, 5, 6, 7)): ext[g] += Ls(vread(nx, dt), ("v", t+1, dt))
                post[16].append(("W", [("K", t+1, 0), ("K", t+1, 1)], None))
            if u == 5:
                for i, g in enumerate((4, 6, 8, 10)): ext[g] += Ls([kread(nx, 2*i), kread(nx, 2*i+1)], ("k", t+1))
                post[16].append(("W", [("V", t+1, 0)], [("k", t+1)]))
                if first: post[16].append("s_barrier")
            if u == 6:
                for g, dt in zip((6, 8, 9, 10), (3, 0, 1, 2)): ext[g] += Ls(vread(nx, dt), ("v", t+1, dt))
            if t % 2 == 0 and t > 0 and u == 1: ext[8].append(f"s_sub_u32 s{S_CNT}, s{S_CNT}, 1")
            if first:
                if u == 0:
                    dgaps, sgaps = (), ()
                    ext[3].append(("W", [("V", 0, 1)], None))
                    for g, dt in zip((4, 5, 6, 7), (4, 5, 6, 7)): ext[g] += Ls(vread(0, dt), ("v", 0, dt))
                    post[7].append(("W", None, [("v", 0, 3)]))
                    q = qreads(2); ext[8] += q[0:2]; ext[9] += q[2:4]; ext[10] += q[4:5]
                    post[11].append(("W", None, [("v", 0, 7)]))
                elif u < 4:
                    q = qreads(u + 2); ext[6] += q[0:2]; ext[7] += q[2:4]; ext[9] += q[4:5]
                    dgaps, sgaps = (5, 8, 10), (4,)
                    if u == 3:
                        q = qreads(6)
                        for i in range(5): ext[11 + i] += q[i:i+1]
                if u == 4: dgaps = (5, 9, 13)
                if u < 5: post[16].append(("W", None, [("q", u + 2)]))
                xs = [(0, 1), (0, 13), (1, 1), (2, 1), (3, 1), (4, 1), (5, 1), (6, 1), (1, 13), (2, 13), (5, 13), (6, 13)][:t0extra]
                dgaps = tuple(sorted(set(dgaps) | set(g for (uu, g) in xs if uu == u)))
                stamp("t")
                if u == 0: a(("W", None, [("q", 1)]))
            emit_step(u, par, first, False, ext, post, dgaps, sgaps)

    a.c("tile 0"); tile(0)
    a(f"s_mov_b32 s{S_CNT}, 3")
    stamp()
    a.raw(".p2align 6")
    a.label("L_loop")
    i0 = len(a.l)
    bodies = []
    for t in range(1, 7):
        b = len(a.l); tile(t); bodies.append(a.l[b:])
    for t in (2, 4):
        for k in (0, 1):
            assert bodies[t + k] == bodies[k], [(x, y) for x, y in zip(bodies[k], bodies[t + k]) if x != y][:4]
    del a.l[i0:]
    a.l += bodies[4] + bodies[5]
    a(f"s_cmp_lg_u32 s{S_CNT}, 0")
    a("s_cbranch_scc1 L_loop")
    i1 = len(a.l)
    assert stream[spos[0]][2] >= 8, "stream not fully issued"
    stamp()

    def blk(u, j): return (u * 3 + j - 1) * 1024
    def pk(u, j):
        o = Ov(u, 2*j); p = Ov(u, 2*j+1) if j < 3 else Ov(u, 3)
        return [f"v_cvt_pk_bf16_f32 v{o+r}, v{(o, p)[r//2] + 2*(r%2)}, v{(o, p)[r//2] + 2*(r%2) + 1}" for r in range(4)]
    def acc(u): return [f"v_accvgpr_read_b32 v{Ov(u,3)+r}, a{A_O7+4*u+r}" for r in range(4)]
    def xw(u, j): return ("L", f"ds_write_b128 v{V_LIN}, {vr(Ov(u, 2*j), 4)} offset:{blk(u, j)}", ("xw", u))
    def lw(u): return ("L", f"ds_write_b32 v{V_LW}, a{A_L+4*u} offset:{LTAB(u)}", ("xw", u))
    def R(u):
        o = [("L", f"ds_read_b128 {ar(A_X(u) + 4*(j-1), 4)}, v{V_XR+j-1} offset:{blk(u, j)}", ("x", u)) for j in range(1, 4)]
        return o + [("L", f"ds_read_b128 {vr(V_CI+4*u,4)}, v{V_LR} offset:{LTAB(u)}", ("x", u))]
    def cmb(u):
        return [f"{M16} {Of(u, b)}, {ar(A_SEL + 2 - 2*b, 4)}, {ar(A_X(u) + 4*j, 4)}, {Of(u, b)}" for b in range(2) for j in range(3)]
    def ladd(u):
        c = V_CI + 4*u
        return [f"v_add_f32 v{c}, v{c}, v{c+1}", f"v_add_f32 v{c+2}, v{c+2}, v{c+3}", f"v_add_f32 v{c}, v{c}, v{c+2}"]
    def lrcp(u):
        c = V_CI + 4*u
        return [f"v_rcp_f32 v{c+1}, v{c}", f"v_add_f32 v{V_CHK}, v{V_CHK}, v{c}" if u else f"v_mov_b32 v{V_CHK}, v{c}"]
    def mul(u, b): return [f"v_mul_f32 v{Ov(u,b)+r}, v{Ov(u,b)+r}, v{V_CI+4*u+1}" for r in range(4)]
    def swp(u): return [f"v_permlane16_swap_b32 v{Ov(u,0)+r}, v{Ov(u,0)+2+r}" for r in range(2)]
    def sto(u): return f"s_movk_i32 s98, {u*4096}"
    def ST(u): return ("V", f"buffer_store_dwordx4 {vr(Ov(u,0),4)}, v{V_ST}, {srd(SRD_O)}, s98 offen{(' '+sflags) if sflags else ''}", "st")
    def seq(mf, fill):
        for i, m in enumerate(mf):
            if m: a(m)
            a(fill.get(i, []))
    a.c("tile 7")
    for u in range(6):
        stamp("e")
        w = u - 1; f = u - 2
        mf = [qk(u + 1, g) for g in range(8)] + (cmb(f) if f >= 0 else [None] * 6) + [pv(u, dt, 1, False) for dt in range(8)] + [sm(u, False)]
        F = {i: [] for i in range(23)}
        if f >= 0:
            r = R(f); F[0] += r[0:2]; F[1] += r[2:4]
        if w >= 0: F[2 if f >= 0 else 3] += [lw(w)]
        for g in range(3): F[g] += [ex(5 + g)]
        F[3] += [cv(2), cv(3)]
        if u == 0:
            F[4] += [("W", "all", "all"), f"v_add_u32 v{V_LW}, s{S_LWO}, v{V_CIR}"]
            F[5] += [f"v_lshl_add_u32 v{V_XR+j}, v{L}, 4, s{S_XR+j}" for j in range(2)]
            F[6] += [f"v_lshl_add_u32 v{V_XR+2}, v{L}, 4, s{S_XR+2}", f"v_subrev_u32 v{V_LR}, {CI_AREA - LT0}, v{V_CIR}"]
            sel = [f"v_accvgpr_write_b32 a{A_SEL+r}, {x}" for r, x in enumerate(("0", "0", f"v{V_X0}", f"v{V_X1}", "0", "0"))]
            F[7] += sel[0:2]; F[14] += sel[2:4]; F[15] += sel[4:6]
        if f >= 0:
            F[4] += pk(w, 1); F[5] += [xw(w, 1)]; F[6] += pk(w, 2); F[7] += acc(w) + [("W", None, [("x", f)])]
            F[8] += [xw(w, 2)]; F[9] += pk(w, 3); F[10] += ladd(f); F[11] += lrcp(f); F[12] += [xw(w, 3)]
            F[13] += [ex(0)]; F[14] += [ex(1)]; F[15] += [ex(2)]; F[16] += [ex(3)]
            F[17] += mul(f, 0); F[18] += mul(f, 1); F[19] += pk(f, 0)
            F[20] += [("W", None, [("xw", w)]), "s_barrier", ex(4)]
            F[21] += swp(f) + [sto(f)]
            F[22] += [ST(f), cv(0), cv(1)]
        else:
            if w >= 0:
                F[4] += pk(w, 1); F[5] += [xw(w, 1)]; F[6] += pk(w, 2); F[7] += acc(w)
                F[14] += [xw(w, 2)]; F[15] += pk(w, 3); F[17] += [xw(w, 3)]
            for i, g in enumerate((17, 18, 19, 20, 21) if w < 0 else (16, 18, 19, 20, 21)): F[g] += [ex(i)]
            F[22] += [cv(0), cv(1)]
            if w >= 0: F[22] += [("W", None, [("xw", w)]), "s_barrier"]
        seq(mf, F)
    stamp("e")
    a(R(4))
    a([ex(5), ex(6), ex(7)] + pk(5, 1)[:1] + [cv(2), cv(3)] + pk(5, 1)[1:])
    mf = [pv(6, dt, 1, False) for dt in range(2, 8)] + [sm(6, False), pv(6, 0, 1, False), pv(6, 1, 1, False)] + cmb(4)
    F = {0: [xw(5, 1)], 1: [lw(5)] + pk(5, 2), 2: acc(5), 3: [xw(5, 2)], 4: pk(5, 3), 5: [("W", None, [("x", 4)])] + ladd(4), 6: [xw(5, 3)], 7: pk(6, 1), 8: lrcp(4),
         9: [xw(6, 1)], 10: pk(6, 2), 11: acc(6), 12: [xw(6, 2)], 13: pk(6, 3), 14: [lw(6), xw(6, 3)]}
    seq(mf, F)
    a(mul(4, 0))
    a(("W", None, [("xw", 6)])); a("s_barrier")
    stamp()
    a(R(5)); a(R(6))
    a(mul(4, 1)); a(pk(4, 0)); a(sto(4)); a("s_nop 0"); a(swp(4)); a("s_nop 0"); a(ST(4))
    a(("W", None, [("x", 5)]))
    F = {0: ladd(5), 1: lrcp(5), 2: [("W", None, [("x", 6)])] + ladd(6), 3: lrcp(6), 4: [f"s_mov_b32 s99, {hex(f2u(THRESH))}", f"s_cmp_lg_u32 s{S_FB}, 0"],
         5: [f"v_cmp_ngt_f32 vcc, s99, v{V_CHK}", sto(5)], 6: mul(5, 0)[:2], 7: mul(5, 0)[2:], 8: ["s_nop 1"], 9: mul(5, 1), 10: pk(5, 0), 11: mul(6, 0)[:2] + swp(5)}
    seq(cmb(5) + cmb(6), F)
    a("s_nop 0"); a(ST(5)); a(mul(6, 0)[2:]); a(sto(6)); a(mul(6, 1)); a(pk(6, 0)); a("s_nop 1"); a(swp(6)); a("s_nop 0"); a(ST(6))
    a("s_cbranch_scc1 L_ok")
    a("s_cbranch_vccnz L_fallback")
    a.label("L_ok")
    a.free = True
    if diag and spin:
        i, j, mult = spin
        a("s_waitcnt vmcnt(0)")
        a(f"s_lshl_b32 s84, s2, 2"); a(f"s_add_u32 s84, s84, s{S_W}"); a("s_cmp_lg_u32 s84, 401"); a("s_cbranch_scc1 L_end")
        a("s_memrealtime s[80:81]"); a("s_memtime s[86:87]"); a("s_waitcnt lgkmcnt(0)")
        if mult > 0:
            sj = 80 if j == 8 else S_STAMP + 2*j
            a(f"s_sub_u32 s84, s{sj}, s{S_STAMP+2*i}"); a(f"s_mul_i32 s84, s84, {mult}")
        else:
            sj = 86 if j == 8 else S_STAMP + 16 + 2*j
            a(f"s_sub_u32 s84, s{sj}, s{S_STAMP+16+2*i}"); a(f"s_lshr_b32 s84, s84, {-mult}")
        a("s_min_u32 s84, s84, 20000")
        a.label("L_spin")
        a("s_memrealtime s[82:83]"); a("s_waitcnt lgkmcnt(0)")
        a("s_sub_u32 s85, s82, s80"); a("s_cmp_lt_u32 s85, s84"); a("s_cbranch_scc1 L_spin")
    elif diag:
        a("s_memrealtime s[84:85]"); a("s_memtime s[86:87]")
        a("s_waitcnt vmcnt(0)")
        a("s_mov_b32 s36, s46"); a("s_mov_b32 s37, s47"); a("s_mov_b32 s38, 0x100000"); a("s_mov_b32 s39, 0x20000")
        a("s_memrealtime s[80:81]"); a("s_memtime s[82:83]"); a("s_waitcnt lgkmcnt(0)")
        a("s_lshl_b32 s40, s2, 2"); a(f"s_add_u32 s40, s40, s{S_W}"); a("s_lshl_b32 s40, s40, 8")
        a(f"v_mov_b32 v4, s40")
        a(f"v_cmp_eq_u32 vcc, 0, v{L}")
        a("s_and_saveexec_b64 s[42:43], vcc")
        slots = [(S_STAMP+2*i, i) for i in range(8)] + [(84, 8), (80, 9)] + [(S_STAMP+16+2*i, 16+i) for i in range(8)] + [(86, 24), (82, 25)]
        for s, i in slots:
            a(f"v_mov_b32 v6, s{s}"); a(f"v_mov_b32 v7, s{s+1}"); a(f"buffer_store_dwordx2 v[6:7], v4, s[36:39], 0 offen offset:{8*i}"); a("s_nop 1")
    a.label("L_end")
    a("s_endpgm")
    iend = len(a.l)
    a.label("L_fallback")
    a("s_waitcnt vmcnt(0) lgkmcnt(0)")
    a("s_barrier")
    a(f"s_mov_b32 s{S_FB}, 1")
    a("s_branch L_start")
    a.label("L_pass1")
    for u in range(7):
        for x in qreads(u)[1:]: a(x[1])
        a("s_waitcnt lgkmcnt(0)")
    a("s_waitcnt vmcnt(0)")
    a("s_barrier")
    a("s_mov_b32 s42, 0")
    MX = V_OWN
    for u in range(7): a(f"v_mov_b32 v{MX+u}, 0xff800000")
    a.label("L_fb1")
    a(m0(0)); a(f"s_add_u32 s{S_SO}, s42, 128")
    for p in range(4): a(dma(SRD_K, 42, p, "f")[1])
    a(m0(4096)); a("s_nop 0")
    for p in range(4): a(dma(SRD_K, S_SO, p, "f")[1])
    a("s_waitcnt vmcnt(0)")
    for j in range(8): a(kread(0, j))
    a("s_waitcnt lgkmcnt(0)")
    for u in range(7):
        for j in range(8): a(qk(u, j, zero=True))
        a("s_nop 7")
        for r in range(0, 8, 2): a(f"v_max3_f32 v{MX+u}, v{MX+u}, v{V_S+r}, v{V_S+r+1}")
    a("s_add_u32 s42, s42, 0x2000")
    a("s_cmp_lt_u32 s42, 0x10000")
    a("s_cbranch_scc1 L_fb1")
    for sw in ("v_permlane16_swap_b32", "v_permlane32_swap_b32"):
        for u in range(7): a(f"v_mov_b32 v{MX+8+u}, v{MX+u}")
        a("s_nop 1")
        for u in range(7): a(f"{sw} v{MX+u}, v{MX+8+u}")
        a("s_nop 1")
        for u in range(7): a(f"v_max_f32 v{MX+u}, v{MX+u}, v{MX+8+u}")
    a(f"v_add_u32 v{V_P}, s{S_LWO}, v{V_CIR}")
    for u in range(7): a(f"ds_write_b32 v{V_P}, v{MX+u} offset:{LTAB(u)}")
    a("s_waitcnt lgkmcnt(0)")
    a("s_barrier")
    a(f"s_and_b32 s42, s{S_W}, 1"); a("s_lshl_b32 s42, s42, 9")
    a(f"s_lshr_b32 s98, s{S_W}, 1"); a(f"s_mul_i32 s98, s98, {REG}"); a("s_add_u32 s42, s42, s98")
    a(f"s_sub_u32 s42, s42, {CI_AREA - LT0}")
    a(f"v_add_u32 v{V_P}, s42, v{V_CIR}")
    for h in range(2): a(f"ds_read_b128 {vr(V_S+4*h,4)}, v{V_P} offset:{256*h}")
    a("s_waitcnt lgkmcnt(0)")
    for h in range(2):
        a(f"v_max3_f32 v{V_KEEP+h}, v{V_S+4*h}, v{V_S+4*h+1}, v{V_S+4*h+2}")
        a(f"v_max_f32 v{V_KEEP+h}, v{V_KEEP+h}, v{V_S+4*h+3}")
    a(f"s_mov_b32 s{S_FB}, 2")
    a(f"s_mov_b64 s[{S_FBM}:{S_FBM+1}], -1")
    a("s_barrier")
    a("s_branch L_start")
    lin = a.l[:i1] + a.l[i0:i1] + a.l[i1:iend]
    bad = hz.check(lin) + hz.check(a.l[iend:])
    for b in bad: print("HAZARD", b, file=sys.stderr)
    if pref: a.raw(f".fill ({16384 * pref} - (. - {NAME}_kernel)) / 4, 4, 0xbf810000")
    a.raw('.section .rodata,"a"'); a.raw(".p2align 6"); a.raw(f".amdhsa_kernel {NAME}_kernel")
    a.raw("  .amdhsa_next_free_vgpr 512"); a.raw("  .amdhsa_next_free_sgpr 102"); a.raw("  .amdhsa_accum_offset 256")
    a.raw("  .amdhsa_group_segment_fixed_size 0"); a.raw("  .amdhsa_kernarg_size 48"); a.raw("  .amdhsa_user_sgpr_count 2")
    a.raw("  .amdhsa_user_sgpr_kernarg_segment_ptr 1"); a.raw("  .amdhsa_system_sgpr_workgroup_id_x 1"); a.raw(".end_amdhsa_kernel")
    if warm: a.l = add_stubs(a.l, head)
    return "\n".join(a.l) + "\n"

if __name__ == "__main__":
    ap = argparse.ArgumentParser()
    ap.add_argument("-o", default=f"kG.s")
    ap.add_argument("--diag", action="store_true")
    ap.add_argument("--spin", default=None); ap.add_argument("--flags", default=""); ap.add_argument("--sflags", default="nt")
    ap.add_argument("--n0", type=int, default=8); ap.add_argument("--mix", type=int, default=1); ap.add_argument("--vsch", default="2,2,2,2,0")
    ap.add_argument("--t0extra", type=int, default=4); ap.add_argument("--pace", type=int, default=2); ap.add_argument("--fine", default="c")
    ap.add_argument("--cgap", type=int, default=14); ap.add_argument("--pref", type=int, default=1); ap.add_argument("--align", type=int, default=12); ap.add_argument("--head", type=int, default=3584); ap.add_argument("--warm", type=int, default=1); ap.add_argument("--rot", default="0,0"); ap.add_argument("--wg", default="4,5,6,7,8,9,10")
    args = ap.parse_args()
    tup = lambda s: tuple(map(int, s.split(',')))
    open(args.o, "w").write(gen(diag=args.diag, flags=args.flags, sflags=args.sflags, n0=args.n0, mix=args.mix, vsch=tup(args.vsch), t0extra=args.t0extra,
                                pace=args.pace, fine=args.fine, cgap=args.cgap, pref=args.pref, align=args.align, head=args.head, warm=args.warm, rot=tup(args.rot), wg=tup(args.wg), spin=tup(args.spin) if args.spin else None))
```

```python
import sys, struct, argparse
import hz
NAME = "standalone__gqa_softmax__near_ridge"
def f2u(x): return struct.unpack("<I", struct.pack("<f", x))[0]
def vr(b, n=1): return f"v{b}" if n == 1 else f"v[{b}:{b+n-1}]"
def ar(b, n=1): return f"a{b}" if n == 1 else f"a[{b}:{b+n-1}]"
def srd(b): return f"s[{b}:{b+3}]"

V_LANE, V_LIN, V_KEEP, V_VOFF, V_AK, V_AV = 0, 1, 2, 4, 8, 10
V_QA0, V_X0, V_QA1, V_X1, V_ST, V_CIR = 14, 15, 16, 17, 18, 19
V_S, V_P, V_CI, V_OWN, V_OTH = 20, 28, 32, 60, 116
A_O7, A_L, A_ONE, A_K, A_V, A_Q = 0, 28, 56, 60, 92, 144
V_XR, V_LW, V_LR, V_CHK = 4, 7, 8, 9
A_SEL = A_V + 12
def A_X(u): return A_Q + 16 * (u % 2)
S_W = 3
SRD_Q, SRD_K, SRD_V, SRD_O = 12, 16, 20, 24
S_MK0, S_MK1, S_MV0, S_MV1 = 28, 29, 30, 31
S_Y, S_FB, S_WB, S_CNT = 32, 33, 34, 35
S_SO = 44
S_STAMP = 48
S_FBM = 88
S_XR = 90
S_LWO = 93
S_Y0 = 100
S_K0 = 101
REG = 40960
KB = lambda par: par * 8192
VB = lambda par: 16384 + par * 8192
XO = 32768
CI_AREA = 3 * REG + XO + 6144
LT0 = 39936
def LTAB(u): return u * 256 if u < 4 else REG + (u - 4) * 256
SCALE = (128 ** -0.5) * 1.4426950408889634
THRESH = 2.0 ** 40
M16 = "v_mfma_f32_16x16x32_bf16"

def Qf(u, c): return ar(A_Q + 16 * u + 4 * c, 4)
def Kf(j): return ar(A_K + 4 * j, 4)
def Vbase(dt, par): return A_V + 4 * dt if dt < 3 else A_V + 12 + 20 * par + 4 * (dt - 3)
def Ov(u, dt): return V_OWN + 8 * u + 4 * dt if dt < 2 else V_OTH + 20 * u + 4 * (dt - 2)
def Of(u, dt): return ar(A_O7 + 4 * u, 4) if dt == 7 else vr(Ov(u, dt), 4)
def qk(u, j, zero=False):
    kt, c = j // 4, j % 4
    S = vr(V_S + 4 * kt, 4)
    cc = S if c else ("0" if zero else vr(V_CI + 4 * u, 4))
    return f"{M16} {S}, {Kf(j)}, {Qf(u, c)}, {cc}"
def pv(u, dt, par, first):
    o = Of(u, dt)
    return f"{M16} {o}, {ar(Vbase(dt, par), 4)}, {vr(V_P, 4)}, {'0' if first else o}"
def sm(u, first):
    o = ar(A_L + 4 * u, 4)
    return f"{M16} {o}, {ar(A_ONE, 4)}, {vr(V_P, 4)}, {'0' if first else o}"
def ex(e): return f"v_exp_f32 v{V_S+e}, v{V_S+e}"
def cv(i): return f"v_cvt_pk_bf16_f32 v{V_P+i}, v{V_S+2*i}, v{V_S+2*i+1}"
def kread(par, j, base=None, dst=None):
    kt, c = j // 4, j % 4
    off = (KB(par) if base is None else base) + (c >> 1) * 4096 + kt * 2048
    return f"ds_read_b128 {dst or Kf(j)}, v{V_AK + (c & 1)} offset:{off}"
def vread(par, dt):
    b = Vbase(dt, par)
    return [f"ds_read_b64_tr_b16 {ar(b + 2*h, 2)}, v{V_AV + (dt & 3)} offset:{VB(par) + (dt >> 2) * 4096 + h * 2048}" for h in range(2)]

class Gen:
    def __init__(self):
        self.l = []; self.vq = []; self.lq = []; self.ldone = 0; self.free = False
    def __call__(self, s):
        if isinstance(s, list):
            for x in s: self(x)
        elif isinstance(s, tuple):
            if s[0] == "L": self.l.append("    " + s[1]); self.lq.append(s[2])
            elif s[0] == "V":
                tg = s[2]
                if isinstance(tg, tuple) and tg[0] in "KV" and tg[1] >= 2:
                    kv, x, hf = tg
                    need = ([("k", x-2)] if x > 2 else ["k0a", "k0b"]) if kv == "K" else [("v", x-2, dt) for dt in range(4*hf, 4*hf+4)]
                    for n in need:
                        idx = [i for i, t in enumerate(self.lq) if t == n]
                        assert idx and max(idx) < self.ldone, ("LDS WAR", tg, n)
                self.l.append("    " + s[1]); self.vq.append(s[2])
            elif s[0] == "W":
                parts = []
                for q, tags, nm, mx in ((self.vq, s[1], "vmcnt", 63), (self.lq, s[2], "lgkmcnt", 15)):
                    if tags is None: continue
                    if tags == "all": n = 0
                    else:
                        idx = [i for i, t in enumerate(q) if t in tags]
                        assert idx, ("no such tag", tags)
                        n = len(q) - 1 - max(idx)
                    if nm == "lgkmcnt": self.ldone = max(self.ldone, len(q) - min(n, mx))
                    parts.append(f"{nm}({min(n, mx)})")
                self.l.append("    s_waitcnt " + " ".join(parts))
        else:
            assert not (s.startswith("ds_") or s.startswith("buffer_")) or self.free, s
            self.l.append("    " + s)
    def label(self, s): self.l.append(s + ":")
    def c(self, s): self.l.append("    ; " + s)
    def raw(self, s): self.l.append(s)

def sizes(lines):
    import subprocess, tempfile, os, re
    with tempfile.TemporaryDirectory() as d:
        src = [l for l in lines]
        src.insert(src.index("L_end:"), "L_pg1:\nL_pg2:")
        open(d + "/t.s", "w").write("\n".join(src) + "\n")
        subprocess.run(["clang", "-x", "assembler", "-target", "amdgcn-amd-amdhsa", "-mcpu=gfx950", "-c", d + "/t.s", "-o", d + "/t.o"], check=True)
        out = subprocess.run(["llvm-objdump", "-d", "--mcpu=gfx950", d + "/t.o"], capture_output=True, text=True).stdout
    return [(int(m.group(2), 16), m.group(1)) for m in re.finditer(r"^\t(\S+).*// ([0-9A-F]+):", out, re.M)]
def add_stubs(lines, head):
    lines = list(lines)
    for pg in (1, 2):
        tmp = [l for l in lines if l not in ("L_pg1:", "L_pg2:")]
        ins = [x for x in sizes(tmp) if x[0] >= head]
        mf = [off for off, mn in ins if mn.startswith("v_mfma")]
        target = (pg + (1 if head else 0)) * 4096
        k = next(i for i, off in enumerate(mf) if off >= target - 8)
        assert mf[k] + 8 < target + 60, (mf[k], target)
        idx = [i for i, l in enumerate(lines) if l.strip().startswith("v_mfma")][k]
        lines[idx + 1:idx + 1] = [f"L_pg{pg}:", "    s_cbranch_execz L_back"]
    return lines

def gen(diag=False, flags="", sflags="nt", spin=None, n0=8, mix=1, vsch=(2, 2, 2, 2, 0), t0extra=4, pace=2, fine='c', cgap=14, pref=0, align=12, head=3584, warm=2, rot=(0, 0), touch=0, wg=(4, 5, 6, 7, 8, 9, 10)):
    a = Gen()
    fl = (" " + flags) if flags else ""
    def dma(s, soff, p, tag): return ("V", f"buffer_load_dwordx4 v{V_VOFF+p}, {srd(s)}, s{soff} offen offset:{p*1024}{fl} lds", tag)
    def m0(off): return f"s_add_u32 m0, s{S_WB}, {off}"
    def Ls(texts, tag): return [("L", t, tag) for t in texts]
    nst = [0]
    def stamp(kind="c"):
        if diag and kind in fine and nst[0] < 8:
            a(f"s_memrealtime s[{S_STAMP+2*nst[0]}:{S_STAMP+2*nst[0]+1}]")
            a(f"s_memtime s[{S_STAMP+16+2*nst[0]}:{S_STAMP+16+2*nst[0]+1}]")
            nst[0] += 1
    GROUPS = (("V", 1), ("K", 0), ("K", 1), ("V", 0))
    stream = []
    for x in range(1, 10):
        for gi, (kv, hf) in enumerate(GROUPS):
            s_, buf = (SRD_K, KB(x & 1)) if kv == "K" else (SRD_V, VB(x & 1))
            for p in range(4):
                pre = []; so = S_SO
                if p == 0:
                    if gi == 0: pre += [("Y", x)]
                    pre += [m0(buf + hf * 4096), f"s_xor_b32 s{S_SO}, s{S_Y}, s{(S_MK0 if kv == 'K' else S_MV0) + hf}"]
                stream.append((pre, dma(s_, so, p, (kv, x, hf)), x))
    spos = [0]
    def expand(pre):
        out = []
        for y in pre:
            if isinstance(y, tuple) and y[0] == "Y":
                out += [f"s_add_u32 s{S_Y}, s{S_Y}, 0x2000", f"s_and_b32 s{S_Y}, s{S_Y}, 0xffff"]
                if y[1] % 2 == 0 and y[1] >= 4:
                    out += [f"s_cmp_lg_u32 s{S_Y}, s{S_Y0}", f"s_cselect_b32 s{SRD_K+2}, 0x10000, 0", f"s_mov_b32 s{SRD_V+2}, s{SRD_K+2}"]
            elif isinstance(y, tuple): out += ["s_nop 0"]
            else: out.append(y)
        return out
    def nextpre():
        pre, d, x = stream[spos[0]]
        stream[spos[0]] = ([], d, x)
        return expand(pre)
    def nextdma():
        pre, d, x = stream[spos[0]]
        spos[0] += 1
        return expand(pre) + [d]

    a.raw(open("cdna_kernels/%s.s.ref" % NAME).read().split("; Override launch")[0].rstrip())
    a.raw("; @launch grid=(256,1,1) block=(256,1,1) lds=163840")
    a.raw('.amdgcn_target "amdgcn-amd-amdhsa--gfx950"')
    a.raw(".text"); a.raw(f".globl {NAME}_kernel"); a.raw(f".p2align {align}"); a.raw(f".fill {head // 4}, 4, 0xbf810000"); a.raw(".p2align 8"); a.raw(f".type {NAME}_kernel,@function")
    a.label(f"{NAME}_kernel")
    a("s_load_dwordx8 s[4:11], s[0:1], 0")
    a("s_cmp_ge_u32 s2, 256")
    a("s_cbranch_scc1 L_end")
    if diag:
        a("s_load_dwordx2 s[46:47], s[0:1], 40")
        stamp(fine[0])
    L = V_LANE
    T = V_S
    a(f"v_lshrrev_b32 v{T}, 6, v0")
    a(f"v_and_b32 v{L}, 63, v0")
    a(f"v_readfirstlane_b32 s{S_W}, v{T}")
    a("s_and_b32 s36, s2, 7")
    a("s_lshr_b32 s37, s2, 3")
    a("s_lshl_b32 s36, s36, 5")
    a("s_add_u32 s36, s36, s37")
    a("s_mul_i32 s38, s36, 28672")
    a(f"s_mul_i32 s{S_WB}, s{S_W}, {REG}")
    a(f"s_movk_i32 s{SRD_Q+2}, 28672")
    a(f"s_mov_b32 s{SRD_Q+3}, 0x20000")
    a(f"s_lshl_b32 s40, s{S_W}, 13")
    a(f"s_mov_b32 s{S_FB}, 0")
    a(f"s_mov_b64 s[{S_FBM}:{S_FBM+1}], 0")
    a.label("L_start")
    a(f"v_lshrrev_b32 v{T}, 3, v{L}")
    a(f"v_and_b32 v{T+1}, 6, v{T}")
    a(f"v_xor_b32 v{T+1}, v{T+1}, v{L}")
    a(f"v_and_b32 v{T+1}, 7, v{T+1}")
    a(f"v_lshlrev_b32 v{T+1}, 4, v{T+1}")
    a(f"v_lshl_add_u32 v{V_VOFF}, v{T}, 8, v{T+1}")
    a(f"v_xor_b32 v{V_VOFF+1}, 16, v{V_VOFF}")
    a(f"v_add_u32 v{V_VOFF+1}, 0x400, v{V_VOFF+1}")
    a(m0(XO))
    a("s_add_u32 s41, s40, 128")
    a("s_lshr_b32 s39, s36, 2")
    a(f"s_and_b32 s{S_Y0}, s39, {rot[0]}")
    a(f"s_lshl_b32 s{S_Y0}, s{S_Y0}, 13")
    a(f"s_and_b32 s{S_MK0}, s36, {rot[1]}")
    a(f"s_lshl_b32 s{S_MK0}, s{S_MK0}, 13")
    a("s_lshl_b32 s39, s39, 18")
    a(f"s_lshl_b32 s42, s{S_W}, 16")
    a("s_add_u32 s39, s39, s42")
    a(f"s_mov_b32 s{SRD_K+2}, 0x10000")
    a(f"s_mov_b32 s{SRD_K+3}, 0x20000")
    a(f"s_mov_b32 s{S_Y}, s{S_Y0}")
    a(f"s_xor_b32 s{S_K0}, s{S_Y0}, s{S_MK0}")
    a(f"s_or_b32 s43, s{S_K0}, 128")
    stamp("k")
    a("s_waitcnt lgkmcnt(0)")
    stamp("k")
    def base(b, src, off): return [f"s_add_u32 s{b}, s{src}, s{off}", f"s_addc_u32 s{b+1}, s{src+1}, 0"]
    a(base(SRD_Q, 4, 38))
    for p in (0, 1): a(dma(SRD_Q, 40, p, "Qa"))
    a(m0(XO + 4096)); a(base(SRD_K, 6, 39))
    for p in (0, 1): a(dma(SRD_Q, 41, p, "Qa"))
    if pref:
        a("s_getpc_b64 s[94:95]")
        a.label("L_pc")
        a(f"s_lshl_b32 s42, s{S_W}, 5")
        a("s_add_u32 s42, s42, s37")
        a("s_lshl_b32 s42, s42, 7")
        a(f"s_sub_u32 s94, s94, L_pc-{NAME}_kernel")
        a("s_subb_u32 s95, s95, 0")
        a("s_load_dword s96, s[94:95], s42")
        if pref > 1:
            a("s_add_u32 s42, s42, 0x4000")
            a("s_load_dword s97, s[94:95], s42")
    a(m0(KB(0)))
    a(f"s_cmp_eq_u32 s{S_W}, 3")
    for p in (0, 1): a(dma(SRD_K, S_K0, p, "K0a"))
    a(f"s_cselect_b32 s45, 0x4000, 0")
    a(m0(KB(0) + 4096))
    a(f"s_add_u32 s45, s45, s{S_WB}")
    for p in (0, 1): a(dma(SRD_K, 43, p, "K0a"))
    a(f"v_add_u32 v{V_VOFF+2}, 0x800, v{V_VOFF}")
    a(f"v_add_u32 v{V_VOFF+3}, 0x800, v{V_VOFF+1}")
    a(f"s_add_u32 m0, s45, {XO + 4096}"); a("s_nop 0")
    for p in (2, 3): a(dma(SRD_Q, 41, p, "Qb"))
    a(f"s_add_u32 m0, s45, {XO}"); a("s_nop 0")
    for p in (2, 3): a(dma(SRD_Q, 40, p, "Qb"))
    a(base(SRD_V, 8, 39)); a(base(SRD_O, 10, 38))
    a(f"s_mov_b32 s{SRD_V+2}, 0x10000"); a(f"s_mov_b32 s{SRD_V+3}, 0x20000")
    a(f"s_movk_i32 s{SRD_O+2}, 28672"); a(f"s_mov_b32 s{SRD_O+3}, 0x20000")
    if warm:
        a("s_mov_b64 exec, 0")
        for w in (1, 2, 3)[:warm + 1]:
            a(f"s_cmp_eq_u32 s{S_W}, {w}")
            a(f"s_cbranch_scc1 L_pg{w}")
        a.label("L_back")
        a("s_mov_b64 exec, -1")
    a(f"s_lshr_b32 s{S_MV0}, s{S_W}, 1"); a(f"s_lshl_b32 s{S_MV0}, s{S_MV0}, 7")
    a(f"s_or_b32 s{S_MV0}, s{S_MV0}, s{S_MK0}")
    a(f"s_xor_b32 s{S_MV1}, s{S_MV0}, 128")
    a(f"s_or_b32 s{S_MK1}, s{S_MK0}, 128")
    a(f"v_and_b32 v{T}, 15, v{L}")
    a(f"v_and_b32 v{T+1}, 6, v{T}")
    a(f"v_lshrrev_b32 v{T+2}, 3, v{T}")
    a(f"v_or_b32 v{T+1}, v{T+1}, v{T+2}")
    a(f"v_lshrrev_b32 v{T+2}, 4, v{L}")
    a(f"v_lshlrev_b32 v{T+2}, 1, v{T+2}")
    a(f"v_xor_b32 v{T+1}, v{T+1}, v{T+2}")
    a(f"v_lshlrev_b32 v{T+1}, 4, v{T+1}")
    a(f"v_lshl_add_u32 v{T+1}, v{T}, 7, v{T+1}")
    a(f"v_add_u32 v{V_AK}, s{S_WB}, v{T+1}")
    a(f"v_xor_b32 v{V_AK+1}, 16, v{V_AK}")
    a(f"v_lshl_add_u32 v{V_LIN}, v{L}, 4, s{S_WB}")
    CIW, QWB, SC = V_CI + 24, V_CI + 25, V_CI + 26
    a(f"v_mov_b32 v{SC}, {hex(f2u(SCALE))}")
    a(f"v_lshl_add_u32 v{QWB}, v{L}, 4, s45")
    a(f"s_lshl_b32 s42, s{S_W}, 9")
    a(f"v_lshlrev_b32 v{T+3}, 4, v{T}")
    a(f"v_add_u32 v{V_CIR}, {CI_AREA}, v{T+3}")
    a(f"v_add_u32 v{CIW}, s42, v{V_CIR}")
    a(f"v_lshlrev_b32 v{T+3}, 4, v{L}")
    a(f"v_add_u32 v{V_QA0}, {XO}, v{T+3}")
    a(f"v_add_u32 v{V_QA1}, {2*REG + XO}, v{T+3}")
    for j in range(1, 4):
        a(f"s_xor_b32 s42, s{S_W}, {j}")
        a(f"s_mul_i32 s{S_XR+j-1}, s42, {REG}")
    a(f"s_lshl_b32 s{S_LWO}, s{S_W}, 2")
    a(f"s_sub_u32 s{S_LWO}, s{S_LWO}, {CI_AREA - LT0}")
    a(f"v_lshrrev_b32 v{T+1}, 4, v{L}")
    a(f"v_lshrrev_b32 v{T+2}, 2, v{T}")
    a(f"v_cmp_eq_u32 vcc, v{T+1}, v{T+2}")
    a(f"v_and_b32 v{T+2}, 1, v{L}")
    a(f"v_lshlrev_b32 v{T+2}, 4, v{T+2}")
    a(f"v_mov_b32 v{T+3}, 0x3f80")
    a(f"v_lshlrev_b32 v{T+3}, v{T+2}, v{T+3}")
    a(f"v_cndmask_b32 v{T+3}, 0, v{T+3}, vcc")
    a(f"v_and_b32 v{T+2}, 2, v{L}")
    a(f"v_cmp_eq_u32 vcc, 0, v{T+2}")
    a(f"v_bfe_u32 v{T+4}, v{L}, 4, 1")
    a(f"v_lshrrev_b32 v{T+5}, 5, v{L}")
    a(f"v_cndmask_b32 v{V_X0}, 0, v{T+3}, vcc")
    a(f"v_sub_u32 v{V_X1}, v{T+3}, v{V_X0}")
    a(f"v_lshl_add_u32 v{T+4}, v{T+4}, 1, v{T+5}")
    a(f"v_lshlrev_b32 v{T+4}, 4, v{T+4}")
    a(f"v_lshl_add_u32 v{T+4}, v{T}, 8, v{T+4}")
    a(f"s_lshl_b32 s42, s{S_W}, 6")
    a(f"v_add_u32 v{V_ST}, s42, v{T+4}")
    a(f"v_and_b32 v{T+2}, 3, v{L}")
    a(f"v_cmp_eq_u32 vcc, 0, v{T+2}")
    a(f"v_lshrrev_b32 v{T}, 2, v{L}")
    a(f"v_and_b32 v{T+1}, 6, v{T}")
    a(f"v_lshrrev_b32 v{T+2}, 3, v{T}")
    a(f"v_or_b32 v{T+1}, v{T+1}, v{T+2}")
    a(f"v_bfe_u32 v{T+2}, v{L}, 1, 1")
    a(f"v_xor_b32 v{T+1}, v{T+1}, v{T+2}")
    a(f"s_and_b32 s42, s{S_W}, 1")
    a("s_lshl_b32 s42, s42, 2")
    a(f"v_xor_b32 v{T+1}, s42, v{T+1}")
    a(f"v_lshlrev_b32 v{T+1}, 4, v{T+1}")
    a(f"v_lshl_add_u32 v{T+1}, v{T}, 7, v{T+1}")
    a(f"v_and_b32 v{T+2}, 1, v{L}")
    a(f"v_lshl_add_u32 v{T+1}, v{T+2}, 3, v{T+1}")
    a(f"v_add_u32 v{V_AV}, s{S_WB}, v{T+1}")
    for k in range(1, 4): a(f"v_xor_b32 v{V_AV+k}, {32*k}, v{V_AV}")
    a(f"v_mov_b32 v{T+2}, 0x3f803f80")
    a(f"v_cndmask_b32 v{T+2}, 0, v{T+2}, vcc")
    for r in range(4): a(f"v_accvgpr_write_b32 a{A_ONE+r}, v{T+2}")

    if touch: a(("V", f"buffer_load_dword v{V_CI}, off, {srd(SRD_O)}, 0", "touch"))
    a(m0(KB(0) + 4096)); a("s_nop 0")
    for p in (2, 3): a(dma(SRD_K, 43, p, "K0b"))
    a(m0(KB(0))); a("s_nop 0")
    for p in (2, 3): a(dma(SRD_K, S_K0, p, "K0b"))

    RAW, QP, TMP = V_OTH, V_OWN, V_OTH + 32
    left = [n0]
    def more(n=1):
        for _ in range(n):
            if left[0] > 0: a(nextdma()); left[0] -= 1
    v0 = [0]
    def v0dma(n=1):
        for _ in range(n):
            j = v0[0]
            if j >= 8: return
            if j % 4 == 0: a(m0(VB(0) + (j // 4) * 4096)); a(f"s_xor_b32 s{S_SO}, s{S_Y}, s{S_MV0 + j // 4}")
            a(dma(SRD_V, S_SO, j % 4, ("V", 0, j // 4)))
            v0[0] += 1
    def qoff(h, c): return XO + (c >> 1) * 4096 + h * 2048 + (c & 1) * 1024
    def qw(h, c): return ("L", f"ds_write_b128 v{V_LIN if h == 0 else QWB}, {vr(QP + 16*h + 4*c, 4)} offset:{qoff(h, c)}", "qw")
    def scale_ops(j):
        o = []
        for r in range(4):
            o += [f"v_lshlrev_b32 v{TMP+2*r}, 16, v{RAW+4*j+r}", f"v_and_b32 v{TMP+2*r+1}, 0xffff0000, v{RAW+4*j+r}"]
        o += [f"v_pk_mul_f32 {vr(TMP+2*r,2)}, {vr(TMP+2*r,2)}, {vr(SC,2)} op_sel_hi:[1,0]" for r in range(4)]
        o += [f"v_cvt_pk_bf16_f32 v{QP+4*j+r}, v{TMP+2*r}, v{TMP+2*r+1}" for r in range(4)]
        return o
    def red_ops(h):
        S = V_S + 4*h; M = V_P + 2*h
        o = [f"v_max3_f32 v{M}, v{S}, v{S+1}, v{S+2}", f"v_max_f32 v{M}, v{M}, v{S+3}"]
        for sw in ("v_permlane16_swap_b32", "v_permlane32_swap_b32"):
            o += [f"v_mov_b32 v{M+1}, v{M}", f"{sw} v{M}, v{M+1}", f"v_max_f32 v{M}, v{M}, v{M+1}"]
        o += [f"v_mul_f32 v{M}, v{M}, v{SC}", f"v_cndmask_b32 v{M}, v{M}, v{V_KEEP+h}, s[{S_FBM}:{S_FBM+1}]"]
        o += [f"v_sub_f32 v{S+r}, 0, v{M}" for r in range(4)]
        return o
    def part(h, d0, d1):
        for c in range(4): a(("L", kread(0, 4*h + c, base=XO, dst=vr(RAW + 16*h + 4*c, 4)), ("raw", h, c)))
        if h == 0:
            a(("W", ["K0a"], None))
            for jj in range(4): a(("L", kread(0, jj), "k0a"))
        v0dma(d0)
        a(("W", None, [("raw", h, 0)]))
        a(scale_ops(4*h))
        a(("W", None, [("raw", h, 3), "k0a"]))
        S = vr(V_S + 4*h, 4)
        o1 = scale_ops(4*h + 1)
        for c in range(4):
            a(f"{M16} {S}, {Kf(c)}, {vr(RAW + 16*h + 4*c, 4)}, {S if c else '0'}")
            if c == 0: a(qw(h, 0))
            else: a(o1[:2]); del o1[:2]
        a(o1)
        a(qw(h, 1)); v0dma(d1)
        red = red_ops(h)
        for c in (2, 3):
            o = scale_ops(4*h + c)
            while o:
                a(o[:2]); del o[:2]
                if red: a(red.pop(0))
            a(qw(h, c))
        a(red)
        a(("L", f"ds_write_b128 v{CIW}, {S} offset:{256*h}", "ciw"))
    stamp("p")
    a(("W", ["Qa"], None))
    stamp(); stamp("p")
    part(0, vsch[0], vsch[1])
    v0dma(vsch[2])
    stamp("p")
    a(("W", ["Qb"], None))
    stamp("p")
    part(1, vsch[3], vsch[4])
    v0dma(8); more(pace)
    a(f"s_cmp_eq_u32 s{S_FB}, 1")
    stamp(); stamp("p")
    a(("W", None, "all"))
    a("s_barrier")
    a("s_cbranch_scc1 L_pass1")
    stamp(); stamp("p")
    def qreads(u):
        w, h = u // 2, u % 2
        ad = V_QA0 if w < 2 else V_QA1
        out = [f"ds_read_b128 {vr(V_CI+4*u,4)}, v{V_CIR} offset:{u*256}"]
        out += [f"ds_read_b128 {Qf(u,c)}, v{ad} offset:{(w&1)*REG + qoff(h, c) - XO}" for c in range(4)]
        return Ls(out, ("q", u))
    a(qreads(0))
    a(("W", ["K0b"], None))
    for jj in range(4, 8): a(("L", kread(0, jj), "k0b"))
    a(qreads(1))
    more()
    a(("W", None, [("q", 0)]))
    for j in range(8):
        if j == 4: a(("W", None, ["k0b"]))
        a(qk(0, j))
        if j in (2, 5, 7): more()
    more(64)
    a(("W", [("V", 0, 0)], None))
    for dt in range(4): a(Ls(vread(0, dt), ("v", 0, dt)))
    for e in range(5): a(ex(e))
    a(cv(0)); a(cv(1))
    stamp()

    pend = []
    def emit_step(u, par, first, fin, ext, post, dgaps=(), sgaps=()):
        order = [2, 3, 4, 5, 6, 7, -1, 0, 1] if fin else [0, 1, 2, 3, 4, 5, 6, 7, -1]
        for g in range(17):
            if g < 8:
                if not fin: a(qk((u + 1) % 7, g))
            else:
                dt = order[g - 8]
                a(pv(u, dt, par, first) if dt >= 0 else sm(u, first))
            if g in dgaps:
                a(list(pend)); pend.clear()
                a(nextdma())
            room = 2 - len(ext[g])
            if g in sgaps and room > 0:
                if not pend: pend.extend(nextpre())
                a(pend[:room]); del pend[:room]
            a(ext[g])
            if g < 3: a(ex(5 + g))
            elif g == 3:
                if fin: a("s_nop 0")
                a(cv(2)); a(cv(3))
            elif not fin:
                if 11 <= g <= 15: a(ex(g - 11))
                elif g == 16: a(cv(0)); a(cv(1))
            a(post[g])

    def tile(t):
        par = t & 1; nx = par ^ 1
        first = t == 0
        for u in range(7):
            ext = {g: [] for g in range(17)}; post = {g: [] for g in range(17)}
            dgaps, sgaps = {0: ((5, 8, 10), (4, 6, 7, 9)), 1: ((5, 10), (4, 6, 7, 8, 9)), 2: ((5, 8, 10), (4, 6, 7, 9)), 3: ((5, 10), (4, 6, 7, 8, 9)),
                            4: ((5, 9), (7,)), 5: ((5, 9), (7,)), 6: ((4, 7), (5,))}[u]
            if u == 0 and not first: ext[6].append(("W", None, "all"))
            if u == 3: ext[9].append(("W", [("V", t+1, 1)], None))
            if u == 4:
                for g, dt in zip((4, 6, 8, 10), (4, 5, 6, 7)): ext[g] += Ls(vread(nx, dt), ("v", t+1, dt))
                post[16].append(("W", [("K", t+1, 0), ("K", t+1, 1)], None))
            if u == 5:
                for i, g in enumerate((4, 6, 8, 10)): ext[g] += Ls([kread(nx, 2*i), kread(nx, 2*i+1)], ("k", t+1))
                post[16].append(("W", [("V", t+1, 0)], [("k", t+1)]))
                if first: post[16].append("s_barrier")
            if u == 6:
                for g, dt in zip((6, 8, 9, 10), (3, 0, 1, 2)): ext[g] += Ls(vread(nx, dt), ("v", t+1, dt))
            if t % 2 == 0 and t > 0 and u == 1: ext[8].append(f"s_sub_u32 s{S_CNT}, s{S_CNT}, 1")
            if first:
                if u == 0:
                    dgaps, sgaps = (), ()
                    ext[3].append(("W", [("V", 0, 1)], None))
                    for g, dt in zip((4, 5, 6, 7), (4, 5, 6, 7)): ext[g] += Ls(vread(0, dt), ("v", 0, dt))
                    post[7].append(("W", None, [("v", 0, 3)]))
                    q = qreads(2); ext[8] += q[0:2]; ext[9] += q[2:4]; ext[10] += q[4:5]
                    post[11].append(("W", None, [("v", 0, 7)]))
                elif u < 4:
                    q = qreads(u + 2); ext[6] += q[0:2]; ext[7] += q[2:4]; ext[9] += q[4:5]
                    dgaps, sgaps = (5, 8, 10), (4,)
                    if u == 3:
                        q = qreads(6)
                        for i in range(5): ext[11 + i] += q[i:i+1]
                if u == 4: dgaps = (5, 9, 13)
                if u < 5: post[16].append(("W", None, [("q", u + 2)]))
                xs = [(0, 1), (0, 13), (1, 1), (2, 1), (3, 1), (4, 1), (5, 1), (6, 1), (1, 13), (2, 13), (5, 13), (6, 13)][:t0extra]
                dgaps = tuple(sorted(set(dgaps) | set(g for (uu, g) in xs if uu == u)))
                stamp("t")
                if u == 0: a(("W", None, [("q", 1)]))
            emit_step(u, par, first, False, ext, post, dgaps, sgaps)

    a.c("tile 0"); tile(0)
    a(f"s_mov_b32 s{S_CNT}, 3")
    stamp()
    a.raw(".p2align 6")
    a.label("L_loop")
    i0 = len(a.l)
    bodies = []
    for t in range(1, 7):
        b = len(a.l); tile(t); bodies.append(a.l[b:])
    for t in (2, 4):
        for k in (0, 1):
            assert bodies[t + k] == bodies[k], [(x, y) for x, y in zip(bodies[k], bodies[t + k]) if x != y][:4]
    del a.l[i0:]
    a.l += bodies[4] + bodies[5]
    a(f"s_cmp_lg_u32 s{S_CNT}, 0")
    a("s_cbranch_scc1 L_loop")
    i1 = len(a.l)
    assert stream[spos[0]][2] >= 8, "stream not fully issued"
    stamp()

    def blk(u, j): return (u * 3 + j - 1) * 1024
    def pk(u, j):
        o = Ov(u, 2*j); p = Ov(u, 2*j+1) if j < 3 else Ov(u, 3)
        return [f"v_cvt_pk_bf16_f32 v{o+r}, v{(o, p)[r//2] + 2*(r%2)}, v{(o, p)[r//2] + 2*(r%2) + 1}" for r in range(4)]
    def acc(u): return [f"v_accvgpr_read_b32 v{Ov(u,3)+r}, a{A_O7+4*u+r}" for r in range(4)]
    def xw(u, j): return ("L", f"ds_write_b128 v{V_LIN}, {vr(Ov(u, 2*j), 4)} offset:{blk(u, j)}", ("xw", u))
    def lw(u): return ("L", f"ds_write_b32 v{V_LW}, a{A_L+4*u} offset:{LTAB(u)}", ("xw", u))
    def R(u):
        o = [("L", f"ds_read_b128 {ar(A_X(u) + 4*(j-1), 4)}, v{V_XR+j-1} offset:{blk(u, j)}", ("x", u)) for j in range(1, 4)]
        return o + [("L", f"ds_read_b128 {vr(V_CI+4*u,4)}, v{V_LR} offset:{LTAB(u)}", ("x", u))]
    def cmb(u):
        return [f"{M16} {Of(u, b)}, {ar(A_SEL + 2 - 2*b, 4)}, {ar(A_X(u) + 4*j, 4)}, {Of(u, b)}" for b in range(2) for j in range(3)]
    def ladd(u):
        c = V_CI + 4*u
        return [f"v_add_f32 v{c}, v{c}, v{c+1}", f"v_add_f32 v{c+2}, v{c+2}, v{c+3}", f"v_add_f32 v{c}, v{c}, v{c+2}"]
    def lrcp(u):
        c = V_CI + 4*u
        return [f"v_rcp_f32 v{c+1}, v{c}", f"v_add_f32 v{V_CHK}, v{V_CHK}, v{c}" if u else f"v_mov_b32 v{V_CHK}, v{c}"]
    def mul(u, b): return [f"v_mul_f32 v{Ov(u,b)+r}, v{Ov(u,b)+r}, v{V_CI+4*u+1}" for r in range(4)]
    def swp(u): return [f"v_permlane16_swap_b32 v{Ov(u,0)+r}, v{Ov(u,0)+2+r}" for r in range(2)]
    def sto(u): return f"s_movk_i32 s98, {u*4096}"
    def ST(u): return ("V", f"buffer_store_dwordx4 {vr(Ov(u,0),4)}, v{V_ST}, {srd(SRD_O)}, s98 offen{(' '+sflags) if sflags else ''}", "st")
    def seq(mf, fill):
        for i, m in enumerate(mf):
            if m: a(m)
            a(fill.get(i, []))
    a.c("tile 7")
    for u in range(6):
        stamp("e")
        w = u - 1; f = u - 2
        mf = [qk(u + 1, g) for g in range(8)] + (cmb(f) if f >= 0 else [None] * 6) + [pv(u, dt, 1, False) for dt in range(8)] + [sm(u, False)]
        F = {i: [] for i in range(23)}
        if f >= 0:
            r = R(f); F[0] += r[0:2]; F[1] += r[2:4]
        if w >= 0: F[2 if f >= 0 else 3] += [lw(w)]
        for g in range(3): F[g] += [ex(5 + g)]
        F[3] += [cv(2), cv(3)]
        if u == 0:
            F[4] += [("W", "all", "all"), f"v_add_u32 v{V_LW}, s{S_LWO}, v{V_CIR}"]
            F[5] += [f"v_lshl_add_u32 v{V_XR+j}, v{L}, 4, s{S_XR+j}" for j in range(2)]
            F[6] += [f"v_lshl_add_u32 v{V_XR+2}, v{L}, 4, s{S_XR+2}", f"v_subrev_u32 v{V_LR}, {CI_AREA - LT0}, v{V_CIR}"]
            sel = [f"v_accvgpr_write_b32 a{A_SEL+r}, {x}" for r, x in enumerate(("0", "0", f"v{V_X0}", f"v{V_X1}", "0", "0"))]
            F[7] += sel[0:2]; F[14] += sel[2:4]; F[15] += sel[4:6]
        if f >= 0:
            F[4] += pk(w, 1); F[5] += [xw(w, 1)]; F[6] += pk(w, 2); F[7] += acc(w) + [("W", None, [("x", f)])]
            F[8] += [xw(w, 2)]; F[9] += pk(w, 3); F[10] += ladd(f); F[11] += lrcp(f); F[12] += [xw(w, 3)]
            F[13] += [ex(0)]; F[14] += [ex(1)]; F[15] += [ex(2)]; F[16] += [ex(3)]
            F[17] += mul(f, 0); F[18] += mul(f, 1); F[19] += pk(f, 0)
            F[20] += [("W", None, [("xw", w)]), "s_barrier", ex(4)]
            F[21] += swp(f) + [sto(f)]
            F[22] += [ST(f), cv(0), cv(1)]
        else:
            if w >= 0:
                F[4] += pk(w, 1); F[5] += [xw(w, 1)]; F[6] += pk(w, 2); F[7] += acc(w)
                F[14] += [xw(w, 2)]; F[15] += pk(w, 3); F[17] += [xw(w, 3)]
            for i, g in enumerate((17, 18, 19, 20, 21) if w < 0 else (16, 18, 19, 20, 21)): F[g] += [ex(i)]
            F[22] += [cv(0), cv(1)]
            if w >= 0: F[22] += [("W", None, [("xw", w)]), "s_barrier"]
        seq(mf, F)
    stamp("e")
    a(R(4))
    a([ex(5), ex(6), ex(7)] + pk(5, 1)[:1] + [cv(2), cv(3)] + pk(5, 1)[1:])
    mf = [pv(6, dt, 1, False) for dt in range(2, 8)] + [sm(6, False), pv(6, 0, 1, False), pv(6, 1, 1, False)] + cmb(4)
    F = {0: [xw(5, 1)], 1: [lw(5)] + pk(5, 2), 2: acc(5), 3: [xw(5, 2)], 4: pk(5, 3), 5: [("W", None, [("x", 4)])] + ladd(4), 6: [xw(5, 3)], 7: pk(6, 1), 8: lrcp(4),
         9: [xw(6, 1)], 10: pk(6, 2), 11: acc(6), 12: [xw(6, 2)], 13: pk(6, 3), 14: [lw(6), xw(6, 3)]}
    seq(mf, F)
    a(mul(4, 0))
    a(("W", None, [("xw", 6)])); a("s_barrier")
    stamp()
    a(R(5)); a(R(6))
    a(mul(4, 1)); a(pk(4, 0)); a(sto(4)); a("s_nop 0"); a(swp(4)); a("s_nop 0"); a(ST(4))
    a(("W", None, [("x", 5)]))
    F = {0: ladd(5), 1: lrcp(5), 2: [("W", None, [("x", 6)])] + ladd(6), 3: lrcp(6), 4: [f"s_mov_b32 s99, {hex(f2u(THRESH))}", f"s_cmp_lg_u32 s{S_FB}, 0"],
         5: [f"v_cmp_ngt_f32 vcc, s99, v{V_CHK}", sto(5)], 6: mul(5, 0)[:2], 7: mul(5, 0)[2:], 8: ["s_nop 1"], 9: mul(5, 1), 10: pk(5, 0), 11: mul(6, 0)[:2] + swp(5)}
    seq(cmb(5) + cmb(6), F)
    a("s_nop 0"); a(ST(5)); a(mul(6, 0)[2:]); a(sto(6)); a(mul(6, 1)); a(pk(6, 0)); a("s_nop 1"); a(swp(6)); a("s_nop 0"); a(ST(6))
    a("s_cbranch_scc1 L_ok")
    a("s_cbranch_vccnz L_fallback")
    a.label("L_ok")
    a.free = True
    if diag and spin:
        i, j, mult = spin
        a("s_waitcnt vmcnt(0)")
        a(f"s_lshl_b32 s84, s2, 2"); a(f"s_add_u32 s84, s84, s{S_W}"); a("s_cmp_lg_u32 s84, 401"); a("s_cbranch_scc1 L_end")
        a("s_memrealtime s[80:81]"); a("s_memtime s[86:87]"); a("s_waitcnt lgkmcnt(0)")
        if mult > 0:
            sj = 80 if j == 8 else S_STAMP + 2*j
            a(f"s_sub_u32 s84, s{sj}, s{S_STAMP+2*i}"); a(f"s_mul_i32 s84, s84, {mult}")
        else:
            sj = 86 if j == 8 else S_STAMP + 16 + 2*j
            a(f"s_sub_u32 s84, s{sj}, s{S_STAMP+16+2*i}"); a(f"s_lshr_b32 s84, s84, {-mult}")
        a("s_min_u32 s84, s84, 20000")
        a.label("L_spin")
        a("s_memrealtime s[82:83]"); a("s_waitcnt lgkmcnt(0)")
        a("s_sub_u32 s85, s82, s80"); a("s_cmp_lt_u32 s85, s84"); a("s_cbranch_scc1 L_spin")
    elif diag:
        a("s_memrealtime s[84:85]"); a("s_memtime s[86:87]")
        a("s_waitcnt vmcnt(0)")
        a("s_memrealtime s[80:81]"); a("s_memtime s[82:83]")
        a("s_branch L_dump")
    a.label("L_end")
    a("s_endpgm")
    iend = len(a.l)
    if warm > 1:
        a.raw(f".fill ({4 * 4096 - head} - (. - {NAME}_kernel)) / 4, 4, 0xbf810000")
        a.label("L_pg3")
        a("s_branch L_back")
    a.label("L_fallback")
    a("s_waitcnt vmcnt(0) lgkmcnt(0)")
    a("s_barrier")
    a(f"s_mov_b32 s{S_FB}, 1")
    a("s_branch L_start")
    a.label("L_pass1")
    for u in range(7):
        for x in qreads(u)[1:]: a(x[1])
        a("s_waitcnt lgkmcnt(0)")
    a("s_waitcnt vmcnt(0)")
    a("s_barrier")
    a("s_mov_b32 s42, 0")
    MX = V_OWN
    for u in range(7): a(f"v_mov_b32 v{MX+u}, 0xff800000")
    a.label("L_fb1")
    a(m0(0)); a(f"s_add_u32 s{S_SO}, s42, 128")
    for p in range(4): a(dma(SRD_K, 42, p, "f")[1])
    a(m0(4096)); a("s_nop 0")
    for p in range(4): a(dma(SRD_K, S_SO, p, "f")[1])
    a("s_waitcnt vmcnt(0)")
    for j in range(8): a(kread(0, j))
    a("s_waitcnt lgkmcnt(0)")
    for u in range(7):
        for j in range(8): a(qk(u, j, zero=True))
        a("s_nop 7")
        for r in range(0, 8, 2): a(f"v_max3_f32 v{MX+u}, v{MX+u}, v{V_S+r}, v{V_S+r+1}")
    a("s_add_u32 s42, s42, 0x2000")
    a("s_cmp_lt_u32 s42, 0x10000")
    a("s_cbranch_scc1 L_fb1")
    for sw in ("v_permlane16_swap_b32", "v_permlane32_swap_b32"):
        for u in range(7): a(f"v_mov_b32 v{MX+8+u}, v{MX+u}")
        a("s_nop 1")
        for u in range(7): a(f"{sw} v{MX+u}, v{MX+8+u}")
        a("s_nop 1")
        for u in range(7): a(f"v_max_f32 v{MX+u}, v{MX+u}, v{MX+8+u}")
    a(f"v_add_u32 v{V_P}, s{S_LWO}, v{V_CIR}")
    for u in range(7): a(f"ds_write_b32 v{V_P}, v{MX+u} offset:{LTAB(u)}")
    a("s_waitcnt lgkmcnt(0)")
    a("s_barrier")
    a(f"s_and_b32 s42, s{S_W}, 1"); a("s_lshl_b32 s42, s42, 9")
    a(f"s_lshr_b32 s98, s{S_W}, 1"); a(f"s_mul_i32 s98, s98, {REG}"); a("s_add_u32 s42, s42, s98")
    a(f"s_sub_u32 s42, s42, {CI_AREA - LT0}")
    a(f"v_add_u32 v{V_P}, s42, v{V_CIR}")
    for h in range(2): a(f"ds_read_b128 {vr(V_S+4*h,4)}, v{V_P} offset:{256*h}")
    a("s_waitcnt lgkmcnt(0)")
    for h in range(2):
        a(f"v_max3_f32 v{V_KEEP+h}, v{V_S+4*h}, v{V_S+4*h+1}, v{V_S+4*h+2}")
        a(f"v_max_f32 v{V_KEEP+h}, v{V_KEEP+h}, v{V_S+4*h+3}")
    a(f"s_mov_b32 s{S_FB}, 2")
    a(f"s_mov_b64 s[{S_FBM}:{S_FBM+1}], -1")
    a("s_barrier")
    a("s_branch L_start")
    if diag and not spin:
        a.label("L_dump")
        a("s_mov_b32 s36, s46"); a("s_mov_b32 s37, s47"); a("s_mov_b32 s38, 0x100000"); a("s_mov_b32 s39, 0x20000")
        a("s_waitcnt lgkmcnt(0)")
        a("s_lshl_b32 s40, s2, 2"); a(f"s_add_u32 s40, s40, s{S_W}"); a("s_lshl_b32 s40, s40, 8")
        a(f"v_mov_b32 v4, s40")
        a(f"v_cmp_eq_u32 vcc, 0, v{L}")
        a("s_and_saveexec_b64 s[42:43], vcc")
        slots = [(S_STAMP+2*i, i) for i in range(8)] + [(84, 8), (80, 9)] + [(S_STAMP+16+2*i, 16+i) for i in range(8)] + [(86, 24), (82, 25)]
        for s, i in slots:
            a(f"v_mov_b32 v6, s{s}"); a(f"v_mov_b32 v7, s{s+1}"); a(f"buffer_store_dwordx2 v[6:7], v4, s[36:39], 0 offen offset:{8*i}"); a("s_nop 1")
        a("s_endpgm")
    lin = a.l[:i1] + a.l[i0:i1] + a.l[i1:iend]
    bad = hz.check(lin) + hz.check(a.l[iend:])
    for b in bad: print("HAZARD", b, file=sys.stderr)
    if pref: a.raw(f".fill ({16384 * pref} - (. - {NAME}_kernel)) / 4, 4, 0xbf810000")
    a.raw('.section .rodata,"a"'); a.raw(".p2align 6"); a.raw(f".amdhsa_kernel {NAME}_kernel")
    a.raw("  .amdhsa_next_free_vgpr 512"); a.raw("  .amdhsa_next_free_sgpr 102"); a.raw("  .amdhsa_accum_offset 256")
    a.raw("  .amdhsa_group_segment_fixed_size 0"); a.raw("  .amdhsa_kernarg_size 48"); a.raw("  .amdhsa_user_sgpr_count 2")
    a.raw("  .amdhsa_user_sgpr_kernarg_segment_ptr 1"); a.raw("  .amdhsa_system_sgpr_workgroup_id_x 1"); a.raw(".end_amdhsa_kernel")
    if warm: a.l = add_stubs(a.l, head)
    return "\n".join(a.l) + "\n"

if __name__ == "__main__":
    ap = argparse.ArgumentParser()
    ap.add_argument("-o", default=f"kG.s")
    ap.add_argument("--diag", action="store_true")
    ap.add_argument("--spin", default=None); ap.add_argument("--flags", default=""); ap.add_argument("--sflags", default="nt")
    ap.add_argument("--n0", type=int, default=8); ap.add_argument("--mix", type=int, default=1); ap.add_argument("--vsch", default="2,2,2,2,0")
    ap.add_argument("--t0extra", type=int, default=4); ap.add_argument("--pace", type=int, default=2); ap.add_argument("--fine", default="c")
    ap.add_argument("--cgap", type=int, default=14); ap.add_argument("--pref", type=int, default=0); ap.add_argument("--align", type=int, default=12); ap.add_argument("--head", type=int, default=3584); ap.add_argument("--warm", type=int, default=2); ap.add_argument("--rot", default="0,0"); ap.add_argument("--touch", type=int, default=0); ap.add_argument("--wg", default="4,5,6,7,8,9,10")
    args = ap.parse_args()
    tup = lambda s: tuple(map(int, s.split(',')))
    open(args.o, "w").write(gen(diag=args.diag, flags=args.flags, sflags=args.sflags, n0=args.n0, mix=args.mix, vsch=tup(args.vsch), t0extra=args.t0extra,
                                pace=args.pace, fine=args.fine, cgap=args.cgap, pref=args.pref, align=args.align, head=args.head, warm=args.warm, rot=tup(args.rot), touch=args.touch, wg=tup(args.wg), spin=tup(args.spin) if args.spin else None))
```

```python
import sys, struct, argparse
import hz
NAME = "standalone__gqa_softmax__near_ridge"
def f2u(x): return struct.unpack("<I", struct.pack("<f", x))[0]
def vr(b, n=1): return f"v{b}" if n == 1 else f"v[{b}:{b+n-1}]"
def ar(b, n=1): return f"a{b}" if n == 1 else f"a[{b}:{b+n-1}]"
def srd(b): return f"s[{b}:{b+3}]"

V_LANE, V_LIN, V_KEEP, V_VOFF, V_AK, V_AV = 0, 1, 2, 4, 8, 10
V_QA0, V_X0, V_QA1, V_X1, V_ST, V_CIR = 14, 15, 16, 17, 18, 19
V_S, V_P, V_CI, V_OWN, V_OTH = 20, 28, 32, 60, 116
A_O7, A_L, A_ONE, A_K, A_V, A_Q = 0, 28, 56, 60, 92, 144
V_XR, V_LW, V_LR, V_CHK = 4, 7, 8, 9
A_SEL = A_V + 12
def A_X(u): return A_Q + 16 * (u % 2)
S_W = 3
SRD_Q, SRD_K, SRD_V, SRD_O = 12, 16, 20, 24
S_MK0, S_MK1, S_MV0, S_MV1 = 28, 29, 30, 31
S_Y, S_FB, S_WB, S_CNT = 32, 33, 34, 35
S_SO = 44
S_STAMP = 48
S_FBM = 88
S_XR = 90
S_LWO = 93
S_Y0 = 100
S_K0 = 101
REG = 40960
KB = lambda par: par * 8192
VB = lambda par: 16384 + par * 8192
XO = 32768
CI_AREA = 3 * REG + XO + 6144
LT0 = 39936
def LTAB(u): return u * 256 if u < 4 else REG + (u - 4) * 256
SCALE = (128 ** -0.5) * 1.4426950408889634
THRESH = 2.0 ** 40
M16 = "v_mfma_f32_16x16x32_bf16"

def Qf(u, c): return ar(A_Q + 16 * u + 4 * c, 4)
def Kf(j): return ar(A_K + 4 * j, 4)
def Vbase(dt, par): return A_V + 4 * dt if dt < 3 else A_V + 12 + 20 * par + 4 * (dt - 3)
def Ov(u, dt): return V_OWN + 8 * u + 4 * dt if dt < 2 else V_OTH + 20 * u + 4 * (dt - 2)
def Of(u, dt): return ar(A_O7 + 4 * u, 4) if dt == 7 else vr(Ov(u, dt), 4)
def qk(u, j, zero=False):
    kt, c = j // 4, j % 4
    S = vr(V_S + 4 * kt, 4)
    cc = S if c else ("0" if zero else vr(V_CI + 4 * u, 4))
    return f"{M16} {S}, {Kf(j)}, {Qf(u, c)}, {cc}"
def pv(u, dt, par, first):
    o = Of(u, dt)
    return f"{M16} {o}, {ar(Vbase(dt, par), 4)}, {vr(V_P, 4)}, {'0' if first else o}"
def sm(u, first):
    o = ar(A_L + 4 * u, 4)
    return f"{M16} {o}, {ar(A_ONE, 4)}, {vr(V_P, 4)}, {'0' if first else o}"
def ex(e): return f"v_exp_f32 v{V_S+e}, v{V_S+e}"
def cv(i): return f"v_cvt_pk_bf16_f32 v{V_P+i}, v{V_S+2*i}, v{V_S+2*i+1}"
def kread(par, j, base=None, dst=None):
    kt, c = j // 4, j % 4
    off = (KB(par) if base is None else base) + (c >> 1) * 4096 + kt * 2048
    return f"ds_read_b128 {dst or Kf(j)}, v{V_AK + (c & 1)} offset:{off}"
def vread(par, dt):
    b = Vbase(dt, par)
    return [f"ds_read_b64_tr_b16 {ar(b + 2*h, 2)}, v{V_AV + (dt & 3)} offset:{VB(par) + (dt >> 2) * 4096 + h * 2048}" for h in range(2)]

class Gen:
    def __init__(self):
        self.l = []; self.vq = []; self.lq = []; self.ldone = 0; self.free = False
    def __call__(self, s):
        if isinstance(s, list):
            for x in s: self(x)
        elif isinstance(s, tuple):
            if s[0] == "L": self.l.append("    " + s[1]); self.lq.append(s[2])
            elif s[0] == "V":
                tg = s[2]
                if isinstance(tg, tuple) and tg[0] in "KV" and tg[1] >= 2:
                    kv, x, hf = tg
                    need = ([("k", x-2)] if x > 2 else ["k0a", "k0b"]) if kv == "K" else [("v", x-2, dt) for dt in range(4*hf, 4*hf+4)]
                    for n in need:
                        idx = [i for i, t in enumerate(self.lq) if t == n]
                        assert idx and max(idx) < self.ldone, ("LDS WAR", tg, n)
                self.l.append("    " + s[1]); self.vq.append(s[2])
            elif s[0] == "W":
                parts = []
                for q, tags, nm, mx in ((self.vq, s[1], "vmcnt", 63), (self.lq, s[2], "lgkmcnt", 15)):
                    if tags is None: continue
                    if tags == "all": n = 0
                    else:
                        idx = [i for i, t in enumerate(q) if t in tags]
                        assert idx, ("no such tag", tags)
                        n = len(q) - 1 - max(idx)
                    if nm == "lgkmcnt": self.ldone = max(self.ldone, len(q) - min(n, mx))
                    parts.append(f"{nm}({min(n, mx)})")
                self.l.append("    s_waitcnt " + " ".join(parts))
        else:
            assert not (s.startswith("ds_") or s.startswith("buffer_")) or self.free, s
            self.l.append("    " + s)
    def label(self, s): self.l.append(s + ":")
    def c(self, s): self.l.append("    ; " + s)
    def raw(self, s): self.l.append(s)

def sizes(lines):
    import subprocess, tempfile, os, re
    with tempfile.TemporaryDirectory() as d:
        src = [l for l in lines]
        src.insert(src.index("L_end:"), "L_pg1:\nL_pg2:")
        open(d + "/t.s", "w").write("\n".join(src) + "\n")
        subprocess.run(["clang", "-x", "assembler", "-target", "amdgcn-amd-amdhsa", "-mcpu=gfx950", "-c", d + "/t.s", "-o", d + "/t.o"], check=True)
        out = subprocess.run(["llvm-objdump", "-d", "--mcpu=gfx950", d + "/t.o"], capture_output=True, text=True).stdout
    return [(int(m.group(2), 16), m.group(1)) for m in re.finditer(r"^\t(\S+).*// ([0-9A-F]+):", out, re.M)]
def add_stubs(lines, head):
    lines = list(lines)
    for pg in (1, 2):
        tmp = [l for l in lines if l not in ("L_pg1:", "L_pg2:")]
        ins = [x for x in sizes(tmp) if x[0] >= head]
        mf = [off for off, mn in ins if mn.startswith("v_mfma")]
        target = (pg + (1 if head else 0)) * 4096
        k = next(i for i, off in enumerate(mf) if off >= target - 8)
        assert mf[k] + 8 < target + 60, (mf[k], target)
        idx = [i for i, l in enumerate(lines) if l.strip().startswith("v_mfma")][k]
        lines[idx + 1:idx + 1] = [f"L_pg{pg}:", "    s_cbranch_execz L_back"]
    return lines

def gen(diag=False, flags="", sflags="sc1", spin=None, n0=8, mix=1, vsch=(2, 2, 2, 2, 0), t0extra=4, pace=2, fine='c', cgap=14, pref=2, align=12, head=3328, warm=0, rot=(0, 0), touch=0, pre0=2, wg=(4, 5, 6, 7, 8, 9, 10)):
    a = Gen()
    fl = (" " + flags) if flags else ""
    def dma(s, soff, p, tag): return ("V", f"buffer_load_dwordx4 v{V_VOFF+p}, {srd(s)}, s{soff} offen offset:{p*1024}{fl} lds", tag)
    def m0(off): return f"s_add_u32 m0, s{S_WB}, {off}"
    def Ls(texts, tag): return [("L", t, tag) for t in texts]
    nst = [0]
    def stamp(kind="c"):
        if diag and kind in fine and nst[0] < 8:
            a(f"s_memrealtime s[{S_STAMP+2*nst[0]}:{S_STAMP+2*nst[0]+1}]")
            a(f"s_memtime s[{S_STAMP+16+2*nst[0]}:{S_STAMP+16+2*nst[0]+1}]")
            nst[0] += 1
    GROUPS = (("V", 1), ("K", 0), ("K", 1), ("V", 0))
    stream = []
    for x in range(1, 10):
        for gi, (kv, hf) in enumerate(GROUPS):
            s_, buf = (SRD_K, KB(x & 1)) if kv == "K" else (SRD_V, VB(x & 1))
            for p in range(4):
                pre = []; so = S_SO
                if p == 0:
                    if gi == 0: pre += [("Y", x)]
                    pre += [m0(buf + hf * 4096), f"s_xor_b32 s{S_SO}, s{S_Y}, s{(S_MK0 if kv == 'K' else S_MV0) + hf}"]
                stream.append((pre, dma(s_, so, p, (kv, x, hf)), x))
    spos = [0]
    def expand(pre):
        out = []
        for y in pre:
            if isinstance(y, tuple) and y[0] == "Y":
                out += [f"s_add_u32 s{S_Y}, s{S_Y}, 0x2000", f"s_and_b32 s{S_Y}, s{S_Y}, 0xffff"]
                if y[1] % 2 == 0 and y[1] >= 4:
                    out += [f"s_cmp_lg_u32 s{S_Y}, s{S_Y0}", f"s_cselect_b32 s{SRD_K+2}, 0x10000, 0", f"s_mov_b32 s{SRD_V+2}, s{SRD_K+2}"]
            elif isinstance(y, tuple): out += ["s_nop 0"]
            else: out.append(y)
        return out
    def nextpre():
        pre, d, x = stream[spos[0]]
        stream[spos[0]] = ([], d, x)
        return expand(pre)
    def nextdma():
        pre, d, x = stream[spos[0]]
        spos[0] += 1
        return expand(pre) + [d]

    a.raw(open("cdna_kernels/%s.s.ref" % NAME).read().split("; Override launch")[0].rstrip())
    a.raw("; @launch grid=(256,1,1) block=(256,1,1) lds=163840")
    a.raw('.amdgcn_target "amdgcn-amd-amdhsa--gfx950"')
    a.raw(".text"); a.raw(f".globl {NAME}_kernel"); a.raw(f".p2align {align}"); a.raw(f".fill {head // 4}, 4, 0xbf810000"); a.raw(".p2align 8"); a.raw(f".type {NAME}_kernel,@function")
    a.label(f"{NAME}_kernel")
    a("s_load_dwordx8 s[4:11], s[0:1], 0")
    a("s_cmp_ge_u32 s2, 256")
    a("s_cbranch_scc1 L_end")
    if diag:
        a("s_load_dwordx2 s[46:47], s[0:1], 40")
        stamp(fine[0])
    L = V_LANE
    T = V_S
    a(f"v_lshrrev_b32 v{T}, 6, v0")
    a(f"v_and_b32 v{L}, 63, v0")
    a(f"v_readfirstlane_b32 s{S_W}, v{T}")
    a("s_and_b32 s36, s2, 7")
    a("s_lshr_b32 s37, s2, 3")
    a("s_lshl_b32 s36, s36, 5")
    a("s_add_u32 s36, s36, s37")
    a("s_mul_i32 s38, s36, 28672")
    a(f"s_mul_i32 s{S_WB}, s{S_W}, {REG}")
    a(f"s_movk_i32 s{SRD_Q+2}, 28672")
    a(f"s_mov_b32 s{SRD_Q+3}, 0x20000")
    a(f"s_lshl_b32 s40, s{S_W}, 13")
    a(f"s_mov_b32 s{S_FB}, 0")
    a(f"s_mov_b64 s[{S_FBM}:{S_FBM+1}], 0")
    a.label("L_start")
    a(f"v_lshrrev_b32 v{T}, 3, v{L}")
    a(f"v_and_b32 v{T+1}, 6, v{T}")
    a(f"v_xor_b32 v{T+1}, v{T+1}, v{L}")
    a(f"v_and_b32 v{T+1}, 7, v{T+1}")
    a(f"v_lshlrev_b32 v{T+1}, 4, v{T+1}")
    a(f"v_lshl_add_u32 v{V_VOFF}, v{T}, 8, v{T+1}")
    a(f"v_xor_b32 v{V_VOFF+1}, 16, v{V_VOFF}")
    a(f"v_add_u32 v{V_VOFF+1}, 0x400, v{V_VOFF+1}")
    a(m0(XO))
    a("s_add_u32 s41, s40, 128")
    a("s_lshr_b32 s39, s36, 2")
    a(f"s_and_b32 s{S_Y0}, s39, {rot[0]}")
    a(f"s_lshl_b32 s{S_Y0}, s{S_Y0}, 13")
    a(f"s_and_b32 s{S_MK0}, s36, {rot[1]}")
    a(f"s_lshl_b32 s{S_MK0}, s{S_MK0}, 13")
    a("s_lshl_b32 s39, s39, 18")
    a(f"s_lshl_b32 s42, s{S_W}, 16")
    a("s_add_u32 s39, s39, s42")
    a(f"s_mov_b32 s{SRD_K+2}, 0x10000")
    a(f"s_mov_b32 s{SRD_K+3}, 0x20000")
    a(f"s_mov_b32 s{S_Y}, s{S_Y0}")
    a(f"s_xor_b32 s{S_K0}, s{S_Y0}, s{S_MK0}")
    a(f"s_or_b32 s43, s{S_K0}, 128")
    a("s_getpc_b64 s[94:95]")
    a.label("L_pc")
    a(f"s_lshl_b32 s97, s{S_W}, 5")
    a("s_add_u32 s97, s97, s37")
    a("s_lshl_b32 s97, s97, 6")
    a(f"s_add_u32 s94, s94, {4096 - head}-(L_pc-{NAME}_kernel)")
    a("s_addc_u32 s95, s95, 0")
    if pre0 == 2:
        a(f"v_mov_b32 v{T+2}, s97")
        a(("V", f"global_load_dword v{V_CI}, v{T+2}, s[94:95]", "pf"))
    stamp("k")
    a("s_waitcnt lgkmcnt(0)")
    stamp("k")
    if pre0 == 1: a("s_load_dword s96, s[94:95], s97")
    def base(b, src, off): return [f"s_add_u32 s{b}, s{src}, s{off}", f"s_addc_u32 s{b+1}, s{src+1}, 0"]
    a(base(SRD_Q, 4, 38))
    for p in (0, 1): a(dma(SRD_Q, 40, p, "Qa"))
    a(m0(XO + 4096)); a(base(SRD_K, 6, 39))
    for p in (0, 1): a(dma(SRD_Q, 41, p, "Qa"))
    a(m0(KB(0)))
    a(f"s_cmp_eq_u32 s{S_W}, 3")
    for p in (0, 1): a(dma(SRD_K, S_K0, p, "K0a"))
    a(f"s_cselect_b32 s45, 0x4000, 0")
    a(m0(KB(0) + 4096))
    a(f"s_add_u32 s45, s45, s{S_WB}")
    for p in (0, 1): a(dma(SRD_K, 43, p, "K0a"))
    a(f"v_add_u32 v{V_VOFF+2}, 0x800, v{V_VOFF}")
    a(f"v_add_u32 v{V_VOFF+3}, 0x800, v{V_VOFF+1}")
    a(f"s_add_u32 m0, s45, {XO + 4096}"); a("s_nop 0")
    for p in (2, 3): a(dma(SRD_Q, 41, p, "Qb"))
    a(f"s_add_u32 m0, s45, {XO}"); a("s_nop 0")
    for p in (2, 3): a(dma(SRD_Q, 40, p, "Qb"))
    a(base(SRD_V, 8, 39)); a(base(SRD_O, 10, 38))
    a(f"s_mov_b32 s{SRD_V+2}, 0x10000"); a(f"s_mov_b32 s{SRD_V+3}, 0x20000")
    a(f"s_movk_i32 s{SRD_O+2}, 28672"); a(f"s_mov_b32 s{SRD_O+3}, 0x20000")
    if warm:
        a("s_mov_b64 exec, 0")
        for w in (1, 2, 3)[:warm + 1]:
            a(f"s_cmp_eq_u32 s{S_W}, {w}")
            a(f"s_cbranch_scc1 L_pg{w}")
        a.label("L_back")
        a("s_mov_b64 exec, -1")
    a(f"s_lshr_b32 s{S_MV0}, s{S_W}, 1"); a(f"s_lshl_b32 s{S_MV0}, s{S_MV0}, 7")
    a(f"s_or_b32 s{S_MV0}, s{S_MV0}, s{S_MK0}")
    a(f"s_xor_b32 s{S_MV1}, s{S_MV0}, 128")
    a(f"s_or_b32 s{S_MK1}, s{S_MK0}, 128")
    a(f"v_and_b32 v{T}, 15, v{L}")
    a(f"v_and_b32 v{T+1}, 6, v{T}")
    a(f"v_lshrrev_b32 v{T+2}, 3, v{T}")
    a(f"v_or_b32 v{T+1}, v{T+1}, v{T+2}")
    a(f"v_lshrrev_b32 v{T+2}, 4, v{L}")
    a(f"v_lshlrev_b32 v{T+2}, 1, v{T+2}")
    a(f"v_xor_b32 v{T+1}, v{T+1}, v{T+2}")
    a(f"v_lshlrev_b32 v{T+1}, 4, v{T+1}")
    a(f"v_lshl_add_u32 v{T+1}, v{T}, 7, v{T+1}")
    a(f"v_add_u32 v{V_AK}, s{S_WB}, v{T+1}")
    a(f"v_xor_b32 v{V_AK+1}, 16, v{V_AK}")
    a(f"v_lshl_add_u32 v{V_LIN}, v{L}, 4, s{S_WB}")
    CIW, QWB, SC = V_CI + 24, V_CI + 25, V_CI + 26
    a(f"v_mov_b32 v{SC}, {hex(f2u(SCALE))}")
    a(f"v_lshl_add_u32 v{QWB}, v{L}, 4, s45")
    a(f"s_lshl_b32 s42, s{S_W}, 9")
    a(f"v_lshlrev_b32 v{T+3}, 4, v{T}")
    a(f"v_add_u32 v{V_CIR}, {CI_AREA}, v{T+3}")
    a(f"v_add_u32 v{CIW}, s42, v{V_CIR}")
    a(f"v_lshlrev_b32 v{T+3}, 4, v{L}")
    a(f"v_add_u32 v{V_QA0}, {XO}, v{T+3}")
    a(f"v_add_u32 v{V_QA1}, {2*REG + XO}, v{T+3}")
    for j in range(1, 4):
        a(f"s_xor_b32 s42, s{S_W}, {j}")
        a(f"s_mul_i32 s{S_XR+j-1}, s42, {REG}")
    a(f"s_lshl_b32 s{S_LWO}, s{S_W}, 2")
    a(f"s_sub_u32 s{S_LWO}, s{S_LWO}, {CI_AREA - LT0}")
    a(f"v_lshrrev_b32 v{T+1}, 4, v{L}")
    a(f"v_lshrrev_b32 v{T+2}, 2, v{T}")
    a(f"v_cmp_eq_u32 vcc, v{T+1}, v{T+2}")
    a(f"v_and_b32 v{T+2}, 1, v{L}")
    a(f"v_lshlrev_b32 v{T+2}, 4, v{T+2}")
    a(f"v_mov_b32 v{T+3}, 0x3f80")
    a(f"v_lshlrev_b32 v{T+3}, v{T+2}, v{T+3}")
    a(f"v_cndmask_b32 v{T+3}, 0, v{T+3}, vcc")
    a(f"v_and_b32 v{T+2}, 2, v{L}")
    a(f"v_cmp_eq_u32 vcc, 0, v{T+2}")
    a(f"v_bfe_u32 v{T+4}, v{L}, 4, 1")
    a(f"v_lshrrev_b32 v{T+5}, 5, v{L}")
    a(f"v_cndmask_b32 v{V_X0}, 0, v{T+3}, vcc")
    a(f"v_sub_u32 v{V_X1}, v{T+3}, v{V_X0}")
    a(f"v_lshl_add_u32 v{T+4}, v{T+4}, 1, v{T+5}")
    a(f"v_lshlrev_b32 v{T+4}, 4, v{T+4}")
    a(f"v_lshl_add_u32 v{T+4}, v{T}, 8, v{T+4}")
    a(f"s_lshl_b32 s42, s{S_W}, 6")
    a(f"v_add_u32 v{V_ST}, s42, v{T+4}")
    a(f"v_and_b32 v{T+2}, 3, v{L}")
    a(f"v_cmp_eq_u32 vcc, 0, v{T+2}")
    a(f"v_lshrrev_b32 v{T}, 2, v{L}")
    a(f"v_and_b32 v{T+1}, 6, v{T}")
    a(f"v_lshrrev_b32 v{T+2}, 3, v{T}")
    a(f"v_or_b32 v{T+1}, v{T+1}, v{T+2}")
    a(f"v_bfe_u32 v{T+2}, v{L}, 1, 1")
    a(f"v_xor_b32 v{T+1}, v{T+1}, v{T+2}")
    a(f"s_and_b32 s42, s{S_W}, 1")
    a("s_lshl_b32 s42, s42, 2")
    a(f"v_xor_b32 v{T+1}, s42, v{T+1}")
    a(f"v_lshlrev_b32 v{T+1}, 4, v{T+1}")
    a(f"v_lshl_add_u32 v{T+1}, v{T}, 7, v{T+1}")
    a(f"v_and_b32 v{T+2}, 1, v{L}")
    a(f"v_lshl_add_u32 v{T+1}, v{T+2}, 3, v{T+1}")
    a(f"v_add_u32 v{V_AV}, s{S_WB}, v{T+1}")
    for k in range(1, 4): a(f"v_xor_b32 v{V_AV+k}, {32*k}, v{V_AV}")
    a(f"v_mov_b32 v{T+2}, 0x3f803f80")
    a(f"v_cndmask_b32 v{T+2}, 0, v{T+2}, vcc")
    for r in range(4): a(f"v_accvgpr_write_b32 a{A_ONE+r}, v{T+2}")

    if pref:
        a(f"s_and_b32 s97, s97, 0xfff")
        a(f"s_add_u32 s97, s97, 0x2000")
    if touch: a(("V", f"buffer_load_dword v{V_CI}, off, {srd(SRD_O)}, 0", "touch"))
    a(m0(KB(0) + 4096)); a("s_nop 0")
    for p in (2, 3): a(dma(SRD_K, 43, p, "K0b"))
    a(m0(KB(0))); a("s_nop 0")
    for p in (2, 3): a(dma(SRD_K, S_K0, p, "K0b"))

    RAW, QP, TMP = V_OTH, V_OWN, V_OTH + 32
    left = [n0]
    def more(n=1):
        for _ in range(n):
            if left[0] > 0: a(nextdma()); left[0] -= 1
    v0 = [0]
    def v0dma(n=1):
        for _ in range(n):
            j = v0[0]
            if j >= 8: return
            if j % 4 == 0: a(m0(VB(0) + (j // 4) * 4096)); a(f"s_xor_b32 s{S_SO}, s{S_Y}, s{S_MV0 + j // 4}")
            a(dma(SRD_V, S_SO, j % 4, ("V", 0, j // 4)))
            v0[0] += 1
    def qoff(h, c): return XO + (c >> 1) * 4096 + h * 2048 + (c & 1) * 1024
    def qw(h, c): return ("L", f"ds_write_b128 v{V_LIN if h == 0 else QWB}, {vr(QP + 16*h + 4*c, 4)} offset:{qoff(h, c)}", "qw")
    def scale_ops(j):
        o = []
        for r in range(4):
            o += [f"v_lshlrev_b32 v{TMP+2*r}, 16, v{RAW+4*j+r}", f"v_and_b32 v{TMP+2*r+1}, 0xffff0000, v{RAW+4*j+r}"]
        o += [f"v_pk_mul_f32 {vr(TMP+2*r,2)}, {vr(TMP+2*r,2)}, {vr(SC,2)} op_sel_hi:[1,0]" for r in range(4)]
        o += [f"v_cvt_pk_bf16_f32 v{QP+4*j+r}, v{TMP+2*r}, v{TMP+2*r+1}" for r in range(4)]
        return o
    def red_ops(h):
        S = V_S + 4*h; M = V_P + 2*h
        o = [f"v_max3_f32 v{M}, v{S}, v{S+1}, v{S+2}", f"v_max_f32 v{M}, v{M}, v{S+3}"]
        for sw in ("v_permlane16_swap_b32", "v_permlane32_swap_b32"):
            o += [f"v_mov_b32 v{M+1}, v{M}", f"{sw} v{M}, v{M+1}", f"v_max_f32 v{M}, v{M}, v{M+1}"]
        o += [f"v_mul_f32 v{M}, v{M}, v{SC}", f"v_cndmask_b32 v{M}, v{M}, v{V_KEEP+h}, s[{S_FBM}:{S_FBM+1}]"]
        o += [f"v_sub_f32 v{S+r}, 0, v{M}" for r in range(4)]
        return o
    def part(h, d0, d1):
        for c in range(4): a(("L", kread(0, 4*h + c, base=XO, dst=vr(RAW + 16*h + 4*c, 4)), ("raw", h, c)))
        if h == 0:
            a(("W", ["K0a"], None))
            for jj in range(4): a(("L", kread(0, jj), "k0a"))
        v0dma(d0)
        a(("W", None, [("raw", h, 0)]))
        a(scale_ops(4*h))
        a(("W", None, [("raw", h, 3), "k0a"]))
        S = vr(V_S + 4*h, 4)
        o1 = scale_ops(4*h + 1)
        for c in range(4):
            a(f"{M16} {S}, {Kf(c)}, {vr(RAW + 16*h + 4*c, 4)}, {S if c else '0'}")
            if c == 0: a(qw(h, 0))
            else: a(o1[:2]); del o1[:2]
        a(o1)
        a(qw(h, 1)); v0dma(d1)
        red = red_ops(h)
        for c in (2, 3):
            o = scale_ops(4*h + c)
            while o:
                a(o[:2]); del o[:2]
                if red: a(red.pop(0))
            a(qw(h, c))
        a(red)
        a(("L", f"ds_write_b128 v{CIW}, {S} offset:{256*h}", "ciw"))
    stamp("p")
    a(("W", ["Qa"], None))
    stamp(); stamp("p")
    part(0, vsch[0], vsch[1])
    v0dma(vsch[2])
    stamp("p")
    a(("W", ["Qb"], None))
    stamp("p")
    part(1, vsch[3], vsch[4])
    v0dma(8); more(pace)
    a(f"s_cmp_eq_u32 s{S_FB}, 1")
    stamp(); stamp("p")
    a(("W", None, "all"))
    a("s_barrier")
    a("s_cbranch_scc1 L_pass1")
    stamp(); stamp("p")
    def qreads(u):
        w, h = u // 2, u % 2
        ad = V_QA0 if w < 2 else V_QA1
        out = [f"ds_read_b128 {vr(V_CI+4*u,4)}, v{V_CIR} offset:{u*256}"]
        out += [f"ds_read_b128 {Qf(u,c)}, v{ad} offset:{(w&1)*REG + qoff(h, c) - XO}" for c in range(4)]
        return Ls(out, ("q", u))
    a(qreads(0))
    a(("W", ["K0b"], None))
    for jj in range(4, 8): a(("L", kread(0, jj), "k0b"))
    a(qreads(1))
    more()
    a(("W", None, [("q", 0)]))
    for j in range(8):
        if j == 4: a(("W", None, ["k0b"]))
        a(qk(0, j))
        if j in (2, 5, 7): more()
    more(64)
    a(("W", [("V", 0, 0)], None))
    for dt in range(4): a(Ls(vread(0, dt), ("v", 0, dt)))
    for e in range(5): a(ex(e))
    a(cv(0)); a(cv(1))
    stamp()

    pend = []
    def emit_step(u, par, first, fin, ext, post, dgaps=(), sgaps=()):
        order = [2, 3, 4, 5, 6, 7, -1, 0, 1] if fin else [0, 1, 2, 3, 4, 5, 6, 7, -1]
        for g in range(17):
            if g < 8:
                if not fin: a(qk((u + 1) % 7, g))
            else:
                dt = order[g - 8]
                a(pv(u, dt, par, first) if dt >= 0 else sm(u, first))
            if g in dgaps:
                a(list(pend)); pend.clear()
                a(nextdma())
            room = 2 - len(ext[g])
            if g in sgaps and room > 0:
                if not pend: pend.extend(nextpre())
                a(pend[:room]); del pend[:room]
            a(ext[g])
            if g < 3: a(ex(5 + g))
            elif g == 3:
                if fin: a("s_nop 0")
                a(cv(2)); a(cv(3))
            elif not fin:
                if 11 <= g <= 15: a(ex(g - 11))
                elif g == 16: a(cv(0)); a(cv(1))
            a(post[g])

    def tile(t):
        par = t & 1; nx = par ^ 1
        first = t == 0
        for u in range(7):
            ext = {g: [] for g in range(17)}; post = {g: [] for g in range(17)}
            dgaps, sgaps = {0: ((5, 8, 10), (4, 6, 7, 9)), 1: ((5, 10), (4, 6, 7, 8, 9)), 2: ((5, 8, 10), (4, 6, 7, 9)), 3: ((5, 10), (4, 6, 7, 8, 9)),
                            4: ((5, 9), (7,)), 5: ((5, 9), (7,)), 6: ((4, 7), (5,))}[u]
            if u == 0 and not first: ext[6].append(("W", None, "all"))
            if u == 3: ext[9].append(("W", [("V", t+1, 1)], None))
            if u == 4:
                for g, dt in zip((4, 6, 8, 10), (4, 5, 6, 7)): ext[g] += Ls(vread(nx, dt), ("v", t+1, dt))
                post[16].append(("W", [("K", t+1, 0), ("K", t+1, 1)], None))
            if u == 5:
                for i, g in enumerate((4, 6, 8, 10)): ext[g] += Ls([kread(nx, 2*i), kread(nx, 2*i+1)], ("k", t+1))
                post[16].append(("W", [("V", t+1, 0)], [("k", t+1)]))
                if first: post[16].append("s_barrier")
            if u == 6:
                for g, dt in zip((6, 8, 9, 10), (3, 0, 1, 2)): ext[g] += Ls(vread(nx, dt), ("v", t+1, dt))
            if t % 2 == 0 and t > 0 and u == 1: ext[8].append(f"s_sub_u32 s{S_CNT}, s{S_CNT}, 1")
            if pref and t % 2 == pref % 2 and t > 0 and u == 0: ext[12].append("s_load_dword s96, s[94:95], s97")
            if first:
                if u == 0:
                    dgaps, sgaps = (), ()
                    ext[3].append(("W", [("V", 0, 1)], None))
                    for g, dt in zip((4, 5, 6, 7), (4, 5, 6, 7)): ext[g] += Ls(vread(0, dt), ("v", 0, dt))
                    post[7].append(("W", None, [("v", 0, 3)]))
                    q = qreads(2); ext[8] += q[0:2]; ext[9] += q[2:4]; ext[10] += q[4:5]
                    post[11].append(("W", None, [("v", 0, 7)]))
                elif u < 4:
                    q = qreads(u + 2); ext[6] += q[0:2]; ext[7] += q[2:4]; ext[9] += q[4:5]
                    dgaps, sgaps = (5, 8, 10), (4,)
                    if u == 3:
                        q = qreads(6)
                        for i in range(5): ext[11 + i] += q[i:i+1]
                if u == 4: dgaps = (5, 9, 13)
                if u < 5: post[16].append(("W", None, [("q", u + 2)]))
                xs = [(0, 1), (0, 13), (1, 1), (2, 1), (3, 1), (4, 1), (5, 1), (6, 1), (1, 13), (2, 13), (5, 13), (6, 13)][:t0extra]
                dgaps = tuple(sorted(set(dgaps) | set(g for (uu, g) in xs if uu == u)))
                stamp("t")
                if u == 0: a(("W", None, [("q", 1)]))
            emit_step(u, par, first, False, ext, post, dgaps, sgaps)

    a.c("tile 0"); tile(0)
    a(f"s_mov_b32 s{S_CNT}, 3")
    stamp()
    a.raw(".p2align 6")
    a.label("L_loop")
    i0 = len(a.l)
    bodies = []
    for t in range(1, 7):
        b = len(a.l); tile(t); bodies.append(a.l[b:])
    for t in (2, 4):
        for k in (0, 1):
            assert bodies[t + k] == bodies[k], [(x, y) for x, y in zip(bodies[k], bodies[t + k]) if x != y][:4]
    del a.l[i0:]
    a.l += bodies[4] + bodies[5]
    a(f"s_cmp_lg_u32 s{S_CNT}, 0")
    a("s_cbranch_scc1 L_loop")
    i1 = len(a.l)
    assert stream[spos[0]][2] >= 8, "stream not fully issued"
    stamp()

    def blk(u, j): return (u * 3 + j - 1) * 1024
    def pk(u, j):
        o = Ov(u, 2*j); p = Ov(u, 2*j+1) if j < 3 else Ov(u, 3)
        return [f"v_cvt_pk_bf16_f32 v{o+r}, v{(o, p)[r//2] + 2*(r%2)}, v{(o, p)[r//2] + 2*(r%2) + 1}" for r in range(4)]
    def acc(u): return [f"v_accvgpr_read_b32 v{Ov(u,3)+r}, a{A_O7+4*u+r}" for r in range(4)]
    def xw(u, j): return ("L", f"ds_write_b128 v{V_LIN}, {vr(Ov(u, 2*j), 4)} offset:{blk(u, j)}", ("xw", u))
    def lw(u): return ("L", f"ds_write_b32 v{V_LW}, a{A_L+4*u} offset:{LTAB(u)}", ("xw", u))
    def R(u):
        o = [("L", f"ds_read_b128 {ar(A_X(u) + 4*(j-1), 4)}, v{V_XR+j-1} offset:{blk(u, j)}", ("x", u)) for j in range(1, 4)]
        return o + [("L", f"ds_read_b128 {vr(V_CI+4*u,4)}, v{V_LR} offset:{LTAB(u)}", ("x", u))]
    def cmb(u):
        return [f"{M16} {Of(u, b)}, {ar(A_SEL + 2 - 2*b, 4)}, {ar(A_X(u) + 4*j, 4)}, {Of(u, b)}" for b in range(2) for j in range(3)]
    def ladd(u):
        c = V_CI + 4*u
        return [f"v_add_f32 v{c}, v{c}, v{c+1}", f"v_add_f32 v{c+2}, v{c+2}, v{c+3}", f"v_add_f32 v{c}, v{c}, v{c+2}"]
    def lrcp(u):
        c = V_CI + 4*u
        return [f"v_rcp_f32 v{c+1}, v{c}", f"v_add_f32 v{V_CHK}, v{V_CHK}, v{c}" if u else f"v_mov_b32 v{V_CHK}, v{c}"]
    def mul(u, b): return [f"v_mul_f32 v{Ov(u,b)+r}, v{Ov(u,b)+r}, v{V_CI+4*u+1}" for r in range(4)]
    def swp(u): return [f"v_permlane16_swap_b32 v{Ov(u,0)+r}, v{Ov(u,0)+2+r}" for r in range(2)]
    def sto(u): return f"s_movk_i32 s98, {u*4096}"
    def ST(u): return ("V", f"buffer_store_dwordx4 {vr(Ov(u,0),4)}, v{V_ST}, {srd(SRD_O)}, s98 offen{(' '+sflags) if sflags else ''}", "st")
    def seq(mf, fill):
        for i, m in enumerate(mf):
            if m: a(m)
            a(fill.get(i, []))
    a.c("tile 7")
    for u in range(6):
        stamp("e")
        w = u - 1; f = u - 2
        mf = [qk(u + 1, g) for g in range(8)] + (cmb(f) if f >= 0 else [None] * 6) + [pv(u, dt, 1, False) for dt in range(8)] + [sm(u, False)]
        F = {i: [] for i in range(23)}
        if f >= 0:
            r = R(f); F[0] += r[0:2]; F[1] += r[2:4]
        if w >= 0: F[2 if f >= 0 else 3] += [lw(w)]
        for g in range(3): F[g] += [ex(5 + g)]
        F[3] += [cv(2), cv(3)]
        if u == 0:
            F[4] += [("W", "all", "all"), f"v_add_u32 v{V_LW}, s{S_LWO}, v{V_CIR}"]
            F[5] += [f"v_lshl_add_u32 v{V_XR+j}, v{L}, 4, s{S_XR+j}" for j in range(2)]
            F[6] += [f"v_lshl_add_u32 v{V_XR+2}, v{L}, 4, s{S_XR+2}", f"v_subrev_u32 v{V_LR}, {CI_AREA - LT0}, v{V_CIR}"]
            sel = [f"v_accvgpr_write_b32 a{A_SEL+r}, {x}" for r, x in enumerate(("0", "0", f"v{V_X0}", f"v{V_X1}", "0", "0"))]
            F[7] += sel[0:2]; F[14] += sel[2:4]; F[15] += sel[4:6]
        if f >= 0:
            F[4] += pk(w, 1); F[5] += [xw(w, 1)]; F[6] += pk(w, 2); F[7] += acc(w) + [("W", None, [("x", f)])]
            F[8] += [xw(w, 2)]; F[9] += pk(w, 3); F[10] += ladd(f); F[11] += lrcp(f); F[12] += [xw(w, 3)]
            F[13] += [ex(0)]; F[14] += [ex(1)]; F[15] += [ex(2)]; F[16] += [ex(3)]
            F[17] += mul(f, 0); F[18] += mul(f, 1); F[19] += pk(f, 0)
            F[20] += [("W", None, [("xw", w)]), "s_barrier", ex(4)]
            F[21] += swp(f) + [sto(f)]
            F[22] += [ST(f), cv(0), cv(1)]
        else:
            if w >= 0:
                F[4] += pk(w, 1); F[5] += [xw(w, 1)]; F[6] += pk(w, 2); F[7] += acc(w)
                F[14] += [xw(w, 2)]; F[15] += pk(w, 3); F[17] += [xw(w, 3)]
            for i, g in enumerate((17, 18, 19, 20, 21) if w < 0 else (16, 18, 19, 20, 21)): F[g] += [ex(i)]
            F[22] += [cv(0), cv(1)]
            if w >= 0: F[22] += [("W", None, [("xw", w)]), "s_barrier"]
        seq(mf, F)
    stamp("e")
    a(R(4))
    a([ex(5), ex(6), ex(7)] + pk(5, 1)[:1] + [cv(2), cv(3)] + pk(5, 1)[1:])
    mf = [pv(6, dt, 1, False) for dt in range(2, 8)] + [sm(6, False), pv(6, 0, 1, False), pv(6, 1, 1, False)] + cmb(4)
    F = {0: [xw(5, 1)], 1: [lw(5)] + pk(5, 2), 2: acc(5), 3: [xw(5, 2)], 4: pk(5, 3), 5: [("W", None, [("x", 4)])] + ladd(4), 6: [xw(5, 3)], 7: pk(6, 1), 8: lrcp(4),
         9: [xw(6, 1)], 10: pk(6, 2), 11: acc(6), 12: [xw(6, 2)], 13: pk(6, 3), 14: [lw(6), xw(6, 3)]}
    seq(mf, F)
    a(mul(4, 0))
    a(("W", None, [("xw", 6)])); a("s_barrier")
    stamp()
    a(R(5)); a(R(6))
    a(mul(4, 1)); a(pk(4, 0)); a(sto(4)); a("s_nop 0"); a(swp(4)); a("s_nop 0"); a(ST(4))
    a(("W", None, [("x", 5)]))
    F = {0: ladd(5), 1: lrcp(5), 2: [("W", None, [("x", 6)])] + ladd(6), 3: lrcp(6), 4: [f"s_mov_b32 s99, {hex(f2u(THRESH))}", f"s_cmp_lg_u32 s{S_FB}, 0"],
         5: [f"v_cmp_ngt_f32 vcc, s99, v{V_CHK}", sto(5)], 6: mul(5, 0)[:2], 7: mul(5, 0)[2:], 8: ["s_nop 1"], 9: mul(5, 1), 10: pk(5, 0), 11: mul(6, 0)[:2] + swp(5)}
    seq(cmb(5) + cmb(6), F)
    a("s_nop 0"); a(ST(5)); a(mul(6, 0)[2:]); a(sto(6)); a(mul(6, 1)); a(pk(6, 0)); a("s_nop 1"); a(swp(6)); a("s_nop 0"); a(ST(6))
    a("s_cbranch_scc1 L_ok")
    a("s_cbranch_vccnz L_fallback")
    a.label("L_ok")
    a.free = True
    if diag and spin:
        i, j, mult = spin
        a("s_waitcnt vmcnt(0)")
        a(f"s_lshl_b32 s84, s2, 2"); a(f"s_add_u32 s84, s84, s{S_W}"); a("s_cmp_lg_u32 s84, 401"); a("s_cbranch_scc1 L_end")
        a("s_memrealtime s[80:81]"); a("s_memtime s[86:87]"); a("s_waitcnt lgkmcnt(0)")
        if mult > 0:
            sj = 80 if j == 8 else S_STAMP + 2*j
            a(f"s_sub_u32 s84, s{sj}, s{S_STAMP+2*i}"); a(f"s_mul_i32 s84, s84, {mult}")
        else:
            sj = 86 if j == 8 else S_STAMP + 16 + 2*j
            a(f"s_sub_u32 s84, s{sj}, s{S_STAMP+16+2*i}"); a(f"s_lshr_b32 s84, s84, {-mult}")
        a("s_min_u32 s84, s84, 20000")
        a.label("L_spin")
        a("s_memrealtime s[82:83]"); a("s_waitcnt lgkmcnt(0)")
        a("s_sub_u32 s85, s82, s80"); a("s_cmp_lt_u32 s85, s84"); a("s_cbranch_scc1 L_spin")
    elif diag:
        a("s_memrealtime s[84:85]"); a("s_memtime s[86:87]")
        a("s_waitcnt vmcnt(0)")
        a("s_memrealtime s[80:81]"); a("s_memtime s[82:83]")
        a("s_branch L_dump")
    a.label("L_end")
    a("s_endpgm")
    iend = len(a.l)
    if warm > 1:
        a.raw(f".fill ({4 * 4096 - head} - (. - {NAME}_kernel)) / 4, 4, 0xbf810000")
        a.label("L_pg3")
        a("s_branch L_back")
    a.label("L_fallback")
    a("s_waitcnt vmcnt(0) lgkmcnt(0)")
    a("s_barrier")
    a(f"s_mov_b32 s{S_FB}, 1")
    a("s_branch L_start")
    a.label("L_pass1")
    for u in range(7):
        for x in qreads(u)[1:]: a(x[1])
        a("s_waitcnt lgkmcnt(0)")
    a("s_waitcnt vmcnt(0)")
    a("s_barrier")
    a("s_mov_b32 s42, 0")
    MX = V_OWN
    for u in range(7): a(f"v_mov_b32 v{MX+u}, 0xff800000")
    a.label("L_fb1")
    a(m0(0)); a(f"s_add_u32 s{S_SO}, s42, 128")
    for p in range(4): a(dma(SRD_K, 42, p, "f")[1])
    a(m0(4096)); a("s_nop 0")
    for p in range(4): a(dma(SRD_K, S_SO, p, "f")[1])
    a("s_waitcnt vmcnt(0)")
    for j in range(8): a(kread(0, j))
    a("s_waitcnt lgkmcnt(0)")
    for u in range(7):
        for j in range(8): a(qk(u, j, zero=True))
        a("s_nop 7")
        for r in range(0, 8, 2): a(f"v_max3_f32 v{MX+u}, v{MX+u}, v{V_S+r}, v{V_S+r+1}")
    a("s_add_u32 s42, s42, 0x2000")
    a("s_cmp_lt_u32 s42, 0x10000")
    a("s_cbranch_scc1 L_fb1")
    for sw in ("v_permlane16_swap_b32", "v_permlane32_swap_b32"):
        for u in range(7): a(f"v_mov_b32 v{MX+8+u}, v{MX+u}")
        a("s_nop 1")
        for u in range(7): a(f"{sw} v{MX+u}, v{MX+8+u}")
        a("s_nop 1")
        for u in range(7): a(f"v_max_f32 v{MX+u}, v{MX+u}, v{MX+8+u}")
    a(f"v_add_u32 v{V_P}, s{S_LWO}, v{V_CIR}")
    for u in range(7): a(f"ds_write_b32 v{V_P}, v{MX+u} offset:{LTAB(u)}")
    a("s_waitcnt lgkmcnt(0)")
    a("s_barrier")
    a(f"s_and_b32 s42, s{S_W}, 1"); a("s_lshl_b32 s42, s42, 9")
    a(f"s_lshr_b32 s98, s{S_W}, 1"); a(f"s_mul_i32 s98, s98, {REG}"); a("s_add_u32 s42, s42, s98")
    a(f"s_sub_u32 s42, s42, {CI_AREA - LT0}")
    a(f"v_add_u32 v{V_P}, s42, v{V_CIR}")
    for h in range(2): a(f"ds_read_b128 {vr(V_S+4*h,4)}, v{V_P} offset:{256*h}")
    a("s_waitcnt lgkmcnt(0)")
    for h in range(2):
        a(f"v_max3_f32 v{V_KEEP+h}, v{V_S+4*h}, v{V_S+4*h+1}, v{V_S+4*h+2}")
        a(f"v_max_f32 v{V_KEEP+h}, v{V_KEEP+h}, v{V_S+4*h+3}")
    a(f"s_mov_b32 s{S_FB}, 2")
    a(f"s_mov_b64 s[{S_FBM}:{S_FBM+1}], -1")
    a("s_barrier")
    a("s_branch L_start")
    if diag and not spin:
        a.label("L_dump")
        a("s_mov_b32 s36, s46"); a("s_mov_b32 s37, s47"); a("s_mov_b32 s38, 0x100000"); a("s_mov_b32 s39, 0x20000")
        a("s_waitcnt lgkmcnt(0)")
        a("s_lshl_b32 s40, s2, 2"); a(f"s_add_u32 s40, s40, s{S_W}"); a("s_lshl_b32 s40, s40, 8")
        a(f"v_mov_b32 v4, s40")
        a(f"v_cmp_eq_u32 vcc, 0, v{L}")
        a("s_and_saveexec_b64 s[42:43], vcc")
        slots = [(S_STAMP+2*i, i) for i in range(8)] + [(84, 8), (80, 9)] + [(S_STAMP+16+2*i, 16+i) for i in range(8)] + [(86, 24), (82, 25)]
        for s, i in slots:
            a(f"v_mov_b32 v6, s{s}"); a(f"v_mov_b32 v7, s{s+1}"); a(f"buffer_store_dwordx2 v[6:7], v4, s[36:39], 0 offen offset:{8*i}"); a("s_nop 1")
        a("s_endpgm")
    lin = a.l[:i1] + a.l[i0:i1] + a.l[i1:iend]
    bad = hz.check(lin) + hz.check(a.l[iend:])
    for b in bad: print("HAZARD", b, file=sys.stderr)
    a.raw('.section .rodata,"a"'); a.raw(".p2align 6"); a.raw(f".amdhsa_kernel {NAME}_kernel")
    a.raw("  .amdhsa_next_free_vgpr 512"); a.raw("  .amdhsa_next_free_sgpr 102"); a.raw("  .amdhsa_accum_offset 256")
    a.raw("  .amdhsa_group_segment_fixed_size 0"); a.raw("  .amdhsa_kernarg_size 48"); a.raw("  .amdhsa_user_sgpr_count 2")
    a.raw("  .amdhsa_user_sgpr_kernarg_segment_ptr 1"); a.raw("  .amdhsa_system_sgpr_workgroup_id_x 1"); a.raw(".end_amdhsa_kernel")
    if warm: a.l = add_stubs(a.l, head)
    return "\n".join(a.l) + "\n"

if __name__ == "__main__":
    ap = argparse.ArgumentParser()
    ap.add_argument("-o", default=f"kG.s")
    ap.add_argument("--diag", action="store_true")
    ap.add_argument("--spin", default=None); ap.add_argument("--flags", default=""); ap.add_argument("--sflags", default="sc1")
    ap.add_argument("--n0", type=int, default=8); ap.add_argument("--mix", type=int, default=1); ap.add_argument("--vsch", default="2,2,2,2,0")
    ap.add_argument("--t0extra", type=int, default=4); ap.add_argument("--pace", type=int, default=2); ap.add_argument("--fine", default="c")
    ap.add_argument("--cgap", type=int, default=14); ap.add_argument("--pref", type=int, default=2); ap.add_argument("--align", type=int, default=12); ap.add_argument("--head", type=int, default=3328); ap.add_argument("--warm", type=int, default=0); ap.add_argument("--rot", default="0,0"); ap.add_argument("--touch", type=int, default=0); ap.add_argument("--pre0", type=int, default=2); ap.add_argument("--wg", default="4,5,6,7,8,9,10")
    args = ap.parse_args()
    tup = lambda s: tuple(map(int, s.split(',')))
    open(args.o, "w").write(gen(diag=args.diag, flags=args.flags, sflags=args.sflags, n0=args.n0, mix=args.mix, vsch=tup(args.vsch), t0extra=args.t0extra,
                                pace=args.pace, fine=args.fine, cgap=args.cgap, pref=args.pref, align=args.align, head=args.head, warm=args.warm, rot=tup(args.rot), touch=args.touch, pre0=args.pre0, wg=tup(args.wg), spin=tup(args.spin) if args.spin else None))
```

```python
import sys, struct, argparse
import hz
NAME = "standalone__gqa_softmax__near_ridge"
def f2u(x): return struct.unpack("<I", struct.pack("<f", x))[0]
def vr(b, n=1): return f"v{b}" if n == 1 else f"v[{b}:{b+n-1}]"
def ar(b, n=1): return f"a{b}" if n == 1 else f"a[{b}:{b+n-1}]"
def srd(b): return f"s[{b}:{b+3}]"

V_LANE, V_LIN, V_KEEP, V_VOFF, V_AK, V_AV = 0, 1, 2, 4, 8, 10
V_QA0, V_X0, V_QA1, V_X1, V_ST, V_CIR = 14, 15, 16, 17, 18, 19
V_S, V_P, V_CI, V_OWN, V_OTH = 20, 28, 32, 60, 116
A_O7, A_L, A_ONE, A_K, A_V, A_Q = 0, 28, 56, 60, 92, 144
V_XR, V_LW, V_LR, V_CHK = 4, 7, 8, 9
A_SEL = A_V + 12
def A_X(u): return A_Q + 16 * (u % 2)
S_W = 3
SRD_Q, SRD_K, SRD_V, SRD_O = 12, 16, 20, 24
S_MK0, S_MK1, S_MV0, S_MV1 = 28, 29, 30, 31
S_Y, S_FB, S_WB, S_CNT = 32, 33, 34, 35
S_SO = 44
S_STAMP = 48
S_FBM = 88
S_XR = 90
S_LWO = 93
S_Y0 = 100
S_K0 = 101
REG = 40960
KB = lambda par: par * 8192
VB = lambda par: 16384 + par * 8192
XO = 32768
CI_AREA = 3 * REG + XO + 6144
LT0 = 39936
def LTAB(u): return u * 256 if u < 4 else REG + (u - 4) * 256
SCALE = (128 ** -0.5) * 1.4426950408889634
THRESH = 2.0 ** 40
M16 = "v_mfma_f32_16x16x32_bf16"

def Qf(u, c): return ar(A_Q + 16 * u + 4 * c, 4)
def Kf(j): return ar(A_K + 4 * j, 4)
def Vbase(dt, par): return A_V + 4 * dt if dt < 3 else A_V + 12 + 20 * par + 4 * (dt - 3)
def Ov(u, dt): return V_OWN + 8 * u + 4 * dt if dt < 2 else V_OTH + 20 * u + 4 * (dt - 2)
def Of(u, dt): return ar(A_O7 + 4 * u, 4) if dt == 7 else vr(Ov(u, dt), 4)
def qk(u, j, zero=False):
    kt, c = j // 4, j % 4
    S = vr(V_S + 4 * kt, 4)
    cc = S if c else ("0" if zero else vr(V_CI + 4 * u, 4))
    return f"{M16} {S}, {Kf(j)}, {Qf(u, c)}, {cc}"
def pv(u, dt, par, first):
    o = Of(u, dt)
    return f"{M16} {o}, {ar(Vbase(dt, par), 4)}, {vr(V_P, 4)}, {'0' if first else o}"
def sm(u, first):
    o = ar(A_L + 4 * u, 4)
    return f"{M16} {o}, {ar(A_ONE, 4)}, {vr(V_P, 4)}, {'0' if first else o}"
def ex(e): return f"v_exp_f32 v{V_S+e}, v{V_S+e}"
def cv(i): return f"v_cvt_pk_bf16_f32 v{V_P+i}, v{V_S+2*i}, v{V_S+2*i+1}"
def kread(par, j, base=None, dst=None):
    kt, c = j // 4, j % 4
    off = (KB(par) if base is None else base) + (c >> 1) * 4096 + kt * 2048
    return f"ds_read_b128 {dst or Kf(j)}, v{V_AK + (c & 1)} offset:{off}"
def vread(par, dt):
    b = Vbase(dt, par)
    return [f"ds_read_b64_tr_b16 {ar(b + 2*h, 2)}, v{V_AV + (dt & 3)} offset:{VB(par) + (dt >> 2) * 4096 + h * 2048}" for h in range(2)]

class Gen:
    def __init__(self):
        self.l = []; self.vq = []; self.lq = []; self.ldone = 0; self.free = False
    def __call__(self, s):
        if isinstance(s, list):
            for x in s: self(x)
        elif isinstance(s, tuple):
            if s[0] == "L": self.l.append("    " + s[1]); self.lq.append(s[2])
            elif s[0] == "V":
                tg = s[2]
                if isinstance(tg, tuple) and tg[0] in "KV" and tg[1] >= 2:
                    kv, x, hf = tg
                    need = ([("k", x-2)] if x > 2 else ["k0a", "k0b"]) if kv == "K" else [("v", x-2, dt) for dt in range(4*hf, 4*hf+4)]
                    for n in need:
                        idx = [i for i, t in enumerate(self.lq) if t == n]
                        assert idx and max(idx) < self.ldone, ("LDS WAR", tg, n)
                self.l.append("    " + s[1]); self.vq.append(s[2])
            elif s[0] == "W":
                parts = []
                for q, tags, nm, mx in ((self.vq, s[1], "vmcnt", 63), (self.lq, s[2], "lgkmcnt", 15)):
                    if tags is None: continue
                    if tags == "all": n = 0
                    else:
                        idx = [i for i, t in enumerate(q) if t in tags]
                        assert idx, ("no such tag", tags)
                        n = len(q) - 1 - max(idx)
                    if nm == "lgkmcnt": self.ldone = max(self.ldone, len(q) - min(n, mx))
                    parts.append(f"{nm}({min(n, mx)})")
                self.l.append("    s_waitcnt " + " ".join(parts))
        else:
            assert not (s.startswith("ds_") or s.startswith("buffer_")) or self.free, s
            self.l.append("    " + s)
    def label(self, s): self.l.append(s + ":")
    def c(self, s): self.l.append("    ; " + s)
    def raw(self, s): self.l.append(s)

def sizes(lines):
    import subprocess, tempfile, os, re
    with tempfile.TemporaryDirectory() as d:
        src = [l for l in lines]
        src.insert(src.index("L_end:"), "L_pg1:\nL_pg2:")
        open(d + "/t.s", "w").write("\n".join(src) + "\n")
        subprocess.run(["clang", "-x", "assembler", "-target", "amdgcn-amd-amdhsa", "-mcpu=gfx950", "-c", d + "/t.s", "-o", d + "/t.o"], check=True)
        out = subprocess.run(["llvm-objdump", "-d", "--mcpu=gfx950", d + "/t.o"], capture_output=True, text=True).stdout
    return [(int(m.group(2), 16), m.group(1)) for m in re.finditer(r"^\t(\S+).*// ([0-9A-F]+):", out, re.M)]
def add_stubs(lines, head):
    lines = list(lines)
    for pg in (1, 2):
        tmp = [l for l in lines if l not in ("L_pg1:", "L_pg2:")]
        ins = [x for x in sizes(tmp) if x[0] >= head]
        mf = [off for off, mn in ins if mn.startswith("v_mfma")]
        target = (pg + (1 if head else 0)) * 4096
        k = next(i for i, off in enumerate(mf) if off >= target - 8)
        assert mf[k] + 8 < target + 60, (mf[k], target)
        idx = [i for i, l in enumerate(lines) if l.strip().startswith("v_mfma")][k]
        lines[idx + 1:idx + 1] = [f"L_pg{pg}:", "    s_cbranch_execz L_back"]
    return lines

def gen(diag=False, flags="", sflags="sc1", spin=None, n0=8, mix=1, vsch=(2, 2, 2, 2, 0), t0extra=4, pace=2, fine='c', cgap=14, pref=2, align=12, head=3328, warm=0, rot=(0, 0), touch=0, pre0=2, wg=(4, 5, 6, 7, 8, 9, 10)):
    a = Gen()
    fl = (" " + flags) if flags else ""
    def dma(s, soff, p, tag): return ("V", f"buffer_load_dwordx4 v{V_VOFF+p}, {srd(s)}, s{soff} offen offset:{p*1024}{fl} lds", tag)
    def m0(off): return f"s_add_u32 m0, s{S_WB}, {off}"
    def Ls(texts, tag): return [("L", t, tag) for t in texts]
    nst = [0]
    def stamp(kind="c"):
        if diag and kind in fine and nst[0] < 8:
            a(f"s_memrealtime s[{S_STAMP+2*nst[0]}:{S_STAMP+2*nst[0]+1}]")
            a(f"s_memtime s[{S_STAMP+16+2*nst[0]}:{S_STAMP+16+2*nst[0]+1}]")
            nst[0] += 1
    GROUPS = (("V", 1), ("K", 0), ("K", 1), ("V", 0))
    stream = []
    for x in range(1, 10):
        for gi, (kv, hf) in enumerate(GROUPS):
            s_, buf = (SRD_K, KB(x & 1)) if kv == "K" else (SRD_V, VB(x & 1))
            for p in range(4):
                pre = []; so = S_SO
                if p == 0:
                    if gi == 0: pre += [("Y", x)]
                    pre += [m0(buf + hf * 4096), f"s_xor_b32 s{S_SO}, s{S_Y}, s{(S_MK0 if kv == 'K' else S_MV0) + hf}"]
                stream.append((pre, dma(s_, so, p, (kv, x, hf)), x))
    spos = [0]
    def expand(pre):
        out = []
        for y in pre:
            if isinstance(y, tuple) and y[0] == "Y":
                out += [f"s_add_u32 s{S_Y}, s{S_Y}, 0x2000", f"s_and_b32 s{S_Y}, s{S_Y}, 0xffff"]
                if y[1] % 2 == 0 and y[1] >= 4:
                    out += [f"s_cmp_lg_u32 s{S_Y}, s{S_Y0}", f"s_cselect_b32 s{SRD_K+2}, 0x10000, 0", f"s_mov_b32 s{SRD_V+2}, s{SRD_K+2}"]
            elif isinstance(y, tuple): out += ["s_nop 0"]
            else: out.append(y)
        return out
    def nextpre():
        pre, d, x = stream[spos[0]]
        stream[spos[0]] = ([], d, x)
        return expand(pre)
    def nextdma():
        pre, d, x = stream[spos[0]]
        spos[0] += 1
        return expand(pre) + [d]

    a.raw(open("cdna_kernels/%s.s.ref" % NAME).read().split("; Override launch")[0].rstrip())
    a.raw("; @launch grid=(256,1,1) block=(256,1,1) lds=163840")
    a.raw('.amdgcn_target "amdgcn-amd-amdhsa--gfx950"')
    a.raw(".text"); a.raw(f".globl {NAME}_kernel"); a.raw(f".p2align {align}"); a.raw(f".fill {head // 4}, 4, 0xbf810000"); a.raw(".p2align 8"); a.raw(f".type {NAME}_kernel,@function")
    a.label(f"{NAME}_kernel")
    a("s_load_dwordx8 s[4:11], s[0:1], 0")
    a("s_cmp_ge_u32 s2, 256")
    a("s_cbranch_scc1 L_end")
    if diag:
        a("s_load_dwordx2 s[46:47], s[0:1], 40")
        stamp(fine[0])
    L = V_LANE
    T = V_S
    a(f"v_lshrrev_b32 v{T}, 6, v0")
    a(f"v_and_b32 v{L}, 63, v0")
    a(f"v_readfirstlane_b32 s{S_W}, v{T}")
    a("s_and_b32 s36, s2, 7")
    a("s_lshr_b32 s37, s2, 3")
    a("s_lshl_b32 s36, s36, 5")
    a("s_add_u32 s36, s36, s37")
    a("s_mul_i32 s38, s36, 28672")
    a(f"s_mul_i32 s{S_WB}, s{S_W}, {REG}")
    a(f"s_movk_i32 s{SRD_Q+2}, 28672")
    a(f"s_mov_b32 s{SRD_Q+3}, 0x20000")
    a(f"s_lshl_b32 s40, s{S_W}, 13")
    a(f"s_mov_b32 s{S_FB}, 0")
    a(f"s_mov_b64 s[{S_FBM}:{S_FBM+1}], 0")
    a.label("L_start")
    a(f"v_lshrrev_b32 v{T}, 3, v{L}")
    a(f"v_and_b32 v{T+1}, 6, v{T}")
    a(f"v_xor_b32 v{T+1}, v{T+1}, v{L}")
    a(f"v_and_b32 v{T+1}, 7, v{T+1}")
    a(f"v_lshlrev_b32 v{T+1}, 4, v{T+1}")
    a(f"v_lshl_add_u32 v{V_VOFF}, v{T}, 8, v{T+1}")
    a(f"v_xor_b32 v{V_VOFF+1}, 16, v{V_VOFF}")
    a(f"v_add_u32 v{V_VOFF+1}, 0x400, v{V_VOFF+1}")
    a(m0(XO))
    a("s_add_u32 s41, s40, 128")
    a("s_lshr_b32 s39, s36, 2")
    a(f"s_and_b32 s{S_Y0}, s39, {rot[0]}")
    a(f"s_lshl_b32 s{S_Y0}, s{S_Y0}, 13")
    a(f"s_and_b32 s{S_MK0}, s36, {rot[1]}")
    a(f"s_lshl_b32 s{S_MK0}, s{S_MK0}, 13")
    a("s_lshl_b32 s39, s39, 18")
    a(f"s_lshl_b32 s42, s{S_W}, 16")
    a("s_add_u32 s39, s39, s42")
    a(f"s_mov_b32 s{SRD_K+2}, 0x10000")
    a(f"s_mov_b32 s{SRD_K+3}, 0x20000")
    a(f"s_mov_b32 s{S_Y}, s{S_Y0}")
    a(f"s_xor_b32 s{S_K0}, s{S_Y0}, s{S_MK0}")
    a(f"s_or_b32 s43, s{S_K0}, 128")
    a("s_getpc_b64 s[94:95]")
    a.label("L_pc")
    a(f"s_lshl_b32 s97, s{S_W}, 5")
    a("s_add_u32 s97, s97, s37")
    a("s_lshl_b32 s97, s97, 6")
    a(f"s_add_u32 s94, s94, {4096 - head}-(L_pc-{NAME}_kernel)")
    a("s_addc_u32 s95, s95, 0")
    if pre0 == 2:
        a(f"v_mov_b32 v{T+2}, s97")
        a(("V", f"global_load_dword v{V_CI}, v{T+2}, s[94:95]", "pf"))
    stamp("k")
    a("s_waitcnt lgkmcnt(0)")
    stamp("k")
    if pre0 == 1: a("s_load_dword s96, s[94:95], s97")
    def base(b, src, off): return [f"s_add_u32 s{b}, s{src}, s{off}", f"s_addc_u32 s{b+1}, s{src+1}, 0"]
    a(base(SRD_Q, 4, 38))
    for p in (0, 1): a(dma(SRD_Q, 40, p, "Qa"))
    a(m0(XO + 4096)); a(base(SRD_K, 6, 39))
    for p in (0, 1): a(dma(SRD_Q, 41, p, "Qa"))
    a(m0(KB(0)))
    a(f"s_cmp_eq_u32 s{S_W}, 3")
    for p in (0, 1): a(dma(SRD_K, S_K0, p, "K0a"))
    a(f"s_cselect_b32 s45, 0x4000, 0")
    a(m0(KB(0) + 4096))
    a(f"s_add_u32 s45, s45, s{S_WB}")
    for p in (0, 1): a(dma(SRD_K, 43, p, "K0a"))
    a(f"v_add_u32 v{V_VOFF+2}, 0x800, v{V_VOFF}")
    a(f"v_add_u32 v{V_VOFF+3}, 0x800, v{V_VOFF+1}")
    a(f"s_add_u32 m0, s45, {XO + 4096}"); a("s_nop 0")
    for p in (2, 3): a(dma(SRD_Q, 41, p, "Qb"))
    a(f"s_add_u32 m0, s45, {XO}"); a("s_nop 0")
    for p in (2, 3): a(dma(SRD_Q, 40, p, "Qb"))
    a(base(SRD_V, 8, 39)); a(base(SRD_O, 10, 38))
    a(f"s_mov_b32 s{SRD_V+2}, 0x10000"); a(f"s_mov_b32 s{SRD_V+3}, 0x20000")
    a(f"s_movk_i32 s{SRD_O+2}, 28672"); a(f"s_mov_b32 s{SRD_O+3}, 0x20000")
    if warm:
        a("s_mov_b64 exec, 0")
        for w in (1, 2, 3)[:warm + 1]:
            a(f"s_cmp_eq_u32 s{S_W}, {w}")
            a(f"s_cbranch_scc1 L_pg{w}")
        a.label("L_back")
        a("s_mov_b64 exec, -1")
    a(f"s_lshr_b32 s{S_MV0}, s{S_W}, 1"); a(f"s_lshl_b32 s{S_MV0}, s{S_MV0}, 7")
    a(f"s_or_b32 s{S_MV0}, s{S_MV0}, s{S_MK0}")
    a(f"s_xor_b32 s{S_MV1}, s{S_MV0}, 128")
    a(f"s_or_b32 s{S_MK1}, s{S_MK0}, 128")
    a(f"v_and_b32 v{T}, 15, v{L}")
    a(f"v_and_b32 v{T+1}, 6, v{T}")
    a(f"v_lshrrev_b32 v{T+2}, 3, v{T}")
    a(f"v_or_b32 v{T+1}, v{T+1}, v{T+2}")
    a(f"v_lshrrev_b32 v{T+2}, 4, v{L}")
    a(f"v_lshlrev_b32 v{T+2}, 1, v{T+2}")
    a(f"v_xor_b32 v{T+1}, v{T+1}, v{T+2}")
    a(f"v_lshlrev_b32 v{T+1}, 4, v{T+1}")
    a(f"v_lshl_add_u32 v{T+1}, v{T}, 7, v{T+1}")
    a(f"v_add_u32 v{V_AK}, s{S_WB}, v{T+1}")
    a(f"v_xor_b32 v{V_AK+1}, 16, v{V_AK}")
    a(f"v_lshl_add_u32 v{V_LIN}, v{L}, 4, s{S_WB}")
    CIW, QWB, SC = V_CI + 24, V_CI + 25, V_CI + 26
    a(f"v_mov_b32 v{SC}, {hex(f2u(SCALE))}")
    a(f"v_lshl_add_u32 v{QWB}, v{L}, 4, s45")
    a(f"s_lshl_b32 s42, s{S_W}, 9")
    a(f"v_lshlrev_b32 v{T+3}, 4, v{T}")
    a(f"v_add_u32 v{V_CIR}, {CI_AREA}, v{T+3}")
    a(f"v_add_u32 v{CIW}, s42, v{V_CIR}")
    a(f"v_lshlrev_b32 v{T+3}, 4, v{L}")
    a(f"v_add_u32 v{V_QA0}, {XO}, v{T+3}")
    a(f"v_add_u32 v{V_QA1}, {2*REG + XO}, v{T+3}")
    for j in range(1, 4):
        a(f"s_xor_b32 s42, s{S_W}, {j}")
        a(f"s_mul_i32 s{S_XR+j-1}, s42, {REG}")
    a(f"s_lshl_b32 s{S_LWO}, s{S_W}, 2")
    a(f"s_sub_u32 s{S_LWO}, s{S_LWO}, {CI_AREA - LT0}")
    a(f"v_lshrrev_b32 v{T+1}, 4, v{L}")
    a(f"v_lshrrev_b32 v{T+2}, 2, v{T}")
    a(f"v_cmp_eq_u32 vcc, v{T+1}, v{T+2}")
    a(f"v_and_b32 v{T+2}, 1, v{L}")
    a(f"v_lshlrev_b32 v{T+2}, 4, v{T+2}")
    a(f"v_mov_b32 v{T+3}, 0x3f80")
    a(f"v_lshlrev_b32 v{T+3}, v{T+2}, v{T+3}")
    a(f"v_cndmask_b32 v{T+3}, 0, v{T+3}, vcc")
    a(f"v_and_b32 v{T+2}, 2, v{L}")
    a(f"v_cmp_eq_u32 vcc, 0, v{T+2}")
    a(f"v_bfe_u32 v{T+4}, v{L}, 4, 1")
    a(f"v_lshrrev_b32 v{T+5}, 5, v{L}")
    a(f"v_cndmask_b32 v{V_X0}, 0, v{T+3}, vcc")
    a(f"v_sub_u32 v{V_X1}, v{T+3}, v{V_X0}")
    a(f"v_lshl_add_u32 v{T+4}, v{T+4}, 1, v{T+5}")
    a(f"v_lshlrev_b32 v{T+4}, 4, v{T+4}")
    a(f"v_lshl_add_u32 v{T+4}, v{T}, 8, v{T+4}")
    a(f"s_lshl_b32 s42, s{S_W}, 6")
    a(f"v_add_u32 v{V_ST}, s42, v{T+4}")
    a(f"v_and_b32 v{T+2}, 3, v{L}")
    a(f"v_cmp_eq_u32 vcc, 0, v{T+2}")
    a(f"v_lshrrev_b32 v{T}, 2, v{L}")
    a(f"v_and_b32 v{T+1}, 6, v{T}")
    a(f"v_lshrrev_b32 v{T+2}, 3, v{T}")
    a(f"v_or_b32 v{T+1}, v{T+1}, v{T+2}")
    a(f"v_bfe_u32 v{T+2}, v{L}, 1, 1")
    a(f"v_xor_b32 v{T+1}, v{T+1}, v{T+2}")
    a(f"s_and_b32 s42, s{S_W}, 1")
    a("s_lshl_b32 s42, s42, 2")
    a(f"v_xor_b32 v{T+1}, s42, v{T+1}")
    a(f"v_lshlrev_b32 v{T+1}, 4, v{T+1}")
    a(f"v_lshl_add_u32 v{T+1}, v{T}, 7, v{T+1}")
    a(f"v_and_b32 v{T+2}, 1, v{L}")
    a(f"v_lshl_add_u32 v{T+1}, v{T+2}, 3, v{T+1}")
    a(f"v_add_u32 v{V_AV}, s{S_WB}, v{T+1}")
    for k in range(1, 4): a(f"v_xor_b32 v{V_AV+k}, {32*k}, v{V_AV}")
    a(f"v_mov_b32 v{T+2}, 0x3f803f80")
    a(f"v_cndmask_b32 v{T+2}, 0, v{T+2}, vcc")
    for r in range(4): a(f"v_accvgpr_write_b32 a{A_ONE+r}, v{T+2}")

    if pref:
        a(f"s_and_b32 s97, s97, 0xfff")
        a(f"s_add_u32 s97, s97, 0x2000")
    if touch: a(("V", f"buffer_load_dword v{V_CI}, off, {srd(SRD_O)}, 0", "touch"))
    a(m0(KB(0) + 4096)); a("s_nop 0")
    for p in (2, 3): a(dma(SRD_K, 43, p, "K0b"))
    a(m0(KB(0))); a("s_nop 0")
    for p in (2, 3): a(dma(SRD_K, S_K0, p, "K0b"))

    RAW, QP, TMP = V_OTH, V_OWN, V_OTH + 32
    left = [n0]
    def more(n=1):
        for _ in range(n):
            if left[0] > 0: a(nextdma()); left[0] -= 1
    v0 = [0]
    def v0dma(n=1):
        for _ in range(n):
            j = v0[0]
            if j >= 8: return
            if j % 4 == 0: a(m0(VB(0) + (j // 4) * 4096)); a(f"s_xor_b32 s{S_SO}, s{S_Y}, s{S_MV0 + j // 4}")
            a(dma(SRD_V, S_SO, j % 4, ("V", 0, j // 4)))
            v0[0] += 1
    def qoff(h, c): return XO + (c >> 1) * 4096 + h * 2048 + (c & 1) * 1024
    def qw(h, c): return ("L", f"ds_write_b128 v{V_LIN if h == 0 else QWB}, {vr(QP + 16*h + 4*c, 4)} offset:{qoff(h, c)}", "qw")
    def scale_ops(j):
        o = []
        for r in range(4):
            o += [f"v_lshlrev_b32 v{TMP+2*r}, 16, v{RAW+4*j+r}", f"v_and_b32 v{TMP+2*r+1}, 0xffff0000, v{RAW+4*j+r}"]
        o += [f"v_pk_mul_f32 {vr(TMP+2*r,2)}, {vr(TMP+2*r,2)}, {vr(SC,2)} op_sel_hi:[1,0]" for r in range(4)]
        o += [f"v_cvt_pk_bf16_f32 v{QP+4*j+r}, v{TMP+2*r}, v{TMP+2*r+1}" for r in range(4)]
        return o
    def red_ops(h):
        S = V_S + 4*h; M = V_P + 2*h
        o = [f"v_max3_f32 v{M}, v{S}, v{S+1}, v{S+2}", f"v_max_f32 v{M}, v{M}, v{S+3}"]
        for sw in ("v_permlane16_swap_b32", "v_permlane32_swap_b32"):
            o += [f"v_mov_b32 v{M+1}, v{M}", f"{sw} v{M}, v{M+1}", f"v_max_f32 v{M}, v{M}, v{M+1}"]
        o += [f"v_mul_f32 v{M}, v{M}, v{SC}", f"v_cndmask_b32 v{M}, v{M}, v{V_KEEP+h}, s[{S_FBM}:{S_FBM+1}]"]
        o += [f"v_sub_f32 v{S+r}, 0, v{M}" for r in range(4)]
        return o
    def part(h, d0, d1):
        for c in range(4): a(("L", kread(0, 4*h + c, base=XO, dst=vr(RAW + 16*h + 4*c, 4)), ("raw", h, c)))
        if h == 0:
            a(("W", ["K0a"], None))
            for jj in range(4): a(("L", kread(0, jj), "k0a"))
        v0dma(d0)
        a(("W", None, [("raw", h, 0)]))
        a(scale_ops(4*h))
        a(("W", None, [("raw", h, 3), "k0a"]))
        S = vr(V_S + 4*h, 4)
        o1 = scale_ops(4*h + 1)
        for c in range(4):
            a(f"{M16} {S}, {Kf(c)}, {vr(RAW + 16*h + 4*c, 4)}, {S if c else '0'}")
            if c == 0: a(qw(h, 0))
            else: a(o1[:2]); del o1[:2]
        a(o1)
        a(qw(h, 1)); v0dma(d1)
        red = red_ops(h)
        for c in (2, 3):
            o = scale_ops(4*h + c)
            while o:
                a(o[:2]); del o[:2]
                if red: a(red.pop(0))
            a(qw(h, c))
        a(red)
        a(("L", f"ds_write_b128 v{CIW}, {S} offset:{256*h}", "ciw"))
    stamp("p")
    a(("W", ["Qa"], None))
    stamp(); stamp("p")
    part(0, vsch[0], vsch[1])
    v0dma(vsch[2])
    stamp("p")
    a(("W", ["Qb"], None))
    stamp("p")
    part(1, vsch[3], vsch[4])
    v0dma(8); more(pace)
    a(f"s_cmp_eq_u32 s{S_FB}, 1")
    stamp(); stamp("p")
    a(("W", None, "all"))
    a("s_barrier")
    a("s_cbranch_scc1 L_pass1")
    stamp(); stamp("p")
    def qreads(u):
        w, h = u // 2, u % 2
        ad = V_QA0 if w < 2 else V_QA1
        out = [f"ds_read_b128 {vr(V_CI+4*u,4)}, v{V_CIR} offset:{u*256}"]
        out += [f"ds_read_b128 {Qf(u,c)}, v{ad} offset:{(w&1)*REG + qoff(h, c) - XO}" for c in range(4)]
        return Ls(out, ("q", u))
    a(qreads(0))
    a(("W", ["K0b"], None))
    for jj in range(4, 8): a(("L", kread(0, jj), "k0b"))
    a(qreads(1))
    more()
    a(("W", None, [("q", 0)]))
    for j in range(8):
        if j == 4: a(("W", None, ["k0b"]))
        a(qk(0, j))
        if j in (2, 5, 7): more()
    more(64)
    a(("W", [("V", 0, 0)], None))
    for dt in range(4): a(Ls(vread(0, dt), ("v", 0, dt)))
    for e in range(5): a(ex(e))
    a(cv(0)); a(cv(1))
    stamp()

    pend = []
    def emit_step(u, par, first, fin, ext, post, dgaps=(), sgaps=()):
        order = [2, 3, 4, 5, 6, 7, -1, 0, 1] if fin else [0, 1, 2, 3, 4, 5, 6, 7, -1]
        for g in range(17):
            if g < 8:
                if not fin: a(qk((u + 1) % 7, g))
            else:
                dt = order[g - 8]
                a(pv(u, dt, par, first) if dt >= 0 else sm(u, first))
            if g in dgaps:
                a(list(pend)); pend.clear()
                a(nextdma())
            room = 2 - len(ext[g])
            if g in sgaps and room > 0:
                if not pend: pend.extend(nextpre())
                a(pend[:room]); del pend[:room]
            a(ext[g])
            if g < 3: a(ex(5 + g))
            elif g == 3:
                if fin: a("s_nop 0")
                a(cv(2)); a(cv(3))
            elif not fin:
                if 11 <= g <= 15: a(ex(g - 11))
                elif g == 16: a(cv(0)); a(cv(1))
            a(post[g])

    def tile(t):
        par = t & 1; nx = par ^ 1
        first = t == 0
        for u in range(7):
            ext = {g: [] for g in range(17)}; post = {g: [] for g in range(17)}
            dgaps, sgaps = {0: ((5, 8, 10), (4, 6, 7, 9)), 1: ((5, 10), (4, 6, 7, 8, 9)), 2: ((5, 8, 10), (4, 6, 7, 9)), 3: ((5, 10), (4, 6, 7, 8, 9)),
                            4: ((5, 9), (7,)), 5: ((5, 9), (7,)), 6: ((4, 7), (5,))}[u]
            if u == 0 and not first: ext[6].append(("W", None, "all"))
            if u == 3: ext[9].append(("W", [("V", t+1, 1)], None))
            if u == 4:
                for g, dt in zip((4, 6, 8, 10), (4, 5, 6, 7)): ext[g] += Ls(vread(nx, dt), ("v", t+1, dt))
                post[16].append(("W", [("K", t+1, 0), ("K", t+1, 1)], None))
            if u == 5:
                for i, g in enumerate((4, 6, 8, 10)): ext[g] += Ls([kread(nx, 2*i), kread(nx, 2*i+1)], ("k", t+1))
                post[16].append(("W", [("V", t+1, 0)], [("k", t+1)]))
                if first: post[16].append("s_barrier")
            if u == 6:
                for g, dt in zip((6, 8, 9, 10), (3, 0, 1, 2)): ext[g] += Ls(vread(nx, dt), ("v", t+1, dt))
            if t % 2 == 0 and t > 0 and u == 1: ext[8].append(f"s_sub_u32 s{S_CNT}, s{S_CNT}, 1")
            if pref and t % 2 == pref % 2 and t > 0 and u == 0: ext[12].append("s_load_dword s96, s[94:95], s97")
            if first:
                if u == 0:
                    dgaps, sgaps = (), ()
                    ext[3].append(("W", [("V", 0, 1)], None))
                    for g, dt in zip((4, 5, 6, 7), (4, 5, 6, 7)): ext[g] += Ls(vread(0, dt), ("v", 0, dt))
                    post[7].append(("W", None, [("v", 0, 3)]))
                    q = qreads(2); ext[8] += q[0:2]; ext[9] += q[2:4]; ext[10] += q[4:5]
                    post[11].append(("W", None, [("v", 0, 7)]))
                elif u < 4:
                    q = qreads(u + 2); ext[6] += q[0:2]; ext[7] += q[2:4]; ext[9] += q[4:5]
                    dgaps, sgaps = (5, 8, 10), (4,)
                    if u == 3:
                        q = qreads(6)
                        for i in range(5): ext[11 + i] += q[i:i+1]
                if u == 4: dgaps = (5, 9, 13)
                if u < 5: post[16].append(("W", None, [("q", u + 2)]))
                xs = [(0, 1), (0, 13), (1, 1), (2, 1), (3, 1), (4, 1), (5, 1), (6, 1), (1, 13), (2, 13), (5, 13), (6, 13)][:t0extra]
                dgaps = tuple(sorted(set(dgaps) | set(g for (uu, g) in xs if uu == u)))
                stamp("t")
                if u == 0: a(("W", None, [("q", 1)]))
            emit_step(u, par, first, False, ext, post, dgaps, sgaps)

    a.c("tile 0"); tile(0)
    a(f"s_mov_b32 s{S_CNT}, 3")
    stamp()
    a.raw(".p2align 6")
    a.label("L_loop")
    i0 = len(a.l)
    bodies = []
    for t in range(1, 7):
        b = len(a.l); tile(t); bodies.append(a.l[b:])
    for t in (2, 4):
        for k in (0, 1):
            assert bodies[t + k] == bodies[k], [(x, y) for x, y in zip(bodies[k], bodies[t + k]) if x != y][:4]
    del a.l[i0:]
    a.l += bodies[4] + bodies[5]
    a(f"s_cmp_lg_u32 s{S_CNT}, 0")
    a("s_cbranch_scc1 L_loop")
    i1 = len(a.l)
    assert stream[spos[0]][2] >= 8, "stream not fully issued"
    stamp()

    def blk(u, j): return (u * 3 + j - 1) * 1024
    def pk(u, j):
        o = Ov(u, 2*j); p = Ov(u, 2*j+1) if j < 3 else Ov(u, 3)
        return [f"v_cvt_pk_bf16_f32 v{o+r}, v{(o, p)[r//2] + 2*(r%2)}, v{(o, p)[r//2] + 2*(r%2) + 1}" for r in range(4)]
    def acc(u): return [f"v_accvgpr_read_b32 v{Ov(u,3)+r}, a{A_O7+4*u+r}" for r in range(4)]
    def xw(u, j): return ("L", f"ds_write_b128 v{V_LIN}, {vr(Ov(u, 2*j), 4)} offset:{blk(u, j)}", ("xw", u))
    def lw(u): return ("L", f"ds_write_b32 v{V_LW}, a{A_L+4*u} offset:{LTAB(u)}", ("xw", u))
    def R(u):
        o = [("L", f"ds_read_b128 {ar(A_X(u) + 4*(j-1), 4)}, v{V_XR+j-1} offset:{blk(u, j)}", ("x", u)) for j in range(1, 4)]
        return o + [("L", f"ds_read_b128 {vr(V_CI+4*u,4)}, v{V_LR} offset:{LTAB(u)}", ("x", u))]
    def cmb(u):
        return [f"{M16} {Of(u, b)}, {ar(A_SEL + 2 - 2*b, 4)}, {ar(A_X(u) + 4*j, 4)}, {Of(u, b)}" for b in range(2) for j in range(3)]
    def ladd(u):
        c = V_CI + 4*u
        return [f"v_add_f32 v{c}, v{c}, v{c+1}", f"v_add_f32 v{c+2}, v{c+2}, v{c+3}", f"v_add_f32 v{c}, v{c}, v{c+2}"]
    def lrcp(u):
        c = V_CI + 4*u
        return [f"v_rcp_f32 v{c+1}, v{c}", f"v_add_f32 v{V_CHK}, v{V_CHK}, v{c}" if u else f"v_mov_b32 v{V_CHK}, v{c}"]
    def mul(u, b): return [f"v_mul_f32 v{Ov(u,b)+r}, v{Ov(u,b)+r}, v{V_CI+4*u+1}" for r in range(4)]
    def swp(u): return [f"v_permlane16_swap_b32 v{Ov(u,0)+r}, v{Ov(u,0)+2+r}" for r in range(2)]
    def sto(u): return f"s_movk_i32 s98, {u*4096}"
    def ST(u): return ("V", f"buffer_store_dwordx4 {vr(Ov(u,0),4)}, v{V_ST}, {srd(SRD_O)}, s98 offen{(' '+sflags) if sflags else ''}", "st")
    def seq(mf, fill):
        for i, m in enumerate(mf):
            if m: a(m)
            a(fill.get(i, []))
    a.c("tile 7")
    for u in range(6):
        stamp("e")
        w = u - 1; f = u - 2
        mf = [qk(u + 1, g) for g in range(8)] + (cmb(f) if f >= 0 else [None] * 6) + [pv(u, dt, 1, False) for dt in range(8)] + [sm(u, False)]
        F = {i: [] for i in range(23)}
        if f >= 0:
            r = R(f); F[0] += r[0:2]; F[1] += r[2:4]
        if w >= 0: F[2 if f >= 0 else 3] += [lw(w)]
        for g in range(3): F[g] += [ex(5 + g)]
        F[3] += [cv(2), cv(3)]
        if u == 0:
            F[4] += [("W", "all", "all"), f"v_add_u32 v{V_LW}, s{S_LWO}, v{V_CIR}"]
            F[5] += [f"v_lshl_add_u32 v{V_XR+j}, v{L}, 4, s{S_XR+j}" for j in range(2)]
            F[6] += [f"v_lshl_add_u32 v{V_XR+2}, v{L}, 4, s{S_XR+2}", f"v_subrev_u32 v{V_LR}, {CI_AREA - LT0}, v{V_CIR}"]
            sel = [f"v_accvgpr_write_b32 a{A_SEL+r}, {x}" for r, x in enumerate(("0", "0", f"v{V_X0}", f"v{V_X1}", "0", "0"))]
            F[7] += sel[0:2]; F[14] += sel[2:4]; F[15] += sel[4:6]
        if f >= 0:
            F[4] += pk(w, 1); F[5] += [xw(w, 1)]; F[6] += pk(w, 2); F[7] += acc(w) + [("W", None, [("x", f)])]
            F[8] += [xw(w, 2)]; F[9] += pk(w, 3); F[10] += ladd(f); F[11] += lrcp(f); F[12] += [xw(w, 3)]
            F[13] += [ex(0)]; F[14] += [ex(1)]; F[15] += [ex(2)]; F[16] += [ex(3)]
            F[17] += mul(f, 0); F[18] += mul(f, 1); F[19] += pk(f, 0)
            F[20] += [("W", None, [("xw", w)]), "s_barrier", ex(4)]
            F[21] += swp(f) + [sto(f)]
            F[22] += [ST(f), cv(0), cv(1)]
        else:
            if w >= 0:
                F[4] += pk(w, 1); F[5] += [xw(w, 1)]; F[6] += pk(w, 2); F[7] += acc(w)
                F[14] += [xw(w, 2)]; F[15] += pk(w, 3); F[17] += [xw(w, 3)]
            for i, g in enumerate((17, 18, 19, 20, 21) if w < 0 else (16, 18, 19, 20, 21)): F[g] += [ex(i)]
            F[22] += [cv(0), cv(1)]
            if w >= 0: F[22] += [("W", None, [("xw", w)]), "s_barrier"]
        seq(mf, F)
    stamp("e")
    a(R(4))
    a([ex(5), ex(6), ex(7)] + pk(5, 1)[:1] + [cv(2), cv(3)] + pk(5, 1)[1:])
    mf = [pv(6, dt, 1, False) for dt in range(2, 8)] + [sm(6, False), pv(6, 0, 1, False), pv(6, 1, 1, False)] + cmb(4)
    F = {0: [xw(5, 1)], 1: [lw(5)] + pk(5, 2), 2: acc(5), 3: [xw(5, 2)], 4: pk(5, 3), 5: [("W", None, [("x", 4)])] + ladd(4), 6: [xw(5, 3)], 7: pk(6, 1), 8: lrcp(4),
         9: [xw(6, 1)], 10: pk(6, 2), 11: acc(6), 12: [xw(6, 2)], 13: pk(6, 3), 14: [lw(6), xw(6, 3)]}
    seq(mf, F)
    a(mul(4, 0))
    a(("W", None, [("xw", 6)])); a("s_barrier")
    stamp()
    a(R(5)); a(R(6))
    a(mul(4, 1)); a(pk(4, 0)); a(sto(4)); a("s_nop 0"); a(swp(4)); a("s_nop 0"); a(ST(4))
    a(("W", None, [("x", 5)]))
    F = {0: ladd(5), 1: lrcp(5), 2: [("W", None, [("x", 6)])] + ladd(6), 3: lrcp(6), 4: [f"s_mov_b32 s99, {hex(f2u(THRESH))}", f"s_cmp_lg_u32 s{S_FB}, 0"],
         5: [f"v_cmp_ngt_f32 vcc, s99, v{V_CHK}", sto(5)], 6: mul(5, 0)[:2], 7: mul(5, 0)[2:], 8: ["s_nop 1"], 9: mul(5, 1), 10: pk(5, 0), 11: mul(6, 0)[:2] + swp(5)}
    seq(cmb(5) + cmb(6), F)
    a("s_nop 0"); a(ST(5)); a(mul(6, 0)[2:]); a(sto(6)); a(mul(6, 1)); a(pk(6, 0)); a("s_nop 1"); a(swp(6)); a("s_nop 0"); a(ST(6))
    a("s_cbranch_scc1 L_ok")
    a("s_cbranch_vccnz L_fallback")
    a.label("L_ok")
    a.free = True
    if diag and spin:
        i, j, mult = spin[:3]
        a("s_waitcnt vmcnt(0)")
        if len(spin) == 3:
            a(f"s_lshl_b32 s84, s2, 2"); a(f"s_add_u32 s84, s84, s{S_W}"); a("s_cmp_lg_u32 s84, 401"); a("s_cbranch_scc1 L_end")
        a("s_memrealtime s[80:81]"); a("s_memtime s[86:87]"); a("s_waitcnt lgkmcnt(0)")
        if mult > 0:
            sj = 80 if j == 8 else S_STAMP + 2*j
            a(f"s_sub_u32 s84, s{sj}, s{S_STAMP+2*i}"); a(f"s_mul_i32 s84, s84, {mult}")
        else:
            sj = 86 if j == 8 else S_STAMP + 16 + 2*j
            a(f"s_sub_u32 s84, s{sj}, s{S_STAMP+16+2*i}"); a(f"s_lshr_b32 s84, s84, {-mult}")
        a("s_min_u32 s84, s84, 20000")
        a.label("L_spin")
        a("s_memrealtime s[82:83]"); a("s_waitcnt lgkmcnt(0)")
        a("s_sub_u32 s85, s82, s80"); a("s_cmp_lt_u32 s85, s84"); a("s_cbranch_scc1 L_spin")
    elif diag:
        a("s_memrealtime s[84:85]"); a("s_memtime s[86:87]")
        a("s_waitcnt vmcnt(0)")
        a("s_memrealtime s[80:81]"); a("s_memtime s[82:83]")
        a("s_branch L_dump")
    a.label("L_end")
    a("s_endpgm")
    iend = len(a.l)
    if warm > 1:
        a.raw(f".fill ({4 * 4096 - head} - (. - {NAME}_kernel)) / 4, 4, 0xbf810000")
        a.label("L_pg3")
        a("s_branch L_back")
    a.label("L_fallback")
    a("s_waitcnt vmcnt(0) lgkmcnt(0)")
    a("s_barrier")
    a(f"s_mov_b32 s{S_FB}, 1")
    a("s_branch L_start")
    a.label("L_pass1")
    for u in range(7):
        for x in qreads(u)[1:]: a(x[1])
        a("s_waitcnt lgkmcnt(0)")
    a("s_waitcnt vmcnt(0)")
    a("s_barrier")
    a("s_mov_b32 s42, 0")
    MX = V_OWN
    for u in range(7): a(f"v_mov_b32 v{MX+u}, 0xff800000")
    a.label("L_fb1")
    a(m0(0)); a(f"s_add_u32 s{S_SO}, s42, 128")
    for p in range(4): a(dma(SRD_K, 42, p, "f")[1])
    a(m0(4096)); a("s_nop 0")
    for p in range(4): a(dma(SRD_K, S_SO, p, "f")[1])
    a("s_waitcnt vmcnt(0)")
    for j in range(8): a(kread(0, j))
    a("s_waitcnt lgkmcnt(0)")
    for u in range(7):
        for j in range(8): a(qk(u, j, zero=True))
        a("s_nop 7")
        for r in range(0, 8, 2): a(f"v_max3_f32 v{MX+u}, v{MX+u}, v{V_S+r}, v{V_S+r+1}")
    a("s_add_u32 s42, s42, 0x2000")
    a("s_cmp_lt_u32 s42, 0x10000")
    a("s_cbranch_scc1 L_fb1")
    for sw in ("v_permlane16_swap_b32", "v_permlane32_swap_b32"):
        for u in range(7): a(f"v_mov_b32 v{MX+8+u}, v{MX+u}")
        a("s_nop 1")
        for u in range(7): a(f"{sw} v{MX+u}, v{MX+8+u}")
        a("s_nop 1")
        for u in range(7): a(f"v_max_f32 v{MX+u}, v{MX+u}, v{MX+8+u}")
    a(f"v_add_u32 v{V_P}, s{S_LWO}, v{V_CIR}")
    for u in range(7): a(f"ds_write_b32 v{V_P}, v{MX+u} offset:{LTAB(u)}")
    a("s_waitcnt lgkmcnt(0)")
    a("s_barrier")
    a(f"s_and_b32 s42, s{S_W}, 1"); a("s_lshl_b32 s42, s42, 9")
    a(f"s_lshr_b32 s98, s{S_W}, 1"); a(f"s_mul_i32 s98, s98, {REG}"); a("s_add_u32 s42, s42, s98")
    a(f"s_sub_u32 s42, s42, {CI_AREA - LT0}")
    a(f"v_add_u32 v{V_P}, s42, v{V_CIR}")
    for h in range(2): a(f"ds_read_b128 {vr(V_S+4*h,4)}, v{V_P} offset:{256*h}")
    a("s_waitcnt lgkmcnt(0)")
    for h in range(2):
        a(f"v_max3_f32 v{V_KEEP+h}, v{V_S+4*h}, v{V_S+4*h+1}, v{V_S+4*h+2}")
        a(f"v_max_f32 v{V_KEEP+h}, v{V_KEEP+h}, v{V_S+4*h+3}")
    a(f"s_mov_b32 s{S_FB}, 2")
    a(f"s_mov_b64 s[{S_FBM}:{S_FBM+1}], -1")
    a("s_barrier")
    a("s_branch L_start")
    if diag and not spin:
        a.label("L_dump")
        a("s_mov_b32 s36, s46"); a("s_mov_b32 s37, s47"); a("s_mov_b32 s38, 0x100000"); a("s_mov_b32 s39, 0x20000")
        a("s_waitcnt lgkmcnt(0)")
        a("s_lshl_b32 s40, s2, 2"); a(f"s_add_u32 s40, s40, s{S_W}"); a("s_lshl_b32 s40, s40, 8")
        a(f"v_mov_b32 v4, s40")
        a(f"v_cmp_eq_u32 vcc, 0, v{L}")
        a("s_and_saveexec_b64 s[42:43], vcc")
        slots = [(S_STAMP+2*i, i) for i in range(8)] + [(84, 8), (80, 9)] + [(S_STAMP+16+2*i, 16+i) for i in range(8)] + [(86, 24), (82, 25)]
        for s, i in slots:
            a(f"v_mov_b32 v6, s{s}"); a(f"v_mov_b32 v7, s{s+1}"); a(f"buffer_store_dwordx2 v[6:7], v4, s[36:39], 0 offen offset:{8*i}"); a("s_nop 1")
        a("s_endpgm")
    lin = a.l[:i1] + a.l[i0:i1] + a.l[i1:iend]
    bad = hz.check(lin) + hz.check(a.l[iend:])
    for b in bad: print("HAZARD", b, file=sys.stderr)
    a.raw('.section .rodata,"a"'); a.raw(".p2align 6"); a.raw(f".amdhsa_kernel {NAME}_kernel")
    a.raw("  .amdhsa_next_free_vgpr 512"); a.raw("  .amdhsa_next_free_sgpr 102"); a.raw("  .amdhsa_accum_offset 256")
    a.raw("  .amdhsa_group_segment_fixed_size 0"); a.raw("  .amdhsa_kernarg_size 48"); a.raw("  .amdhsa_user_sgpr_count 2")
    a.raw("  .amdhsa_user_sgpr_kernarg_segment_ptr 1"); a.raw("  .amdhsa_system_sgpr_workgroup_id_x 1"); a.raw(".end_amdhsa_kernel")
    if warm: a.l = add_stubs(a.l, head)
    return "\n".join(a.l) + "\n"

if __name__ == "__main__":
    ap = argparse.ArgumentParser()
    ap.add_argument("-o", default=f"kG.s")
    ap.add_argument("--diag", action="store_true")
    ap.add_argument("--spin", default=None); ap.add_argument("--flags", default=""); ap.add_argument("--sflags", default="sc1")
    ap.add_argument("--n0", type=int, default=8); ap.add_argument("--mix", type=int, default=1); ap.add_argument("--vsch", default="2,2,2,2,0")
    ap.add_argument("--t0extra", type=int, default=4); ap.add_argument("--pace", type=int, default=2); ap.add_argument("--fine", default="c")
    ap.add_argument("--cgap", type=int, default=14); ap.add_argument("--pref", type=int, default=2); ap.add_argument("--align", type=int, default=12); ap.add_argument("--head", type=int, default=3328); ap.add_argument("--warm", type=int, default=0); ap.add_argument("--rot", default="0,0"); ap.add_argument("--touch", type=int, default=0); ap.add_argument("--pre0", type=int, default=2); ap.add_argument("--wg", default="4,5,6,7,8,9,10")
    args = ap.parse_args()
    tup = lambda s: tuple(map(int, s.split(',')))
    open(args.o, "w").write(gen(diag=args.diag, flags=args.flags, sflags=args.sflags, n0=args.n0, mix=args.mix, vsch=tup(args.vsch), t0extra=args.t0extra,
                                pace=args.pace, fine=args.fine, cgap=args.cgap, pref=args.pref, align=args.align, head=args.head, warm=args.warm, rot=tup(args.rot), touch=args.touch, pre0=args.pre0, wg=tup(args.wg), spin=tup(args.spin) if args.spin else None))
```

```python
import sys, struct, argparse
import hz
NAME = "standalone__gqa_softmax__near_ridge"
def f2u(x): return struct.unpack("<I", struct.pack("<f", x))[0]
def vr(b, n=1): return f"v{b}" if n == 1 else f"v[{b}:{b+n-1}]"
def ar(b, n=1): return f"a{b}" if n == 1 else f"a[{b}:{b+n-1}]"
def srd(b): return f"s[{b}:{b+3}]"

V_LANE, V_LIN, V_KEEP, V_VOFF, V_AK, V_AV = 0, 1, 2, 4, 8, 10
V_QA0, V_X0, V_QA1, V_X1, V_ST, V_CIR = 14, 15, 16, 17, 18, 19
V_S, V_P, V_CI, V_OWN, V_OTH = 20, 28, 32, 60, 116
A_O7, A_L, A_ONE, A_K, A_V, A_Q = 0, 28, 56, 60, 92, 144
V_XR, V_LW, V_LR, V_CHK = 4, 7, 8, 9
A_SEL = A_V + 36
def A_X(u): return A_Q + 16 * (u % 2)
S_W = 3
SRD_Q, SRD_K, SRD_V, SRD_O = 12, 16, 20, 24
S_MK0, S_MK1, S_MV0, S_MV1 = 28, 29, 30, 31
S_Y, S_FB, S_WB, S_CNT = 32, 33, 34, 35
S_SO = 44
S_STAMP = 48
S_FBM = 88
S_XR = 90
S_LWO = 93
S_Y0 = 100
S_K0 = 101
S_YR = 43
REG = 40960
KB = lambda par: par * 8192
VB = lambda par: 16384 + par * 8192
XO = 32768
CI_AREA = 3 * REG + XO + 6144
LT0 = 39936
def LTAB(u): return u * 256 if u < 4 else REG + (u - 4) * 256
SCALE = (128 ** -0.5) * 1.4426950408889634
THRESH = 2.0 ** 40
M16 = "v_mfma_f32_16x16x32_bf16"

def Qf(u, c): return ar(A_Q + 16 * u + 4 * c, 4)
def Kf(j): return ar(A_K + 4 * j, 4)
def Vbase(dt, par): return A_V + 32 if (dt == 3 and par) else A_V + 4 * dt
def Ov(u, dt): return V_OWN + 8 * u + 4 * dt if dt < 2 else V_OTH + 20 * u + 4 * (dt - 2)
def Of(u, dt): return ar(A_O7 + 4 * u, 4) if dt == 7 else vr(Ov(u, dt), 4)
def qk(u, j, zero=False):
    kt, c = j // 4, j % 4
    S = vr(V_S + 4 * kt, 4)
    cc = S if c else ("0" if zero else vr(V_CI + 4 * u, 4))
    return f"{M16} {S}, {Kf(j)}, {Qf(u, c)}, {cc}"
def pv(u, dt, par, first):
    o = Of(u, dt)
    return f"{M16} {o}, {ar(Vbase(dt, par), 4)}, {vr(V_P, 4)}, {'0' if first else o}"
def sm(u, first):
    o = ar(A_L + 4 * u, 4)
    return f"{M16} {o}, {ar(A_ONE, 4)}, {vr(V_P, 4)}, {'0' if first else o}"
def ex(e): return f"v_exp_f32 v{V_S+e}, v{V_S+e}"
def cv(i): return f"v_cvt_pk_bf16_f32 v{V_P+i}, v{V_S+2*i}, v{V_S+2*i+1}"
def kread(par, j, base=None, dst=None):
    kt, c = j // 4, j % 4
    off = (KB(par) if base is None else base) + (c >> 1) * 4096 + kt * 2048
    return f"ds_read_b128 {dst or Kf(j)}, v{V_AK + (c & 1)} offset:{off}"
def vread(par, dt):
    b = Vbase(dt, par)
    return [f"ds_read_b64_tr_b16 {ar(b + 2*h, 2)}, v{V_AV + (dt & 3)} offset:{VB(par) + (dt >> 2) * 4096 + h * 2048}" for h in range(2)]

class Gen:
    def __init__(self):
        self.l = []; self.vq = []; self.lq = []; self.ldone = 0; self.free = False
    def __call__(self, s):
        if isinstance(s, list):
            for x in s: self(x)
        elif isinstance(s, tuple):
            if s[0] == "L": self.l.append("    " + s[1]); self.lq.append(s[2])
            elif s[0] == "V":
                tg = s[2]
                if isinstance(tg, tuple) and tg[0] in "KV" and tg[1] >= 2:
                    kv, x, hf = tg
                    need = ([("k", x-2)] if x > 2 else ["k0a", "k0b"]) if kv == "K" else [("v", x-2, dt) for dt in range(4*hf, 4*hf+4)]
                    for n in need:
                        idx = [i for i, t in enumerate(self.lq) if t == n]
                        assert idx and max(idx) < self.ldone, ("LDS WAR", tg, n)
                self.l.append("    " + s[1]); self.vq.append(s[2])
            elif s[0] == "W":
                parts = []
                for q, tags, nm, mx in ((self.vq, s[1], "vmcnt", 63), (self.lq, s[2], "lgkmcnt", 15)):
                    if tags is None: continue
                    if tags == "all": n = 0
                    else:
                        idx = [i for i, t in enumerate(q) if t in tags]
                        assert idx, ("no such tag", tags)
                        n = len(q) - 1 - max(idx)
                    if nm == "lgkmcnt": self.ldone = max(self.ldone, len(q) - min(n, mx))
                    parts.append(f"{nm}({min(n, mx)})")
                self.l.append("    s_waitcnt " + " ".join(parts))
        else:
            assert not (s.startswith("ds_") or s.startswith("buffer_")) or self.free, s
            self.l.append("    " + s)
    def label(self, s): self.l.append(s + ":")
    def c(self, s): self.l.append("    ; " + s)
    def raw(self, s): self.l.append(s)

def sizes(lines):
    import subprocess, tempfile, os, re
    with tempfile.TemporaryDirectory() as d:
        src = [l for l in lines]
        src.insert(src.index("L_end:"), "L_pg1:\nL_pg2:")
        open(d + "/t.s", "w").write("\n".join(src) + "\n")
        subprocess.run(["clang", "-x", "assembler", "-target", "amdgcn-amd-amdhsa", "-mcpu=gfx950", "-c", d + "/t.s", "-o", d + "/t.o"], check=True)
        out = subprocess.run(["llvm-objdump", "-d", "--mcpu=gfx950", d + "/t.o"], capture_output=True, text=True).stdout
    return [(int(m.group(2), 16), m.group(1)) for m in re.finditer(r"^\t(\S+).*// ([0-9A-F]+):", out, re.M)]
def add_stubs(lines, head):
    lines = list(lines)
    for pg in (1, 2):
        tmp = [l for l in lines if l not in ("L_pg1:", "L_pg2:")]
        ins = [x for x in sizes(tmp) if x[0] >= head]
        mf = [off for off, mn in ins if mn.startswith("v_mfma")]
        target = (pg + (1 if head else 0)) * 4096
        k = next(i for i, off in enumerate(mf) if off >= target - 8)
        assert mf[k] + 8 < target + 60, (mf[k], target)
        idx = [i for i, l in enumerate(lines) if l.strip().startswith("v_mfma")][k]
        lines[idx + 1:idx + 1] = [f"L_pg{pg}:", "    s_cbranch_execz L_back"]
    return lines

def gen(diag=False, flags="", sflags="sc1", spin=None, n0=8, mix=1, vsch=(2, 2, 2, 2, 0), t0extra=2, pace=2, fine='c', cgap=14, pref=2, align=12, head=3328, warm=0, rot=(0, 0), touch=0, pre0=2, mid=None, epi=1, wg=(4, 5, 6, 7, 8, 9, 10)):
    a = Gen()
    fl = (" " + flags) if flags else ""
    def dma(s, soff, p, tag): return ("V", f"buffer_load_dwordx4 v{V_VOFF+p}, {srd(s)}, s{soff} offen offset:{p*1024}{fl} lds", tag)
    def m0(off): return f"s_add_u32 m0, s{S_WB}, {off}"
    def Ls(texts, tag): return [("L", t, tag) for t in texts]
    nst = [0]
    def stamp(kind="c"):
        if diag and kind in fine and nst[0] < 8:
            a(f"s_memrealtime s[{S_STAMP+2*nst[0]}:{S_STAMP+2*nst[0]+1}]")
            a(f"s_memtime s[{S_STAMP+16+2*nst[0]}:{S_STAMP+16+2*nst[0]+1}]")
            nst[0] += 1
    GROUPS = (("K", 0), ("K", 1), ("V", 0), ("V", 1))
    stream = []
    for x in range(1, 10):
        for gi, (kv, hf) in enumerate(GROUPS):
            s_, buf = (SRD_K, KB(x & 1)) if kv == "K" else (SRD_V, VB(x & 1))
            for p in range(4):
                pre = []; so = S_SO
                if p == 0:
                    if gi == 0: pre += [("Y", x)]
                    pre += [m0(buf + hf * 4096)]
                    pre += [f"s_or_b32 s{S_SO}, s{S_Y}, s{S_MV0+hf}" if kv == "V" else f"s_or_b32 s{S_SO}, s{S_Y}, {128*hf}"]
                stream.append((pre, dma(s_, so, p, (kv, x, hf)), x))
    spos = [0]
    def expand(pre):
        out = []
        for y in pre:
            if isinstance(y, tuple) and y[0] == "Y":
                out += [f"s_add_u32 s{S_Y}, s{S_Y}, 0x2000"]
                if y[1] % 2 == 0 and y[1] >= 4:
                    out += [f"s_cmp_lt_u32 s{S_Y}, 0x10000", f"s_cselect_b32 s{SRD_K+2}, 0x10000, 0", f"s_mov_b32 s{SRD_V+2}, s{SRD_K+2}"]
            elif isinstance(y, tuple): out += ["s_nop 0"]
            else: out.append(y)
        return out
    def nextpre():
        pre, d, x = stream[spos[0]]
        stream[spos[0]] = ([], d, x)
        return expand(pre)
    def nextdma():
        pre, d, x = stream[spos[0]]
        spos[0] += 1
        return expand(pre) + [d]

    a.raw(open("cdna_kernels/%s.s.ref" % NAME).read().split("; Override launch")[0].rstrip())
    a.raw("; @launch grid=(256,1,1) block=(256,1,1) lds=163840")
    a.raw('.amdgcn_target "amdgcn-amd-amdhsa--gfx950"')
    a.raw(".text"); a.raw(f".globl {NAME}_kernel"); a.raw(f".p2align {align}"); a.raw(f".fill {head // 4}, 4, 0xbf810000"); a.raw(".p2align 8"); a.raw(f".type {NAME}_kernel,@function")
    a.label(f"{NAME}_kernel")
    a("s_load_dwordx8 s[4:11], s[0:1], 0")
    a("s_cmp_ge_u32 s2, 256")
    a("s_cbranch_scc1 L_end")
    if diag:
        a("s_load_dwordx2 s[46:47], s[0:1], 40")
        stamp(fine[0])
    L = V_LANE
    T = V_S
    a(f"v_lshrrev_b32 v{T}, 6, v0")
    a(f"v_and_b32 v{L}, 63, v0")
    a(f"v_readfirstlane_b32 s{S_W}, v{T}")
    a("s_and_b32 s36, s2, 7")
    a("s_lshr_b32 s37, s2, 3")
    a("s_lshl_b32 s36, s36, 5")
    a("s_add_u32 s36, s36, s37")
    a("s_mul_i32 s38, s36, 28672")
    a(f"s_mul_i32 s{S_WB}, s{S_W}, {REG}")
    a(f"s_movk_i32 s{SRD_Q+2}, 28672")
    a(f"s_mov_b32 s{SRD_Q+3}, 0x20000")
    a(f"s_lshl_b32 s40, s{S_W}, 13")
    a(f"s_mov_b32 s{S_FB}, 0")
    a(f"s_mov_b64 s[{S_FBM}:{S_FBM+1}], 0")
    a.label("L_start")
    a(f"v_lshrrev_b32 v{T}, 3, v{L}")
    a(f"v_and_b32 v{T+1}, 6, v{T}")
    a(f"v_xor_b32 v{T+1}, v{T+1}, v{L}")
    a(f"v_and_b32 v{T+1}, 7, v{T+1}")
    a(f"v_lshlrev_b32 v{T+1}, 4, v{T+1}")
    a(f"v_lshl_add_u32 v{V_VOFF}, v{T}, 8, v{T+1}")
    a(f"v_xor_b32 v{V_VOFF+1}, 16, v{V_VOFF}")
    a(f"v_add_u32 v{V_VOFF+1}, 0x400, v{V_VOFF+1}")
    a(m0(XO))
    a("s_add_u32 s41, s40, 128")
    a("s_lshr_b32 s39, s36, 2")
    a("s_lshl_b32 s39, s39, 18")
    a(f"s_lshl_b32 s42, s{S_W}, 16")
    a("s_add_u32 s39, s39, s42")
    a(f"s_mov_b32 s{SRD_K+2}, 0x10000")
    a(f"s_mov_b32 s{SRD_K+3}, 0x20000")
    a(f"s_mov_b32 s{S_Y}, 0")
    a("s_movk_i32 s43, 128")
    a("s_getpc_b64 s[94:95]")
    a.label("L_pc")
    a(f"s_lshl_b32 s97, s{S_W}, 5")
    a("s_add_u32 s97, s97, s37")
    a("s_lshl_b32 s97, s97, 6")
    a(f"s_add_u32 s94, s94, {4096 - head}-(L_pc-{NAME}_kernel)")
    a("s_addc_u32 s95, s95, 0")
    if pre0 == 2:
        a(f"v_mov_b32 v{T+2}, s97")
        a(("V", f"global_load_dword v{V_CI}, v{T+2}, s[94:95]", "pf"))
    stamp("k")
    a("s_waitcnt lgkmcnt(0)")
    stamp("k")
    if pre0 == 1: a("s_load_dword s96, s[94:95], s97")
    def base(b, src, off): return [f"s_add_u32 s{b}, s{src}, s{off}", f"s_addc_u32 s{b+1}, s{src+1}, 0"]
    a(base(SRD_Q, 4, 38))
    for p in (0, 1): a(dma(SRD_Q, 40, p, "Qa"))
    a(m0(XO + 4096)); a(base(SRD_K, 6, 39))
    for p in (0, 1): a(dma(SRD_Q, 41, p, "Qa"))
    a(m0(KB(0)))
    a(f"s_cmp_eq_u32 s{S_W}, 3")
    for p in (0, 1): a(dma(SRD_K, S_Y, p, "K0a"))
    a(f"s_cselect_b32 s45, 0x4000, 0")
    a(m0(KB(0) + 4096))
    a(f"s_add_u32 s45, s45, s{S_WB}")
    for p in (0, 1): a(dma(SRD_K, 43, p, "K0a"))
    a(f"v_add_u32 v{V_VOFF+2}, 0x800, v{V_VOFF}")
    a(f"v_add_u32 v{V_VOFF+3}, 0x800, v{V_VOFF+1}")
    a(f"s_add_u32 m0, s45, {XO + 4096}"); a("s_nop 0")
    for p in (2, 3): a(dma(SRD_Q, 41, p, "Qb"))
    a(f"s_add_u32 m0, s45, {XO}"); a("s_nop 0")
    for p in (2, 3): a(dma(SRD_Q, 40, p, "Qb"))
    a(base(SRD_V, 8, 39)); a(base(SRD_O, 10, 38))
    a(f"s_mov_b32 s{SRD_V+2}, 0x10000"); a(f"s_mov_b32 s{SRD_V+3}, 0x20000")
    a(f"s_movk_i32 s{SRD_O+2}, 28672"); a(f"s_mov_b32 s{SRD_O+3}, 0x20000")
    if warm:
        a("s_mov_b64 exec, 0")
        for w in (1, 2, 3)[:warm + 1]:
            a(f"s_cmp_eq_u32 s{S_W}, {w}")
            a(f"s_cbranch_scc1 L_pg{w}")
        a.label("L_back")
        a("s_mov_b64 exec, -1")
    a(f"s_lshr_b32 s{S_MV0}, s{S_W}, 1"); a(f"s_lshl_b32 s{S_MV0}, s{S_MV0}, 7")
    a(f"s_xor_b32 s{S_MV1}, s{S_MV0}, 128")

    a(f"v_and_b32 v{T}, 15, v{L}")
    a(f"v_and_b32 v{T+1}, 6, v{T}")
    a(f"v_lshrrev_b32 v{T+2}, 3, v{T}")
    a(f"v_or_b32 v{T+1}, v{T+1}, v{T+2}")
    a(f"v_lshrrev_b32 v{T+2}, 4, v{L}")
    a(f"v_lshlrev_b32 v{T+2}, 1, v{T+2}")
    a(f"v_xor_b32 v{T+1}, v{T+1}, v{T+2}")
    a(f"v_lshlrev_b32 v{T+1}, 4, v{T+1}")
    a(f"v_lshl_add_u32 v{T+1}, v{T}, 7, v{T+1}")
    a(f"v_add_u32 v{V_AK}, s{S_WB}, v{T+1}")
    a(f"v_xor_b32 v{V_AK+1}, 16, v{V_AK}")
    a(f"v_lshl_add_u32 v{V_LIN}, v{L}, 4, s{S_WB}")
    CIW, QWB, SC = V_CI + 24, V_CI + 25, V_CI + 26
    a(f"v_mov_b32 v{SC}, {hex(f2u(SCALE))}")
    a(f"v_lshl_add_u32 v{QWB}, v{L}, 4, s45")
    a(f"s_lshl_b32 s42, s{S_W}, 9")
    a(f"v_lshlrev_b32 v{T+3}, 4, v{T}")
    a(f"v_add_u32 v{V_CIR}, {CI_AREA}, v{T+3}")
    a(f"v_add_u32 v{CIW}, s42, v{V_CIR}")
    a(f"v_lshlrev_b32 v{T+3}, 4, v{L}")
    a(f"v_add_u32 v{V_QA0}, {XO}, v{T+3}")
    a(f"v_add_u32 v{V_QA1}, {2*REG + XO}, v{T+3}")
    for j in range(1, 4):
        a(f"s_xor_b32 s42, s{S_W}, {j}")
        a(f"s_mul_i32 s{S_XR+j-1}, s42, {REG}")
    a(f"s_lshl_b32 s{S_LWO}, s{S_W}, 2")
    a(f"s_sub_u32 s{S_LWO}, s{S_LWO}, {CI_AREA - LT0}")
    a(f"v_lshrrev_b32 v{T+1}, 4, v{L}")
    a(f"v_lshrrev_b32 v{T+2}, 2, v{T}")
    a(f"v_cmp_eq_u32 vcc, v{T+1}, v{T+2}")
    a(f"v_and_b32 v{T+2}, 1, v{L}")
    a(f"v_lshlrev_b32 v{T+2}, 4, v{T+2}")
    a(f"v_mov_b32 v{T+3}, 0x3f80")
    a(f"v_lshlrev_b32 v{T+3}, v{T+2}, v{T+3}")
    a(f"v_cndmask_b32 v{T+3}, 0, v{T+3}, vcc")
    a(f"v_and_b32 v{T+2}, 2, v{L}")
    a(f"v_cmp_eq_u32 vcc, 0, v{T+2}")
    a(f"v_bfe_u32 v{T+4}, v{L}, 4, 1")
    a(f"v_lshrrev_b32 v{T+5}, 5, v{L}")
    a(f"v_cndmask_b32 v{V_X0}, 0, v{T+3}, vcc")
    a(f"v_sub_u32 v{V_X1}, v{T+3}, v{V_X0}")
    for r, x in enumerate(("0", "0", f"v{V_X0}", f"v{V_X1}", "0", "0")): a(f"v_accvgpr_write_b32 a{A_SEL+r}, {x}")
    a(f"v_lshl_add_u32 v{T+4}, v{T+4}, 1, v{T+5}")
    a(f"v_lshlrev_b32 v{T+4}, 4, v{T+4}")
    a(f"v_lshl_add_u32 v{T+4}, v{T}, 8, v{T+4}")
    a(f"s_lshl_b32 s42, s{S_W}, 6")
    a(f"v_add_u32 v{V_ST}, s42, v{T+4}")
    a(f"v_and_b32 v{T+2}, 3, v{L}")
    a(f"v_cmp_eq_u32 vcc, 0, v{T+2}")
    a(f"v_lshrrev_b32 v{T}, 2, v{L}")
    a(f"v_and_b32 v{T+1}, 6, v{T}")
    a(f"v_lshrrev_b32 v{T+2}, 3, v{T}")
    a(f"v_or_b32 v{T+1}, v{T+1}, v{T+2}")
    a(f"v_bfe_u32 v{T+2}, v{L}, 1, 1")
    a(f"v_xor_b32 v{T+1}, v{T+1}, v{T+2}")
    a(f"s_and_b32 s42, s{S_W}, 1")
    a("s_lshl_b32 s42, s42, 2")
    a(f"v_xor_b32 v{T+1}, s42, v{T+1}")
    a(f"v_lshlrev_b32 v{T+1}, 4, v{T+1}")
    a(f"v_lshl_add_u32 v{T+1}, v{T}, 7, v{T+1}")
    a(f"v_and_b32 v{T+2}, 1, v{L}")
    a(f"v_lshl_add_u32 v{T+1}, v{T+2}, 3, v{T+1}")
    a(f"v_add_u32 v{V_AV}, s{S_WB}, v{T+1}")
    for k in range(1, 4): a(f"v_xor_b32 v{V_AV+k}, {32*k}, v{V_AV}")
    a(f"v_mov_b32 v{T+2}, 0x3f803f80")
    a(f"v_cndmask_b32 v{T+2}, 0, v{T+2}, vcc")
    for r in range(4): a(f"v_accvgpr_write_b32 a{A_ONE+r}, v{T+2}")

    if pref:
        a(f"s_and_b32 s97, s97, 0xfff")
        a(f"s_add_u32 s97, s97, 0x2000")
    if touch: a(("V", f"buffer_load_dword v{V_CI}, off, {srd(SRD_O)}, 0", "touch"))
    a(m0(KB(0) + 4096)); a("s_nop 0")
    for p in (2, 3): a(dma(SRD_K, 43, p, "K0b"))
    a(m0(KB(0))); a("s_nop 0")
    for p in (2, 3): a(dma(SRD_K, S_Y, p, "K0b"))

    RAW, QP, TMP = V_OTH, V_OWN, V_OTH + 32
    left = [n0]
    def more(n=1):
        for _ in range(n):
            if left[0] > 0: a(nextdma()); left[0] -= 1
    v0 = [0]
    def v0dma(n=1):
        for _ in range(n):
            j = v0[0]
            if j >= 8: return
            if j % 4 == 0: a(m0(VB(0) + (j // 4) * 4096)); a("s_nop 0")
            a(dma(SRD_V, S_MV0 + j // 4, j % 4, ("V", 0, j // 4)))
            v0[0] += 1
    def qoff(h, c): return XO + (c >> 1) * 4096 + h * 2048 + (c & 1) * 1024
    def qw(h, c): return ("L", f"ds_write_b128 v{V_LIN if h == 0 else QWB}, {vr(QP + 16*h + 4*c, 4)} offset:{qoff(h, c)}", "qw")
    def scale_ops(j):
        o = []
        for r in range(4):
            o += [f"v_lshlrev_b32 v{TMP+2*r}, 16, v{RAW+4*j+r}", f"v_and_b32 v{TMP+2*r+1}, 0xffff0000, v{RAW+4*j+r}"]
        o += [f"v_pk_mul_f32 {vr(TMP+2*r,2)}, {vr(TMP+2*r,2)}, {vr(SC,2)} op_sel_hi:[1,0]" for r in range(4)]
        o += [f"v_cvt_pk_bf16_f32 v{QP+4*j+r}, v{TMP+2*r}, v{TMP+2*r+1}" for r in range(4)]
        return o
    def red_ops(h):
        S = V_S + 4*h; M = V_P + 2*h
        o = [f"v_max3_f32 v{M}, v{S}, v{S+1}, v{S+2}", f"v_max_f32 v{M}, v{M}, v{S+3}"]
        for sw in ("v_permlane16_swap_b32", "v_permlane32_swap_b32"):
            o += [f"v_mov_b32 v{M+1}, v{M}", f"{sw} v{M}, v{M+1}", f"v_max_f32 v{M}, v{M}, v{M+1}"]
        o += [f"v_mul_f32 v{M}, v{M}, v{SC}", f"v_cndmask_b32 v{M}, v{M}, v{V_KEEP+h}, s[{S_FBM}:{S_FBM+1}]"]
        o += [f"v_sub_f32 v{S+r}, 0, v{M}" for r in range(4)]
        return o
    def part(h, d0, d1):
        for c in range(4): a(("L", kread(0, 4*h + c, base=XO, dst=vr(RAW + 16*h + 4*c, 4)), ("raw", h, c)))
        if h == 0:
            a(("W", ["K0a"], None))
            for jj in range(4): a(("L", kread(0, jj), "k0a"))
        v0dma(d0)
        a(("W", None, [("raw", h, 0)]))
        a(scale_ops(4*h))
        a(("W", None, [("raw", h, 3), "k0a"]))
        S = vr(V_S + 4*h, 4)
        o1 = scale_ops(4*h + 1)
        for c in range(4):
            a(f"{M16} {S}, {Kf(c)}, {vr(RAW + 16*h + 4*c, 4)}, {S if c else '0'}")
            if c == 0: a(qw(h, 0))
            else: a(o1[:2]); del o1[:2]
        a(o1)
        a(qw(h, 1)); v0dma(d1)
        red = red_ops(h)
        for c in (2, 3):
            o = scale_ops(4*h + c)
            while o:
                a(o[:2]); del o[:2]
                if red: a(red.pop(0))
            a(qw(h, c))
        a(red)
        a(("L", f"ds_write_b128 v{CIW}, {S} offset:{256*h}", "ciw"))
    stamp("p")
    a(("W", ["Qa"], None))
    stamp(); stamp("p")
    part(0, vsch[0], vsch[1])
    v0dma(vsch[2])
    stamp("p")
    a(("W", ["Qb"], None))
    stamp("p")
    part(1, vsch[3], vsch[4])
    v0dma(8); more(pace)
    a(f"s_cmp_eq_u32 s{S_FB}, 1")
    stamp(); stamp("p")
    a(("W", None, "all"))
    a("s_barrier")
    a("s_cbranch_scc1 L_pass1")
    stamp(); stamp("p")
    def qreads(u):
        w, h = u // 2, u % 2
        ad = V_QA0 if w < 2 else V_QA1
        out = [f"ds_read_b128 {vr(V_CI+4*u,4)}, v{V_CIR} offset:{u*256}"]
        out += [f"ds_read_b128 {Qf(u,c)}, v{ad} offset:{(w&1)*REG + qoff(h, c) - XO}" for c in range(4)]
        return Ls(out, ("q", u))
    a(qreads(0))
    a(("W", ["K0b"], None))
    for jj in range(4, 8): a(("L", kread(0, jj), "k0b"))
    a(qreads(1))
    more()
    a(("W", None, [("q", 0)]))
    for j in range(8):
        if j == 4: a(("W", None, ["k0b"]))
        a(qk(0, j))
        if j in (2, 5, 7): more()
    more(64)
    a(("W", [("V", 0, 0)], None))
    for dt in range(4): a(Ls(vread(0, dt), ("v", 0, dt)))
    for e in range(5): a(ex(e))
    a(cv(0)); a(cv(1))
    stamp()

    pend = []
    def emit_step(u, par, first, ext, shadow, dgaps):
        for g in range(17):
            a(qk((u + 1) % 7, g) if g < 8 else (pv(u, g - 8, par, first) if g < 16 else sm(u, first)))
            valu = g < 4 or g > 10
            if g in dgaps:
                a(list(pend)); pend.clear()
                a(nextdma())
                a(shadow[g])
            else:
                a(shadow[g])
                room = (1 if valu else 2) - len(ext[g]) - len(shadow[g])
                if room > 0 and dgaps:
                    if not pend: pend.extend(nextpre())
                    a(pend[:room]); del pend[:room]
            a(ext[g])
            if g < 3: a(ex(5 + g))
            elif g == 3: a(cv(2)); a(cv(3))
            elif 11 <= g <= 15: a(ex(g - 11))
            elif g == 16: a(cv(0)); a(cv(1))

    def vh1(t, ext, sh):
        sh[2].append(("W", None, [("v", t, dt) for dt in range(4)]))
        sh[3].append(("W", [("V", t, 1)], None))
        for g, dt in zip((4, 5, 6, 7), (4, 5, 6, 7)): ext[g] += Ls(vread(t & 1, dt), ("v", t, dt))
    def tile(t):
        par = t & 1; nx = par ^ 1
        first = t == 0
        for u in range(7):
            ext = {g: [] for g in range(17)}; sh = {g: [] for g in range(17)}
            dgaps = {0: (8, 10), 1: (4, 10), 2: (4, 7, 10), 3: (4, 10), 4: (4, 7, 10), 5: (5, 9), 6: (4, 7)}[u]
            if u == 0:
                vh1(t, ext, sh)
                sh[11].append(("W", None, [("v", t, 5)])); sh[13].append(("W", None, [("v", t, 7)]))
            if u == 5:
                sh[3].append(("W", [("K", t+1, 0), ("K", t+1, 1)], None))
                for i, g in enumerate((4, 6, 8, 10)): ext[g] += Ls([kread(nx, 2*i), kread(nx, 2*i+1)], ("k", t+1))
                sh[16].append(("W", None, [("k", t+1)]))
                if first: sh[15].append("s_barrier")
            if u == 6:
                sh[5].append(("W", [("V", t+1, 0)], None))
                for g, dt in zip((6, 8, 9, 10), (3, 0, 1, 2)): ext[g] += Ls(vread(nx, dt), ("v", t+1, dt))
                if t % 2 == 0 and t > 0: sh[15].append(f"s_sub_u32 s{S_CNT}, s{S_CNT}, 1"); sh[16].append(f"s_cmp_lg_u32 s{S_CNT}, 0")
            if pref and t % 2 == pref % 2 and t > 0 and u == 1: sh[0].append("s_load_dword s96, s[94:95], s97")
            if first:
                if u == 0:
                    dgaps = ()
                    sh[2] = []; ext[7].append(("W", None, [("v", 0, 3)]))
                    q = qreads(2); ext[8] += q[0:2]; ext[9] += q[2:4]; ext[10] += q[4:5]
                elif u < 5:
                    q = qreads(u + 2); ext[5] += q[0:2]; ext[6] += q[2:3]; ext[8] += q[3:5]
                    dgaps = (4, 7, 10)
                if u < 5: sh[16].append(("W", None, [("q", u + 2)]))
                xs = [(0, 1), (0, 14), (1, 9), (2, 9), (3, 9), (4, 9), (5, 7), (1, 1), (2, 1), (3, 1), (4, 1), (5, 1)][:t0extra]
                dgaps = tuple(sorted(set(dgaps) | set(g for (uu, g) in xs if uu == u)))
                stamp("t")
                if u == 0: a(("W", None, [("q", 1)]))
            emit_step(u, par, first, ext, sh, dgaps)

    a.c("tile 0"); tile(0)
    a(f"s_mov_b32 s{S_CNT}, 3")
    stamp()
    a.raw(".p2align 6")
    a.label("L_loop")
    i0 = len(a.l)
    bodies = []
    for t in range(1, 7):
        b = len(a.l); tile(t); bodies.append(a.l[b:])
    for t in (2, 4):
        for k in (0, 1):
            assert bodies[t + k] == bodies[k], [(x, y) for x, y in zip(bodies[k], bodies[t + k]) if x != y][:4]
    del a.l[i0:]
    a.l += bodies[4] + bodies[5]
    a("s_cbranch_scc1 L_loop")
    i1 = len(a.l)
    assert stream[spos[0]][2] >= 8, "stream not fully issued"
    stamp()

    def blk(u, j): return (u * 3 + j - 1) * 1024
    def pk(u, j):
        o = Ov(u, 2*j); p = Ov(u, 2*j+1) if j < 3 else Ov(u, 3)
        return [f"v_cvt_pk_bf16_f32 v{o+r}, v{(o, p)[r//2] + 2*(r%2)}, v{(o, p)[r//2] + 2*(r%2) + 1}" for r in range(4)]
    def acc(u): return [f"v_accvgpr_read_b32 v{Ov(u,3)+r}, a{A_O7+4*u+r}" for r in range(4)]
    def xw(u, j): return ("L", f"ds_write_b128 v{V_LIN}, {vr(Ov(u, 2*j), 4)} offset:{blk(u, j)}", ("xw", u))
    def lw(u): return ("L", f"ds_write_b32 v{V_LW}, a{A_L+4*u} offset:{LTAB(u)}", ("xw", u))
    def R(u):
        o = [("L", f"ds_read_b128 {ar(A_X(u) + 4*(j-1), 4)}, v{V_XR+j-1} offset:{blk(u, j)}", ("x", u)) for j in range(1, 4)]
        return o + [("L", f"ds_read_b128 {vr(V_CI+4*u,4)}, v{V_LR} offset:{LTAB(u)}", ("x", u))]
    def cmb(u):
        return [f"{M16} {Of(u, b)}, {ar(A_SEL + 2 - 2*b, 4)}, {ar(A_X(u) + 4*j, 4)}, {Of(u, b)}" for b in range(2) for j in range(3)]
    def ladd(u):
        c = V_CI + 4*u
        return [f"v_add_f32 v{c}, v{c}, v{c+1}", f"v_add_f32 v{c+2}, v{c+2}, v{c+3}", f"v_add_f32 v{c}, v{c}, v{c+2}"]
    def lrcp(u):
        c = V_CI + 4*u
        return [f"v_rcp_f32 v{c+2}, v{c}", f"v_add_f32 v{V_CHK}, v{V_CHK}, v{c}" if u else f"v_mov_b32 v{V_CHK}, v{c}"]
    def mul(u, b): return [f"v_mul_f32 v{Ov(u,b)+r}, v{Ov(u,b)+r}, v{V_CI+4*u+2}" for r in range(4)]
    def pmul(u): return [f"v_pk_mul_f32 {vr(Ov(u,0)+r,2)}, {vr(Ov(u,0)+r,2)}, {vr(V_CI+4*u+2,2)} op_sel_hi:[1,0]" for r in range(0, 8, 2)]
    def swp(u): return [f"v_permlane16_swap_b32 v{Ov(u,0)+r}, v{Ov(u,0)+2+r}" for r in range(2)]
    def sto(u): return f"s_movk_i32 s98, {u*4096}"
    def ST(u): return ("V", f"buffer_store_dwordx4 {vr(Ov(u,0),4)}, v{V_ST}, {srd(SRD_O)}, s98 offen{(' '+sflags) if sflags else ''}", "st")
    def seq(mf, fill):
        for i, m in enumerate(mf):
            if m: a(m)
            a(fill.get(i, []))
    a.c("tile 7")
    for u in range(6):
        stamp("e")
        w = u - 1; f = u - 2
        mf = [qk(u + 1, g) for g in range(8)] + (cmb(f) if f >= 0 else [None] * 6) + [pv(u, dt, 1, False) for dt in range(8)] + [sm(u, False)]
        F = {i: [] for i in range(23)}
        if f >= 0:
            r = R(f); F[0] += r[0:2]; F[1] += r[2:4]
        if w >= 0: F[2 if f >= 0 else 3] += [lw(w)]
        for g in range(3): F[g] += [ex(5 + g)]
        F[3] += [cv(2), cv(3)]
        if u == 0:
            e_ = {g: [] for g in range(8)}; s_ = {g: [] for g in range(8)}
            vh1(7, e_, s_)
            for g in range(8): F[g] = s_[g] + e_[g] + F[g]
            F[14] += [f"v_add_u32 v{V_LW}, s{S_LWO}, v{V_CIR}", f"v_subrev_u32 v{V_LR}, {CI_AREA - LT0}, v{V_CIR}"]
            F[15] += [f"v_lshl_add_u32 v{V_XR+j}, v{L}, 4, s{S_XR+j}" for j in range(2)]
            F[16] += [f"v_lshl_add_u32 v{V_XR+2}, v{L}, 4, s{S_XR+2}"]
            F[17] += [("W", None, [("v", 7, 5)])]; F[19] += [("W", "all", [("v", 7, 7)])]
        if f >= 0:
            if epi == 0:
                F[4] += pk(w, 1); F[5] += [xw(w, 1)]; F[6] += pk(w, 2); F[7] += [("W", None, [("x", f)])] + acc(w)
                F[8] += [xw(w, 2)]; F[9] += pk(w, 3); F[10] += ladd(f); F[11] += lrcp(f); F[12] += [xw(w, 3)]
                F[13] += [ex(0)]; F[14] += [ex(1)]; F[15] += [ex(2)]; F[16] += [ex(3)]
                F[17] += mul(f, 0); F[18] += mul(f, 1); F[19] += pk(f, 0)
                F[19] = [("W", None, [("xw", w)])] + F[19]
                F[20] += ["s_barrier", ex(4)]
                F[21] += [sto(f)] + swp(f)
                F[22] += [ST(f), cv(0), cv(1)]
            else:
                p1, p2, p3, ac, la, p0 = pk(w, 1), pk(w, 2), pk(w, 3), acc(w), ladd(f), pk(f, 0)
                F[4] += p1; F[5] += [xw(w, 1)]; F[6] += p2[:2]; F[7] += [("W", None, [("x", f)])] + p2[2:]
                F[8] += ac[:2]; F[9] += [xw(w, 2)]; F[10] += ac[2:]; F[11] += p3[:2]; F[12] += p3[2:]; F[13] += la[:2]
                F[14] += [xw(w, 3)]; F[15] += la[2:] + lrcp(f)[1:]; F[16] += lrcp(f)[:1]; F[17] += [ex(0)]
                F[18] += [ex(1), ex(2), ex(3)] + pmul(f)
                F[19] += [("W", None, [("xw", w)])] + p0
                F[20] += ["s_barrier", ex(4)]
                F[21] += [sto(f)] + swp(f)
                F[22] += [ST(f), cv(0), cv(1)]
        else:
            if w >= 0:
                F[4] += pk(w, 1); F[5] += [xw(w, 1)]; F[6] += pk(w, 2); F[7] += acc(w)
                F[14] += [xw(w, 2)]; F[15] += pk(w, 3); F[17] += [xw(w, 3)]
            for i, g in enumerate((17, 18, 19, 20, 21) if w < 0 else (16, 18, 19, 20, 21)): F[g] += [ex(i)]
            F[22] += [cv(0), cv(1)]
            if w >= 0: F[22] += [("W", None, [("xw", w)]), "s_barrier"]
        seq(mf, F)
    if epi == 0:
        stamp("e")
        a(R(4))
        a([ex(5), ex(6), ex(7)] + pk(5, 1)[:1] + [cv(2), cv(3)] + pk(5, 1)[1:])
        mf = [pv(6, dt, 1, False) for dt in range(2, 8)] + [sm(6, False), pv(6, 0, 1, False), pv(6, 1, 1, False)] + cmb(4)
        F = {0: [xw(5, 1)], 1: [lw(5)] + pk(5, 2), 2: acc(5), 3: [xw(5, 2)], 4: pk(5, 3), 5: [("W", None, [("x", 4)])] + ladd(4), 6: [xw(5, 3)], 7: pk(6, 1), 8: lrcp(4),
             9: [xw(6, 1)], 10: pk(6, 2), 11: acc(6), 12: [xw(6, 2)], 13: pk(6, 3), 14: [lw(6), xw(6, 3)]}
        seq(mf, F)
        a(mul(4, 0))
        a(("W", None, [("xw", 6)])); a("s_barrier")
        stamp()
        a(R(5)); a(R(6))
        a(mul(4, 1)); a(pk(4, 0)); a(sto(4)); a("s_nop 0"); a(swp(4)); a("s_nop 0"); a(ST(4))
        a(("W", None, [("x", 5)]))
        F = {0: ladd(5), 1: lrcp(5), 2: [("W", None, [("x", 6)])] + ladd(6), 3: lrcp(6), 4: [f"s_mov_b32 s99, {hex(f2u(THRESH))}", f"s_cmp_lg_u32 s{S_FB}, 0"],
             5: [f"v_cmp_ngt_f32 vcc, s99, v{V_CHK}", sto(5)], 6: mul(5, 0)[:2], 7: mul(5, 0)[2:], 8: ["s_nop 1"], 9: mul(5, 1), 10: pk(5, 0), 11: mul(6, 0)[:2] + swp(5)}
        seq(cmb(5) + cmb(6), F)
        a("s_nop 0"); a(ST(5)); a(mul(6, 0)[2:]); a(sto(6)); a(mul(6, 1)); a(pk(6, 0)); a("s_nop 1"); a(swp(6)); a("s_nop 0"); a(ST(6))
    else:
        stamp("e")
        a(R(4))
        a([ex(5), ex(6), ex(7)] + pk(5, 1)[:1] + [cv(2), cv(3)] + pk(5, 1)[1:])
        mf = [pv(6, dt, 1, False) for dt in range(2, 8)] + [sm(6, False), pv(6, 0, 1, False), pv(6, 1, 1, False)] + cmb(4)
        F = {0: [xw(5, 1)], 1: [lw(5)] + pk(5, 2), 2: acc(5), 3: [xw(5, 2)], 4: pk(5, 3), 5: [("W", None, [("x", 4)])] + ladd(4), 6: [xw(5, 3)], 7: pk(6, 1), 8: lrcp(4),
             9: [xw(6, 1)], 10: pk(6, 2), 11: [("W", None, [("xw", 5)])] + acc(6), 12: ["s_barrier", xw(6, 2)], 13: R(5) + pk(6, 3), 14: [lw(6), xw(6, 3)]}
        seq(mf, F)
        a([sto(4), f"s_mov_b32 s99, {hex(f2u(THRESH))}", ("W", None, [("x", 5)])] + ladd(5) + lrcp(5))
        a(pmul(4)); a(pk(4, 0))
        a(("W", None, [("xw", 6)])); a("s_barrier")
        stamp()
        a(R(6))
        F = {0: swp(4), 1: [ST(4)], 5: [("W", None, [("x", 6)])] + ladd(6), 6: [sto(5)] + lrcp(6), 7: mul(5, 0)[:2], 8: mul(5, 0)[2:],
             9: [f"s_cmp_lg_u32 s{S_FB}, 0"] + mul(5, 1), 10: pk(5, 0), 11: [f"v_cmp_ngt_f32 vcc, s99, v{V_CHK}", "s_nop 0"] + swp(5)}
        seq(cmb(5) + cmb(6), F)
        a("s_nop 0"); a(ST(5)); a(sto(6)); a("s_nop 0"); a(pmul(6)); a(pk(6, 0)); a("s_nop 1"); a(swp(6)); a("s_nop 0"); a(ST(6))
    a("s_cbranch_scc1 L_ok")
    a("s_cbranch_vccnz L_fallback")
    a.label("L_ok")
    a.free = True
    if diag and spin:
        i, j, mult = spin[:3]
        a("s_waitcnt vmcnt(0)")
        if len(spin) > 3 and spin[3] >= 16:
            a("s_bfe_u32 s84, s2, 0x20001"); a(f"s_cmp_lg_u32 s84, {spin[3] - 16}"); a("s_cbranch_scc1 L_end")
        if len(spin) == 3:
            a(f"s_lshl_b32 s84, s2, 2"); a(f"s_add_u32 s84, s84, s{S_W}"); a("s_cmp_lg_u32 s84, 401"); a("s_cbranch_scc1 L_end")
        a("s_memrealtime s[80:81]"); a("s_memtime s[86:87]"); a("s_waitcnt lgkmcnt(0)")
        if mult > 0:
            sj = 80 if j == 8 else S_STAMP + 2*j
            a(f"s_sub_u32 s84, s{sj}, s{S_STAMP+2*i}"); a(f"s_mul_i32 s84, s84, {mult}")
        else:
            sj = 86 if j == 8 else S_STAMP + 16 + 2*j
            a(f"s_sub_u32 s84, s{sj}, s{S_STAMP+16+2*i}"); a(f"s_lshr_b32 s84, s84, {-mult}")
        a("s_min_u32 s84, s84, 20000")
        a.label("L_spin")
        a("s_memrealtime s[82:83]"); a("s_waitcnt lgkmcnt(0)")
        a("s_sub_u32 s85, s82, s80"); a("s_cmp_lt_u32 s85, s84"); a("s_cbranch_scc1 L_spin")
    elif diag:
        a("s_memrealtime s[84:85]"); a("s_memtime s[86:87]")
        a("s_waitcnt vmcnt(0)")
        a("s_memrealtime s[80:81]"); a("s_memtime s[82:83]")
        a("s_branch L_dump")
    a.label("L_end")
    a("s_endpgm")
    iend = len(a.l)
    if warm > 1:
        a.raw(f".fill ({4 * 4096 - head} - (. - {NAME}_kernel)) / 4, 4, 0xbf810000")
        a.label("L_pg3")
        a("s_branch L_back")
    a.label("L_fallback")
    a("s_waitcnt vmcnt(0) lgkmcnt(0)")
    a("s_barrier")
    a(f"s_mov_b32 s{S_FB}, 1")
    a("s_branch L_start")
    a.label("L_pass1")
    for u in range(7):
        for x in qreads(u)[1:]: a(x[1])
        a("s_waitcnt lgkmcnt(0)")
    a("s_waitcnt vmcnt(0)")
    a("s_barrier")
    a("s_mov_b32 s42, 0")
    MX = V_OWN
    for u in range(7): a(f"v_mov_b32 v{MX+u}, 0xff800000")
    a.label("L_fb1")
    a(m0(0)); a(f"s_add_u32 s{S_SO}, s42, 128")
    for p in range(4): a(dma(SRD_K, 42, p, "f")[1])
    a(m0(4096)); a("s_nop 0")
    for p in range(4): a(dma(SRD_K, S_SO, p, "f")[1])
    a("s_waitcnt vmcnt(0)")
    for j in range(8): a(kread(0, j))
    a("s_waitcnt lgkmcnt(0)")
    for u in range(7):
        for j in range(8): a(qk(u, j, zero=True))
        a("s_nop 7")
        for r in range(0, 8, 2): a(f"v_max3_f32 v{MX+u}, v{MX+u}, v{V_S+r}, v{V_S+r+1}")
    a("s_add_u32 s42, s42, 0x2000")
    a("s_cmp_lt_u32 s42, 0x10000")
    a("s_cbranch_scc1 L_fb1")
    for sw in ("v_permlane16_swap_b32", "v_permlane32_swap_b32"):
        for u in range(7): a(f"v_mov_b32 v{MX+8+u}, v{MX+u}")
        a("s_nop 1")
        for u in range(7): a(f"{sw} v{MX+u}, v{MX+8+u}")
        a("s_nop 1")
        for u in range(7): a(f"v_max_f32 v{MX+u}, v{MX+u}, v{MX+8+u}")
    a(f"v_add_u32 v{V_P}, s{S_LWO}, v{V_CIR}")
    for u in range(7): a(f"ds_write_b32 v{V_P}, v{MX+u} offset:{LTAB(u)}")
    a("s_waitcnt lgkmcnt(0)")
    a("s_barrier")
    a(f"s_and_b32 s42, s{S_W}, 1"); a("s_lshl_b32 s42, s42, 9")
    a(f"s_lshr_b32 s98, s{S_W}, 1"); a(f"s_mul_i32 s98, s98, {REG}"); a("s_add_u32 s42, s42, s98")
    a(f"s_sub_u32 s42, s42, {CI_AREA - LT0}")
    a(f"v_add_u32 v{V_P}, s42, v{V_CIR}")
    for h in range(2): a(f"ds_read_b128 {vr(V_S+4*h,4)}, v{V_P} offset:{256*h}")
    a("s_waitcnt lgkmcnt(0)")
    for h in range(2):
        a(f"v_max3_f32 v{V_KEEP+h}, v{V_S+4*h}, v{V_S+4*h+1}, v{V_S+4*h+2}")
        a(f"v_max_f32 v{V_KEEP+h}, v{V_KEEP+h}, v{V_S+4*h+3}")
    a(f"s_mov_b32 s{S_FB}, 2")
    a(f"s_mov_b64 s[{S_FBM}:{S_FBM+1}], -1")
    a("s_barrier")
    a("s_branch L_start")
    if diag and not spin:
        a.label("L_dump")
        a("s_mov_b32 s36, s46"); a("s_mov_b32 s37, s47"); a("s_mov_b32 s38, 0x100000"); a("s_mov_b32 s39, 0x20000")
        a("s_waitcnt lgkmcnt(0)")
        a("s_lshl_b32 s40, s2, 2"); a(f"s_add_u32 s40, s40, s{S_W}"); a("s_lshl_b32 s40, s40, 8")
        a(f"v_mov_b32 v4, s40")
        a(f"v_cmp_eq_u32 vcc, 0, v{L}")
        a("s_and_saveexec_b64 s[42:43], vcc")
        slots = [(S_STAMP+2*i, i) for i in range(8)] + [(84, 8), (80, 9)] + [(S_STAMP+16+2*i, 16+i) for i in range(8)] + [(86, 24), (82, 25)]
        for s, i in slots:
            a(f"v_mov_b32 v6, s{s}"); a(f"v_mov_b32 v7, s{s+1}"); a(f"buffer_store_dwordx2 v[6:7], v4, s[36:39], 0 offen offset:{8*i}"); a("s_nop 1")
        a("s_endpgm")
    lin = a.l[:i1] + a.l[i0:i1] + a.l[i1:iend]
    bad = hz.check(lin) + hz.check(a.l[iend:])
    for b in bad: print("HAZARD", b, file=sys.stderr)
    a.raw('.section .rodata,"a"'); a.raw(".p2align 6"); a.raw(f".amdhsa_kernel {NAME}_kernel")
    a.raw("  .amdhsa_next_free_vgpr 512"); a.raw("  .amdhsa_next_free_sgpr 102"); a.raw("  .amdhsa_accum_offset 256")
    a.raw("  .amdhsa_group_segment_fixed_size 0"); a.raw("  .amdhsa_kernarg_size 48"); a.raw("  .amdhsa_user_sgpr_count 2")
    a.raw("  .amdhsa_user_sgpr_kernarg_segment_ptr 1"); a.raw("  .amdhsa_system_sgpr_workgroup_id_x 1"); a.raw(".end_amdhsa_kernel")
    if warm: a.l = add_stubs(a.l, head)
    return "\n".join(a.l) + "\n"

if __name__ == "__main__":
    ap = argparse.ArgumentParser()
    ap.add_argument("-o", default=f"kI.s")
    ap.add_argument("--diag", action="store_true")
    ap.add_argument("--spin", default=None); ap.add_argument("--flags", default=""); ap.add_argument("--sflags", default="sc1")
    ap.add_argument("--n0", type=int, default=8); ap.add_argument("--mix", type=int, default=1); ap.add_argument("--vsch", default="2,2,2,2,0")
    ap.add_argument("--t0extra", type=int, default=2); ap.add_argument("--pace", type=int, default=2); ap.add_argument("--fine", default="c")
    ap.add_argument("--cgap", type=int, default=14); ap.add_argument("--pref", type=int, default=2); ap.add_argument("--align", type=int, default=12); ap.add_argument("--head", type=int, default=3328); ap.add_argument("--warm", type=int, default=0); ap.add_argument("--rot", default="0,0"); ap.add_argument("--touch", type=int, default=0); ap.add_argument("--pre0", type=int, default=2); ap.add_argument("--mid", default=""); ap.add_argument("--epi", type=int, default=1); ap.add_argument("--wg", default="4,5,6,7,8,9,10")
    args = ap.parse_args()
    tup = lambda s: tuple(map(int, s.split(',')))
    open(args.o, "w").write(gen(diag=args.diag, flags=args.flags, sflags=args.sflags, n0=args.n0, mix=args.mix, vsch=tup(args.vsch), t0extra=args.t0extra,
                                pace=args.pace, fine=args.fine, cgap=args.cgap, pref=args.pref, align=args.align, head=args.head, warm=args.warm, rot=tup(args.rot), touch=args.touch, pre0=args.pre0, epi=args.epi, mid=tup(args.mid) if args.mid else None, wg=tup(args.wg), spin=tup(args.spin) if args.spin else None))
```

```python
import sys, struct, argparse
import hz
NAME = "standalone__gqa_softmax__near_ridge"
def f2u(x): return struct.unpack("<I", struct.pack("<f", x))[0]
def vr(b, n=1): return f"v{b}" if n == 1 else f"v[{b}:{b+n-1}]"
def ar(b, n=1): return f"a{b}" if n == 1 else f"a[{b}:{b+n-1}]"
def srd(b): return f"s[{b}:{b+3}]"

V_LANE, V_LIN, V_KEEP, V_VOFF, V_AK, V_AV = 0, 1, 2, 4, 8, 10
V_QA0, V_X0, V_QA1, V_X1, V_ST, V_CIR = 14, 15, 16, 17, 18, 19
V_S, V_P, V_CI, V_OWN, V_OTH = 20, 28, 32, 60, 116
A_O7, A_L, A_ONE, A_K, A_V, A_Q = 0, 28, 56, 60, 92, 144
V_XR, V_LW, V_LR, V_CHK = 4, 7, 8, 9
A_SEL = A_V + 36
def A_X(u): return A_Q + 16 * (u % 2)
S_W = 3
SRD_Q, SRD_K, SRD_V, SRD_O = 12, 16, 20, 24
S_MK0, S_MK1, S_MV0, S_MV1 = 28, 29, 30, 31
S_Y, S_FB, S_WB, S_CNT = 32, 33, 34, 35
S_SO = 44
S_STAMP = 48
S_FBM = 88
S_XR = 90
S_LWO = 93
S_Y0 = 100
S_K0 = 101
S_YR = 43
REG = 40960
KB = lambda par: par * 8192
VB = lambda par: 16384 + par * 8192
XO = 32768
CI_AREA = 3 * REG + XO + 6144
LT0 = 39936
def LTAB(u): return u * 256 if u < 4 else REG + (u - 4) * 256
SCALE = (128 ** -0.5) * 1.4426950408889634
THRESH = 2.0 ** 40
M16 = "v_mfma_f32_16x16x32_bf16"

def Qf(u, c): return ar(A_Q + 16 * u + 4 * c, 4)
def Kf(j): return ar(A_K + 4 * j, 4)
def Vbase(dt, par): return A_V + 32 if (dt == 3 and par) else A_V + 4 * dt
def Ov(u, dt): return V_OWN + 8 * u + 4 * dt if dt < 2 else V_OTH + 20 * u + 4 * (dt - 2)
def Of(u, dt): return ar(A_O7 + 4 * u, 4) if dt == 7 else vr(Ov(u, dt), 4)
def qk(u, j, zero=False):
    kt, c = j // 4, j % 4
    S = vr(V_S + 4 * kt, 4)
    cc = S if c else ("0" if zero else vr(V_CI + 4 * u, 4))
    return f"{M16} {S}, {Kf(j)}, {Qf(u, c)}, {cc}"
def pv(u, dt, par, first):
    o = Of(u, dt)
    return f"{M16} {o}, {ar(Vbase(dt, par), 4)}, {vr(V_P, 4)}, {'0' if first else o}"
def sm(u, first):
    o = ar(A_L + 4 * u, 4)
    return f"{M16} {o}, {ar(A_ONE, 4)}, {vr(V_P, 4)}, {'0' if first else o}"
def ex(e): return f"v_exp_f32 v{V_S+e}, v{V_S+e}"
def cv(i): return f"v_cvt_pk_bf16_f32 v{V_P+i}, v{V_S+2*i}, v{V_S+2*i+1}"
def kread(par, j, base=None, dst=None):
    kt, c = j // 4, j % 4
    off = (KB(par) if base is None else base) + (c >> 1) * 4096 + kt * 2048
    return f"ds_read_b128 {dst or Kf(j)}, v{V_AK + (c & 1)} offset:{off}"
def vread(par, dt):
    b = Vbase(dt, par)
    return [f"ds_read_b64_tr_b16 {ar(b + 2*h, 2)}, v{V_AV + (dt & 3)} offset:{VB(par) + (dt >> 2) * 4096 + h * 2048}" for h in range(2)]

class Gen:
    def __init__(self):
        self.l = []; self.vq = []; self.lq = []; self.ldone = 0; self.free = False
    def __call__(self, s):
        if isinstance(s, list):
            for x in s: self(x)
        elif isinstance(s, tuple):
            if s[0] == "L": self.l.append("    " + s[1]); self.lq.append(s[2])
            elif s[0] == "V":
                tg = s[2]
                if isinstance(tg, tuple) and tg[0] in "KV" and tg[1] >= 2:
                    kv, x, hf = tg
                    need = ([("k", x-2)] if x > 2 else ["k0a", "k0b"]) if kv == "K" else [("v", x-2, dt) for dt in range(4*hf, 4*hf+4)]
                    for n in need:
                        idx = [i for i, t in enumerate(self.lq) if t == n]
                        assert idx and max(idx) < self.ldone, ("LDS WAR", tg, n)
                self.l.append("    " + s[1]); self.vq.append(s[2])
            elif s[0] == "W":
                parts = []
                for q, tags, nm, mx in ((self.vq, s[1], "vmcnt", 63), (self.lq, s[2], "lgkmcnt", 15)):
                    if tags is None: continue
                    if tags == "all": n = 0
                    else:
                        idx = [i for i, t in enumerate(q) if t in tags]
                        assert idx, ("no such tag", tags)
                        n = len(q) - 1 - max(idx)
                    if nm == "lgkmcnt": self.ldone = max(self.ldone, len(q) - min(n, mx))
                    parts.append(f"{nm}({min(n, mx)})")
                self.l.append("    s_waitcnt " + " ".join(parts))
        else:
            assert not (s.startswith("ds_") or s.startswith("buffer_")) or self.free, s
            self.l.append("    " + s)
    def label(self, s): self.l.append(s + ":")
    def c(self, s): self.l.append("    ; " + s)
    def raw(self, s): self.l.append(s)

def sizes(lines):
    import subprocess, tempfile, os, re
    with tempfile.TemporaryDirectory() as d:
        src = [l for l in lines]
        src.insert(src.index("L_end:"), "L_pg1:\nL_pg2:")
        open(d + "/t.s", "w").write("\n".join(src) + "\n")
        subprocess.run(["clang", "-x", "assembler", "-target", "amdgcn-amd-amdhsa", "-mcpu=gfx950", "-c", d + "/t.s", "-o", d + "/t.o"], check=True)
        out = subprocess.run(["llvm-objdump", "-d", "--mcpu=gfx950", d + "/t.o"], capture_output=True, text=True).stdout
    return [(int(m.group(2), 16), m.group(1)) for m in re.finditer(r"^\t(\S+).*// ([0-9A-F]+):", out, re.M)]
def add_stubs(lines, head):
    lines = list(lines)
    for pg in (1, 2):
        tmp = [l for l in lines if l not in ("L_pg1:", "L_pg2:")]
        ins = [x for x in sizes(tmp) if x[0] >= head]
        mf = [off for off, mn in ins if mn.startswith("v_mfma")]
        target = (pg + (1 if head else 0)) * 4096
        k = next(i for i, off in enumerate(mf) if off >= target - 8)
        assert mf[k] + 8 < target + 60, (mf[k], target)
        idx = [i for i, l in enumerate(lines) if l.strip().startswith("v_mfma")][k]
        lines[idx + 1:idx + 1] = [f"L_pg{pg}:", "    s_cbranch_execz L_back"]
    return lines

def gen(diag=False, flags="", sflags="sc1", spin=None, n0=8, mix=1, vsch=(2, 2, 2, 2, 0), t0extra=2, pace=2, fine='c', cgap=14, pref=2, align=12, head=3328, warm=0, rot=(0, 0), touch=0, pre0=2, mid=None, epi=1, absm=False, wg=(4, 5, 6, 7, 8, 9, 10)):
    a = Gen()
    fl = (" " + flags) if flags else ""
    def dma(s, soff, p, tag): return ("V", f"buffer_load_dwordx4 v{V_VOFF+p}, {srd(s)}, s{soff} offen offset:{p*1024}{fl} lds", tag)
    def m0(off): return f"s_add_u32 m0, s{S_WB}, {off}"
    def Ls(texts, tag): return [("L", t, tag) for t in texts]
    nst = [0]
    def stamp(kind="c"):
        if diag and kind in fine and nst[0] < 8:
            a(f"s_memrealtime s[{S_STAMP+2*nst[0]}:{S_STAMP+2*nst[0]+1}]")
            a(f"s_memtime s[{S_STAMP+16+2*nst[0]}:{S_STAMP+16+2*nst[0]+1}]")
            nst[0] += 1
    GROUPS = (("K", 0), ("K", 1), ("V", 0), ("V", 1))
    stream = []
    for x in range(1, 10):
        for gi, (kv, hf) in enumerate(GROUPS):
            s_, buf = (SRD_K, KB(x & 1)) if kv == "K" else (SRD_V, VB(x & 1))
            for p in range(4):
                pre = []; so = S_SO
                if p == 0:
                    if gi == 0: pre += [("Y", x)]
                    pre += [m0(buf + hf * 4096)]
                    pre += [f"s_or_b32 s{S_SO}, s{S_Y}, s{S_MV0+hf}" if kv == "V" else f"s_or_b32 s{S_SO}, s{S_Y}, {128*hf}"]
                stream.append((pre, dma(s_, so, p, (kv, x, hf)), x))
    spos = [0]
    def expand(pre):
        out = []
        for y in pre:
            if isinstance(y, tuple) and y[0] == "Y":
                out += [f"s_add_u32 s{S_Y}, s{S_Y}, 0x2000"]
                if y[1] % 2 == 0 and y[1] >= 4:
                    out += [f"s_cmp_lt_u32 s{S_Y}, 0x10000", f"s_cselect_b32 s{SRD_K+2}, 0x10000, 0", f"s_mov_b32 s{SRD_V+2}, s{SRD_K+2}"]
            elif isinstance(y, tuple): out += ["s_nop 0"]
            else: out.append(y)
        return out
    def nextpre():
        pre, d, x = stream[spos[0]]
        stream[spos[0]] = ([], d, x)
        return expand(pre)
    def nextdma():
        pre, d, x = stream[spos[0]]
        spos[0] += 1
        return expand(pre) + [d]

    a.raw(open("cdna_kernels/%s.s.ref" % NAME).read().split("; Override launch")[0].rstrip())
    a.raw("; @launch grid=(256,1,1) block=(256,1,1) lds=163840")
    a.raw('.amdgcn_target "amdgcn-amd-amdhsa--gfx950"')
    a.raw(".text"); a.raw(f".globl {NAME}_kernel"); a.raw(f".p2align {align}"); a.raw(f".fill {head // 4}, 4, 0xbf810000"); a.raw(".p2align 8"); a.raw(f".type {NAME}_kernel,@function")
    a.label(f"{NAME}_kernel")
    a("s_load_dwordx8 s[4:11], s[0:1], 0")
    a("s_cmp_ge_u32 s2, 256")
    a("s_cbranch_scc1 L_end")
    if diag:
        a("s_load_dwordx2 s[46:47], s[0:1], %d" % (32 if absm else 40))
        stamp(fine[0])
    L = V_LANE
    T = V_S
    a(f"v_lshrrev_b32 v{T}, 6, v0")
    a(f"v_and_b32 v{L}, 63, v0")
    a(f"v_readfirstlane_b32 s{S_W}, v{T}")
    a("s_and_b32 s36, s2, 7")
    a("s_lshr_b32 s37, s2, 3")
    a("s_lshl_b32 s36, s36, 5")
    a("s_add_u32 s36, s36, s37")
    a("s_mul_i32 s38, s36, 28672")
    a(f"s_mul_i32 s{S_WB}, s{S_W}, {REG}")
    a(f"s_movk_i32 s{SRD_Q+2}, 28672")
    a(f"s_mov_b32 s{SRD_Q+3}, 0x20000")
    a(f"s_lshl_b32 s40, s{S_W}, 13")
    a(f"s_mov_b32 s{S_FB}, 0")
    a(f"s_mov_b64 s[{S_FBM}:{S_FBM+1}], 0")
    a.label("L_start")
    a(f"v_lshrrev_b32 v{T}, 3, v{L}")
    a(f"v_and_b32 v{T+1}, 6, v{T}")
    a(f"v_xor_b32 v{T+1}, v{T+1}, v{L}")
    a(f"v_and_b32 v{T+1}, 7, v{T+1}")
    a(f"v_lshlrev_b32 v{T+1}, 4, v{T+1}")
    a(f"v_lshl_add_u32 v{V_VOFF}, v{T}, 8, v{T+1}")
    a(f"v_xor_b32 v{V_VOFF+1}, 16, v{V_VOFF}")
    a(f"v_add_u32 v{V_VOFF+1}, 0x400, v{V_VOFF+1}")
    a(m0(XO))
    a("s_add_u32 s41, s40, 128")
    a("s_lshr_b32 s39, s36, 2")
    a("s_lshl_b32 s39, s39, 18")
    a(f"s_lshl_b32 s42, s{S_W}, 16")
    a("s_add_u32 s39, s39, s42")
    a(f"s_mov_b32 s{SRD_K+2}, 0x10000")
    a(f"s_mov_b32 s{SRD_K+3}, 0x20000")
    a(f"s_mov_b32 s{S_Y}, 0")
    a("s_movk_i32 s43, 128")
    a("s_getpc_b64 s[94:95]")
    a.label("L_pc")
    a(f"s_lshl_b32 s97, s{S_W}, 5")
    a("s_add_u32 s97, s97, s37")
    a("s_lshl_b32 s97, s97, 6")
    a(f"s_add_u32 s94, s94, {4096 - head}-(L_pc-{NAME}_kernel)")
    a("s_addc_u32 s95, s95, 0")
    if pre0 == 2:
        a(f"v_mov_b32 v{T+2}, s97")
        a(("V", f"global_load_dword v{V_CI}, v{T+2}, s[94:95]", "pf"))
    stamp("k")
    a("s_waitcnt lgkmcnt(0)")
    stamp("k")
    if pre0 == 1: a("s_load_dword s96, s[94:95], s97")
    def base(b, src, off): return [f"s_add_u32 s{b}, s{src}, s{off}", f"s_addc_u32 s{b+1}, s{src+1}, 0"]
    a(base(SRD_Q, 4, 38))
    for p in (0, 1): a(dma(SRD_Q, 40, p, "Qa"))
    a(m0(XO + 4096)); a(base(SRD_K, 6, 39))
    for p in (0, 1): a(dma(SRD_Q, 41, p, "Qa"))
    a(m0(KB(0)))
    a(f"s_cmp_eq_u32 s{S_W}, 3")
    for p in (0, 1): a(dma(SRD_K, S_Y, p, "K0a"))
    a(f"s_cselect_b32 s45, 0x4000, 0")
    a(m0(KB(0) + 4096))
    a(f"s_add_u32 s45, s45, s{S_WB}")
    for p in (0, 1): a(dma(SRD_K, 43, p, "K0a"))
    a(f"v_add_u32 v{V_VOFF+2}, 0x800, v{V_VOFF}")
    a(f"v_add_u32 v{V_VOFF+3}, 0x800, v{V_VOFF+1}")
    a(f"s_add_u32 m0, s45, {XO + 4096}"); a("s_nop 0")
    for p in (2, 3): a(dma(SRD_Q, 41, p, "Qb"))
    a(f"s_add_u32 m0, s45, {XO}"); a("s_nop 0")
    for p in (2, 3): a(dma(SRD_Q, 40, p, "Qb"))
    a(base(SRD_V, 8, 39)); a(base(SRD_O, 10, 38))
    a(f"s_mov_b32 s{SRD_V+2}, 0x10000"); a(f"s_mov_b32 s{SRD_V+3}, 0x20000")
    a(f"s_movk_i32 s{SRD_O+2}, 28672"); a(f"s_mov_b32 s{SRD_O+3}, 0x20000")
    if warm:
        a("s_mov_b64 exec, 0")
        for w in (1, 2, 3)[:warm + 1]:
            a(f"s_cmp_eq_u32 s{S_W}, {w}")
            a(f"s_cbranch_scc1 L_pg{w}")
        a.label("L_back")
        a("s_mov_b64 exec, -1")
    a(f"s_lshr_b32 s{S_MV0}, s{S_W}, 1"); a(f"s_lshl_b32 s{S_MV0}, s{S_MV0}, 7")
    a(f"s_xor_b32 s{S_MV1}, s{S_MV0}, 128")

    a(f"v_and_b32 v{T}, 15, v{L}")
    a(f"v_and_b32 v{T+1}, 6, v{T}")
    a(f"v_lshrrev_b32 v{T+2}, 3, v{T}")
    a(f"v_or_b32 v{T+1}, v{T+1}, v{T+2}")
    a(f"v_lshrrev_b32 v{T+2}, 4, v{L}")
    a(f"v_lshlrev_b32 v{T+2}, 1, v{T+2}")
    a(f"v_xor_b32 v{T+1}, v{T+1}, v{T+2}")
    a(f"v_lshlrev_b32 v{T+1}, 4, v{T+1}")
    a(f"v_lshl_add_u32 v{T+1}, v{T}, 7, v{T+1}")
    a(f"v_add_u32 v{V_AK}, s{S_WB}, v{T+1}")
    a(f"v_xor_b32 v{V_AK+1}, 16, v{V_AK}")
    a(f"v_lshl_add_u32 v{V_LIN}, v{L}, 4, s{S_WB}")
    CIW, QWB, SC = V_CI + 24, V_CI + 25, V_CI + 26
    a(f"v_mov_b32 v{SC}, {hex(f2u(SCALE))}")
    a(f"v_lshl_add_u32 v{QWB}, v{L}, 4, s45")
    a(f"s_lshl_b32 s42, s{S_W}, 9")
    a(f"v_lshlrev_b32 v{T+3}, 4, v{T}")
    a(f"v_add_u32 v{V_CIR}, {CI_AREA}, v{T+3}")
    a(f"v_add_u32 v{CIW}, s42, v{V_CIR}")
    a(f"v_lshlrev_b32 v{T+3}, 4, v{L}")
    a(f"v_add_u32 v{V_QA0}, {XO}, v{T+3}")
    a(f"v_add_u32 v{V_QA1}, {2*REG + XO}, v{T+3}")
    for j in range(1, 4):
        a(f"s_xor_b32 s42, s{S_W}, {j}")
        a(f"s_mul_i32 s{S_XR+j-1}, s42, {REG}")
    a(f"s_lshl_b32 s{S_LWO}, s{S_W}, 2")
    a(f"s_sub_u32 s{S_LWO}, s{S_LWO}, {CI_AREA - LT0}")
    a(f"v_lshrrev_b32 v{T+1}, 4, v{L}")
    a(f"v_lshrrev_b32 v{T+2}, 2, v{T}")
    a(f"v_cmp_eq_u32 vcc, v{T+1}, v{T+2}")
    a(f"v_and_b32 v{T+2}, 1, v{L}")
    a(f"v_lshlrev_b32 v{T+2}, 4, v{T+2}")
    a(f"v_mov_b32 v{T+3}, 0x3f80")
    a(f"v_lshlrev_b32 v{T+3}, v{T+2}, v{T+3}")
    a(f"v_cndmask_b32 v{T+3}, 0, v{T+3}, vcc")
    a(f"v_and_b32 v{T+2}, 2, v{L}")
    a(f"v_cmp_eq_u32 vcc, 0, v{T+2}")
    a(f"v_bfe_u32 v{T+4}, v{L}, 4, 1")
    a(f"v_lshrrev_b32 v{T+5}, 5, v{L}")
    a(f"v_cndmask_b32 v{V_X0}, 0, v{T+3}, vcc")
    a(f"v_sub_u32 v{V_X1}, v{T+3}, v{V_X0}")
    for r, x in enumerate(("0", "0", f"v{V_X0}", f"v{V_X1}", "0", "0")): a(f"v_accvgpr_write_b32 a{A_SEL+r}, {x}")
    a(f"v_lshl_add_u32 v{T+4}, v{T+4}, 1, v{T+5}")
    a(f"v_lshlrev_b32 v{T+4}, 4, v{T+4}")
    a(f"v_lshl_add_u32 v{T+4}, v{T}, 8, v{T+4}")
    a(f"s_lshl_b32 s42, s{S_W}, 6")
    a(f"v_add_u32 v{V_ST}, s42, v{T+4}")
    a(f"v_and_b32 v{T+2}, 3, v{L}")
    a(f"v_cmp_eq_u32 vcc, 0, v{T+2}")
    a(f"v_lshrrev_b32 v{T}, 2, v{L}")
    a(f"v_and_b32 v{T+1}, 6, v{T}")
    a(f"v_lshrrev_b32 v{T+2}, 3, v{T}")
    a(f"v_or_b32 v{T+1}, v{T+1}, v{T+2}")
    a(f"v_bfe_u32 v{T+2}, v{L}, 1, 1")
    a(f"v_xor_b32 v{T+1}, v{T+1}, v{T+2}")
    a(f"s_and_b32 s42, s{S_W}, 1")
    a("s_lshl_b32 s42, s42, 2")
    a(f"v_xor_b32 v{T+1}, s42, v{T+1}")
    a(f"v_lshlrev_b32 v{T+1}, 4, v{T+1}")
    a(f"v_lshl_add_u32 v{T+1}, v{T}, 7, v{T+1}")
    a(f"v_and_b32 v{T+2}, 1, v{L}")
    a(f"v_lshl_add_u32 v{T+1}, v{T+2}, 3, v{T+1}")
    a(f"v_add_u32 v{V_AV}, s{S_WB}, v{T+1}")
    for k in range(1, 4): a(f"v_xor_b32 v{V_AV+k}, {32*k}, v{V_AV}")
    a(f"v_mov_b32 v{T+2}, 0x3f803f80")
    a(f"v_cndmask_b32 v{T+2}, 0, v{T+2}, vcc")
    for r in range(4): a(f"v_accvgpr_write_b32 a{A_ONE+r}, v{T+2}")

    if pref:
        a(f"s_and_b32 s97, s97, 0xfff")
        a(f"s_add_u32 s97, s97, 0x2000")
    if touch: a(("V", f"buffer_load_dword v{V_CI}, off, {srd(SRD_O)}, 0", "touch"))
    a(m0(KB(0) + 4096)); a("s_nop 0")
    for p in (2, 3): a(dma(SRD_K, 43, p, "K0b"))
    a(m0(KB(0))); a("s_nop 0")
    for p in (2, 3): a(dma(SRD_K, S_Y, p, "K0b"))

    RAW, QP, TMP = V_OTH, V_OWN, V_OTH + 32
    left = [n0]
    def more(n=1):
        for _ in range(n):
            if left[0] > 0: a(nextdma()); left[0] -= 1
    v0 = [0]
    def v0dma(n=1):
        for _ in range(n):
            j = v0[0]
            if j >= 8: return
            if j % 4 == 0: a(m0(VB(0) + (j // 4) * 4096)); a("s_nop 0")
            a(dma(SRD_V, S_MV0 + j // 4, j % 4, ("V", 0, j // 4)))
            v0[0] += 1
    def qoff(h, c): return XO + (c >> 1) * 4096 + h * 2048 + (c & 1) * 1024
    def qw(h, c): return ("L", f"ds_write_b128 v{V_LIN if h == 0 else QWB}, {vr(QP + 16*h + 4*c, 4)} offset:{qoff(h, c)}", "qw")
    def scale_ops(j):
        o = []
        for r in range(4):
            o += [f"v_lshlrev_b32 v{TMP+2*r}, 16, v{RAW+4*j+r}", f"v_and_b32 v{TMP+2*r+1}, 0xffff0000, v{RAW+4*j+r}"]
        o += [f"v_pk_mul_f32 {vr(TMP+2*r,2)}, {vr(TMP+2*r,2)}, {vr(SC,2)} op_sel_hi:[1,0]" for r in range(4)]
        o += [f"v_cvt_pk_bf16_f32 v{QP+4*j+r}, v{TMP+2*r}, v{TMP+2*r+1}" for r in range(4)]
        return o
    def red_ops(h):
        S = V_S + 4*h; M = V_P + 2*h
        o = [f"v_max3_f32 v{M}, v{S}, v{S+1}, v{S+2}", f"v_max_f32 v{M}, v{M}, v{S+3}"]
        for sw in ("v_permlane16_swap_b32", "v_permlane32_swap_b32"):
            o += [f"v_mov_b32 v{M+1}, v{M}", f"{sw} v{M}, v{M+1}", f"v_max_f32 v{M}, v{M}, v{M+1}"]
        o += [f"v_mul_f32 v{M}, v{M}, v{SC}", f"v_cndmask_b32 v{M}, v{M}, v{V_KEEP+h}, s[{S_FBM}:{S_FBM+1}]"]
        o += [f"v_sub_f32 v{S+r}, 0, v{M}" for r in range(4)]
        return o
    def part(h, d0, d1):
        for c in range(4): a(("L", kread(0, 4*h + c, base=XO, dst=vr(RAW + 16*h + 4*c, 4)), ("raw", h, c)))
        if h == 0:
            a(("W", ["K0a"], None))
            for jj in range(4): a(("L", kread(0, jj), "k0a"))
        v0dma(d0)
        a(("W", None, [("raw", h, 0)]))
        a(scale_ops(4*h))
        a(("W", None, [("raw", h, 3), "k0a"]))
        S = vr(V_S + 4*h, 4)
        o1 = scale_ops(4*h + 1)
        for c in range(4):
            a(f"{M16} {S}, {Kf(c)}, {vr(RAW + 16*h + 4*c, 4)}, {S if c else '0'}")
            if c == 0: a(qw(h, 0))
            else: a(o1[:2]); del o1[:2]
        a(o1)
        a(qw(h, 1)); v0dma(d1)
        red = red_ops(h)
        for c in (2, 3):
            o = scale_ops(4*h + c)
            while o:
                a(o[:2]); del o[:2]
                if red: a(red.pop(0))
            a(qw(h, c))
        a(red)
        a(("L", f"ds_write_b128 v{CIW}, {S} offset:{256*h}", "ciw"))
    stamp("p")
    a(("W", ["Qa"], None))
    stamp(); stamp("p")
    part(0, vsch[0], vsch[1])
    v0dma(vsch[2])
    stamp("p")
    a(("W", ["Qb"], None))
    stamp("p")
    part(1, vsch[3], vsch[4])
    v0dma(8); more(pace)
    a(f"s_cmp_eq_u32 s{S_FB}, 1")
    stamp(); stamp("p")
    a(("W", None, "all"))
    a("s_barrier")
    a("s_cbranch_scc1 L_pass1")
    stamp(); stamp("p")
    def qreads(u):
        w, h = u // 2, u % 2
        ad = V_QA0 if w < 2 else V_QA1
        out = [f"ds_read_b128 {vr(V_CI+4*u,4)}, v{V_CIR} offset:{u*256}"]
        out += [f"ds_read_b128 {Qf(u,c)}, v{ad} offset:{(w&1)*REG + qoff(h, c) - XO}" for c in range(4)]
        return Ls(out, ("q", u))
    a(qreads(0))
    a(("W", ["K0b"], None))
    for jj in range(4, 8): a(("L", kread(0, jj), "k0b"))
    a(qreads(1))
    more()
    a(("W", None, [("q", 0)]))
    for j in range(8):
        if j == 4: a(("W", None, ["k0b"]))
        a(qk(0, j))
        if j in (2, 5, 7): more()
    more(64)
    a(("W", [("V", 0, 0)], None))
    for dt in range(4): a(Ls(vread(0, dt), ("v", 0, dt)))
    for e in range(5): a(ex(e))
    a(cv(0)); a(cv(1))
    stamp()

    pend = []
    def emit_step(u, par, first, ext, shadow, dgaps):
        for g in range(17):
            a(qk((u + 1) % 7, g) if g < 8 else (pv(u, g - 8, par, first) if g < 16 else sm(u, first)))
            valu = g < 4 or g > 10
            if g in dgaps:
                a(list(pend)); pend.clear()
                a(nextdma())
                a(shadow[g])
            else:
                a(shadow[g])
                room = (1 if valu else 2) - len(ext[g]) - len(shadow[g])
                if room > 0 and dgaps:
                    if not pend: pend.extend(nextpre())
                    a(pend[:room]); del pend[:room]
            a(ext[g])
            if g < 3: a(ex(5 + g))
            elif g == 3: a(cv(2)); a(cv(3))
            elif 11 <= g <= 15: a(ex(g - 11))
            elif g == 16: a(cv(0)); a(cv(1))

    def vh1(t, ext, sh):
        sh[2].append(("W", None, [("v", t, dt) for dt in range(4)]))
        sh[3].append(("W", [("V", t, 1)], None))
        for g, dt in zip((4, 5, 6, 7), (4, 5, 6, 7)): ext[g] += Ls(vread(t & 1, dt), ("v", t, dt))
    def tile(t):
        par = t & 1; nx = par ^ 1
        first = t == 0
        for u in range(7):
            ext = {g: [] for g in range(17)}; sh = {g: [] for g in range(17)}
            dgaps = {0: (8, 10), 1: (4, 10), 2: (4, 7, 10), 3: (4, 10), 4: (4, 7, 10), 5: (5, 9), 6: (4, 7)}[u]
            if u == 0:
                vh1(t, ext, sh)
                sh[11].append(("W", None, [("v", t, 5)])); sh[13].append(("W", None, [("v", t, 7)]))
            if u == 5:
                sh[3].append(("W", [("K", t+1, 0), ("K", t+1, 1)], None))
                for i, g in enumerate((4, 6, 8, 10)): ext[g] += Ls([kread(nx, 2*i), kread(nx, 2*i+1)], ("k", t+1))
                sh[16].append(("W", None, [("k", t+1)]))
                if first: sh[15].append("s_barrier")
            if u == 6:
                sh[5].append(("W", [("V", t+1, 0)], None))
                for g, dt in zip((6, 8, 9, 10), (3, 0, 1, 2)): ext[g] += Ls(vread(nx, dt), ("v", t+1, dt))
                if t % 2 == 0 and t > 0: sh[15].append(f"s_sub_u32 s{S_CNT}, s{S_CNT}, 1"); sh[16].append(f"s_cmp_lg_u32 s{S_CNT}, 0")
            if pref and t % 2 == pref % 2 and t > 0 and u == 1: sh[0].append("s_load_dword s96, s[94:95], s97")
            if first:
                if u == 0:
                    dgaps = ()
                    sh[2] = []; ext[7].append(("W", None, [("v", 0, 3)]))
                    q = qreads(2); ext[8] += q[0:2]; ext[9] += q[2:4]; ext[10] += q[4:5]
                elif u < 5:
                    q = qreads(u + 2); ext[5] += q[0:2]; ext[6] += q[2:3]; ext[8] += q[3:5]
                    dgaps = (4, 7, 10)
                if u < 5: sh[16].append(("W", None, [("q", u + 2)]))
                xs = [(0, 1), (0, 14), (1, 9), (2, 9), (3, 9), (4, 9), (5, 7), (1, 1), (2, 1), (3, 1), (4, 1), (5, 1)][:t0extra]
                dgaps = tuple(sorted(set(dgaps) | set(g for (uu, g) in xs if uu == u)))
                stamp("t")
                if u == 0: a(("W", None, [("q", 1)]))
            emit_step(u, par, first, ext, sh, dgaps)

    a.c("tile 0"); tile(0)
    a(f"s_mov_b32 s{S_CNT}, 3")
    if absm:
        a.free = True
        a("s_waitcnt lgkmcnt(0)"); a(f"s_not_b32 s84, s{S_STAMP}"); a("v_mov_b32 v15, s84"); a("v_mov_b32 v17, 0")
        a(("V", "global_atomic_umax v17, v15, s[46:47] sc1", "dbg"))
        a.free = False
    stamp()
    a.raw(".p2align 6")
    a.label("L_loop")
    i0 = len(a.l)
    bodies = []
    for t in range(1, 7):
        b = len(a.l); tile(t); bodies.append(a.l[b:])
    for t in (2, 4):
        for k in (0, 1):
            assert absm or bodies[t + k] == bodies[k], [(x, y) for x, y in zip(bodies[k], bodies[t + k]) if x != y][:4]
    del a.l[i0:]
    a.l += bodies[4] + bodies[5]
    a("s_cbranch_scc1 L_loop")
    i1 = len(a.l)
    assert stream[spos[0]][2] >= 8, "stream not fully issued"
    stamp()

    def blk(u, j): return (u * 3 + j - 1) * 1024
    def pk(u, j):
        o = Ov(u, 2*j); p = Ov(u, 2*j+1) if j < 3 else Ov(u, 3)
        return [f"v_cvt_pk_bf16_f32 v{o+r}, v{(o, p)[r//2] + 2*(r%2)}, v{(o, p)[r//2] + 2*(r%2) + 1}" for r in range(4)]
    def acc(u): return [f"v_accvgpr_read_b32 v{Ov(u,3)+r}, a{A_O7+4*u+r}" for r in range(4)]
    def xw(u, j): return ("L", f"ds_write_b128 v{V_LIN}, {vr(Ov(u, 2*j), 4)} offset:{blk(u, j)}", ("xw", u))
    def lw(u): return ("L", f"ds_write_b32 v{V_LW}, a{A_L+4*u} offset:{LTAB(u)}", ("xw", u))
    def R(u):
        o = [("L", f"ds_read_b128 {ar(A_X(u) + 4*(j-1), 4)}, v{V_XR+j-1} offset:{blk(u, j)}", ("x", u)) for j in range(1, 4)]
        return o + [("L", f"ds_read_b128 {vr(V_CI+4*u,4)}, v{V_LR} offset:{LTAB(u)}", ("x", u))]
    def cmb(u):
        return [f"{M16} {Of(u, b)}, {ar(A_SEL + 2 - 2*b, 4)}, {ar(A_X(u) + 4*j, 4)}, {Of(u, b)}" for b in range(2) for j in range(3)]
    def ladd(u):
        c = V_CI + 4*u
        return [f"v_add_f32 v{c}, v{c}, v{c+1}", f"v_add_f32 v{c+2}, v{c+2}, v{c+3}", f"v_add_f32 v{c}, v{c}, v{c+2}"]
    def lrcp(u):
        c = V_CI + 4*u
        return [f"v_rcp_f32 v{c+2}, v{c}", f"v_add_f32 v{V_CHK}, v{V_CHK}, v{c}" if u else f"v_mov_b32 v{V_CHK}, v{c}"]
    def mul(u, b): return [f"v_mul_f32 v{Ov(u,b)+r}, v{Ov(u,b)+r}, v{V_CI+4*u+2}" for r in range(4)]
    def pmul(u): return [f"v_pk_mul_f32 {vr(Ov(u,0)+r,2)}, {vr(Ov(u,0)+r,2)}, {vr(V_CI+4*u+2,2)} op_sel_hi:[1,0]" for r in range(0, 8, 2)]
    def swp(u): return [f"v_permlane16_swap_b32 v{Ov(u,0)+r}, v{Ov(u,0)+2+r}" for r in range(2)]
    def sto(u): return f"s_movk_i32 s98, {u*4096}"
    def ST(u): return ("V", f"buffer_store_dwordx4 {vr(Ov(u,0),4)}, v{V_ST}, {srd(SRD_O)}, s98 offen{(' '+sflags) if sflags else ''}", "st")
    def seq(mf, fill):
        for i, m in enumerate(mf):
            if m: a(m)
            a(fill.get(i, []))
    a.c("tile 7")
    for u in range(6):
        stamp("e")
        w = u - 1; f = u - 2
        mf = [qk(u + 1, g) for g in range(8)] + (cmb(f) if f >= 0 else [None] * 6) + [pv(u, dt, 1, False) for dt in range(8)] + [sm(u, False)]
        F = {i: [] for i in range(23)}
        if f >= 0:
            r = R(f); F[0] += r[0:2]; F[1] += r[2:4]
        if w >= 0: F[2 if f >= 0 else 3] += [lw(w)]
        for g in range(3): F[g] += [ex(5 + g)]
        F[3] += [cv(2), cv(3)]
        if u == 0:
            e_ = {g: [] for g in range(8)}; s_ = {g: [] for g in range(8)}
            vh1(7, e_, s_)
            for g in range(8): F[g] = s_[g] + e_[g] + F[g]
            F[14] += [f"v_add_u32 v{V_LW}, s{S_LWO}, v{V_CIR}", f"v_subrev_u32 v{V_LR}, {CI_AREA - LT0}, v{V_CIR}"]
            F[15] += [f"v_lshl_add_u32 v{V_XR+j}, v{L}, 4, s{S_XR+j}" for j in range(2)]
            F[16] += [f"v_lshl_add_u32 v{V_XR+2}, v{L}, 4, s{S_XR+2}"]
            F[17] += [("W", None, [("v", 7, 5)])]; F[19] += [("W", "all", [("v", 7, 7)])]
        if f >= 0:
            if epi == 0:
                F[4] += pk(w, 1); F[5] += [xw(w, 1)]; F[6] += pk(w, 2); F[7] += [("W", None, [("x", f)])] + acc(w)
                F[8] += [xw(w, 2)]; F[9] += pk(w, 3); F[10] += ladd(f); F[11] += lrcp(f); F[12] += [xw(w, 3)]
                F[13] += [ex(0)]; F[14] += [ex(1)]; F[15] += [ex(2)]; F[16] += [ex(3)]
                F[17] += mul(f, 0); F[18] += mul(f, 1); F[19] += pk(f, 0)
                F[19] = [("W", None, [("xw", w)])] + F[19]
                F[20] += ["s_barrier", ex(4)]
                F[21] += [sto(f)] + swp(f)
                F[22] += [ST(f), cv(0), cv(1)]
            else:
                p1, p2, p3, ac, la, p0 = pk(w, 1), pk(w, 2), pk(w, 3), acc(w), ladd(f), pk(f, 0)
                F[4] += p1; F[5] += [xw(w, 1)]; F[6] += p2[:2]; F[7] += [("W", None, [("x", f)])] + p2[2:]
                F[8] += ac[:2]; F[9] += [xw(w, 2)]; F[10] += ac[2:]; F[11] += p3[:2]; F[12] += p3[2:]; F[13] += la[:2]
                F[14] += [xw(w, 3)]; F[15] += la[2:] + lrcp(f)[1:]; F[16] += lrcp(f)[:1]; F[17] += [ex(0)]
                F[18] += [ex(1), ex(2), ex(3)] + pmul(f)
                F[19] += [("W", None, [("xw", w)])] + p0
                F[20] += ["s_barrier", ex(4)]
                F[21] += [sto(f)] + swp(f)
                F[22] += [ST(f), cv(0), cv(1)]
        else:
            if w >= 0:
                F[4] += pk(w, 1); F[5] += [xw(w, 1)]; F[6] += pk(w, 2); F[7] += acc(w)
                F[14] += [xw(w, 2)]; F[15] += pk(w, 3); F[17] += [xw(w, 3)]
            for i, g in enumerate((17, 18, 19, 20, 21) if w < 0 else (16, 18, 19, 20, 21)): F[g] += [ex(i)]
            F[22] += [cv(0), cv(1)]
            if w >= 0: F[22] += [("W", None, [("xw", w)]), "s_barrier"]
        seq(mf, F)
    if epi == 0:
        stamp("e")
        a(R(4))
        a([ex(5), ex(6), ex(7)] + pk(5, 1)[:1] + [cv(2), cv(3)] + pk(5, 1)[1:])
        mf = [pv(6, dt, 1, False) for dt in range(2, 8)] + [sm(6, False), pv(6, 0, 1, False), pv(6, 1, 1, False)] + cmb(4)
        F = {0: [xw(5, 1)], 1: [lw(5)] + pk(5, 2), 2: acc(5), 3: [xw(5, 2)], 4: pk(5, 3), 5: [("W", None, [("x", 4)])] + ladd(4), 6: [xw(5, 3)], 7: pk(6, 1), 8: lrcp(4),
             9: [xw(6, 1)], 10: pk(6, 2), 11: acc(6), 12: [xw(6, 2)], 13: pk(6, 3), 14: [lw(6), xw(6, 3)]}
        seq(mf, F)
        a(mul(4, 0))
        a(("W", None, [("xw", 6)])); a("s_barrier")
        stamp()
        a(R(5)); a(R(6))
        a(mul(4, 1)); a(pk(4, 0)); a(sto(4)); a("s_nop 0"); a(swp(4)); a("s_nop 0"); a(ST(4))
        a(("W", None, [("x", 5)]))
        F = {0: ladd(5), 1: lrcp(5), 2: [("W", None, [("x", 6)])] + ladd(6), 3: lrcp(6), 4: [f"s_mov_b32 s99, {hex(f2u(THRESH))}", f"s_cmp_lg_u32 s{S_FB}, 0"],
             5: [f"v_cmp_ngt_f32 vcc, s99, v{V_CHK}", sto(5)], 6: mul(5, 0)[:2], 7: mul(5, 0)[2:], 8: ["s_nop 1"], 9: mul(5, 1), 10: pk(5, 0), 11: mul(6, 0)[:2] + swp(5)}
        seq(cmb(5) + cmb(6), F)
        a("s_nop 0"); a(ST(5)); a(mul(6, 0)[2:]); a(sto(6)); a(mul(6, 1)); a(pk(6, 0)); a("s_nop 1"); a(swp(6)); a("s_nop 0"); a(ST(6))
    else:
        stamp("e")
        a(R(4))
        a([ex(5), ex(6), ex(7)] + pk(5, 1)[:1] + [cv(2), cv(3)] + pk(5, 1)[1:])
        mf = [pv(6, dt, 1, False) for dt in range(2, 8)] + [sm(6, False), pv(6, 0, 1, False), pv(6, 1, 1, False)] + cmb(4)
        F = {0: [xw(5, 1)], 1: [lw(5)] + pk(5, 2), 2: acc(5), 3: [xw(5, 2)], 4: pk(5, 3), 5: [("W", None, [("x", 4)])] + ladd(4), 6: [xw(5, 3)], 7: pk(6, 1), 8: lrcp(4),
             9: [xw(6, 1)], 10: pk(6, 2), 11: [("W", None, [("xw", 5)])] + acc(6), 12: ["s_barrier", xw(6, 2)], 13: R(5) + pk(6, 3), 14: [lw(6), xw(6, 3)]}
        seq(mf, F)
        a([sto(4), f"s_mov_b32 s99, {hex(f2u(THRESH))}", ("W", None, [("x", 5)])] + ladd(5) + lrcp(5))
        a(pmul(4)); a(pk(4, 0))
        a(("W", None, [("xw", 6)])); a("s_barrier")
        stamp()
        a(R(6))
        F = {0: swp(4), 1: [ST(4)], 5: [("W", None, [("x", 6)])] + ladd(6), 6: [sto(5)] + lrcp(6), 7: mul(5, 0)[:2], 8: mul(5, 0)[2:],
             9: [f"s_cmp_lg_u32 s{S_FB}, 0"] + mul(5, 1), 10: pk(5, 0), 11: [f"v_cmp_ngt_f32 vcc, s99, v{V_CHK}", "s_nop 0"] + swp(5)}
        seq(cmb(5) + cmb(6), F)
        a("s_nop 0"); a(ST(5)); a(sto(6)); a("s_nop 0"); a(pmul(6)); a(pk(6, 0)); a("s_nop 1"); a(swp(6)); a("s_nop 0"); a(ST(6))
    a("s_cbranch_scc1 L_ok")
    a("s_cbranch_vccnz L_fallback")
    a.label("L_ok")
    a.free = True
    if diag and spin:
        i, j, mult = spin[:3]
        a("s_waitcnt vmcnt(0)")
        if len(spin) > 3 and spin[3] >= 32:
            a("s_lshr_b32 s84, s2, 6"); a(f"s_cmp_lg_u32 s84, {spin[3] - 32}"); a("s_cbranch_scc1 L_end")
        elif len(spin) > 3 and spin[3] >= 16:
            a("s_bfe_u32 s84, s2, 0x20001"); a(f"s_cmp_lg_u32 s84, {spin[3] - 16}"); a("s_cbranch_scc1 L_end")
        if len(spin) == 3:
            a(f"s_lshl_b32 s84, s2, 2"); a(f"s_add_u32 s84, s84, s{S_W}"); a("s_cmp_lg_u32 s84, 401"); a("s_cbranch_scc1 L_end")
        a("s_memrealtime s[80:81]"); a("s_memtime s[86:87]"); a("s_waitcnt lgkmcnt(0)")
        if absm:
            a("global_load_dword v15, v17, s[46:47] sc1"); a("s_waitcnt vmcnt(0)"); a("v_readfirstlane_b32 s85, v15"); a("s_nop 3"); a("s_not_b32 s85, s85")
            sj = 80 if j == 8 else S_STAMP + 2*j
            a(f"s_sub_u32 s84, s{sj}, s85"); a(f"s_mul_i32 s84, s84, {mult}")
        elif mult > 0:
            sj = 80 if j == 8 else S_STAMP + 2*j
            a(f"s_sub_u32 s84, s{sj}, s{S_STAMP+2*i}"); a(f"s_mul_i32 s84, s84, {mult}")
        else:
            sj = 86 if j == 8 else S_STAMP + 16 + 2*j
            a(f"s_sub_u32 s84, s{sj}, s{S_STAMP+16+2*i}"); a(f"s_lshr_b32 s84, s84, {-mult}")
        a("s_min_u32 s84, s84, 20000")
        a.label("L_spin")
        a("s_memrealtime s[82:83]"); a("s_waitcnt lgkmcnt(0)")
        a("s_sub_u32 s85, s82, s80"); a("s_cmp_lt_u32 s85, s84"); a("s_cbranch_scc1 L_spin")
    elif diag:
        a("s_memrealtime s[84:85]"); a("s_memtime s[86:87]")
        a("s_waitcnt vmcnt(0)")
        a("s_memrealtime s[80:81]"); a("s_memtime s[82:83]")
        a("s_branch L_dump")
    a.label("L_end")
    a("s_endpgm")
    iend = len(a.l)
    if warm > 1:
        a.raw(f".fill ({4 * 4096 - head} - (. - {NAME}_kernel)) / 4, 4, 0xbf810000")
        a.label("L_pg3")
        a("s_branch L_back")
    a.label("L_fallback")
    a("s_waitcnt vmcnt(0) lgkmcnt(0)")
    a("s_barrier")
    a(f"s_mov_b32 s{S_FB}, 1")
    a("s_branch L_start")
    a.label("L_pass1")
    for u in range(7):
        for x in qreads(u)[1:]: a(x[1])
        a("s_waitcnt lgkmcnt(0)")
    a("s_waitcnt vmcnt(0)")
    a("s_barrier")
    a("s_mov_b32 s42, 0")
    MX = V_OWN
    for u in range(7): a(f"v_mov_b32 v{MX+u}, 0xff800000")
    a.label("L_fb1")
    a(m0(0)); a(f"s_add_u32 s{S_SO}, s42, 128")
    for p in range(4): a(dma(SRD_K, 42, p, "f")[1])
    a(m0(4096)); a("s_nop 0")
    for p in range(4): a(dma(SRD_K, S_SO, p, "f")[1])
    a("s_waitcnt vmcnt(0)")
    for j in range(8): a(kread(0, j))
    a("s_waitcnt lgkmcnt(0)")
    for u in range(7):
        for j in range(8): a(qk(u, j, zero=True))
        a("s_nop 7")
        for r in range(0, 8, 2): a(f"v_max3_f32 v{MX+u}, v{MX+u}, v{V_S+r}, v{V_S+r+1}")
    a("s_add_u32 s42, s42, 0x2000")
    a("s_cmp_lt_u32 s42, 0x10000")
    a("s_cbranch_scc1 L_fb1")
    for sw in ("v_permlane16_swap_b32", "v_permlane32_swap_b32"):
        for u in range(7): a(f"v_mov_b32 v{MX+8+u}, v{MX+u}")
        a("s_nop 1")
        for u in range(7): a(f"{sw} v{MX+u}, v{MX+8+u}")
        a("s_nop 1")
        for u in range(7): a(f"v_max_f32 v{MX+u}, v{MX+u}, v{MX+8+u}")
    a(f"v_add_u32 v{V_P}, s{S_LWO}, v{V_CIR}")
    for u in range(7): a(f"ds_write_b32 v{V_P}, v{MX+u} offset:{LTAB(u)}")
    a("s_waitcnt lgkmcnt(0)")
    a("s_barrier")
    a(f"s_and_b32 s42, s{S_W}, 1"); a("s_lshl_b32 s42, s42, 9")
    a(f"s_lshr_b32 s98, s{S_W}, 1"); a(f"s_mul_i32 s98, s98, {REG}"); a("s_add_u32 s42, s42, s98")
    a(f"s_sub_u32 s42, s42, {CI_AREA - LT0}")
    a(f"v_add_u32 v{V_P}, s42, v{V_CIR}")
    for h in range(2): a(f"ds_read_b128 {vr(V_S+4*h,4)}, v{V_P} offset:{256*h}")
    a("s_waitcnt lgkmcnt(0)")
    for h in range(2):
        a(f"v_max3_f32 v{V_KEEP+h}, v{V_S+4*h}, v{V_S+4*h+1}, v{V_S+4*h+2}")
        a(f"v_max_f32 v{V_KEEP+h}, v{V_KEEP+h}, v{V_S+4*h+3}")
    a(f"s_mov_b32 s{S_FB}, 2")
    a(f"s_mov_b64 s[{S_FBM}:{S_FBM+1}], -1")
    a("s_barrier")
    a("s_branch L_start")
    if diag and not spin:
        a.label("L_dump")
        a("s_mov_b32 s36, s46"); a("s_mov_b32 s37, s47"); a("s_mov_b32 s38, 0x100000"); a("s_mov_b32 s39, 0x20000")
        a("s_waitcnt lgkmcnt(0)")
        a("s_lshl_b32 s40, s2, 2"); a(f"s_add_u32 s40, s40, s{S_W}"); a("s_lshl_b32 s40, s40, 8")
        a(f"v_mov_b32 v4, s40")
        a(f"v_cmp_eq_u32 vcc, 0, v{L}")
        a("s_and_saveexec_b64 s[42:43], vcc")
        slots = [(S_STAMP+2*i, i) for i in range(8)] + [(84, 8), (80, 9)] + [(S_STAMP+16+2*i, 16+i) for i in range(8)] + [(86, 24), (82, 25)]
        for s, i in slots:
            a(f"v_mov_b32 v6, s{s}"); a(f"v_mov_b32 v7, s{s+1}"); a(f"buffer_store_dwordx2 v[6:7], v4, s[36:39], 0 offen offset:{8*i}"); a("s_nop 1")
        a("s_endpgm")
    lin = a.l[:i1] + a.l[i0:i1] + a.l[i1:iend]
    bad = hz.check(lin) + hz.check(a.l[iend:])
    for b in bad: print("HAZARD", b, file=sys.stderr)
    a.raw('.section .rodata,"a"'); a.raw(".p2align 6"); a.raw(f".amdhsa_kernel {NAME}_kernel")
    a.raw("  .amdhsa_next_free_vgpr 512"); a.raw("  .amdhsa_next_free_sgpr 102"); a.raw("  .amdhsa_accum_offset 256")
    a.raw("  .amdhsa_group_segment_fixed_size 0"); a.raw("  .amdhsa_kernarg_size 48"); a.raw("  .amdhsa_user_sgpr_count 2")
    a.raw("  .amdhsa_user_sgpr_kernarg_segment_ptr 1"); a.raw("  .amdhsa_system_sgpr_workgroup_id_x 1"); a.raw(".end_amdhsa_kernel")
    if warm: a.l = add_stubs(a.l, head)
    return "\n".join(a.l) + "\n"

if __name__ == "__main__":
    ap = argparse.ArgumentParser()
    ap.add_argument("-o", default=f"kI.s")
    ap.add_argument("--diag", action="store_true")
    ap.add_argument("--spin", default=None); ap.add_argument("--flags", default=""); ap.add_argument("--sflags", default="sc1")
    ap.add_argument("--n0", type=int, default=8); ap.add_argument("--mix", type=int, default=1); ap.add_argument("--vsch", default="2,2,2,2,0")
    ap.add_argument("--t0extra", type=int, default=2); ap.add_argument("--pace", type=int, default=2); ap.add_argument("--fine", default="c")
    ap.add_argument("--cgap", type=int, default=14); ap.add_argument("--pref", type=int, default=2); ap.add_argument("--align", type=int, default=12); ap.add_argument("--head", type=int, default=3328); ap.add_argument("--warm", type=int, default=0); ap.add_argument("--rot", default="0,0"); ap.add_argument("--touch", type=int, default=0); ap.add_argument("--pre0", type=int, default=2); ap.add_argument("--mid", default=""); ap.add_argument("--epi", type=int, default=1); ap.add_argument("--absm", action="store_true"); ap.add_argument("--wg", default="4,5,6,7,8,9,10")
    args = ap.parse_args()
    tup = lambda s: tuple(map(int, s.split(',')))
    open(args.o, "w").write(gen(diag=args.diag, flags=args.flags, sflags=args.sflags, n0=args.n0, mix=args.mix, vsch=tup(args.vsch), t0extra=args.t0extra,
                                pace=args.pace, fine=args.fine, cgap=args.cgap, pref=args.pref, align=args.align, head=args.head, warm=args.warm, rot=tup(args.rot), touch=args.touch, pre0=args.pre0, epi=args.epi, absm=args.absm, mid=tup(args.mid) if args.mid else None, wg=tup(args.wg), spin=tup(args.spin) if args.spin else None))
```

```python
import sys, struct, argparse
import hz
NAME = "standalone__gqa_softmax__near_ridge"
def f2u(x): return struct.unpack("<I", struct.pack("<f", x))[0]
def vr(b, n=1): return f"v{b}" if n == 1 else f"v[{b}:{b+n-1}]"
def ar(b, n=1): return f"a{b}" if n == 1 else f"a[{b}:{b+n-1}]"
def srd(b): return f"s[{b}:{b+3}]"

V_LANE, V_LIN, V_KEEP, V_VOFF, V_AK, V_AV = 0, 1, 2, 4, 8, 10
V_QA0, V_X0, V_QA1, V_X1, V_ST, V_CIR = 14, 15, 16, 17, 18, 19
V_S, V_P, V_CI, V_OWN, V_OTH = 20, 28, 32, 60, 116
A_O7, A_L, A_ONE, A_K, A_V, A_Q = 0, 28, 56, 60, 92, 144
V_XR, V_LW, V_LR, V_CHK = 4, 7, 8, 9
A_SEL = A_V + 36
def A_X(u): return A_Q + 16 * (u % 2)
S_W = 3
SRD_Q, SRD_K, SRD_V, SRD_O = 12, 16, 20, 24
S_MK0, S_MK1, S_MV0, S_MV1 = 28, 29, 30, 31
S_Y, S_FB, S_WB, S_CNT = 32, 33, 34, 35
S_SO = 44
S_STAMP = 48
S_FBM = 88
S_XR = 90
S_LWO = 93
S_Y0 = 100
S_K0 = 101
S_YR = 43
REG = 40960
KB = lambda par: par * 8192
VB = lambda par: 16384 + par * 8192
XO = 32768
CI_AREA = 3 * REG + XO + 6144
LT0 = 39936
def LTAB(u): return u * 256 if u < 4 else REG + (u - 4) * 256
SCALE = (128 ** -0.5) * 1.4426950408889634
THRESH = 2.0 ** 40
M16 = "v_mfma_f32_16x16x32_bf16"

def Qf(u, c): return ar(A_Q + 16 * u + 4 * c, 4)
def Kf(j): return ar(A_K + 4 * j, 4)
def Vbase(dt, par): return A_V + 32 if (dt == 3 and par) else A_V + 4 * dt
def Ov(u, dt): return V_OWN + 8 * u + 4 * dt if dt < 2 else V_OTH + 20 * u + 4 * (dt - 2)
def Of(u, dt): return ar(A_O7 + 4 * u, 4) if dt == 7 else vr(Ov(u, dt), 4)
def qk(u, j, zero=False):
    kt, c = j // 4, j % 4
    S = vr(V_S + 4 * kt, 4)
    cc = S if c else ("0" if zero else vr(V_CI + 4 * u, 4))
    return f"{M16} {S}, {Kf(j)}, {Qf(u, c)}, {cc}"
def pv(u, dt, par, first):
    o = Of(u, dt)
    return f"{M16} {o}, {ar(Vbase(dt, par), 4)}, {vr(V_P, 4)}, {'0' if first else o}"
def sm(u, first):
    o = ar(A_L + 4 * u, 4)
    return f"{M16} {o}, {ar(A_ONE, 4)}, {vr(V_P, 4)}, {'0' if first else o}"
def ex(e): return f"v_exp_f32 v{V_S+e}, v{V_S+e}"
def cv(i): return f"v_cvt_pk_bf16_f32 v{V_P+i}, v{V_S+2*i}, v{V_S+2*i+1}"
def kread(par, j, base=None, dst=None):
    kt, c = j // 4, j % 4
    off = (KB(par) if base is None else base) + (c >> 1) * 4096 + kt * 2048
    return f"ds_read_b128 {dst or Kf(j)}, v{V_AK + (c & 1)} offset:{off}"
def vread(par, dt):
    b = Vbase(dt, par)
    return [f"ds_read_b64_tr_b16 {ar(b + 2*h, 2)}, v{V_AV + (dt & 3)} offset:{VB(par) + (dt >> 2) * 4096 + h * 2048}" for h in range(2)]

class Gen:
    def __init__(self):
        self.l = []; self.vq = []; self.lq = []; self.ldone = 0; self.free = False
    def __call__(self, s):
        if isinstance(s, list):
            for x in s: self(x)
        elif isinstance(s, tuple):
            if s[0] == "L": self.l.append("    " + s[1]); self.lq.append(s[2])
            elif s[0] == "V":
                tg = s[2]
                if isinstance(tg, tuple) and tg[0] in "KV" and tg[1] >= 2:
                    kv, x, hf = tg
                    need = ([("k", x-2)] if x > 2 else ["k0a", "k0b"]) if kv == "K" else [("v", x-2, dt) for dt in range(4*hf, 4*hf+4)]
                    for n in need:
                        idx = [i for i, t in enumerate(self.lq) if t == n]
                        assert idx and max(idx) < self.ldone, ("LDS WAR", tg, n)
                self.l.append("    " + s[1]); self.vq.append(s[2])
            elif s[0] == "W":
                parts = []
                for q, tags, nm, mx in ((self.vq, s[1], "vmcnt", 63), (self.lq, s[2], "lgkmcnt", 15)):
                    if tags is None: continue
                    if tags == "all": n = 0
                    else:
                        idx = [i for i, t in enumerate(q) if t in tags]
                        assert idx, ("no such tag", tags)
                        n = len(q) - 1 - max(idx)
                    if nm == "lgkmcnt": self.ldone = max(self.ldone, len(q) - min(n, mx))
                    parts.append(f"{nm}({min(n, mx)})")
                self.l.append("    s_waitcnt " + " ".join(parts))
        else:
            assert not (s.startswith("ds_") or s.startswith("buffer_")) or self.free, s
            self.l.append("    " + s)
    def label(self, s): self.l.append(s + ":")
    def c(self, s): self.l.append("    ; " + s)
    def raw(self, s): self.l.append(s)

def sizes(lines):
    import subprocess, tempfile, os, re
    with tempfile.TemporaryDirectory() as d:
        src = [l for l in lines]
        src.insert(src.index("L_end:"), "L_pg1:\nL_pg2:")
        open(d + "/t.s", "w").write("\n".join(src) + "\n")
        subprocess.run(["clang", "-x", "assembler", "-target", "amdgcn-amd-amdhsa", "-mcpu=gfx950", "-c", d + "/t.s", "-o", d + "/t.o"], check=True)
        out = subprocess.run(["llvm-objdump", "-d", "--mcpu=gfx950", d + "/t.o"], capture_output=True, text=True).stdout
    return [(int(m.group(2), 16), m.group(1)) for m in re.finditer(r"^\t(\S+).*// ([0-9A-F]+):", out, re.M)]
def add_stubs(lines, head):
    lines = list(lines)
    for pg in (1, 2):
        tmp = [l for l in lines if l not in ("L_pg1:", "L_pg2:")]
        ins = [x for x in sizes(tmp) if x[0] >= head]
        mf = [off for off, mn in ins if mn.startswith("v_mfma")]
        target = (pg + (1 if head else 0)) * 4096
        k = next(i for i, off in enumerate(mf) if off >= target - 8)
        assert mf[k] + 8 < target + 60, (mf[k], target)
        idx = [i for i, l in enumerate(lines) if l.strip().startswith("v_mfma")][k]
        lines[idx + 1:idx + 1] = [f"L_pg{pg}:", "    s_cbranch_execz L_back"]
    return lines

def gen(diag=False, flags="", sflags="sc1", spin=None, n0=8, mix=1, vsch=(2, 2, 2, 2, 0), t0extra=2, pace=2, fine='c', cgap=14, pref=2, align=12, head=3328, warm=0, rot=(0, 0), touch=0, pre0=2, mid=None, epi=1, absm=False, wg=(4, 5, 6, 7, 8, 9, 10)):
    a = Gen()
    fl = (" " + flags) if flags else ""
    def dma(s, soff, p, tag): return ("V", f"buffer_load_dwordx4 v{V_VOFF+p}, {srd(s)}, s{soff} offen offset:{p*1024}{fl} lds", tag)
    def m0(off): return f"s_add_u32 m0, s{S_WB}, {off}"
    def Ls(texts, tag): return [("L", t, tag) for t in texts]
    nst = [0]
    def stamp(kind="c"):
        if diag and kind in fine and nst[0] < 8:
            a(f"s_memrealtime s[{S_STAMP+2*nst[0]}:{S_STAMP+2*nst[0]+1}]")
            a(f"s_memtime s[{S_STAMP+16+2*nst[0]}:{S_STAMP+16+2*nst[0]+1}]")
            nst[0] += 1
    GROUPS = (("K", 0), ("K", 1), ("V", 0), ("V", 1))
    stream = []
    for x in range(1, 10):
        for gi, (kv, hf) in enumerate(GROUPS):
            s_, buf = (SRD_K, KB(x & 1)) if kv == "K" else (SRD_V, VB(x & 1))
            for p in range(4):
                pre = []; so = S_SO
                if p == 0:
                    if gi == 0: pre += [("Y", x)]
                    pre += [m0(buf + hf * 4096)]
                    pre += [f"s_or_b32 s{S_SO}, s{S_Y}, s{S_MV0+hf}" if kv == "V" else f"s_or_b32 s{S_SO}, s{S_Y}, {128*hf}"]
                stream.append((pre, dma(s_, so, p, (kv, x, hf)), x))
    spos = [0]
    def expand(pre):
        out = []
        for y in pre:
            if isinstance(y, tuple) and y[0] == "Y":
                out += [f"s_add_u32 s{S_Y}, s{S_Y}, 0x2000"]
                if y[1] % 2 == 0 and y[1] >= 4:
                    out += [f"s_cmp_lt_u32 s{S_Y}, 0x10000", f"s_cselect_b32 s{SRD_K+2}, 0x10000, 0", f"s_mov_b32 s{SRD_V+2}, s{SRD_K+2}"]
            elif isinstance(y, tuple): out += ["s_nop 0"]
            else: out.append(y)
        return out
    def nextpre():
        pre, d, x = stream[spos[0]]
        stream[spos[0]] = ([], d, x)
        return expand(pre)
    def nextdma():
        pre, d, x = stream[spos[0]]
        spos[0] += 1
        return expand(pre) + [d]

    a.raw(open("cdna_kernels/%s.s.ref" % NAME).read().split("; Override launch")[0].rstrip())
    a.raw("; @launch grid=(256,1,1) block=(256,1,1) lds=163840")
    a.raw('.amdgcn_target "amdgcn-amd-amdhsa--gfx950"')
    a.raw(".text"); a.raw(f".globl {NAME}_kernel"); a.raw(f".p2align {align}"); a.raw(f".fill {head // 4}, 4, 0xbf810000"); a.raw(".p2align 8"); a.raw(f".type {NAME}_kernel,@function")
    a.label(f"{NAME}_kernel")
    a("s_load_dwordx8 s[4:11], s[0:1], 0")
    a("s_cmp_ge_u32 s2, 256")
    a("s_cbranch_scc1 L_end")
    if diag:
        a("s_load_dwordx2 s[46:47], s[0:1], %d" % (32 if absm else 40))
        stamp(fine[0])
    L = V_LANE
    T = V_S
    a(f"v_lshrrev_b32 v{T}, 6, v0")
    a(f"v_and_b32 v{L}, 63, v0")
    a(f"v_readfirstlane_b32 s{S_W}, v{T}")
    a("s_and_b32 s36, s2, 7")
    a("s_lshr_b32 s37, s2, 3")
    a("s_lshl_b32 s36, s36, 5")
    a("s_add_u32 s36, s36, s37")
    a("s_mul_i32 s38, s36, 28672")
    a(f"s_mul_i32 s{S_WB}, s{S_W}, {REG}")
    a(f"s_movk_i32 s{SRD_Q+2}, 28672")
    a(f"s_mov_b32 s{SRD_Q+3}, 0x20000")
    a(f"s_lshl_b32 s40, s{S_W}, 13")
    a(f"s_mov_b32 s{S_FB}, 0")
    a(f"s_mov_b64 s[{S_FBM}:{S_FBM+1}], 0")
    a.label("L_start")
    a(f"v_lshrrev_b32 v{T}, 3, v{L}")
    a(f"v_and_b32 v{T+1}, 6, v{T}")
    a(f"v_xor_b32 v{T+1}, v{T+1}, v{L}")
    a(f"v_and_b32 v{T+1}, 7, v{T+1}")
    a(f"v_lshlrev_b32 v{T+1}, 4, v{T+1}")
    a(f"v_lshl_add_u32 v{V_VOFF}, v{T}, 8, v{T+1}")
    a(f"v_xor_b32 v{V_VOFF+1}, 16, v{V_VOFF}")
    a(f"v_add_u32 v{V_VOFF+1}, 0x400, v{V_VOFF+1}")
    a(m0(XO))
    a("s_add_u32 s41, s40, 128")
    a("s_lshr_b32 s39, s36, 2")
    a("s_lshl_b32 s39, s39, 18")
    a(f"s_lshl_b32 s42, s{S_W}, 16")
    a("s_add_u32 s39, s39, s42")
    a(f"s_mov_b32 s{SRD_K+2}, 0x10000")
    a(f"s_mov_b32 s{SRD_K+3}, 0x20000")
    a(f"s_mov_b32 s{S_Y}, 0")
    a("s_movk_i32 s43, 128")
    a("s_getpc_b64 s[94:95]")
    a.label("L_pc")
    a(f"s_lshl_b32 s97, s{S_W}, 5")
    a("s_add_u32 s97, s97, s37")
    a("s_lshl_b32 s97, s97, 6")
    a(f"s_add_u32 s94, s94, {4096 - head}-(L_pc-{NAME}_kernel)")
    a("s_addc_u32 s95, s95, 0")
    if pre0 == 2:
        a(f"v_mov_b32 v{T+2}, s97")
        a(("V", f"global_load_dword v{V_CI}, v{T+2}, s[94:95]", "pf"))
    stamp("k")
    a("s_waitcnt lgkmcnt(0)")
    stamp("k")
    if pre0 == 1: a("s_load_dword s96, s[94:95], s97")
    def base(b, src, off): return [f"s_add_u32 s{b}, s{src}, s{off}", f"s_addc_u32 s{b+1}, s{src+1}, 0"]
    a(base(SRD_Q, 4, 38))
    for p in (0, 1): a(dma(SRD_Q, 40, p, "Qa"))
    a(m0(XO + 4096)); a(base(SRD_K, 6, 39))
    for p in (0, 1): a(dma(SRD_Q, 41, p, "Qa"))
    a(m0(KB(0)))
    a(f"s_cmp_eq_u32 s{S_W}, 3")
    for p in (0, 1): a(dma(SRD_K, S_Y, p, "K0a"))
    a(f"s_cselect_b32 s45, 0x4000, 0")
    a(m0(KB(0) + 4096))
    a(f"s_add_u32 s45, s45, s{S_WB}")
    for p in (0, 1): a(dma(SRD_K, 43, p, "K0a"))
    a(f"v_add_u32 v{V_VOFF+2}, 0x800, v{V_VOFF}")
    a(f"v_add_u32 v{V_VOFF+3}, 0x800, v{V_VOFF+1}")
    a(f"s_add_u32 m0, s45, {XO + 4096}"); a("s_nop 0")
    for p in (2, 3): a(dma(SRD_Q, 41, p, "Qb"))
    a(f"s_add_u32 m0, s45, {XO}"); a("s_nop 0")
    for p in (2, 3): a(dma(SRD_Q, 40, p, "Qb"))
    a(base(SRD_V, 8, 39)); a(base(SRD_O, 10, 38))
    a(f"s_mov_b32 s{SRD_V+2}, 0x10000"); a(f"s_mov_b32 s{SRD_V+3}, 0x20000")
    a(f"s_movk_i32 s{SRD_O+2}, 28672"); a(f"s_mov_b32 s{SRD_O+3}, 0x20000")
    if warm:
        a("s_mov_b64 exec, 0")
        for w in (1, 2, 3)[:warm + 1]:
            a(f"s_cmp_eq_u32 s{S_W}, {w}")
            a(f"s_cbranch_scc1 L_pg{w}")
        a.label("L_back")
        a("s_mov_b64 exec, -1")
    a(f"s_lshr_b32 s{S_MV0}, s{S_W}, 1"); a(f"s_lshl_b32 s{S_MV0}, s{S_MV0}, 7")
    a(f"s_xor_b32 s{S_MV1}, s{S_MV0}, 128")

    a(f"v_and_b32 v{T}, 15, v{L}")
    a(f"v_and_b32 v{T+1}, 6, v{T}")
    a(f"v_lshrrev_b32 v{T+2}, 3, v{T}")
    a(f"v_or_b32 v{T+1}, v{T+1}, v{T+2}")
    a(f"v_lshrrev_b32 v{T+2}, 4, v{L}")
    a(f"v_lshlrev_b32 v{T+2}, 1, v{T+2}")
    a(f"v_xor_b32 v{T+1}, v{T+1}, v{T+2}")
    a(f"v_lshlrev_b32 v{T+1}, 4, v{T+1}")
    a(f"v_lshl_add_u32 v{T+1}, v{T}, 7, v{T+1}")
    a(f"v_add_u32 v{V_AK}, s{S_WB}, v{T+1}")
    a(f"v_xor_b32 v{V_AK+1}, 16, v{V_AK}")
    a(f"v_lshl_add_u32 v{V_LIN}, v{L}, 4, s{S_WB}")
    CIW, QWB, SC = V_CI + 24, V_CI + 25, V_CI + 26
    a(f"v_mov_b32 v{SC}, {hex(f2u(SCALE))}")
    a(f"v_lshl_add_u32 v{QWB}, v{L}, 4, s45")
    a(f"s_lshl_b32 s42, s{S_W}, 9")
    a(f"v_lshlrev_b32 v{T+3}, 4, v{T}")
    a(f"v_add_u32 v{V_CIR}, {CI_AREA}, v{T+3}")
    a(f"v_add_u32 v{CIW}, s42, v{V_CIR}")
    a(f"v_lshlrev_b32 v{T+3}, 4, v{L}")
    a(f"v_add_u32 v{V_QA0}, {XO}, v{T+3}")
    a(f"v_add_u32 v{V_QA1}, {2*REG + XO}, v{T+3}")
    for j in range(1, 4):
        a(f"s_xor_b32 s42, s{S_W}, {j}")
        a(f"s_mul_i32 s{S_XR+j-1}, s42, {REG}")
    a(f"s_lshl_b32 s{S_LWO}, s{S_W}, 2")
    a(f"s_sub_u32 s{S_LWO}, s{S_LWO}, {CI_AREA - LT0}")
    a(f"v_lshrrev_b32 v{T+1}, 4, v{L}")
    a(f"v_lshrrev_b32 v{T+2}, 2, v{T}")
    a(f"v_cmp_eq_u32 vcc, v{T+1}, v{T+2}")
    a(f"v_and_b32 v{T+2}, 1, v{L}")
    a(f"v_lshlrev_b32 v{T+2}, 4, v{T+2}")
    a(f"v_mov_b32 v{T+3}, 0x3f80")
    a(f"v_lshlrev_b32 v{T+3}, v{T+2}, v{T+3}")
    a(f"v_cndmask_b32 v{T+3}, 0, v{T+3}, vcc")
    a(f"v_and_b32 v{T+2}, 2, v{L}")
    a(f"v_cmp_eq_u32 vcc, 0, v{T+2}")
    a(f"v_bfe_u32 v{T+4}, v{L}, 4, 1")
    a(f"v_lshrrev_b32 v{T+5}, 5, v{L}")
    a(f"v_cndmask_b32 v{V_X0}, 0, v{T+3}, vcc")
    a(f"v_sub_u32 v{V_X1}, v{T+3}, v{V_X0}")
    for r, x in enumerate(("0", "0", f"v{V_X0}", f"v{V_X1}", "0", "0")): a(f"v_accvgpr_write_b32 a{A_SEL+r}, {x}")
    a(f"v_lshl_add_u32 v{T+4}, v{T+4}, 1, v{T+5}")
    a(f"v_lshlrev_b32 v{T+4}, 4, v{T+4}")
    a(f"v_lshl_add_u32 v{T+4}, v{T}, 8, v{T+4}")
    a(f"s_lshl_b32 s42, s{S_W}, 6")
    a(f"v_add_u32 v{V_ST}, s42, v{T+4}")
    a(f"v_and_b32 v{T+2}, 3, v{L}")
    a(f"v_cmp_eq_u32 vcc, 0, v{T+2}")
    a(f"v_lshrrev_b32 v{T}, 2, v{L}")
    a(f"v_and_b32 v{T+1}, 6, v{T}")
    a(f"v_lshrrev_b32 v{T+2}, 3, v{T}")
    a(f"v_or_b32 v{T+1}, v{T+1}, v{T+2}")
    a(f"v_bfe_u32 v{T+2}, v{L}, 1, 1")
    a(f"v_xor_b32 v{T+1}, v{T+1}, v{T+2}")
    a(f"s_and_b32 s42, s{S_W}, 1")
    a("s_lshl_b32 s42, s42, 2")
    a(f"v_xor_b32 v{T+1}, s42, v{T+1}")
    a(f"v_lshlrev_b32 v{T+1}, 4, v{T+1}")
    a(f"v_lshl_add_u32 v{T+1}, v{T}, 7, v{T+1}")
    a(f"v_and_b32 v{T+2}, 1, v{L}")
    a(f"v_lshl_add_u32 v{T+1}, v{T+2}, 3, v{T+1}")
    a(f"v_add_u32 v{V_AV}, s{S_WB}, v{T+1}")
    for k in range(1, 4): a(f"v_xor_b32 v{V_AV+k}, {32*k}, v{V_AV}")
    a(f"v_mov_b32 v{T+2}, 0x3f803f80")
    a(f"v_cndmask_b32 v{T+2}, 0, v{T+2}, vcc")
    for r in range(4): a(f"v_accvgpr_write_b32 a{A_ONE+r}, v{T+2}")

    if pref:
        a(f"s_and_b32 s97, s97, 0xfff")
        a(f"s_add_u32 s97, s97, 0x2000")
    if touch: a(("V", f"buffer_load_dword v{V_CI}, off, {srd(SRD_O)}, 0", "touch"))
    a(m0(KB(0) + 4096)); a("s_nop 0")
    for p in (2, 3): a(dma(SRD_K, 43, p, "K0b"))
    a(m0(KB(0))); a("s_nop 0")
    for p in (2, 3): a(dma(SRD_K, S_Y, p, "K0b"))

    RAW, QP, TMP = V_OTH, V_OWN, V_OTH + 32
    left = [n0]
    def more(n=1):
        for _ in range(n):
            if left[0] > 0: a(nextdma()); left[0] -= 1
    v0 = [0]
    def v0dma(n=1):
        for _ in range(n):
            j = v0[0]
            if j >= 8: return
            if j % 4 == 0: a(m0(VB(0) + (j // 4) * 4096)); a("s_nop 0")
            a(dma(SRD_V, S_MV0 + j // 4, j % 4, ("V", 0, j // 4)))
            v0[0] += 1
    def qoff(h, c): return XO + (c >> 1) * 4096 + h * 2048 + (c & 1) * 1024
    def qw(h, c): return ("L", f"ds_write_b128 v{V_LIN if h == 0 else QWB}, {vr(QP + 16*h + 4*c, 4)} offset:{qoff(h, c)}", "qw")
    def scale_ops(j):
        o = []
        for r in range(4):
            o += [f"v_lshlrev_b32 v{TMP+2*r}, 16, v{RAW+4*j+r}", f"v_and_b32 v{TMP+2*r+1}, 0xffff0000, v{RAW+4*j+r}"]
        o += [f"v_pk_mul_f32 {vr(TMP+2*r,2)}, {vr(TMP+2*r,2)}, {vr(SC,2)} op_sel_hi:[1,0]" for r in range(4)]
        o += [f"v_cvt_pk_bf16_f32 v{QP+4*j+r}, v{TMP+2*r}, v{TMP+2*r+1}" for r in range(4)]
        return o
    def red_ops(h):
        S = V_S + 4*h; M = V_P + 2*h
        o = [f"v_max3_f32 v{M}, v{S}, v{S+1}, v{S+2}", f"v_max_f32 v{M}, v{M}, v{S+3}"]
        for sw in ("v_permlane16_swap_b32", "v_permlane32_swap_b32"):
            o += [f"v_mov_b32 v{M+1}, v{M}", f"{sw} v{M}, v{M+1}", f"v_max_f32 v{M}, v{M}, v{M+1}"]
        o += [f"v_mul_f32 v{M}, v{M}, v{SC}", f"v_cndmask_b32 v{M}, v{M}, v{V_KEEP+h}, s[{S_FBM}:{S_FBM+1}]"]
        o += [f"v_sub_f32 v{S+r}, 0, v{M}" for r in range(4)]
        return o
    def part(h, d0, d1):
        for c in range(4): a(("L", kread(0, 4*h + c, base=XO, dst=vr(RAW + 16*h + 4*c, 4)), ("raw", h, c)))
        if h == 0:
            a(("W", ["K0a"], None))
            for jj in range(4): a(("L", kread(0, jj), "k0a"))
        v0dma(d0)
        a(("W", None, [("raw", h, 0)]))
        a(scale_ops(4*h))
        a(("W", None, [("raw", h, 3), "k0a"]))
        S = vr(V_S + 4*h, 4)
        o1 = scale_ops(4*h + 1)
        for c in range(4):
            a(f"{M16} {S}, {Kf(c)}, {vr(RAW + 16*h + 4*c, 4)}, {S if c else '0'}")
            if c == 0: a(qw(h, 0))
            else: a(o1[:2]); del o1[:2]
        a(o1)
        a(qw(h, 1)); v0dma(d1)
        red = red_ops(h)
        for c in (2, 3):
            o = scale_ops(4*h + c)
            while o:
                a(o[:2]); del o[:2]
                if red: a(red.pop(0))
            a(qw(h, c))
        a(red)
        a(("L", f"ds_write_b128 v{CIW}, {S} offset:{256*h}", "ciw"))
    stamp("p")
    a(("W", ["Qa"], None))
    stamp(); stamp("p")
    part(0, vsch[0], vsch[1])
    v0dma(vsch[2])
    stamp("p")
    a(("W", ["Qb"], None))
    stamp("p")
    part(1, vsch[3], vsch[4])
    v0dma(8); more(pace)
    a(f"s_cmp_eq_u32 s{S_FB}, 1")
    stamp(); stamp("p")
    a(("W", None, "all"))
    a("s_barrier")
    a("s_cbranch_scc1 L_pass1")
    stamp(); stamp("p")
    def qreads(u):
        w, h = u // 2, u % 2
        ad = V_QA0 if w < 2 else V_QA1
        out = [f"ds_read_b128 {vr(V_CI+4*u,4)}, v{V_CIR} offset:{u*256}"]
        out += [f"ds_read_b128 {Qf(u,c)}, v{ad} offset:{(w&1)*REG + qoff(h, c) - XO}" for c in range(4)]
        return Ls(out, ("q", u))
    a(qreads(0))
    a(("W", ["K0b"], None))
    for jj in range(4, 8): a(("L", kread(0, jj), "k0b"))
    a(qreads(1))
    more()
    a(("W", None, [("q", 0)]))
    for j in range(8):
        if j == 4: a(("W", None, ["k0b"]))
        a(qk(0, j))
        if j in (2, 5, 7): more()
    more(64)
    a(("W", [("V", 0, 0)], None))
    for dt in range(4): a(Ls(vread(0, dt), ("v", 0, dt)))
    for e in range(5): a(ex(e))
    a(cv(0)); a(cv(1))
    stamp()

    pend = []
    def emit_step(u, par, first, ext, shadow, dgaps):
        for g in range(17):
            a(qk((u + 1) % 7, g) if g < 8 else (pv(u, g - 8, par, first) if g < 16 else sm(u, first)))
            valu = g < 4 or g > 10
            if g in dgaps:
                a(list(pend)); pend.clear()
                a(nextdma())
                a(shadow[g])
            else:
                a(shadow[g])
                room = (1 if valu else 2) - len(ext[g]) - len(shadow[g])
                if room > 0 and dgaps:
                    if not pend: pend.extend(nextpre())
                    a(pend[:room]); del pend[:room]
            a(ext[g])
            if g < 3: a(ex(5 + g))
            elif g == 3: a(cv(2)); a(cv(3))
            elif 11 <= g <= 15: a(ex(g - 11))
            elif g == 16: a(cv(0)); a(cv(1))

    def vh1(t, ext, sh):
        sh[2].append(("W", None, [("v", t, dt) for dt in range(4)]))
        sh[3].append(("W", [("V", t, 1)], None))
        for g, dt in zip((4, 5, 6, 7), (4, 5, 6, 7)): ext[g] += Ls(vread(t & 1, dt), ("v", t, dt))
    def tile(t):
        par = t & 1; nx = par ^ 1
        first = t == 0
        for u in range(7):
            ext = {g: [] for g in range(17)}; sh = {g: [] for g in range(17)}
            dgaps = {0: (8, 10), 1: (4, 10), 2: (4, 7, 10), 3: (4, 10), 4: (4, 7, 10), 5: (5, 9), 6: (4, 7)}[u]
            if u == 0:
                vh1(t, ext, sh)
                sh[11].append(("W", None, [("v", t, 5)])); sh[13].append(("W", None, [("v", t, 7)]))
            if u == 5:
                sh[3].append(("W", [("K", t+1, 0), ("K", t+1, 1)], None))
                for i, g in enumerate((4, 6, 8, 10)): ext[g] += Ls([kread(nx, 2*i), kread(nx, 2*i+1)], ("k", t+1))
                sh[16].append(("W", None, [("k", t+1)]))
                if first: sh[15].append("s_barrier")
            if u == 6:
                sh[5].append(("W", [("V", t+1, 0)], None))
                for g, dt in zip((6, 8, 9, 10), (3, 0, 1, 2)): ext[g] += Ls(vread(nx, dt), ("v", t+1, dt))
                if t % 2 == 0 and t > 0: sh[15].append(f"s_sub_u32 s{S_CNT}, s{S_CNT}, 1"); sh[16].append(f"s_cmp_lg_u32 s{S_CNT}, 0")
            if pref and t % 2 == pref % 2 and t > 0 and u == 1: sh[0].append("s_load_dword s96, s[94:95], s97")
            if first:
                if u == 0:
                    dgaps = ()
                    sh[2] = []; ext[7].append(("W", None, [("v", 0, 3)]))
                    q = qreads(2); ext[8] += q[0:2]; ext[9] += q[2:4]; ext[10] += q[4:5]
                elif u < 5:
                    q = qreads(u + 2); ext[5] += q[0:2]; ext[6] += q[2:3]; ext[8] += q[3:5]
                    dgaps = (4, 7, 10)
                if u < 5: sh[16].append(("W", None, [("q", u + 2)]))
                xs = [(0, 1), (0, 14), (1, 9), (2, 9), (3, 9), (4, 9), (5, 7), (1, 1), (2, 1), (3, 1), (4, 1), (5, 1)][:t0extra]
                dgaps = tuple(sorted(set(dgaps) | set(g for (uu, g) in xs if uu == u)))
                stamp("t")
                if u == 0: a(("W", None, [("q", 1)]))
            emit_step(u, par, first, ext, sh, dgaps)

    a.c("tile 0"); tile(0)
    a(f"s_mov_b32 s{S_CNT}, 3")
    if absm:
        a.free = True
        a(f"s_lshr_b32 s84, s2, 3"); a(f"s_add_u32 s84, s84, s{S_W}"); a("s_cmp_lg_u32 s84, 0"); a("s_cbranch_scc1 L_nopost")
        a("s_waitcnt lgkmcnt(0)"); a(f"v_mov_b32 v15, s{S_STAMP}"); a("s_lshl_b32 s84, s2, 2"); a("v_mov_b32 v17, s84")
        a("global_store_dword v17, v15, s[46:47] sc1")
        a.label("L_nopost")
        a.free = False
    stamp()
    a.raw(".p2align 6")
    a.label("L_loop")
    i0 = len(a.l)
    bodies = []
    for t in range(1, 7):
        b = len(a.l); tile(t); bodies.append(a.l[b:])
    for t in (2, 4):
        for k in (0, 1):
            assert absm or bodies[t + k] == bodies[k], [(x, y) for x, y in zip(bodies[k], bodies[t + k]) if x != y][:4]
    del a.l[i0:]
    a.l += bodies[4] + bodies[5]
    a("s_cbranch_scc1 L_loop")
    i1 = len(a.l)
    assert stream[spos[0]][2] >= 8, "stream not fully issued"
    stamp()

    def blk(u, j): return (u * 3 + j - 1) * 1024
    def pk(u, j):
        o = Ov(u, 2*j); p = Ov(u, 2*j+1) if j < 3 else Ov(u, 3)
        return [f"v_cvt_pk_bf16_f32 v{o+r}, v{(o, p)[r//2] + 2*(r%2)}, v{(o, p)[r//2] + 2*(r%2) + 1}" for r in range(4)]
    def acc(u): return [f"v_accvgpr_read_b32 v{Ov(u,3)+r}, a{A_O7+4*u+r}" for r in range(4)]
    def xw(u, j): return ("L", f"ds_write_b128 v{V_LIN}, {vr(Ov(u, 2*j), 4)} offset:{blk(u, j)}", ("xw", u))
    def lw(u): return ("L", f"ds_write_b32 v{V_LW}, a{A_L+4*u} offset:{LTAB(u)}", ("xw", u))
    def R(u):
        o = [("L", f"ds_read_b128 {ar(A_X(u) + 4*(j-1), 4)}, v{V_XR+j-1} offset:{blk(u, j)}", ("x", u)) for j in range(1, 4)]
        return o + [("L", f"ds_read_b128 {vr(V_CI+4*u,4)}, v{V_LR} offset:{LTAB(u)}", ("x", u))]
    def cmb(u):
        return [f"{M16} {Of(u, b)}, {ar(A_SEL + 2 - 2*b, 4)}, {ar(A_X(u) + 4*j, 4)}, {Of(u, b)}" for b in range(2) for j in range(3)]
    def ladd(u):
        c = V_CI + 4*u
        return [f"v_add_f32 v{c}, v{c}, v{c+1}", f"v_add_f32 v{c+2}, v{c+2}, v{c+3}", f"v_add_f32 v{c}, v{c}, v{c+2}"]
    def lrcp(u):
        c = V_CI + 4*u
        return [f"v_rcp_f32 v{c+2}, v{c}", f"v_add_f32 v{V_CHK}, v{V_CHK}, v{c}" if u else f"v_mov_b32 v{V_CHK}, v{c}"]
    def mul(u, b): return [f"v_mul_f32 v{Ov(u,b)+r}, v{Ov(u,b)+r}, v{V_CI+4*u+2}" for r in range(4)]
    def pmul(u): return [f"v_pk_mul_f32 {vr(Ov(u,0)+r,2)}, {vr(Ov(u,0)+r,2)}, {vr(V_CI+4*u+2,2)} op_sel_hi:[1,0]" for r in range(0, 8, 2)]
    def swp(u): return [f"v_permlane16_swap_b32 v{Ov(u,0)+r}, v{Ov(u,0)+2+r}" for r in range(2)]
    def sto(u): return f"s_movk_i32 s98, {u*4096}"
    def ST(u): return ("V", f"buffer_store_dwordx4 {vr(Ov(u,0),4)}, v{V_ST}, {srd(SRD_O)}, s98 offen{(' '+sflags) if sflags else ''}", "st")
    def seq(mf, fill):
        for i, m in enumerate(mf):
            if m: a(m)
            a(fill.get(i, []))
    a.c("tile 7")
    for u in range(6):
        stamp("e")
        w = u - 1; f = u - 2
        mf = [qk(u + 1, g) for g in range(8)] + (cmb(f) if f >= 0 else [None] * 6) + [pv(u, dt, 1, False) for dt in range(8)] + [sm(u, False)]
        F = {i: [] for i in range(23)}
        if f >= 0:
            r = R(f); F[0] += r[0:2]; F[1] += r[2:4]
        if w >= 0: F[2 if f >= 0 else 3] += [lw(w)]
        for g in range(3): F[g] += [ex(5 + g)]
        F[3] += [cv(2), cv(3)]
        if u == 0:
            e_ = {g: [] for g in range(8)}; s_ = {g: [] for g in range(8)}
            vh1(7, e_, s_)
            for g in range(8): F[g] = s_[g] + e_[g] + F[g]
            F[14] += [f"v_add_u32 v{V_LW}, s{S_LWO}, v{V_CIR}", f"v_subrev_u32 v{V_LR}, {CI_AREA - LT0}, v{V_CIR}"]
            F[15] += [f"v_lshl_add_u32 v{V_XR+j}, v{L}, 4, s{S_XR+j}" for j in range(2)]
            F[16] += [f"v_lshl_add_u32 v{V_XR+2}, v{L}, 4, s{S_XR+2}"]
            F[17] += [("W", None, [("v", 7, 5)])]; F[19] += [("W", "all", [("v", 7, 7)])]
        if f >= 0:
            if epi == 0:
                F[4] += pk(w, 1); F[5] += [xw(w, 1)]; F[6] += pk(w, 2); F[7] += [("W", None, [("x", f)])] + acc(w)
                F[8] += [xw(w, 2)]; F[9] += pk(w, 3); F[10] += ladd(f); F[11] += lrcp(f); F[12] += [xw(w, 3)]
                F[13] += [ex(0)]; F[14] += [ex(1)]; F[15] += [ex(2)]; F[16] += [ex(3)]
                F[17] += mul(f, 0); F[18] += mul(f, 1); F[19] += pk(f, 0)
                F[19] = [("W", None, [("xw", w)])] + F[19]
                F[20] += ["s_barrier", ex(4)]
                F[21] += [sto(f)] + swp(f)
                F[22] += [ST(f), cv(0), cv(1)]
            else:
                p1, p2, p3, ac, la, p0 = pk(w, 1), pk(w, 2), pk(w, 3), acc(w), ladd(f), pk(f, 0)
                F[4] += p1; F[5] += [xw(w, 1)]; F[6] += p2[:2]; F[7] += [("W", None, [("x", f)])] + p2[2:]
                F[8] += ac[:2]; F[9] += [xw(w, 2)]; F[10] += ac[2:]; F[11] += p3[:2]; F[12] += p3[2:]; F[13] += la[:2]
                F[14] += [xw(w, 3)]; F[15] += la[2:] + lrcp(f)[1:]; F[16] += lrcp(f)[:1]; F[17] += [ex(0)]
                F[18] += [ex(1), ex(2), ex(3)] + pmul(f)
                F[19] += [("W", None, [("xw", w)])] + p0
                F[20] += ["s_barrier", ex(4)]
                F[21] += [sto(f)] + swp(f)
                F[22] += [ST(f), cv(0), cv(1)]
        else:
            if w >= 0:
                F[4] += pk(w, 1); F[5] += [xw(w, 1)]; F[6] += pk(w, 2); F[7] += acc(w)
                F[14] += [xw(w, 2)]; F[15] += pk(w, 3); F[17] += [xw(w, 3)]
            for i, g in enumerate((17, 18, 19, 20, 21) if w < 0 else (16, 18, 19, 20, 21)): F[g] += [ex(i)]
            F[22] += [cv(0), cv(1)]
            if w >= 0: F[22] += [("W", None, [("xw", w)]), "s_barrier"]
        seq(mf, F)
    if epi == 0:
        stamp("e")
        a(R(4))
        a([ex(5), ex(6), ex(7)] + pk(5, 1)[:1] + [cv(2), cv(3)] + pk(5, 1)[1:])
        mf = [pv(6, dt, 1, False) for dt in range(2, 8)] + [sm(6, False), pv(6, 0, 1, False), pv(6, 1, 1, False)] + cmb(4)
        F = {0: [xw(5, 1)], 1: [lw(5)] + pk(5, 2), 2: acc(5), 3: [xw(5, 2)], 4: pk(5, 3), 5: [("W", None, [("x", 4)])] + ladd(4), 6: [xw(5, 3)], 7: pk(6, 1), 8: lrcp(4),
             9: [xw(6, 1)], 10: pk(6, 2), 11: acc(6), 12: [xw(6, 2)], 13: pk(6, 3), 14: [lw(6), xw(6, 3)]}
        seq(mf, F)
        a(mul(4, 0))
        a(("W", None, [("xw", 6)])); a("s_barrier")
        stamp()
        a(R(5)); a(R(6))
        a(mul(4, 1)); a(pk(4, 0)); a(sto(4)); a("s_nop 0"); a(swp(4)); a("s_nop 0"); a(ST(4))
        a(("W", None, [("x", 5)]))
        F = {0: ladd(5), 1: lrcp(5), 2: [("W", None, [("x", 6)])] + ladd(6), 3: lrcp(6), 4: [f"s_mov_b32 s99, {hex(f2u(THRESH))}", f"s_cmp_lg_u32 s{S_FB}, 0"],
             5: [f"v_cmp_ngt_f32 vcc, s99, v{V_CHK}", sto(5)], 6: mul(5, 0)[:2], 7: mul(5, 0)[2:], 8: ["s_nop 1"], 9: mul(5, 1), 10: pk(5, 0), 11: mul(6, 0)[:2] + swp(5)}
        seq(cmb(5) + cmb(6), F)
        a("s_nop 0"); a(ST(5)); a(mul(6, 0)[2:]); a(sto(6)); a(mul(6, 1)); a(pk(6, 0)); a("s_nop 1"); a(swp(6)); a("s_nop 0"); a(ST(6))
    else:
        stamp("e")
        a(R(4))
        a([ex(5), ex(6), ex(7)] + pk(5, 1)[:1] + [cv(2), cv(3)] + pk(5, 1)[1:])
        mf = [pv(6, dt, 1, False) for dt in range(2, 8)] + [sm(6, False), pv(6, 0, 1, False), pv(6, 1, 1, False)] + cmb(4)
        F = {0: [xw(5, 1)], 1: [lw(5)] + pk(5, 2), 2: acc(5), 3: [xw(5, 2)], 4: pk(5, 3), 5: [("W", None, [("x", 4)])] + ladd(4), 6: [xw(5, 3)], 7: pk(6, 1), 8: lrcp(4),
             9: [xw(6, 1)], 10: pk(6, 2), 11: [("W", None, [("xw", 5)])] + acc(6), 12: ["s_barrier", xw(6, 2)], 13: R(5) + pk(6, 3), 14: [lw(6), xw(6, 3)]}
        seq(mf, F)
        a([sto(4), f"s_mov_b32 s99, {hex(f2u(THRESH))}", ("W", None, [("x", 5)])] + ladd(5) + lrcp(5))
        a(pmul(4)); a(pk(4, 0))
        a(("W", None, [("xw", 6)])); a("s_barrier")
        stamp()
        a(R(6))
        F = {0: swp(4), 1: [ST(4)], 5: [("W", None, [("x", 6)])] + ladd(6), 6: [sto(5)] + lrcp(6), 7: mul(5, 0)[:2], 8: mul(5, 0)[2:],
             9: [f"s_cmp_lg_u32 s{S_FB}, 0"] + mul(5, 1), 10: pk(5, 0), 11: [f"v_cmp_ngt_f32 vcc, s99, v{V_CHK}", "s_nop 0"] + swp(5)}
        seq(cmb(5) + cmb(6), F)
        a("s_nop 0"); a(ST(5)); a(sto(6)); a("s_nop 0"); a(pmul(6)); a(pk(6, 0)); a("s_nop 1"); a(swp(6)); a("s_nop 0"); a(ST(6))
    a("s_cbranch_scc1 L_ok")
    a("s_cbranch_vccnz L_fallback")
    a.label("L_ok")
    a.free = True
    if diag and spin:
        i, j, mult = spin[:3]
        a("s_waitcnt vmcnt(0)")
        if len(spin) > 3 and spin[3] >= 32:
            a("s_lshr_b32 s84, s2, 6"); a(f"s_cmp_lg_u32 s84, {spin[3] - 32}"); a("s_cbranch_scc1 L_end")
        elif len(spin) > 3 and spin[3] >= 16:
            a("s_bfe_u32 s84, s2, 0x20001"); a(f"s_cmp_lg_u32 s84, {spin[3] - 16}"); a("s_cbranch_scc1 L_end")
        if len(spin) == 3:
            a(f"s_lshl_b32 s84, s2, 2"); a(f"s_add_u32 s84, s84, s{S_W}"); a("s_cmp_lg_u32 s84, 401"); a("s_cbranch_scc1 L_end")
        a("s_memrealtime s[80:81]"); a("s_memtime s[86:87]"); a("s_waitcnt lgkmcnt(0)")
        if absm:
            a("s_load_dwordx8 s[4:11], s[46:47], 0"); a("s_waitcnt lgkmcnt(0)")
            for k in range(4, 12): a(f"s_sub_u32 s{k}, s80, s{k}")
            for k in range(5, 12): a(f"s_max_u32 s4, s4, s{k}")
            a("s_sub_u32 s85, s80, s4")
            sj = 80 if j == 8 else S_STAMP + 2*j
            a(f"s_sub_u32 s84, s{sj}, s85"); a("s_add_u32 s84, s84, 100"); a(f"s_mul_i32 s84, s84, {mult}")
        elif mult >= 100:
            a(f"s_sub_u32 s84, s{S_STAMP+2*j}, s{S_STAMP+2*i}"); a(f"s_sub_u32 s85, s{S_STAMP+16+2*j}, s{S_STAMP+16+2*i}")
            a("s_mul_i32 s85, s85, 2731"); a("s_lshr_b32 s85, s85, 16"); a("s_sub_u32 s84, s84, s85"); a(f"s_mul_i32 s84, s84, {mult - 100}")
        elif mult > 0:
            sj = 80 if j == 8 else S_STAMP + 2*j
            a(f"s_sub_u32 s84, s{sj}, s{S_STAMP+2*i}"); a(f"s_mul_i32 s84, s84, {mult}")
        else:
            sj = 86 if j == 8 else S_STAMP + 16 + 2*j
            a(f"s_sub_u32 s84, s{sj}, s{S_STAMP+16+2*i}"); a(f"s_lshr_b32 s84, s84, {-mult}")
        a("s_min_u32 s84, s84, 20000")
        a.label("L_spin")
        a("s_memrealtime s[82:83]"); a("s_waitcnt lgkmcnt(0)")
        a("s_sub_u32 s85, s82, s80"); a("s_cmp_lt_u32 s85, s84"); a("s_cbranch_scc1 L_spin")
    elif diag:
        a("s_memrealtime s[84:85]"); a("s_memtime s[86:87]")
        a("s_waitcnt vmcnt(0)")
        a("s_memrealtime s[80:81]"); a("s_memtime s[82:83]")
        a("s_branch L_dump")
    a.label("L_end")
    a("s_endpgm")
    iend = len(a.l)
    if warm > 1:
        a.raw(f".fill ({4 * 4096 - head} - (. - {NAME}_kernel)) / 4, 4, 0xbf810000")
        a.label("L_pg3")
        a("s_branch L_back")
    a.label("L_fallback")
    a("s_waitcnt vmcnt(0) lgkmcnt(0)")
    a("s_barrier")
    a(f"s_mov_b32 s{S_FB}, 1")
    a("s_branch L_start")
    a.label("L_pass1")
    for u in range(7):
        for x in qreads(u)[1:]: a(x[1])
        a("s_waitcnt lgkmcnt(0)")
    a("s_waitcnt vmcnt(0)")
    a("s_barrier")
    a("s_mov_b32 s42, 0")
    MX = V_OWN
    for u in range(7): a(f"v_mov_b32 v{MX+u}, 0xff800000")
    a.label("L_fb1")
    a(m0(0)); a(f"s_add_u32 s{S_SO}, s42, 128")
    for p in range(4): a(dma(SRD_K, 42, p, "f")[1])
    a(m0(4096)); a("s_nop 0")
    for p in range(4): a(dma(SRD_K, S_SO, p, "f")[1])
    a("s_waitcnt vmcnt(0)")
    for j in range(8): a(kread(0, j))
    a("s_waitcnt lgkmcnt(0)")
    for u in range(7):
        for j in range(8): a(qk(u, j, zero=True))
        a("s_nop 7")
        for r in range(0, 8, 2): a(f"v_max3_f32 v{MX+u}, v{MX+u}, v{V_S+r}, v{V_S+r+1}")
    a("s_add_u32 s42, s42, 0x2000")
    a("s_cmp_lt_u32 s42, 0x10000")
    a("s_cbranch_scc1 L_fb1")
    for sw in ("v_permlane16_swap_b32", "v_permlane32_swap_b32"):
        for u in range(7): a(f"v_mov_b32 v{MX+8+u}, v{MX+u}")
        a("s_nop 1")
        for u in range(7): a(f"{sw} v{MX+u}, v{MX+8+u}")
        a("s_nop 1")
        for u in range(7): a(f"v_max_f32 v{MX+u}, v{MX+u}, v{MX+8+u}")
    a(f"v_add_u32 v{V_P}, s{S_LWO}, v{V_CIR}")
    for u in range(7): a(f"ds_write_b32 v{V_P}, v{MX+u} offset:{LTAB(u)}")
    a("s_waitcnt lgkmcnt(0)")
    a("s_barrier")
    a(f"s_and_b32 s42, s{S_W}, 1"); a("s_lshl_b32 s42, s42, 9")
    a(f"s_lshr_b32 s98, s{S_W}, 1"); a(f"s_mul_i32 s98, s98, {REG}"); a("s_add_u32 s42, s42, s98")
    a(f"s_sub_u32 s42, s42, {CI_AREA - LT0}")
    a(f"v_add_u32 v{V_P}, s42, v{V_CIR}")
    for h in range(2): a(f"ds_read_b128 {vr(V_S+4*h,4)}, v{V_P} offset:{256*h}")
    a("s_waitcnt lgkmcnt(0)")
    for h in range(2):
        a(f"v_max3_f32 v{V_KEEP+h}, v{V_S+4*h}, v{V_S+4*h+1}, v{V_S+4*h+2}")
        a(f"v_max_f32 v{V_KEEP+h}, v{V_KEEP+h}, v{V_S+4*h+3}")
    a(f"s_mov_b32 s{S_FB}, 2")
    a(f"s_mov_b64 s[{S_FBM}:{S_FBM+1}], -1")
    a("s_barrier")
    a("s_branch L_start")
    if diag and not spin:
        a.label("L_dump")
        a("s_mov_b32 s36, s46"); a("s_mov_b32 s37, s47"); a("s_mov_b32 s38, 0x100000"); a("s_mov_b32 s39, 0x20000")
        a("s_waitcnt lgkmcnt(0)")
        a("s_lshl_b32 s40, s2, 2"); a(f"s_add_u32 s40, s40, s{S_W}"); a("s_lshl_b32 s40, s40, 8")
        a(f"v_mov_b32 v4, s40")
        a(f"v_cmp_eq_u32 vcc, 0, v{L}")
        a("s_and_saveexec_b64 s[42:43], vcc")
        slots = [(S_STAMP+2*i, i) for i in range(8)] + [(84, 8), (80, 9)] + [(S_STAMP+16+2*i, 16+i) for i in range(8)] + [(86, 24), (82, 25)]
        for s, i in slots:
            a(f"v_mov_b32 v6, s{s}"); a(f"v_mov_b32 v7, s{s+1}"); a(f"buffer_store_dwordx2 v[6:7], v4, s[36:39], 0 offen offset:{8*i}"); a("s_nop 1")
        a("s_endpgm")
    lin = a.l[:i1] + a.l[i0:i1] + a.l[i1:iend]
    bad = hz.check(lin) + hz.check(a.l[iend:])
    for b in bad: print("HAZARD", b, file=sys.stderr)
    a.raw('.section .rodata,"a"'); a.raw(".p2align 6"); a.raw(f".amdhsa_kernel {NAME}_kernel")
    a.raw("  .amdhsa_next_free_vgpr 512"); a.raw("  .amdhsa_next_free_sgpr 102"); a.raw("  .amdhsa_accum_offset 256")
    a.raw("  .amdhsa_group_segment_fixed_size 0"); a.raw("  .amdhsa_kernarg_size 48"); a.raw("  .amdhsa_user_sgpr_count 2")
    a.raw("  .amdhsa_user_sgpr_kernarg_segment_ptr 1"); a.raw("  .amdhsa_system_sgpr_workgroup_id_x 1"); a.raw(".end_amdhsa_kernel")
    if warm: a.l = add_stubs(a.l, head)
    return "\n".join(a.l) + "\n"

if __name__ == "__main__":
    ap = argparse.ArgumentParser()
    ap.add_argument("-o", default=f"kI.s")
    ap.add_argument("--diag", action="store_true")
    ap.add_argument("--spin", default=None); ap.add_argument("--flags", default=""); ap.add_argument("--sflags", default="sc1")
    ap.add_argument("--n0", type=int, default=8); ap.add_argument("--mix", type=int, default=1); ap.add_argument("--vsch", default="2,2,2,2,0")
    ap.add_argument("--t0extra", type=int, default=2); ap.add_argument("--pace", type=int, default=2); ap.add_argument("--fine", default="c")
    ap.add_argument("--cgap", type=int, default=14); ap.add_argument("--pref", type=int, default=2); ap.add_argument("--align", type=int, default=12); ap.add_argument("--head", type=int, default=3328); ap.add_argument("--warm", type=int, default=0); ap.add_argument("--rot", default="0,0"); ap.add_argument("--touch", type=int, default=0); ap.add_argument("--pre0", type=int, default=2); ap.add_argument("--mid", default=""); ap.add_argument("--epi", type=int, default=1); ap.add_argument("--absm", action="store_true"); ap.add_argument("--wg", default="4,5,6,7,8,9,10")
    args = ap.parse_args()
    tup = lambda s: tuple(map(int, s.split(',')))
    open(args.o, "w").write(gen(diag=args.diag, flags=args.flags, sflags=args.sflags, n0=args.n0, mix=args.mix, vsch=tup(args.vsch), t0extra=args.t0extra,
                                pace=args.pace, fine=args.fine, cgap=args.cgap, pref=args.pref, align=args.align, head=args.head, warm=args.warm, rot=tup(args.rot), touch=args.touch, pre0=args.pre0, epi=args.epi, absm=args.absm, mid=tup(args.mid) if args.mid else None, wg=tup(args.wg), spin=tup(args.spin) if args.spin else None))
```

```python
import sys, struct, argparse
import hz
NAME = "standalone__gqa_softmax__near_ridge"
def f2u(x): return struct.unpack("<I", struct.pack("<f", x))[0]
def vr(b, n=1): return f"v{b}" if n == 1 else f"v[{b}:{b+n-1}]"
def ar(b, n=1): return f"a{b}" if n == 1 else f"a[{b}:{b+n-1}]"
def srd(b): return f"s[{b}:{b+3}]"

V_LANE, V_LIN, V_KEEP, V_VOFF, V_AK, V_AV = 0, 1, 2, 4, 8, 10
V_QA0, V_X0, V_QA1, V_X1, V_ST, V_CIR = 14, 15, 16, 17, 18, 19
V_S, V_P, V_CI, V_OWN, V_OTH = 20, 28, 32, 60, 116
A_O7, A_L, A_ONE, A_K, A_V, A_Q = 0, 28, 56, 60, 92, 144
V_XR, V_LW, V_LR, V_CHK = 4, 7, 8, 9
A_SEL = A_V + 36
def A_X(u): return A_Q + 16 * (u % 2)
S_W = 3
SRD_Q, SRD_K, SRD_V, SRD_O = 12, 16, 20, 24
S_MK0, S_MK1, S_MV0, S_MV1 = 28, 29, 30, 31
S_Y, S_FB, S_WB, S_CNT = 32, 33, 34, 35
S_SO = 44
S_STAMP = 48
S_FBM = 88
S_XR = 90
S_LWO = 93
S_Y0 = 100
S_K0 = 101
S_YR = 43
REG = 40960
KB = lambda par: par * 8192
VB = lambda par: 16384 + par * 8192
XO = 32768
CI_AREA = 3 * REG + XO + 6144
LT0 = 39936
def LTAB(u): return u * 256 if u < 4 else REG + (u - 4) * 256
SCALE = (128 ** -0.5) * 1.4426950408889634
THRESH = 2.0 ** 40
M16 = "v_mfma_f32_16x16x32_bf16"

def Qf(u, c): return ar(A_Q + 16 * u + 4 * c, 4)
def Kf(j): return ar(A_K + 4 * j, 4)
def Vbase(dt, par): return A_V + 32 if (dt == 3 and par) else A_V + 4 * dt
def Ov(u, dt): return V_OWN + 8 * u + 4 * dt if dt < 2 else V_OTH + 20 * u + 4 * (dt - 2)
def Of(u, dt): return ar(A_O7 + 4 * u, 4) if dt == 7 else vr(Ov(u, dt), 4)
def qk(u, j, zero=False):
    kt, c = j // 4, j % 4
    S = vr(V_S + 4 * kt, 4)
    cc = S if c else ("0" if zero else vr(V_CI + 4 * u, 4))
    return f"{M16} {S}, {Kf(j)}, {Qf(u, c)}, {cc}"
def pv(u, dt, par, first):
    o = Of(u, dt)
    return f"{M16} {o}, {ar(Vbase(dt, par), 4)}, {vr(V_P, 4)}, {'0' if first else o}"
def sm(u, first):
    o = ar(A_L + 4 * u, 4)
    return f"{M16} {o}, {ar(A_ONE, 4)}, {vr(V_P, 4)}, {'0' if first else o}"
def ex(e): return f"v_exp_f32 v{V_S+e}, v{V_S+e}"
def cv(i): return f"v_cvt_pk_bf16_f32 v{V_P+i}, v{V_S+2*i}, v{V_S+2*i+1}"
def kread(par, j, base=None, dst=None):
    kt, c = j // 4, j % 4
    off = (KB(par) if base is None else base) + (c >> 1) * 4096 + kt * 2048
    return f"ds_read_b128 {dst or Kf(j)}, v{V_AK + (c & 1)} offset:{off}"
def vread(par, dt):
    b = Vbase(dt, par)
    return [f"ds_read_b64_tr_b16 {ar(b + 2*h, 2)}, v{V_AV + (dt & 3)} offset:{VB(par) + (dt >> 2) * 4096 + h * 2048}" for h in range(2)]


DOC = """
; ---------------------------------------------------------------------------------------------------------------
;   * wave w handles all 112 q rows (7 tiles of 16) against its own 256 keys, 32 keys per tile, v_mfma 16x16x32 bf16:
;   * K / V tiles come in by LDS-DMA (swizzled image, double buffered per wave); V is transposed by ds_read_b64_tr_b16.
;     the safe range (>= 2^40, inf or NaN) the workgroup computes the true row max over all keys (L_pass1) and
; ---------------------------------------------------------------------------------------------------------------"""

class Gen:
    def __init__(self):
        self.l = []; self.vq = []; self.lq = []; self.ldone = 0; self.free = False
    def __call__(self, s):
        if isinstance(s, list):
            for x in s: self(x)
        elif isinstance(s, tuple):
            if s[0] == "L": self.l.append("    " + s[1]); self.lq.append(s[2])
            elif s[0] == "V":
                tg = s[2]
                if isinstance(tg, tuple) and tg[0] in "KV" and tg[1] >= 2:
                    kv, x, hf = tg
                    need = ([("k", x-2)] if x > 2 else ["k0a", "k0b"]) if kv == "K" else [("v", x-2, dt) for dt in range(4*hf, 4*hf+4)]
                    for n in need:
                        idx = [i for i, t in enumerate(self.lq) if t == n]
                        assert idx and max(idx) < self.ldone, ("LDS WAR", tg, n)
                self.l.append("    " + s[1]); self.vq.append(s[2])
            elif s[0] == "W":
                parts = []
                for q, tags, nm, mx in ((self.vq, s[1], "vmcnt", 63), (self.lq, s[2], "lgkmcnt", 15)):
                    if tags is None: continue
                    if tags == "all": n = 0
                    else:
                        idx = [i for i, t in enumerate(q) if t in tags]
                        assert idx, ("no such tag", tags)
                        n = len(q) - 1 - max(idx)
                    if nm == "lgkmcnt": self.ldone = max(self.ldone, len(q) - min(n, mx))
                    parts.append(f"{nm}({min(n, mx)})")
                self.l.append("    s_waitcnt " + " ".join(parts))
        else:
            assert not (s.startswith("ds_") or s.startswith("buffer_")) or self.free, s
            self.l.append("    " + s)
    def label(self, s): self.l.append(s + ":")
    def c(self, s): self.l.append("    ; " + s)
    def raw(self, s): self.l.append(s)

def sizes(lines):
    import subprocess, tempfile, os, re
    with tempfile.TemporaryDirectory() as d:
        src = [l for l in lines]
        src.insert(src.index("L_end:"), "L_pg1:\nL_pg2:")
        open(d + "/t.s", "w").write("\n".join(src) + "\n")
        subprocess.run(["clang", "-x", "assembler", "-target", "amdgcn-amd-amdhsa", "-mcpu=gfx950", "-c", d + "/t.s", "-o", d + "/t.o"], check=True)
        out = subprocess.run(["llvm-objdump", "-d", "--mcpu=gfx950", d + "/t.o"], capture_output=True, text=True).stdout
    return [(int(m.group(2), 16), m.group(1)) for m in re.finditer(r"^\t(\S+).*// ([0-9A-F]+):", out, re.M)]
def add_stubs(lines, head):
    lines = list(lines)
    for pg in (1, 2):
        tmp = [l for l in lines if l not in ("L_pg1:", "L_pg2:")]
        ins = [x for x in sizes(tmp) if x[0] >= head]
        mf = [off for off, mn in ins if mn.startswith("v_mfma")]
        target = (pg + (1 if head else 0)) * 4096
        k = next(i for i, off in enumerate(mf) if off >= target - 8)
        assert mf[k] + 8 < target + 60, (mf[k], target)
        idx = [i for i, l in enumerate(lines) if l.strip().startswith("v_mfma")][k]
        lines[idx + 1:idx + 1] = [f"L_pg{pg}:", "    s_cbranch_execz L_back"]
    return lines

def gen(diag=False, flags="", sflags="sc1", spin=None, n0=8, mix=1, vsch=(2, 2, 2, 2, 0), t0extra=2, pace=2, fine='c', cgap=14, pref=3, align=12, head=3328, warm=0, rot=(0, 0), touch=0, pre0=2, mid=None, epi=1, absm=False, unroll=0, lpad=0, lal=3, bpad=0, wg=(4, 5, 6, 7, 8, 9, 10)):
    a = Gen()
    fl = (" " + flags) if flags else ""
    def dma(s, soff, p, tag): return ("V", f"buffer_load_dwordx4 v{V_VOFF+p}, {srd(s)}, s{soff} offen offset:{p*1024}{fl} lds", tag)
    def m0(off): return f"s_add_u32 m0, s{S_WB}, {off}"
    def Ls(texts, tag): return [("L", t, tag) for t in texts]
    nst = [0]
    def stamp(kind="c"):
        if diag and kind in fine and nst[0] < 8:
            a(f"s_memrealtime s[{S_STAMP+2*nst[0]}:{S_STAMP+2*nst[0]+1}]")
            a(f"s_memtime s[{S_STAMP+16+2*nst[0]}:{S_STAMP+16+2*nst[0]+1}]")
            nst[0] += 1
    GROUPS = (("K", 0), ("K", 1), ("V", 0), ("V", 1))
    stream = []
    for x in range(1, 10):
        for gi, (kv, hf) in enumerate(GROUPS):
            s_, buf = (SRD_K, KB(x & 1)) if kv == "K" else (SRD_V, VB(x & 1))
            for p in range(4):
                pre = []; so = S_SO
                if p == 0:
                    if gi == 0: pre += [("Y", x)]
                    pre += [m0(buf + hf * 4096)]
                    pre += [f"s_or_b32 s{S_SO}, s{S_Y}, s{S_MV0+hf}" if kv == "V" else f"s_or_b32 s{S_SO}, s{S_Y}, {128*hf}"]
                stream.append((pre, dma(s_, so, p, (kv, x, hf)), x))
    spos = [0]
    def expand(pre):
        out = []
        for y in pre:
            if isinstance(y, tuple) and y[0] == "Y":
                out += [f"s_add_u32 s{S_Y}, s{S_Y}, 0x2000"]
                if y[1] % 2 == 0 and y[1] >= 4 and not unroll:
                    out += [f"s_cmp_lt_u32 s{S_Y}, 0x10000", f"s_cselect_b32 s{SRD_K+2}, 0x10000, 0", f"s_mov_b32 s{SRD_V+2}, s{SRD_K+2}"]
            elif isinstance(y, tuple): out += ["s_nop 0"]
            else: out.append(y)
        return out
    def nextpre():
        pre, d, x = stream[spos[0]]
        if unroll and x >= 8: return []
        stream[spos[0]] = ([], d, x)
        return expand(pre)
    def nextdma():
        pre, d, x = stream[spos[0]]
        if unroll and x >= 8: return []
        spos[0] += 1
        return expand(pre) + [d]

    a.raw(open("cdna_kernels/%s.s.ref" % NAME).read().split("; Override launch")[0].rstrip())
    a.raw("; @launch grid=(256,1,1) block=(256,1,1) lds=163840")
    a.raw(DOC.strip())
    a.raw('.amdgcn_target "amdgcn-amd-amdhsa--gfx950"')
    a.raw(".text"); a.raw(f".globl {NAME}_kernel"); a.raw(f".p2align {align}"); a.raw(f".fill {head // 4}, 4, 0xbf810000"); a.raw(".p2align 8"); a.raw(f".type {NAME}_kernel,@function")
    a.label(f"{NAME}_kernel")
    a("s_load_dwordx8 s[4:11], s[0:1], 0")
    a("s_cmp_ge_u32 s2, 256")
    a("s_cbranch_scc1 L_end")
    if diag:
        a("s_load_dwordx2 s[46:47], s[0:1], %d" % (32 if absm else 40))
        stamp(fine[0])
    L = V_LANE
    T = V_S
    a(f"v_lshrrev_b32 v{T}, 6, v0")
    a(f"v_and_b32 v{L}, 63, v0")
    a(f"v_readfirstlane_b32 s{S_W}, v{T}")
    a("s_and_b32 s36, s2, 7")
    a("s_lshr_b32 s37, s2, 3")
    a("s_lshl_b32 s36, s36, 5")
    a("s_add_u32 s36, s36, s37")
    a("s_mul_i32 s38, s36, 28672")
    a(f"s_mul_i32 s{S_WB}, s{S_W}, {REG}")
    a(f"s_movk_i32 s{SRD_Q+2}, 28672")
    a(f"s_mov_b32 s{SRD_Q+3}, 0x20000")
    a(f"s_lshl_b32 s40, s{S_W}, 13")
    a(f"s_mov_b32 s{S_FB}, 0")
    a(f"s_mov_b64 s[{S_FBM}:{S_FBM+1}], 0")
    a.label("L_start")
    a(f"v_lshrrev_b32 v{T}, 3, v{L}")
    a(f"v_and_b32 v{T+1}, 6, v{T}")
    a(f"v_xor_b32 v{T+1}, v{T+1}, v{L}")
    a(f"v_and_b32 v{T+1}, 7, v{T+1}")
    a(f"v_lshlrev_b32 v{T+1}, 4, v{T+1}")
    a(f"v_lshl_add_u32 v{V_VOFF}, v{T}, 8, v{T+1}")
    a(f"v_xor_b32 v{V_VOFF+1}, 16, v{V_VOFF}")
    a(f"v_add_u32 v{V_VOFF+1}, 0x400, v{V_VOFF+1}")
    a(m0(XO))
    a("s_add_u32 s41, s40, 128")
    a("s_lshr_b32 s39, s36, 2")
    a("s_lshl_b32 s39, s39, 18")
    a(f"s_lshl_b32 s42, s{S_W}, 16")
    a("s_add_u32 s39, s39, s42")
    a(f"s_mov_b32 s{SRD_K+2}, 0x10000")
    a(f"s_mov_b32 s{SRD_K+3}, 0x20000")
    a(f"s_mov_b32 s{S_Y}, 0")
    a("s_movk_i32 s43, 128")
    a.c("code prefetch into L2: one 64-B line of the following code pages per wave")
    a("s_getpc_b64 s[94:95]")
    a.label("L_pc")
    a(f"s_lshl_b32 s97, s{S_W}, 5")
    a("s_add_u32 s97, s97, s37")
    a("s_lshl_b32 s97, s97, 6")
    a(f"s_add_u32 s94, s94, {4096 - head}-(L_pc-{NAME}_kernel)")
    a("s_addc_u32 s95, s95, 0")
    if pre0 == 2:
        a(f"v_mov_b32 v{T+2}, s97")
        a(("V", f"global_load_dword v{V_CI}, v{T+2}, s[94:95]", "pf"))
    stamp("k")
    a("s_waitcnt lgkmcnt(0)")
    stamp("k")
    if pre0 == 1: a("s_load_dword s96, s[94:95], s97")
    def base(b, src, off): return [f"s_add_u32 s{b}, s{src}, s{off}", f"s_addc_u32 s{b+1}, s{src+1}, 0"]
    a(base(SRD_Q, 4, 38))
    for p in (0, 1): a(dma(SRD_Q, 40, p, "Qa"))
    a(m0(XO + 4096)); a(base(SRD_K, 6, 39))
    for p in (0, 1): a(dma(SRD_Q, 41, p, "Qa"))
    a(m0(KB(0)))
    a(f"s_cmp_eq_u32 s{S_W}, 3")
    for p in (0, 1): a(dma(SRD_K, S_Y, p, "K0a"))
    a(f"s_cselect_b32 s45, 0x4000, 0")
    a(m0(KB(0) + 4096))
    a(f"s_add_u32 s45, s45, s{S_WB}")
    for p in (0, 1): a(dma(SRD_K, 43, p, "K0a"))
    a(f"v_add_u32 v{V_VOFF+2}, 0x800, v{V_VOFF}")
    a(f"v_add_u32 v{V_VOFF+3}, 0x800, v{V_VOFF+1}")
    a(f"s_add_u32 m0, s45, {XO + 4096}"); a("s_nop 0")
    for p in (2, 3): a(dma(SRD_Q, 41, p, "Qb"))
    a(f"s_add_u32 m0, s45, {XO}"); a("s_nop 0")
    for p in (2, 3): a(dma(SRD_Q, 40, p, "Qb"))
    a(base(SRD_V, 8, 39)); a(base(SRD_O, 10, 38))
    a(f"s_mov_b32 s{SRD_V+2}, 0x10000"); a(f"s_mov_b32 s{SRD_V+3}, 0x20000")
    a(f"s_movk_i32 s{SRD_O+2}, 28672"); a(f"s_mov_b32 s{SRD_O+3}, 0x20000")
    if warm:
        a("s_mov_b64 exec, 0")
        for w in (1, 2, 3)[:warm + 1]:
            a(f"s_cmp_eq_u32 s{S_W}, {w}")
            a(f"s_cbranch_scc1 L_pg{w}")
        a.label("L_back")
        a("s_mov_b64 exec, -1")
    a(f"s_lshr_b32 s{S_MV0}, s{S_W}, 1"); a(f"s_lshl_b32 s{S_MV0}, s{S_MV0}, 7")
    a(f"s_xor_b32 s{S_MV1}, s{S_MV0}, 128")

    a(f"v_and_b32 v{T}, 15, v{L}")
    a(f"v_and_b32 v{T+1}, 6, v{T}")
    a(f"v_lshrrev_b32 v{T+2}, 3, v{T}")
    a(f"v_or_b32 v{T+1}, v{T+1}, v{T+2}")
    a(f"v_lshrrev_b32 v{T+2}, 4, v{L}")
    a(f"v_lshlrev_b32 v{T+2}, 1, v{T+2}")
    a(f"v_xor_b32 v{T+1}, v{T+1}, v{T+2}")
    a(f"v_lshlrev_b32 v{T+1}, 4, v{T+1}")
    a(f"v_lshl_add_u32 v{T+1}, v{T}, 7, v{T+1}")
    a(f"v_add_u32 v{V_AK}, s{S_WB}, v{T+1}")
    a(f"v_xor_b32 v{V_AK+1}, 16, v{V_AK}")
    a(f"v_lshl_add_u32 v{V_LIN}, v{L}, 4, s{S_WB}")
    CIW, QWB, SC = V_CI + 24, V_CI + 25, V_CI + 26
    a(f"v_mov_b32 v{SC}, {hex(f2u(SCALE))}")
    a(f"v_lshl_add_u32 v{QWB}, v{L}, 4, s45")
    a(f"s_lshl_b32 s42, s{S_W}, 9")
    a(f"v_lshlrev_b32 v{T+3}, 4, v{T}")
    a(f"v_add_u32 v{V_CIR}, {CI_AREA}, v{T+3}")
    a(f"v_add_u32 v{CIW}, s42, v{V_CIR}")
    a(f"v_lshlrev_b32 v{T+3}, 4, v{L}")
    a(f"v_add_u32 v{V_QA0}, {XO}, v{T+3}")
    a(f"v_add_u32 v{V_QA1}, {2*REG + XO}, v{T+3}")
    for j in range(1, 4):
        a(f"s_xor_b32 s42, s{S_W}, {j}")
        a(f"s_mul_i32 s{S_XR+j-1}, s42, {REG}")
    a(f"s_lshl_b32 s{S_LWO}, s{S_W}, 2")
    a(f"s_sub_u32 s{S_LWO}, s{S_LWO}, {CI_AREA - LT0}")
    a(f"v_lshrrev_b32 v{T+1}, 4, v{L}")
    a(f"v_lshrrev_b32 v{T+2}, 2, v{T}")
    a(f"v_cmp_eq_u32 vcc, v{T+1}, v{T+2}")
    a(f"v_and_b32 v{T+2}, 1, v{L}")
    a(f"v_lshlrev_b32 v{T+2}, 4, v{T+2}")
    a(f"v_mov_b32 v{T+3}, 0x3f80")
    a(f"v_lshlrev_b32 v{T+3}, v{T+2}, v{T+3}")
    a(f"v_cndmask_b32 v{T+3}, 0, v{T+3}, vcc")
    a(f"v_and_b32 v{T+2}, 2, v{L}")
    a(f"v_cmp_eq_u32 vcc, 0, v{T+2}")
    a(f"v_bfe_u32 v{T+4}, v{L}, 4, 1")
    a(f"v_lshrrev_b32 v{T+5}, 5, v{L}")
    a(f"v_cndmask_b32 v{V_X0}, 0, v{T+3}, vcc")
    a(f"v_sub_u32 v{V_X1}, v{T+3}, v{V_X0}")
    for r, x in enumerate(("0", "0", f"v{V_X0}", f"v{V_X1}", "0", "0")): a(f"v_accvgpr_write_b32 a{A_SEL+r}, {x}")
    a(f"v_lshl_add_u32 v{T+4}, v{T+4}, 1, v{T+5}")
    a(f"v_lshlrev_b32 v{T+4}, 4, v{T+4}")
    a(f"v_lshl_add_u32 v{T+4}, v{T}, 8, v{T+4}")
    a(f"s_lshl_b32 s42, s{S_W}, 6")
    a(f"v_add_u32 v{V_ST}, s42, v{T+4}")
    a(f"v_and_b32 v{T+2}, 3, v{L}")
    a(f"v_cmp_eq_u32 vcc, 0, v{T+2}")
    a(f"v_lshrrev_b32 v{T}, 2, v{L}")
    a(f"v_and_b32 v{T+1}, 6, v{T}")
    a(f"v_lshrrev_b32 v{T+2}, 3, v{T}")
    a(f"v_or_b32 v{T+1}, v{T+1}, v{T+2}")
    a(f"v_bfe_u32 v{T+2}, v{L}, 1, 1")
    a(f"v_xor_b32 v{T+1}, v{T+1}, v{T+2}")
    a(f"s_and_b32 s42, s{S_W}, 1")
    a("s_lshl_b32 s42, s42, 2")
    a(f"v_xor_b32 v{T+1}, s42, v{T+1}")
    a(f"v_lshlrev_b32 v{T+1}, 4, v{T+1}")
    a(f"v_lshl_add_u32 v{T+1}, v{T}, 7, v{T+1}")
    a(f"v_and_b32 v{T+2}, 1, v{L}")
    a(f"v_lshl_add_u32 v{T+1}, v{T+2}, 3, v{T+1}")
    a(f"v_add_u32 v{V_AV}, s{S_WB}, v{T+1}")
    for k in range(1, 4): a(f"v_xor_b32 v{V_AV+k}, {32*k}, v{V_AV}")
    a(f"v_mov_b32 v{T+2}, 0x3f803f80")
    a(f"v_cndmask_b32 v{T+2}, 0, v{T+2}, vcc")
    for r in range(4): a(f"v_accvgpr_write_b32 a{A_ONE+r}, v{T+2}")

    if pref and not unroll:
        a(f"s_and_b32 s97, s97, 0xfff")
        a(f"s_add_u32 s97, s97, 0x2000")
        a(f"v_mov_b32 v{V_X0}, s97")
    if touch: a(("V", f"buffer_load_dword v{V_CI}, off, {srd(SRD_O)}, 0", "touch"))
    a(m0(KB(0) + 4096)); a("s_nop 0")
    for p in (2, 3): a(dma(SRD_K, 43, p, "K0b"))
    a(m0(KB(0))); a("s_nop 0")
    for p in (2, 3): a(dma(SRD_K, S_Y, p, "K0b"))

    RAW, QP, TMP = V_OTH, V_OWN, V_OTH + 32
    left = [n0]
    def more(n=1):
        for _ in range(n):
            if left[0] > 0: a(nextdma()); left[0] -= 1
    v0 = [0]
    def v0dma(n=1):
        for _ in range(n):
            j = v0[0]
            if j >= 8: return
            if j % 4 == 0: a(m0(VB(0) + (j // 4) * 4096)); a("s_nop 0")
            a(dma(SRD_V, S_MV0 + j // 4, j % 4, ("V", 0, j // 4)))
            v0[0] += 1
    def qoff(h, c): return XO + (c >> 1) * 4096 + h * 2048 + (c & 1) * 1024
    def qw(h, c): return ("L", f"ds_write_b128 v{V_LIN if h == 0 else QWB}, {vr(QP + 16*h + 4*c, 4)} offset:{qoff(h, c)}", "qw")
    def scale_ops(j):
        o = []
        for r in range(4):
            o += [f"v_lshlrev_b32 v{TMP+2*r}, 16, v{RAW+4*j+r}", f"v_and_b32 v{TMP+2*r+1}, 0xffff0000, v{RAW+4*j+r}"]
        o += [f"v_pk_mul_f32 {vr(TMP+2*r,2)}, {vr(TMP+2*r,2)}, {vr(SC,2)} op_sel_hi:[1,0]" for r in range(4)]
        o += [f"v_cvt_pk_bf16_f32 v{QP+4*j+r}, v{TMP+2*r}, v{TMP+2*r+1}" for r in range(4)]
        return o
    def red_ops(h):
        S = V_S + 4*h; M = V_P + 2*h
        o = [f"v_max3_f32 v{M}, v{S}, v{S+1}, v{S+2}", f"v_max_f32 v{M}, v{M}, v{S+3}"]
        for sw in ("v_permlane16_swap_b32", "v_permlane32_swap_b32"):
            o += [f"v_mov_b32 v{M+1}, v{M}", f"{sw} v{M}, v{M+1}", f"v_max_f32 v{M}, v{M}, v{M+1}"]
        o += [f"v_mul_f32 v{M}, v{M}, v{SC}", f"v_cndmask_b32 v{M}, v{M}, v{V_KEEP+h}, s[{S_FBM}:{S_FBM+1}]"]
        o += [f"v_sub_f32 v{S+r}, 0, v{M}" for r in range(4)]
        return o
    def part(h, d0, d1):
        for c in range(4): a(("L", kread(0, 4*h + c, base=XO, dst=vr(RAW + 16*h + 4*c, 4)), ("raw", h, c)))
        if h == 0:
            a(("W", ["K0a"], None))
            for jj in range(4): a(("L", kread(0, jj), "k0a"))
        v0dma(d0)
        a(("W", None, [("raw", h, 0)]))
        a(scale_ops(4*h))
        a(("W", None, [("raw", h, 3), "k0a"]))
        S = vr(V_S + 4*h, 4)
        o1 = scale_ops(4*h + 1)
        for c in range(4):
            a(f"{M16} {S}, {Kf(c)}, {vr(RAW + 16*h + 4*c, 4)}, {S if c else '0'}")
            if c == 0: a(qw(h, 0))
            else: a(o1[:2]); del o1[:2]
        a(o1)
        a(qw(h, 1)); v0dma(d1)
        red = red_ops(h)
        for c in (2, 3):
            o = scale_ops(4*h + c)
            while o:
                a(o[:2]); del o[:2]
                if red: a(red.pop(0))
            a(qw(h, c))
        a(red)
        a(("L", f"ds_write_b128 v{CIW}, {S} offset:{256*h}", "ciw"))
    a.c("Q tiles 2w, 2w+1: prescale, block max, publish through LDS")
    stamp("p")
    a(("W", ["Qa"], None))
    stamp(); stamp("p")
    part(0, vsch[0], vsch[1])
    v0dma(vsch[2])
    stamp("p")
    a(("W", ["Qb"], None))
    stamp("p")
    part(1, vsch[3], vsch[4])
    v0dma(8); more(pace)
    a(("W", ["K0b"], None))
    for jj in range(4, 8): a(("L", kread(0, jj), "k0b"))
    a(f"s_cmp_eq_u32 s{S_FB}, 1")
    stamp(); stamp("p")
    a(("W", None, "all"))
    a("s_barrier")
    a("s_cbranch_scc1 L_pass1")
    stamp(); stamp("p")
    def qreads(u):
        w, h = u // 2, u % 2
        ad = V_QA0 if w < 2 else V_QA1
        out = [f"ds_read_b128 {vr(V_CI+4*u,4)}, v{V_CIR} offset:{u*256}"]
        out += [f"ds_read_b128 {Qf(u,c)}, v{ad} offset:{(w&1)*REG + qoff(h, c) - XO}" for c in range(4)]
        return Ls(out, ("q", u))
    a(qreads(0)); a(qreads(1))
    more(2)
    a(("W", None, [("q", 0)]))
    for j in range(8):
        a(qk(0, j))
        if j in (0, 2): more()
        if j == 3: a(("W", [("V", 0, 0)], None))
        if j >= 4: a(Ls(vread(0, j - 4), ("v", 0, j - 4)))
    more(64)
    a([ex(0), ex(1), ex(2), ex(3), cv(0), ("W", None, [("q", 1)]), cv(1), ex(4)])
    stamp()

    pend = []
    def emit_step(u, par, first, ext, shadow, dgaps):
        for g in range(17):
            a(qk((u + 1) % 7, g) if g < 8 else (pv(u, g - 8, par, first) if g < 16 else sm(u, first)))
            valu = g < 4 or g > 10
            if g in dgaps:
                a(list(pend)); pend.clear()
                a(nextdma())
                a(shadow[g])
            else:
                a(shadow[g])
                room = (1 if valu else 2) - len(ext[g]) - len(shadow[g])
                if room > 0 and dgaps:
                    if not pend: pend.extend(nextpre())
                    a(pend[:room]); del pend[:room]
            a(ext[g])
            if g < 3: a(ex(5 + g))
            elif g == 3: a(cv(2)); a(cv(3))
            elif 11 <= g <= 15: a(ex(g - 11))
            elif g == 16: a(cv(0)); a(cv(1))

    def vh1(t, ext, sh):
        sh[2].append(("W", None, [("v", t, dt) for dt in range(4)]))
        sh[3].append(("W", [("V", t, 1)], None))
        for g, dt in zip((4, 5, 6, 7), (4, 5, 6, 7)): ext[g] += Ls(vread(t & 1, dt), ("v", t, dt))
    def tile(t):
        par = t & 1; nx = par ^ 1
        first = t == 0
        for u in range(7):
            ext = {g: [] for g in range(17)}; sh = {g: [] for g in range(17)}
            dgaps = {0: (8, 10), 1: (4, 10), 2: (4, 7, 10), 3: (4, 10), 4: (4, 7, 10), 5: (5, 9), 6: (4, 7)}[u]
            if u == 0:
                vh1(t, ext, sh)
                sh[11].append(("W", None, [("v", t, 5)])); sh[13].append(("W", None, [("v", t, 7)]))
            if u == 5:
                sh[3].append(("W", [("K", t+1, 0), ("K", t+1, 1)], None))
                for i, g in enumerate((4, 6, 8, 10)): ext[g] += Ls([kread(nx, 2*i), kread(nx, 2*i+1)], ("k", t+1))
                sh[16].append(("W", None, [("k", t+1)]))
                if first: sh[15].append("s_barrier")
            if u == 6:
                sh[5].append(("W", [("V", t+1, 0)], None))
                for g, dt in zip((6, 8, 9, 10), (3, 0, 1, 2)): ext[g] += Ls(vread(nx, dt), ("v", t+1, dt))
                if t % 2 == 0 and t > 0 and not unroll: sh[15].append(f"s_sub_u32 s{S_CNT}, s{S_CNT}, 1"); sh[16].append(f"s_cmp_lg_u32 s{S_CNT}, 0")
            if pref == 2 and not unroll and t % 2 == 0 and t > 0 and u == 1: sh[0].append("s_load_dword s96, s[94:95], s97")
            if pref == 3 and t % 2 == 0 and u == 1: ext[7 if t else 9] += [("V", f"global_load_dword v{V_X1}, v{V_X0}, s[94:95]", "pf"), []]
            if pref and unroll and t in (1, 3, 5) and u == 1:
                sh[0].append(f"s_add_u32 s97, s97, {0x2000 if t == 1 else 0x1000}"); sh[1].append("s_load_dword s96, s[94:95], s97")
            if first:
                if u == 0:
                    dgaps = ()
                    sh[2] = []; ext[7].append(("W", None, [("v", 0, 3)]))
                    q = qreads(2); ext[8] += q[0:2]; ext[9] += q[2:4]; ext[10] += q[4:5]
                elif u < 5:
                    q = qreads(u + 2); ext[5] += q[0:2]; ext[6] += q[2:3]; ext[8] += q[3:5]
                    dgaps = (4, 7, 10)
                if u < 5: sh[16].append(("W", None, [("q", u + 2)]))
                xs = [(0, 1), (0, 14), (1, 9), (2, 9), (3, 9), (4, 9), (5, 7), (1, 1), (2, 1), (3, 1), (4, 1), (5, 1)][:t0extra]
                dgaps = tuple(sorted(set(dgaps) | set(g for (uu, g) in xs if uu == u)))
                stamp("t")
            if t > 0 and t % 2 == 1 and u in (1, 3):
                for i in range(bpad // 2 + (bpad % 2 if u == 1 else 0)): ext[(6, 8, 5, 7, 9, 6, 8, 5)[i]].append("s_nop 0")
            if t == 5: stamp('l')
            if t == 6: stamp('m')
            emit_step(u, par, first, ext, sh, dgaps)

    a.c("tile 0"); tile(0)
    if not unroll: a(f"s_mov_b32 s{S_CNT}, 3")
    if absm:
        a.free = True
        a(f"s_lshr_b32 s84, s2, 3"); a(f"s_add_u32 s84, s84, s{S_W}"); a("s_cmp_lg_u32 s84, 0"); a("s_cbranch_scc1 L_nopost")
        a("s_waitcnt lgkmcnt(0)"); a(f"v_mov_b32 v15, s{S_STAMP}"); a("s_lshl_b32 s84, s2, 2"); a("v_mov_b32 v17, s84")
        a("global_store_dword v17, v15, s[46:47] sc1")
        a.label("L_nopost")
        a.free = False
    stamp()
    if unroll:
        for t in range(1, 7): a.c(f"tile {t}"); tile(t)
        i0 = i1 = len(a.l)
    else:
        a.raw(f".p2align {lal}")
        for _ in range(lpad): a("s_nop 0")
        a.label("L_loop")
        i0 = len(a.l)
        bodies = []
        for t in range(1, 7):
            b = len(a.l); tile(t); bodies.append(a.l[b:])
        for t in (2, 4):
            for k in (0, 1):
                assert absm or fine[0] in 'lm' or bodies[t + k] == bodies[k], [(x, y) for x, y in zip(bodies[k], bodies[t + k]) if x != y][:4]
        del a.l[i0:]
        a.l += bodies[4] + bodies[5]
        a("s_cbranch_scc1 L_loop")
        i1 = len(a.l)
    assert stream[spos[0]][2] >= 8, "stream not fully issued"
    stamp()

    def blk(u, j): return (u * 3 + j - 1) * 1024
    def pk(u, j):
        o = Ov(u, 2*j); p = Ov(u, 2*j+1) if j < 3 else Ov(u, 3)
        return [f"v_cvt_pk_bf16_f32 v{o+r}, v{(o, p)[r//2] + 2*(r%2)}, v{(o, p)[r//2] + 2*(r%2) + 1}" for r in range(4)]
    def acc(u): return [f"v_accvgpr_read_b32 v{Ov(u,3)+r}, a{A_O7+4*u+r}" for r in range(4)]
    def xw(u, j): return ("L", f"ds_write_b128 v{V_LIN}, {vr(Ov(u, 2*j), 4)} offset:{blk(u, j)}", ("xw", u))
    def lw(u): return ("L", f"ds_write_b32 v{V_LW}, a{A_L+4*u} offset:{LTAB(u)}", ("xw", u))
    def R(u):
        o = [("L", f"ds_read_b128 {ar(A_X(u) + 4*(j-1), 4)}, v{V_XR+j-1} offset:{blk(u, j)}", ("x", u)) for j in range(1, 4)]
        return o + [("L", f"ds_read_b128 {vr(V_CI+4*u,4)}, v{V_LR} offset:{LTAB(u)}", ("x", u))]
    def cmb(u):
        return [f"{M16} {Of(u, b)}, {ar(A_SEL + 2 - 2*b, 4)}, {ar(A_X(u) + 4*j, 4)}, {Of(u, b)}" for b in range(2) for j in range(3)]
    def ladd(u):
        c = V_CI + 4*u
        return [f"v_add_f32 v{c}, v{c}, v{c+1}", f"v_add_f32 v{c+2}, v{c+2}, v{c+3}", f"v_add_f32 v{c}, v{c}, v{c+2}"]
    def lrcp(u):
        c = V_CI + 4*u
        return [f"v_rcp_f32 v{c+2}, v{c}", f"v_add_f32 v{V_CHK}, v{V_CHK}, v{c}" if u else f"v_mov_b32 v{V_CHK}, v{c}"]
    def mul(u, b): return [f"v_mul_f32 v{Ov(u,b)+r}, v{Ov(u,b)+r}, v{V_CI+4*u+2}" for r in range(4)]
    def pmul(u): return [f"v_pk_mul_f32 {vr(Ov(u,0)+r,2)}, {vr(Ov(u,0)+r,2)}, {vr(V_CI+4*u+2,2)} op_sel_hi:[1,0]" for r in range(0, 8, 2)]
    def swp(u): return [f"v_permlane16_swap_b32 v{Ov(u,0)+r}, v{Ov(u,0)+2+r}" for r in range(2)]
    def sto(u): return f"s_movk_i32 s98, {u*4096}"
    def ST(u): return ("V", f"buffer_store_dwordx4 {vr(Ov(u,0),4)}, v{V_ST}, {srd(SRD_O)}, s98 offen{(' '+sflags) if sflags else ''}", "st")
    def seq(mf, fill):
        for i, m in enumerate(mf):
            if m: a(m)
            a(fill.get(i, []))
    a.c("tile 7")
    for u in range(6):
        stamp("e")
        w = u - 1; f = u - 2
        mf = [qk(u + 1, g) for g in range(8)] + (cmb(f) if f >= 0 else [None] * 6) + [pv(u, dt, 1, False) for dt in range(8)] + [sm(u, False)]
        F = {i: [] for i in range(23)}
        if f >= 0:
            r = R(f); F[0] += r[0:2]; F[1] += r[2:4]
        if w >= 0: F[2 if f >= 0 else 3] += [lw(w)]
        for g in range(3): F[g] += [ex(5 + g)]
        F[3] += [cv(2), cv(3)]
        if u == 0:
            e_ = {g: [] for g in range(8)}; s_ = {g: [] for g in range(8)}
            vh1(7, e_, s_)
            for g in range(8): F[g] = s_[g] + e_[g] + F[g]
            F[14] += [f"v_add_u32 v{V_LW}, s{S_LWO}, v{V_CIR}", f"v_subrev_u32 v{V_LR}, {CI_AREA - LT0}, v{V_CIR}"]
            F[15] += [f"v_lshl_add_u32 v{V_XR+j}, v{L}, 4, s{S_XR+j}" for j in range(2)]
            F[16] += [f"v_lshl_add_u32 v{V_XR+2}, v{L}, 4, s{S_XR+2}"]
            F[17] += [("W", None, [("v", 7, 5)])]; F[19] += [("W", "all", [("v", 7, 7)])]
        if f >= 0:
            if epi == 0:
                F[4] += pk(w, 1); F[5] += [xw(w, 1)]; F[6] += pk(w, 2); F[7] += [("W", None, [("x", f)])] + acc(w)
                F[8] += [xw(w, 2)]; F[9] += pk(w, 3); F[10] += ladd(f); F[11] += lrcp(f); F[12] += [xw(w, 3)]
                F[13] += [ex(0)]; F[14] += [ex(1)]; F[15] += [ex(2)]; F[16] += [ex(3)]
                F[17] += mul(f, 0); F[18] += mul(f, 1); F[19] += pk(f, 0)
                F[19] = [("W", None, [("xw", w)])] + F[19]
                F[20] += ["s_barrier", ex(4)]
                F[21] += [sto(f)] + swp(f)
                F[22] += [ST(f), cv(0), cv(1)]
            else:
                p1, p2, p3, ac, la, p0 = pk(w, 1), pk(w, 2), pk(w, 3), acc(w), ladd(f), pk(f, 0)
                F[4] += p1; F[5] += [xw(w, 1)]; F[6] += p2[:2]; F[7] += [("W", None, [("x", f)])] + p2[2:]
                F[8] += ac[:2]; F[9] += [xw(w, 2)]; F[10] += ac[2:]; F[11] += p3[:2]; F[12] += p3[2:]; F[13] += la[:2]
                F[14] += [xw(w, 3)]; F[15] += la[2:] + lrcp(f)[1:]; F[16] += lrcp(f)[:1]; F[17] += [ex(0)]
                F[18] += [ex(1), ex(2), ex(3)] + pmul(f)
                F[19] += [("W", None, [("xw", w)])] + p0
                F[20] += ["s_barrier", ex(4)]
                F[21] += [sto(f)] + swp(f)
                F[22] += [ST(f), cv(0), cv(1)]
        else:
            if w >= 0:
                F[4] += pk(w, 1); F[5] += [xw(w, 1)]; F[6] += pk(w, 2); F[7] += acc(w)
                F[14] += [xw(w, 2)]; F[15] += pk(w, 3); F[17] += [xw(w, 3)]
            for i, g in enumerate((17, 18, 19, 20, 21) if w < 0 else (16, 18, 19, 20, 21)): F[g] += [ex(i)]
            F[22] += [cv(0), cv(1)]
            if w >= 0: F[22] += [("W", None, [("xw", w)]), "s_barrier"]
        seq(mf, F)
    if epi == 0:
        stamp("e")
        a(R(4))
        a([ex(5), ex(6), ex(7)] + pk(5, 1)[:1] + [cv(2), cv(3)] + pk(5, 1)[1:])
        mf = [pv(6, dt, 1, False) for dt in range(2, 8)] + [sm(6, False), pv(6, 0, 1, False), pv(6, 1, 1, False)] + cmb(4)
        F = {0: [xw(5, 1)], 1: [lw(5)] + pk(5, 2), 2: acc(5), 3: [xw(5, 2)], 4: pk(5, 3), 5: [("W", None, [("x", 4)])] + ladd(4), 6: [xw(5, 3)], 7: pk(6, 1), 8: lrcp(4),
             9: [xw(6, 1)], 10: pk(6, 2), 11: acc(6), 12: [xw(6, 2)], 13: pk(6, 3), 14: [lw(6), xw(6, 3)]}
        seq(mf, F)
        a(mul(4, 0))
        a(("W", None, [("xw", 6)])); a("s_barrier")
        stamp()
        a(R(5)); a(R(6))
        a(mul(4, 1)); a(pk(4, 0)); a(sto(4)); a("s_nop 0"); a(swp(4)); a("s_nop 0"); a(ST(4))
        a(("W", None, [("x", 5)]))
        F = {0: ladd(5), 1: lrcp(5), 2: [("W", None, [("x", 6)])] + ladd(6), 3: lrcp(6), 4: [f"s_mov_b32 s99, {hex(f2u(THRESH))}", f"s_cmp_lg_u32 s{S_FB}, 0"],
             5: [f"v_cmp_ngt_f32 vcc, s99, v{V_CHK}", sto(5)], 6: mul(5, 0)[:2], 7: mul(5, 0)[2:], 8: ["s_nop 1"], 9: mul(5, 1), 10: pk(5, 0), 11: mul(6, 0)[:2] + swp(5)}
        seq(cmb(5) + cmb(6), F)
        a("s_nop 0"); a(ST(5)); a(mul(6, 0)[2:]); a(sto(6)); a(mul(6, 1)); a(pk(6, 0)); a("s_nop 1"); a(swp(6)); a("s_nop 0"); a(ST(6))
    else:
        stamp("e")
        a(R(4))
        a([ex(5), ex(6), ex(7)] + pk(5, 1)[:1] + [cv(2), cv(3)] + pk(5, 1)[1:])
        mf = [pv(6, dt, 1, False) for dt in range(2, 8)] + [sm(6, False), pv(6, 0, 1, False), pv(6, 1, 1, False)] + cmb(4)
        F = {0: [xw(5, 1)], 1: [lw(5)] + pk(5, 2), 2: acc(5), 3: [xw(5, 2)], 4: pk(5, 3), 5: [("W", None, [("x", 4)])] + ladd(4), 6: [xw(5, 3)], 7: pk(6, 1), 8: lrcp(4),
             9: [xw(6, 1)], 10: pk(6, 2), 11: [("W", None, [("xw", 5)])] + acc(6), 12: ["s_barrier", xw(6, 2)], 13: R(5) + pk(6, 3), 14: [lw(6), xw(6, 3)]}
        seq(mf, F)
        a([sto(4), f"s_mov_b32 s99, {hex(f2u(THRESH))}", ("W", None, [("x", 5)])] + ladd(5) + lrcp(5))
        a(pmul(4)); a(pk(4, 0))
        a(("W", None, [("xw", 6)])); a("s_barrier")
        stamp()
        a(R(6))
        F = {0: swp(4), 1: [ST(4)], 5: [("W", None, [("x", 6)])] + ladd(6), 6: [sto(5)] + lrcp(6), 7: mul(5, 0)[:2], 8: mul(5, 0)[2:],
             9: [f"s_cmp_lg_u32 s{S_FB}, 0"] + mul(5, 1), 10: pk(5, 0), 11: [f"v_cmp_ngt_f32 vcc, s99, v{V_CHK}", "s_nop 0"] + swp(5)}
        seq(cmb(5) + cmb(6), F)
        a("s_nop 0"); a(ST(5)); a(sto(6)); a("s_nop 0"); a(pmul(6)); a(pk(6, 0)); a("s_nop 1"); a(swp(6)); a("s_nop 0"); a(ST(6))
    a("s_cbranch_scc1 L_ok")
    a("s_cbranch_vccnz L_fallback")
    a.label("L_ok")
    a.free = True
    if diag and spin:
        i, j, mult = spin[:3]
        a("s_waitcnt vmcnt(0)")
        if len(spin) > 3 and spin[3] >= 32:
            a("s_lshr_b32 s84, s2, 6"); a(f"s_cmp_lg_u32 s84, {spin[3] - 32}"); a("s_cbranch_scc1 L_end")
        elif len(spin) > 3 and spin[3] >= 16:
            a("s_bfe_u32 s84, s2, 0x20001"); a(f"s_cmp_lg_u32 s84, {spin[3] - 16}"); a("s_cbranch_scc1 L_end")
        if len(spin) == 3:
            a(f"s_lshl_b32 s84, s2, 2"); a(f"s_add_u32 s84, s84, s{S_W}"); a("s_cmp_lg_u32 s84, 401"); a("s_cbranch_scc1 L_end")
        a("s_memrealtime s[80:81]"); a("s_memtime s[86:87]"); a("s_waitcnt lgkmcnt(0)")
        if absm:
            a("s_load_dwordx8 s[4:11], s[46:47], 0"); a("s_waitcnt lgkmcnt(0)")
            for k in range(4, 12): a(f"s_sub_u32 s{k}, s80, s{k}")
            for k in range(5, 12): a(f"s_max_u32 s4, s4, s{k}")
            a("s_sub_u32 s85, s80, s4")
            sj = 80 if j == 8 else S_STAMP + 2*j
            a(f"s_sub_u32 s84, s{sj}, s85"); a("s_add_u32 s84, s84, 100"); a(f"s_mul_i32 s84, s84, {mult}")
        elif mult >= 100:
            a(f"s_sub_u32 s84, s{S_STAMP+2*j}, s{S_STAMP+2*i}"); a(f"s_sub_u32 s85, s{S_STAMP+16+2*j}, s{S_STAMP+16+2*i}")
            a("s_mul_i32 s85, s85, 2731"); a("s_lshr_b32 s85, s85, 16"); a("s_sub_u32 s84, s84, s85"); a(f"s_mul_i32 s84, s84, {mult - 100}")
        elif mult > 0:
            sj = 80 if j == 8 else S_STAMP + 2*j
            a(f"s_sub_u32 s84, s{sj}, s{S_STAMP+2*i}"); a(f"s_mul_i32 s84, s84, {mult}")
        else:
            sj = 86 if j == 8 else S_STAMP + 16 + 2*j
            a(f"s_sub_u32 s84, s{sj}, s{S_STAMP+16+2*i}"); a(f"s_lshr_b32 s84, s84, {-mult}")
        a("s_min_u32 s84, s84, 20000")
        a.label("L_spin")
        a("s_memrealtime s[82:83]"); a("s_waitcnt lgkmcnt(0)")
        a("s_sub_u32 s85, s82, s80"); a("s_cmp_lt_u32 s85, s84"); a("s_cbranch_scc1 L_spin")
    elif diag:
        a("s_memrealtime s[84:85]"); a("s_memtime s[86:87]")
        a("s_waitcnt vmcnt(0)")
        a("s_memrealtime s[80:81]"); a("s_memtime s[82:83]")
        a("s_branch L_dump")
    a.label("L_end")
    a("s_endpgm")
    iend = len(a.l)
    if warm > 1:
        a.raw(f".fill ({4 * 4096 - head} - (. - {NAME}_kernel)) / 4, 4, 0xbf810000")
        a.label("L_pg3")
        a("s_branch L_back")
    a.c("fallback: redo the prologue, take the true row max over all keys, run again with it")
    a.label("L_fallback")
    a("s_waitcnt vmcnt(0) lgkmcnt(0)")
    a("s_barrier")
    a(f"s_mov_b32 s{S_FB}, 1")
    a("s_branch L_start")
    a.label("L_pass1")
    for u in range(7):
        for x in qreads(u)[1:]: a(x[1])
        a("s_waitcnt lgkmcnt(0)")
    a("s_waitcnt vmcnt(0)")
    a("s_barrier")
    a("s_mov_b32 s42, 0")
    MX = V_OWN
    for u in range(7): a(f"v_mov_b32 v{MX+u}, 0xff800000")
    a.label("L_fb1")
    a(m0(0)); a(f"s_add_u32 s{S_SO}, s42, 128")
    for p in range(4): a(dma(SRD_K, 42, p, "f")[1])
    a(m0(4096)); a("s_nop 0")
    for p in range(4): a(dma(SRD_K, S_SO, p, "f")[1])
    a("s_waitcnt vmcnt(0)")
    for j in range(8): a(kread(0, j))
    a("s_waitcnt lgkmcnt(0)")
    for u in range(7):
        for j in range(8): a(qk(u, j, zero=True))
        a("s_nop 7")
        for r in range(0, 8, 2): a(f"v_max3_f32 v{MX+u}, v{MX+u}, v{V_S+r}, v{V_S+r+1}")
    a("s_add_u32 s42, s42, 0x2000")
    a("s_cmp_lt_u32 s42, 0x10000")
    a("s_cbranch_scc1 L_fb1")
    for sw in ("v_permlane16_swap_b32", "v_permlane32_swap_b32"):
        for u in range(7): a(f"v_mov_b32 v{MX+8+u}, v{MX+u}")
        a("s_nop 1")
        for u in range(7): a(f"{sw} v{MX+u}, v{MX+8+u}")
        a("s_nop 1")
        for u in range(7): a(f"v_max_f32 v{MX+u}, v{MX+u}, v{MX+8+u}")
    a(f"v_add_u32 v{V_P}, s{S_LWO}, v{V_CIR}")
    for u in range(7): a(f"ds_write_b32 v{V_P}, v{MX+u} offset:{LTAB(u)}")
    a("s_waitcnt lgkmcnt(0)")
    a("s_barrier")
    a(f"s_and_b32 s42, s{S_W}, 1"); a("s_lshl_b32 s42, s42, 9")
    a(f"s_lshr_b32 s98, s{S_W}, 1"); a(f"s_mul_i32 s98, s98, {REG}"); a("s_add_u32 s42, s42, s98")
    a(f"s_sub_u32 s42, s42, {CI_AREA - LT0}")
    a(f"v_add_u32 v{V_P}, s42, v{V_CIR}")
    for h in range(2): a(f"ds_read_b128 {vr(V_S+4*h,4)}, v{V_P} offset:{256*h}")
    a("s_waitcnt lgkmcnt(0)")
    for h in range(2):
        a(f"v_max3_f32 v{V_KEEP+h}, v{V_S+4*h}, v{V_S+4*h+1}, v{V_S+4*h+2}")
        a(f"v_max_f32 v{V_KEEP+h}, v{V_KEEP+h}, v{V_S+4*h+3}")
    a(f"s_mov_b32 s{S_FB}, 2")
    a(f"s_mov_b64 s[{S_FBM}:{S_FBM+1}], -1")
    a("s_barrier")
    a("s_branch L_start")
    if diag and not spin:
        a.label("L_dump")
        a("s_mov_b32 s36, s46"); a("s_mov_b32 s37, s47"); a("s_mov_b32 s38, 0x100000"); a("s_mov_b32 s39, 0x20000")
        a("s_waitcnt lgkmcnt(0)")
        a("s_lshl_b32 s40, s2, 2"); a(f"s_add_u32 s40, s40, s{S_W}"); a("s_lshl_b32 s40, s40, 8")
        a(f"v_mov_b32 v4, s40")
        a(f"v_cmp_eq_u32 vcc, 0, v{L}")
        a("s_and_saveexec_b64 s[42:43], vcc")
        slots = [(S_STAMP+2*i, i) for i in range(8)] + [(84, 8), (80, 9)] + [(S_STAMP+16+2*i, 16+i) for i in range(8)] + [(86, 24), (82, 25)]
        for s, i in slots:
            a(f"v_mov_b32 v6, s{s}"); a(f"v_mov_b32 v7, s{s+1}"); a(f"buffer_store_dwordx2 v[6:7], v4, s[36:39], 0 offen offset:{8*i}"); a("s_nop 1")
        a("s_endpgm")
    lin = a.l[:i1] + a.l[i0:i1] + a.l[i1:iend]
    bad = hz.check(lin) + hz.check(a.l[iend:])
    for b in bad: print("HAZARD", b, file=sys.stderr)
    if unroll: a.raw(f".fill ({7 * 4096 - head} - (. - {NAME}_kernel)) / 4, 4, 0xbf810000")
    a.raw('.section .rodata,"a"'); a.raw(".p2align 6"); a.raw(f".amdhsa_kernel {NAME}_kernel")
    a.raw("  .amdhsa_next_free_vgpr 512"); a.raw("  .amdhsa_next_free_sgpr 102"); a.raw("  .amdhsa_accum_offset 256")
    a.raw("  .amdhsa_group_segment_fixed_size 0"); a.raw("  .amdhsa_kernarg_size 48"); a.raw("  .amdhsa_user_sgpr_count 2")
    a.raw("  .amdhsa_user_sgpr_kernarg_segment_ptr 1"); a.raw("  .amdhsa_system_sgpr_workgroup_id_x 1"); a.raw(".end_amdhsa_kernel")
    if warm: a.l = add_stubs(a.l, head)
    return "\n".join(a.l) + "\n"

if __name__ == "__main__":
    ap = argparse.ArgumentParser()
    ap.add_argument("-o", default=f"kK.s")
    ap.add_argument("--diag", action="store_true")
    ap.add_argument("--spin", default=None); ap.add_argument("--flags", default=""); ap.add_argument("--sflags", default="sc1")
    ap.add_argument("--n0", type=int, default=8); ap.add_argument("--mix", type=int, default=1); ap.add_argument("--vsch", default="2,2,2,2,0")
    ap.add_argument("--t0extra", type=int, default=2); ap.add_argument("--pace", type=int, default=2); ap.add_argument("--fine", default="c")
    ap.add_argument("--cgap", type=int, default=14); ap.add_argument("--pref", type=int, default=3); ap.add_argument("--align", type=int, default=12); ap.add_argument("--head", type=int, default=3328); ap.add_argument("--warm", type=int, default=0); ap.add_argument("--rot", default="0,0"); ap.add_argument("--touch", type=int, default=0); ap.add_argument("--pre0", type=int, default=2); ap.add_argument("--mid", default=""); ap.add_argument("--epi", type=int, default=1); ap.add_argument("--absm", action="store_true"); ap.add_argument("--unroll", type=int, default=0); ap.add_argument("--lpad", type=int, default=0); ap.add_argument("--lal", type=int, default=3); ap.add_argument("--bpad", type=int, default=0); ap.add_argument("--wg", default="4,5,6,7,8,9,10")
    args = ap.parse_args()
    tup = lambda s: tuple(map(int, s.split(',')))
    open(args.o, "w").write(gen(diag=args.diag, flags=args.flags, sflags=args.sflags, n0=args.n0, mix=args.mix, vsch=tup(args.vsch), t0extra=args.t0extra,
                                pace=args.pace, fine=args.fine, cgap=args.cgap, pref=args.pref, align=args.align, head=args.head, warm=args.warm, rot=tup(args.rot), touch=args.touch, pre0=args.pre0, epi=args.epi, absm=args.absm, unroll=args.unroll, lpad=args.lpad, lal=args.lal, bpad=args.bpad, mid=tup(args.mid) if args.mid else None, wg=tup(args.wg), spin=tup(args.spin) if args.spin else None))
```

```python
import sys, struct, argparse
import hz
NAME = "standalone__gqa_softmax__near_ridge"
def f2u(x): return struct.unpack("<I", struct.pack("<f", x))[0]
def vr(b, n=1): return f"v{b}" if n == 1 else f"v[{b}:{b+n-1}]"
def ar(b, n=1): return f"a{b}" if n == 1 else f"a[{b}:{b+n-1}]"
def srd(b): return f"s[{b}:{b+3}]"

V_LANE, V_LIN, V_KEEP, V_VOFF, V_AK, V_AV = 0, 1, 2, 4, 8, 10
V_QA0, V_QA1, V_X0, V_X1, V_ST, V_CIR = 14, 15, 16, 17, 18, 19
V_S, V_P, V_CI, V_OWN, V_OTH = 20, 28, 32, 60, 116
A_O7, A_L, A_ONE, A_K, A_V, A_Q = 0, 28, 56, 60, 92, 144
V_XR, V_LW, V_LR, V_CHK = 4, 7, 8, 9
A_SEL = A_V + 36
def A_X(u): return A_Q + 16 * (u % 2)
S_W = 3
SRD_Q, SRD_K, SRD_V, SRD_O = 12, 16, 20, 24
S_MK0, S_MK1, S_MV0, S_MV1 = 28, 29, 30, 31
S_Y, S_FB, S_WB, S_CNT = 32, 33, 34, 35
S_SO = 44
S_STAMP = 48
S_FBM = 88
S_XR = 90
S_LWO = 93
S_Y0 = 100
S_K0 = 101
S_YR = 43
REG = 40960
KB = lambda par: par * 8192
VB = lambda par: 16384 + par * 8192
XO = 32768
CI_AREA = 3 * REG + XO + 6144
LT0 = 39936
def LTAB(u): return u * 256 if u < 4 else REG + (u - 4) * 256
SCALE = (128 ** -0.5) * 1.4426950408889634
THRESH = 2.0 ** 40
M16 = "v_mfma_f32_16x16x32_bf16"

def Qf(u, c): return ar(A_Q + 16 * u + 4 * c, 4)
def Kf(j): return ar(A_K + 4 * j, 4)
def Vbase(dt, par): return A_V + 32 if (dt == 3 and par) else A_V + 4 * dt
def Ov(u, dt): return V_OWN + 8 * u + 4 * dt if dt < 2 else V_OTH + 20 * u + 4 * (dt - 2)
def Of(u, dt): return ar(A_O7 + 4 * u, 4) if dt == 7 else vr(Ov(u, dt), 4)
def qk(u, j, zero=False):
    kt, c = j // 4, j % 4
    S = vr(V_S + 4 * kt, 4)
    cc = S if c else ("0" if zero else vr(V_CI + 4 * u, 4))
    return f"{M16} {S}, {Kf(j)}, {Qf(u, c)}, {cc}"
def pv(u, dt, par, first):
    o = Of(u, dt)
    return f"{M16} {o}, {ar(Vbase(dt, par), 4)}, {vr(V_P, 4)}, {'0' if first else o}"
def sm(u, first):
    o = ar(A_L + 4 * u, 4)
    return f"{M16} {o}, {ar(A_ONE, 4)}, {vr(V_P, 4)}, {'0' if first else o}"
def ex(e): return f"v_exp_f32 v{V_S+e}, v{V_S+e}"
def cv(i): return f"v_cvt_pk_bf16_f32 v{V_P+i}, v{V_S+2*i}, v{V_S+2*i+1}"
def kread(par, j, base=None, dst=None):
    kt, c = j // 4, j % 4
    off = (KB(par) if base is None else base) + (c >> 1) * 4096 + kt * 2048
    return f"ds_read_b128 {dst or Kf(j)}, v{V_AK + (c & 1)} offset:{off}"
def vread(par, dt):
    b = Vbase(dt, par)
    return [f"ds_read_b64_tr_b16 {ar(b + 2*h, 2)}, v{V_AV + (dt & 3)} offset:{VB(par) + (dt >> 2) * 4096 + h * 2048}" for h in range(2)]


DOC = """
; ---------------------------------------------------------------------------------------------------------------
;   * wave w handles all 112 q rows (7 tiles of 16) against its own 256 keys, 32 keys per tile, v_mfma 16x16x32 bf16:
;   * K / V tiles come in by LDS-DMA (swizzled image, double buffered per wave); V is transposed by ds_read_b64_tr_b16.
;     the safe range (2^-40, 2^40) the workgroup computes the true row max over all keys (L_pass1) and
; ---------------------------------------------------------------------------------------------------------------"""

class Gen:
    def __init__(self):
        self.l = []; self.vq = []; self.lq = []; self.ldone = 0; self.free = False
    def __call__(self, s):
        if isinstance(s, list):
            for x in s: self(x)
        elif isinstance(s, tuple):
            if s[0] == "L": self.l.append("    " + s[1]); self.lq.append(s[2])
            elif s[0] == "V":
                tg = s[2]
                if isinstance(tg, tuple) and tg[0] in "KV" and tg[1] >= 2:
                    kv, x, hf = tg
                    need = ([("k", x-2)] if x > 2 else ["k0a", "k0b"]) if kv == "K" else [("v", x-2, dt) for dt in range(4*hf, 4*hf+4)]
                    for n in need:
                        idx = [i for i, t in enumerate(self.lq) if t == n]
                        assert idx and max(idx) < self.ldone, ("LDS WAR", tg, n)
                self.l.append("    " + s[1]); self.vq.append(s[2])
            elif s[0] == "W":
                parts = []
                for q, tags, nm, mx in ((self.vq, s[1], "vmcnt", 63), (self.lq, s[2], "lgkmcnt", 15)):
                    if tags is None: continue
                    if tags == "all": n = 0
                    else:
                        idx = [i for i, t in enumerate(q) if t in tags]
                        assert idx, ("no such tag", tags)
                        n = len(q) - 1 - max(idx)
                    if nm == "lgkmcnt": self.ldone = max(self.ldone, len(q) - min(n, mx))
                    parts.append(f"{nm}({min(n, mx)})")
                self.l.append("    s_waitcnt " + " ".join(parts))
        else:
            assert not (s.startswith("ds_") or s.startswith("buffer_")) or self.free, s
            self.l.append("    " + s)
    def label(self, s): self.l.append(s + ":")
    def c(self, s): self.l.append("    ; " + s)
    def raw(self, s): self.l.append(s)

def sizes(lines):
    import subprocess, tempfile, os, re
    with tempfile.TemporaryDirectory() as d:
        src = [l for l in lines]
        src.insert(src.index("L_end:"), "L_pg1:\nL_pg2:")
        open(d + "/t.s", "w").write("\n".join(src) + "\n")
        subprocess.run(["clang", "-x", "assembler", "-target", "amdgcn-amd-amdhsa", "-mcpu=gfx950", "-c", d + "/t.s", "-o", d + "/t.o"], check=True)
        out = subprocess.run(["llvm-objdump", "-d", "--mcpu=gfx950", d + "/t.o"], capture_output=True, text=True).stdout
    return [(int(m.group(2), 16), m.group(1)) for m in re.finditer(r"^\t(\S+).*// ([0-9A-F]+):", out, re.M)]
def add_stubs(lines, head):
    lines = list(lines)
    for pg in (1, 2):
        tmp = [l for l in lines if l not in ("L_pg1:", "L_pg2:")]
        ins = [x for x in sizes(tmp) if x[0] >= head]
        mf = [off for off, mn in ins if mn.startswith("v_mfma")]
        target = (pg + (1 if head else 0)) * 4096
        k = next(i for i, off in enumerate(mf) if off >= target - 8)
        assert mf[k] + 8 < target + 60, (mf[k], target)
        idx = [i for i, l in enumerate(lines) if l.strip().startswith("v_mfma")][k]
        lines[idx + 1:idx + 1] = [f"L_pg{pg}:", "    s_cbranch_execz L_back"]
    return lines

def gen(diag=False, flags="", sflags="sc1", spin=None, n0=8, mix=1, vsch=(2, 2, 2, 2, 0), t0extra=2, pace=2, fine='c', cgap=14, pref=3, align=12, head=3328, warm=0, rot=(0, 0), touch=0, pre0=2, mid=None, epi=1, absm=False, unroll=0, lpad=0, lal=3, bpad=0, wg=(4, 5, 6, 7, 8, 9, 10)):
    a = Gen()
    fl = (" " + flags) if flags else ""
    def dma(s, soff, p, tag): return ("V", f"buffer_load_dwordx4 v{V_VOFF+p}, {srd(s)}, s{soff} offen offset:{p*1024}{fl} lds", tag)
    def m0(off): return f"s_add_u32 m0, s{S_WB}, {off}"
    def Ls(texts, tag): return [("L", t, tag) for t in texts]
    nst = [0]
    def stamp(kind="c"):
        if diag and kind in fine and nst[0] < 8:
            a(f"s_memrealtime s[{S_STAMP+2*nst[0]}:{S_STAMP+2*nst[0]+1}]")
            a(f"s_memtime s[{S_STAMP+16+2*nst[0]}:{S_STAMP+16+2*nst[0]+1}]")
            nst[0] += 1
    GROUPS = (("K", 0), ("K", 1), ("V", 0), ("V", 1))
    stream = []
    for x in range(1, 10):
        for gi, (kv, hf) in enumerate(GROUPS):
            s_, buf = (SRD_K, KB(x & 1)) if kv == "K" else (SRD_V, VB(x & 1))
            for p in range(4):
                pre = []; so = S_SO
                if p == 0:
                    if gi == 0: pre += [("Y", x)]
                    pre += [m0(buf + hf * 4096)]
                    pre += [f"s_or_b32 s{S_SO}, s{S_Y}, s{S_MV0+hf}" if kv == "V" else f"s_or_b32 s{S_SO}, s{S_Y}, {128*hf}"]
                stream.append((pre, dma(s_, so, p, (kv, x, hf)), x))
    spos = [0]
    def expand(pre):
        out = []
        for y in pre:
            if isinstance(y, tuple) and y[0] == "Y":
                out += [f"s_add_u32 s{S_Y}, s{S_Y}, 0x2000"]
                if y[1] % 2 == 0 and y[1] >= 4 and not unroll:
                    out += [f"s_cmp_lt_u32 s{S_Y}, 0x10000", f"s_cselect_b32 s{SRD_K+2}, 0x10000, 0", f"s_mov_b32 s{SRD_V+2}, s{SRD_K+2}"]
            elif isinstance(y, tuple): out += ["s_nop 0"]
            else: out.append(y)
        return out
    def nextpre():
        pre, d, x = stream[spos[0]]
        if unroll and x >= 8: return []
        stream[spos[0]] = ([], d, x)
        return expand(pre)
    def nextdma():
        pre, d, x = stream[spos[0]]
        if unroll and x >= 8: return []
        spos[0] += 1
        return expand(pre) + [d]

    a.raw(open("cdna_kernels/%s.s.ref" % NAME).read().split("; Override launch")[0].rstrip())
    a.raw("; @launch grid=(256,1,1) block=(256,1,1) lds=163840")
    a.raw(DOC.strip())
    a.raw('.amdgcn_target "amdgcn-amd-amdhsa--gfx950"')
    a.raw(".text"); a.raw(f".globl {NAME}_kernel"); a.raw(f".p2align {align}"); a.raw(f".fill {head // 4}, 4, 0xbf810000"); a.raw(".p2align 8"); a.raw(f".type {NAME}_kernel,@function")
    a.label(f"{NAME}_kernel")
    a("s_load_dwordx8 s[4:11], s[0:1], 0")
    a("s_cmp_ge_u32 s2, 256")
    a("s_cbranch_scc1 L_end")
    if diag:
        a("s_load_dwordx2 s[46:47], s[0:1], %d" % (32 if absm else 40))
        stamp(fine[0])
    L = V_LANE
    T = V_S
    a(f"v_lshrrev_b32 v{T}, 6, v0")
    a(f"v_and_b32 v{L}, 63, v0")
    a(f"v_readfirstlane_b32 s{S_W}, v{T}")
    a("s_and_b32 s36, s2, 7")
    a("s_lshr_b32 s37, s2, 3")
    a("s_lshl_b32 s36, s36, 5")
    a("s_add_u32 s36, s36, s37")
    a("s_mul_i32 s38, s36, 28672")
    a(f"s_mul_i32 s{S_WB}, s{S_W}, {REG}")
    a(f"s_movk_i32 s{SRD_Q+2}, 28672")
    a(f"s_mov_b32 s{SRD_Q+3}, 0x20000")
    a(f"s_lshl_b32 s40, s{S_W}, 13")
    a(f"s_mov_b32 s{S_FB}, 0")
    a(f"s_mov_b64 s[{S_FBM}:{S_FBM+1}], 0")
    a.label("L_start")
    a(f"v_lshrrev_b32 v{T}, 3, v{L}")
    a(f"v_and_b32 v{T+1}, 6, v{T}")
    a(f"v_xor_b32 v{T+1}, v{T+1}, v{L}")
    a(f"v_and_b32 v{T+1}, 7, v{T+1}")
    a(f"v_lshlrev_b32 v{T+1}, 4, v{T+1}")
    a(f"v_lshl_add_u32 v{V_VOFF}, v{T}, 8, v{T+1}")
    a(f"v_xor_b32 v{V_VOFF+1}, 16, v{V_VOFF}")
    a(f"v_add_u32 v{V_VOFF+1}, 0x400, v{V_VOFF+1}")
    a(m0(XO))
    a("s_add_u32 s41, s40, 128")
    a("s_lshr_b32 s39, s36, 2")
    a("s_lshl_b32 s39, s39, 18")
    a(f"s_lshl_b32 s42, s{S_W}, 16")
    a("s_add_u32 s39, s39, s42")
    a(f"s_mov_b32 s{SRD_K+2}, 0x10000")
    a(f"s_mov_b32 s{SRD_K+3}, 0x20000")
    a(f"s_mov_b32 s{S_Y}, 0")
    a("s_movk_i32 s43, 128")
    a.c("code prefetch into L2: one 64-B line of the following code pages per wave")
    a("s_getpc_b64 s[94:95]")
    a.label("L_pc")
    a(f"s_lshl_b32 s97, s{S_W}, 5")
    a("s_add_u32 s97, s97, s37")
    a("s_lshl_b32 s97, s97, 6")
    a(f"s_add_u32 s96, s97, {4096 - head}-(L_pc-{NAME}_kernel)")
    a("s_add_u32 s96, s94, s96")
    a(f"v_mov_b32 v{T+2}, s96")
    a("s_addc_u32 s96, s95, 0")
    a(f"v_mov_b32 v{T+3}, s96")
    a(("V", f"global_load_dword v{V_CI}, {vr(T+2, 2)}, off", "pf"))
    stamp("k")
    a("s_waitcnt lgkmcnt(0)")
    stamp("k")
    def base(b, src, off): return [f"s_add_u32 s{b}, s{src}, s{off}", f"s_addc_u32 s{b+1}, s{src+1}, 0"]
    a(base(SRD_Q, 4, 38))
    for p in (0, 1): a(dma(SRD_Q, 40, p, "Qa"))
    a(m0(XO + 4096)); a(base(SRD_K, 6, 39))
    for p in (0, 1): a(dma(SRD_Q, 41, p, "Qa"))
    a(m0(KB(0)))
    a(f"s_cmp_eq_u32 s{S_W}, 3")
    for p in (0, 1): a(dma(SRD_K, S_Y, p, "K0a"))
    a(f"s_cselect_b32 s45, 0x4000, 0")
    a(m0(KB(0) + 4096))
    a(f"s_add_u32 s45, s45, s{S_WB}")
    for p in (0, 1): a(dma(SRD_K, 43, p, "K0a"))
    a(f"v_add_u32 v{V_VOFF+2}, 0x800, v{V_VOFF}")
    a(f"v_add_u32 v{V_VOFF+3}, 0x800, v{V_VOFF+1}")
    a(f"s_add_u32 m0, s45, {XO + 4096}"); a("s_nop 0")
    for p in (2, 3): a(dma(SRD_Q, 41, p, "Qb"))
    a(f"s_add_u32 m0, s45, {XO}"); a("s_nop 0")
    for p in (2, 3): a(dma(SRD_Q, 40, p, "Qb"))
    a(base(SRD_V, 8, 39)); a(base(SRD_O, 10, 38))
    a(f"s_mov_b32 s{SRD_V+2}, 0x10000"); a(f"s_mov_b32 s{SRD_V+3}, 0x20000")
    a(f"s_movk_i32 s{SRD_O+2}, 28672"); a(f"s_mov_b32 s{SRD_O+3}, 0x20000")
    if warm:
        a("s_mov_b64 exec, 0")
        for w in (1, 2, 3)[:warm + 1]:
            a(f"s_cmp_eq_u32 s{S_W}, {w}")
            a(f"s_cbranch_scc1 L_pg{w}")
        a.label("L_back")
        a("s_mov_b64 exec, -1")
    a(f"s_lshr_b32 s{S_MV0}, s{S_W}, 1"); a(f"s_lshl_b32 s{S_MV0}, s{S_MV0}, 7")
    a(f"s_xor_b32 s{S_MV1}, s{S_MV0}, 128")

    a(f"v_and_b32 v{T}, 15, v{L}")
    a(f"v_and_b32 v{T+1}, 6, v{T}")
    a(f"v_lshrrev_b32 v{T+2}, 3, v{T}")
    a(f"v_or_b32 v{T+1}, v{T+1}, v{T+2}")
    a(f"v_lshrrev_b32 v{T+2}, 4, v{L}")
    a(f"v_lshlrev_b32 v{T+2}, 1, v{T+2}")
    a(f"v_xor_b32 v{T+1}, v{T+1}, v{T+2}")
    a(f"v_lshlrev_b32 v{T+1}, 4, v{T+1}")
    a(f"v_lshl_add_u32 v{T+1}, v{T}, 7, v{T+1}")
    a(f"v_add_u32 v{V_AK}, s{S_WB}, v{T+1}")
    a(f"v_xor_b32 v{V_AK+1}, 16, v{V_AK}")
    a(f"v_lshl_add_u32 v{V_LIN}, v{L}, 4, s{S_WB}")
    CIW, QWB, SC = V_CI + 24, V_CI + 25, V_CI + 26
    a(f"v_mov_b32 v{SC}, {hex(f2u(SCALE))}")
    a(f"v_lshl_add_u32 v{QWB}, v{L}, 4, s45")
    a(f"s_lshl_b32 s42, s{S_W}, 9")
    a(f"v_lshlrev_b32 v{T+3}, 4, v{T}")
    a(f"v_add_u32 v{V_CIR}, {CI_AREA}, v{T+3}")
    a(f"v_add_u32 v{CIW}, s42, v{V_CIR}")
    a(f"v_lshlrev_b32 v{T+3}, 4, v{L}")
    a(f"v_add_u32 v{V_QA0}, {XO}, v{T+3}")
    a(f"v_add_u32 v{V_QA1}, {2*REG + XO}, v{T+3}")
    for j in range(1, 4):
        a(f"s_xor_b32 s42, s{S_W}, {j}")
        a(f"s_mul_i32 s{S_XR+j-1}, s42, {REG}")
    a(f"s_lshl_b32 s{S_LWO}, s{S_W}, 2")
    a(f"s_sub_u32 s{S_LWO}, s{S_LWO}, {CI_AREA - LT0}")
    a(f"v_lshrrev_b32 v{T+1}, 4, v{L}")
    a(f"v_lshrrev_b32 v{T+2}, 2, v{T}")
    a(f"v_cmp_eq_u32 vcc, v{T+1}, v{T+2}")
    a(f"v_and_b32 v{T+2}, 1, v{L}")
    a(f"v_lshlrev_b32 v{T+2}, 4, v{T+2}")
    a(f"v_mov_b32 v{T+3}, 0x3f80")
    a(f"v_lshlrev_b32 v{T+3}, v{T+2}, v{T+3}")
    a(f"v_cndmask_b32 v{T+3}, 0, v{T+3}, vcc")
    a(f"v_and_b32 v{T+2}, 2, v{L}")
    a(f"v_cmp_eq_u32 vcc, 0, v{T+2}")
    a(f"v_bfe_u32 v{T+4}, v{L}, 4, 1")
    a(f"v_lshrrev_b32 v{T+5}, 5, v{L}")
    a(f"v_cndmask_b32 v{V_X0}, 0, v{T+3}, vcc")
    a(f"v_sub_u32 v{V_X1}, v{T+3}, v{V_X0}")
    for r, x in enumerate(("0", "0", f"v{V_X0}", f"v{V_X1}", "0", "0")): a(f"v_accvgpr_write_b32 a{A_SEL+r}, {x}")
    a(f"v_lshl_add_u32 v{T+4}, v{T+4}, 1, v{T+5}")
    a(f"v_lshlrev_b32 v{T+4}, 4, v{T+4}")
    a(f"v_lshl_add_u32 v{T+4}, v{T}, 8, v{T+4}")
    a(f"s_lshl_b32 s42, s{S_W}, 6")
    a(f"v_add_u32 v{V_ST}, s42, v{T+4}")
    a(f"v_and_b32 v{T+2}, 3, v{L}")
    a(f"v_cmp_eq_u32 vcc, 0, v{T+2}")
    a(f"v_lshrrev_b32 v{T}, 2, v{L}")
    a(f"v_and_b32 v{T+1}, 6, v{T}")
    a(f"v_lshrrev_b32 v{T+2}, 3, v{T}")
    a(f"v_or_b32 v{T+1}, v{T+1}, v{T+2}")
    a(f"v_bfe_u32 v{T+2}, v{L}, 1, 1")
    a(f"v_xor_b32 v{T+1}, v{T+1}, v{T+2}")
    a(f"s_and_b32 s42, s{S_W}, 1")
    a("s_lshl_b32 s42, s42, 2")
    a(f"v_xor_b32 v{T+1}, s42, v{T+1}")
    a(f"v_lshlrev_b32 v{T+1}, 4, v{T+1}")
    a(f"v_lshl_add_u32 v{T+1}, v{T}, 7, v{T+1}")
    a(f"v_and_b32 v{T+2}, 1, v{L}")
    a(f"v_lshl_add_u32 v{T+1}, v{T+2}, 3, v{T+1}")
    a(f"v_add_u32 v{V_AV}, s{S_WB}, v{T+1}")
    for k in range(1, 4): a(f"v_xor_b32 v{V_AV+k}, {32*k}, v{V_AV}")
    a(f"v_mov_b32 v{T+2}, 0x3f803f80")
    a(f"v_cndmask_b32 v{T+2}, 0, v{T+2}, vcc")
    for r in range(4): a(f"v_accvgpr_write_b32 a{A_ONE+r}, v{T+2}")

    if pref:
        a(f"s_and_b32 s97, s97, 0xfff")
        a(f"s_add_u32 s97, s97, {3 * 4096 - head}-(L_pc-{NAME}_kernel)")
        a("s_add_u32 s94, s94, s97")
        a("s_addc_u32 s95, s95, 0")
        a(f"v_mov_b32 v{V_X0}, s94")
        a(f"v_mov_b32 v{V_X1}, s95")
    if touch: a(("V", f"buffer_load_dword v{V_CI}, off, {srd(SRD_O)}, 0", "touch"))
    a(m0(KB(0) + 4096)); a("s_nop 0")
    for p in (2, 3): a(dma(SRD_K, 43, p, "K0b"))
    a(m0(KB(0))); a("s_nop 0")
    for p in (2, 3): a(dma(SRD_K, S_Y, p, "K0b"))

    RAW, QP, TMP = V_OTH, V_OWN, V_OTH + 32
    left = [n0]
    def more(n=1):
        for _ in range(n):
            if left[0] > 0: a(nextdma()); left[0] -= 1
    v0 = [0]
    def v0dma(n=1):
        for _ in range(n):
            j = v0[0]
            if j >= 8: return
            if j % 4 == 0: a(m0(VB(0) + (j // 4) * 4096)); a("s_nop 0")
            a(dma(SRD_V, S_MV0 + j // 4, j % 4, ("V", 0, j // 4)))
            v0[0] += 1
    def qoff(h, c): return XO + (c >> 1) * 4096 + h * 2048 + (c & 1) * 1024
    def qw(h, c): return ("L", f"ds_write_b128 v{V_LIN if h == 0 else QWB}, {vr(QP + 16*h + 4*c, 4)} offset:{qoff(h, c)}", "qw")
    def scale_ops(j):
        o = []
        for r in range(4):
            o += [f"v_lshlrev_b32 v{TMP+2*r}, 16, v{RAW+4*j+r}", f"v_and_b32 v{TMP+2*r+1}, 0xffff0000, v{RAW+4*j+r}"]
        o += [f"v_pk_mul_f32 {vr(TMP+2*r,2)}, {vr(TMP+2*r,2)}, {vr(SC,2)} op_sel_hi:[1,0]" for r in range(4)]
        o += [f"v_cvt_pk_bf16_f32 v{QP+4*j+r}, v{TMP+2*r}, v{TMP+2*r+1}" for r in range(4)]
        return o
    def red_ops(h):
        S = V_S + 4*h; M = V_P + 2*h
        o = [f"v_max3_f32 v{M}, v{S}, v{S+1}, v{S+2}", f"v_max_f32 v{M}, v{M}, v{S+3}"]
        for sw in ("v_permlane16_swap_b32", "v_permlane32_swap_b32"):
            o += [f"v_mov_b32 v{M+1}, v{M}", f"{sw} v{M}, v{M+1}", f"v_max_f32 v{M}, v{M}, v{M+1}"]
        o += [f"v_mul_f32 v{M}, v{M}, v{SC}", f"v_cndmask_b32 v{M}, v{M}, v{V_KEEP+h}, s[{S_FBM}:{S_FBM+1}]"]
        o += [f"v_sub_f32 v{S+r}, 0, v{M}" for r in range(4)]
        return o
    def part(h, d0, d1):
        for c in range(4): a(("L", kread(0, 4*h + c, base=XO, dst=vr(RAW + 16*h + 4*c, 4)), ("raw", h, c)))
        if h == 0:
            a(("W", ["K0a"], None))
            for jj in range(4): a(("L", kread(0, jj), "k0a"))
        v0dma(d0)
        a(("W", None, [("raw", h, 0)]))
        a(scale_ops(4*h))
        a(("W", None, [("raw", h, 3), "k0a"]))
        S = vr(V_S + 4*h, 4)
        o1 = scale_ops(4*h + 1)
        for c in range(4):
            a(f"{M16} {S}, {Kf(c)}, {vr(RAW + 16*h + 4*c, 4)}, {S if c else '0'}")
            if c == 0: a(qw(h, 0))
            else: a(o1[:2]); del o1[:2]
        a(o1)
        a(qw(h, 1)); v0dma(d1)
        red = red_ops(h)
        for c in (2, 3):
            o = scale_ops(4*h + c)
            while o:
                a(o[:2]); del o[:2]
                if red: a(red.pop(0))
            a(qw(h, c))
        a(red)
        a(("L", f"ds_write_b128 v{CIW}, {S} offset:{256*h}", "ciw"))
    a.c("Q tiles 2w, 2w+1: prescale, block max, publish through LDS")
    stamp("p")
    a(("W", ["Qa"], None))
    stamp(); stamp("p")
    part(0, vsch[0], vsch[1])
    v0dma(vsch[2])
    stamp("p")
    a(("W", ["Qb"], None))
    stamp("p")
    part(1, vsch[3], vsch[4])
    v0dma(8); more(pace)
    a(("W", ["K0b"], None))
    for jj in range(4, 8): a(("L", kread(0, jj), "k0b"))
    a(f"s_cmp_eq_u32 s{S_FB}, 1")
    stamp(); stamp("p")
    a(("W", None, "all"))
    a("s_barrier")
    a("s_cbranch_scc1 L_pass1")
    stamp(); stamp("p")
    def qreads(u):
        w, h = u // 2, u % 2
        ad = V_QA0 if w < 2 else V_QA1
        out = [f"ds_read_b128 {vr(V_CI+4*u,4)}, v{V_CIR} offset:{u*256}"]
        out += [f"ds_read_b128 {Qf(u,c)}, v{ad} offset:{(w&1)*REG + qoff(h, c) - XO}" for c in range(4)]
        return Ls(out, ("q", u))
    a(qreads(0)); a(qreads(1))
    more(2)
    a(("W", None, [("q", 0)]))
    for j in range(8):
        a(qk(0, j))
        if j in (0, 2): more()
        if j == 3: a(("W", [("V", 0, 0)], None))
        if j >= 4: a(Ls(vread(0, j - 4), ("v", 0, j - 4)))
    more(64)
    a([ex(0), ex(1), ex(2), ex(3), cv(0), ("W", None, [("q", 1)]), cv(1), ex(4)])
    stamp()

    pend = []
    def emit_step(u, par, first, ext, shadow, dgaps):
        for g in range(17):
            a(qk((u + 1) % 7, g) if g < 8 else (pv(u, g - 8, par, first) if g < 16 else sm(u, first)))
            valu = g < 4 or g > 10
            if g in dgaps:
                a(list(pend)); pend.clear()
                a(nextdma())
                a(shadow[g])
            else:
                a(shadow[g])
                room = (1 if valu else 2) - len(ext[g]) - len(shadow[g])
                if room > 0 and dgaps:
                    if not pend: pend.extend(nextpre())
                    a(pend[:room]); del pend[:room]
            a(ext[g])
            if g < 3: a(ex(5 + g))
            elif g == 3: a(cv(2)); a(cv(3))
            elif 11 <= g <= 15: a(ex(g - 11))
            elif g == 16: a(cv(0)); a(cv(1))

    def vh1(t, ext, sh):
        sh[2].append(("W", None, [("v", t, dt) for dt in range(4)]))
        sh[3].append(("W", [("V", t, 1)], None))
        for g, dt in zip((4, 5, 6, 7), (4, 5, 6, 7)): ext[g] += Ls(vread(t & 1, dt), ("v", t, dt))
    def tile(t):
        par = t & 1; nx = par ^ 1
        first = t == 0
        for u in range(7):
            ext = {g: [] for g in range(17)}; sh = {g: [] for g in range(17)}
            dgaps = {0: (8, 10), 1: (4, 10), 2: (4, 7, 10), 3: (4, 10), 4: (4, 7, 10), 5: (5, 9), 6: (4, 7)}[u]
            if u == 0:
                vh1(t, ext, sh)
                sh[11].append(("W", None, [("v", t, 5)])); sh[13].append(("W", None, [("v", t, 7)]))
            if u == 5:
                sh[3].append(("W", [("K", t+1, 0), ("K", t+1, 1)], None))
                for i, g in enumerate((4, 6, 8, 10)): ext[g] += Ls([kread(nx, 2*i), kread(nx, 2*i+1)], ("k", t+1))
                sh[16].append(("W", None, [("k", t+1)]))
                if first: sh[15].append("s_barrier")
            if u == 6:
                sh[5].append(("W", [("V", t+1, 0)], None))
                for g, dt in zip((6, 8, 9, 10), (3, 0, 1, 2)): ext[g] += Ls(vread(nx, dt), ("v", t+1, dt))
                if t % 2 == 0 and t > 0 and not unroll: sh[15].append(f"s_sub_u32 s{S_CNT}, s{S_CNT}, 1"); sh[16].append(f"s_cmp_lg_u32 s{S_CNT}, 0")
            if pref == 2 and not unroll and t % 2 == 0 and t > 0 and u == 1: sh[0].append("s_load_dword s96, s[94:95], s97")
            if pref == 3 and t % 2 == 0 and u == 1: ext[7 if t else 9] += [("V", f"global_load_dword v{V_KEEP}, {vr(V_X0, 2)}, off", "pf"), []]
            if pref and unroll and t in (1, 3, 5) and u == 1:
                sh[0].append(f"s_add_u32 s97, s97, {0x2000 if t == 1 else 0x1000}"); sh[1].append("s_load_dword s96, s[94:95], s97")
            if first:
                if u == 0:
                    dgaps = ()
                    sh[2] = []; ext[7].append(("W", None, [("v", 0, 3)]))
                    q = qreads(2); ext[8] += q[0:2]; ext[9] += q[2:4]; ext[10] += q[4:5]
                elif u < 5:
                    q = qreads(u + 2); ext[5] += q[0:2]; ext[6] += q[2:3]; ext[8] += q[3:5]
                    dgaps = (4, 7, 10)
                if u < 5: sh[16].append(("W", None, [("q", u + 2)]))
                xs = [(0, 1), (0, 14), (1, 9), (2, 9), (3, 9), (4, 9), (5, 7), (1, 1), (2, 1), (3, 1), (4, 1), (5, 1)][:t0extra]
                dgaps = tuple(sorted(set(dgaps) | set(g for (uu, g) in xs if uu == u)))
                stamp("t")
            if t > 0 and t % 2 == 1 and u in (1, 3):
                for i in range(bpad // 2 + (bpad % 2 if u == 1 else 0)): ext[(6, 8, 5, 7, 9, 6, 8, 5)[i]].append("s_nop 0")
            if t == 5: stamp('l')
            if t == 6: stamp('m')
            emit_step(u, par, first, ext, sh, dgaps)

    a.c("tile 0"); tile(0)
    if not unroll: a(f"s_mov_b32 s{S_CNT}, 3")
    if absm:
        a.free = True
        a(f"s_lshr_b32 s84, s2, 3"); a(f"s_add_u32 s84, s84, s{S_W}"); a("s_cmp_lg_u32 s84, 0"); a("s_cbranch_scc1 L_nopost")
        a("s_waitcnt lgkmcnt(0)"); a(f"v_mov_b32 v14, s{S_STAMP}"); a("s_lshl_b32 s84, s2, 2"); a("v_mov_b32 v15, s84")
        a("global_store_dword v15, v14, s[46:47] sc1")
        a.label("L_nopost")
        a.free = False
    stamp()
    if unroll:
        for t in range(1, 7): a.c(f"tile {t}"); tile(t)
        i0 = i1 = len(a.l)
    else:
        a.raw(f".p2align {lal}")
        for _ in range(lpad): a("s_nop 0")
        a.label("L_loop")
        i0 = len(a.l)
        bodies = []
        for t in range(1, 7):
            b = len(a.l); tile(t); bodies.append(a.l[b:])
        for t in (2, 4):
            for k in (0, 1):
                assert absm or fine[0] in 'lm' or bodies[t + k] == bodies[k], [(x, y) for x, y in zip(bodies[k], bodies[t + k]) if x != y][:4]
        del a.l[i0:]
        a.l += bodies[4] + bodies[5]
        a("s_cbranch_scc1 L_loop")
        i1 = len(a.l)
    assert stream[spos[0]][2] >= 8, "stream not fully issued"
    stamp()

    def blk(u, j): return (u * 3 + j - 1) * 1024
    def pk(u, j):
        o = Ov(u, 2*j); p = Ov(u, 2*j+1) if j < 3 else Ov(u, 3)
        return [f"v_cvt_pk_bf16_f32 v{o+r}, v{(o, p)[r//2] + 2*(r%2)}, v{(o, p)[r//2] + 2*(r%2) + 1}" for r in range(4)]
    def acc(u): return [f"v_accvgpr_read_b32 v{Ov(u,3)+r}, a{A_O7+4*u+r}" for r in range(4)]
    def xw(u, j): return ("L", f"ds_write_b128 v{V_LIN}, {vr(Ov(u, 2*j), 4)} offset:{blk(u, j)}", ("xw", u))
    def lw(u): return ("L", f"ds_write_b32 v{V_LW}, a{A_L+4*u} offset:{LTAB(u)}", ("xw", u))
    def R(u):
        o = [("L", f"ds_read_b128 {ar(A_X(u) + 4*(j-1), 4)}, v{V_XR+j-1} offset:{blk(u, j)}", ("x", u)) for j in range(1, 4)]
        return o + [("L", f"ds_read_b128 {vr(V_CI+4*u,4)}, v{V_LR} offset:{LTAB(u)}", ("x", u))]
    def cmb(u):
        return [f"{M16} {Of(u, b)}, {ar(A_SEL + 2 - 2*b, 4)}, {ar(A_X(u) + 4*j, 4)}, {Of(u, b)}" for b in range(2) for j in range(3)]
    def ladd(u):
        c = V_CI + 4*u
        return [f"v_add_f32 v{c}, v{c}, v{c+1}", f"v_add_f32 v{c+2}, v{c+2}, v{c+3}", f"v_add_f32 v{c}, v{c}, v{c+2}"]
    def lrcp(u):
        c = V_CI + 4*u
        return [f"v_rcp_f32 v{c+2}, v{c}", f"v_max3_f32 v{V_CHK}, v{V_CHK}, v{c}, v{c+2}" if u else f"v_max_f32 v{V_CHK}, v{c}, v{c+2}"]
    def mul(u, b): return [f"v_mul_f32 v{Ov(u,b)+r}, v{Ov(u,b)+r}, v{V_CI+4*u+2}" for r in range(4)]
    def pmul(u): return [f"v_pk_mul_f32 {vr(Ov(u,0)+r,2)}, {vr(Ov(u,0)+r,2)}, {vr(V_CI+4*u+2,2)} op_sel_hi:[1,0]" for r in range(0, 8, 2)]
    def swp(u): return [f"v_permlane16_swap_b32 v{Ov(u,0)+r}, v{Ov(u,0)+2+r}" for r in range(2)]
    def sto(u): return f"s_movk_i32 s98, {u*4096}"
    def ST(u): return ("V", f"buffer_store_dwordx4 {vr(Ov(u,0),4)}, v{V_ST}, {srd(SRD_O)}, s98 offen{(' '+sflags) if sflags else ''}", "st")
    def seq(mf, fill):
        for i, m in enumerate(mf):
            if m: a(m)
            a(fill.get(i, []))
    a.c("tile 7")
    for u in range(6):
        stamp("e")
        w = u - 1; f = u - 2
        mf = [qk(u + 1, g) for g in range(8)] + (cmb(f) if f >= 0 else [None] * 6) + [pv(u, dt, 1, False) for dt in range(8)] + [sm(u, False)]
        F = {i: [] for i in range(23)}
        if f >= 0:
            r = R(f); F[0] += r[0:2]; F[1] += r[2:4]
        if w >= 0: F[2 if f >= 0 else 3] += [lw(w)]
        for g in range(3): F[g] += [ex(5 + g)]
        F[3] += [cv(2), cv(3)]
        if u == 0:
            e_ = {g: [] for g in range(8)}; s_ = {g: [] for g in range(8)}
            vh1(7, e_, s_)
            for g in range(8): F[g] = s_[g] + e_[g] + F[g]
            F[14] += [f"v_add_u32 v{V_LW}, s{S_LWO}, v{V_CIR}", f"v_subrev_u32 v{V_LR}, {CI_AREA - LT0}, v{V_CIR}"]
            F[15] += [f"v_lshl_add_u32 v{V_XR+j}, v{L}, 4, s{S_XR+j}" for j in range(2)]
            F[16] += [f"v_lshl_add_u32 v{V_XR+2}, v{L}, 4, s{S_XR+2}"]
            F[17] += [("W", None, [("v", 7, 5)])]; F[19] += [("W", "all", [("v", 7, 7)])]
        if f >= 0:
            if epi == 0:
                F[4] += pk(w, 1); F[5] += [xw(w, 1)]; F[6] += pk(w, 2); F[7] += [("W", None, [("x", f)])] + acc(w)
                F[8] += [xw(w, 2)]; F[9] += pk(w, 3); F[10] += ladd(f); F[11] += lrcp(f); F[12] += [xw(w, 3)]
                F[13] += [ex(0)]; F[14] += [ex(1)]; F[15] += [ex(2)]; F[16] += [ex(3)]
                F[17] += mul(f, 0); F[18] += mul(f, 1); F[19] += pk(f, 0)
                F[19] = [("W", None, [("xw", w)])] + F[19]
                F[20] += ["s_barrier", ex(4)]
                F[21] += [sto(f)] + swp(f)
                F[22] += [ST(f), cv(0), cv(1)]
            else:
                p1, p2, p3, ac, la, p0 = pk(w, 1), pk(w, 2), pk(w, 3), acc(w), ladd(f), pk(f, 0)
                F[4] += p1; F[5] += [xw(w, 1)]; F[6] += p2[:2]; F[7] += [("W", None, [("x", f)])] + p2[2:]
                F[8] += ac[:2]; F[9] += [xw(w, 2)]; F[10] += ac[2:]; F[11] += p3[:2]; F[12] += p3[2:]; F[13] += la
                F[14] += [xw(w, 3)]; F[15] += lrcp(f)[:1]; F[16] += [ex(0)]; F[17] += [ex(1)]
                F[18] += [ex(2), ex(3)] + lrcp(f)[1:] + pmul(f)
                F[19] += [("W", None, [("xw", w)])] + p0
                F[20] += ["s_barrier", ex(4)]
                F[21] += [sto(f)] + swp(f)
                F[22] += [ST(f), cv(0), cv(1)]
        else:
            if w >= 0:
                F[4] += pk(w, 1); F[5] += [xw(w, 1)]; F[6] += pk(w, 2); F[7] += acc(w)
                F[14] += [xw(w, 2)]; F[15] += pk(w, 3); F[17] += [xw(w, 3)]
            for i, g in enumerate((17, 18, 19, 20, 21) if w < 0 else (16, 18, 19, 20, 21)): F[g] += [ex(i)]
            F[22] += [cv(0), cv(1)]
            if w >= 0: F[22] += [("W", None, [("xw", w)]), "s_barrier"]
        seq(mf, F)
    if epi == 0:
        stamp("e")
        a(R(4))
        a([ex(5), ex(6), ex(7)] + pk(5, 1)[:1] + [cv(2), cv(3)] + pk(5, 1)[1:])
        mf = [pv(6, dt, 1, False) for dt in range(2, 8)] + [sm(6, False), pv(6, 0, 1, False), pv(6, 1, 1, False)] + cmb(4)
        F = {0: [xw(5, 1)], 1: [lw(5)] + pk(5, 2), 2: acc(5), 3: [xw(5, 2)], 4: pk(5, 3), 5: [("W", None, [("x", 4)])] + ladd(4), 6: [xw(5, 3)], 7: pk(6, 1), 8: lrcp(4),
             9: [xw(6, 1)], 10: pk(6, 2), 11: acc(6), 12: [xw(6, 2)], 13: pk(6, 3), 14: [lw(6), xw(6, 3)]}
        seq(mf, F)
        a(mul(4, 0))
        a(("W", None, [("xw", 6)])); a("s_barrier")
        stamp()
        a(R(5)); a(R(6))
        a(mul(4, 1)); a(pk(4, 0)); a(sto(4)); a("s_nop 0"); a(swp(4)); a("s_nop 0"); a(ST(4))
        a(("W", None, [("x", 5)]))
        F = {0: ladd(5), 1: lrcp(5), 2: [("W", None, [("x", 6)])] + ladd(6), 3: lrcp(6), 4: [f"s_mov_b32 s99, {hex(f2u(THRESH))}", f"s_cmp_lg_u32 s{S_FB}, 0"],
             5: [f"v_cmp_ngt_f32 vcc, s99, v{V_CHK}", sto(5)], 6: mul(5, 0)[:2], 7: mul(5, 0)[2:], 8: ["s_nop 1"], 9: mul(5, 1), 10: pk(5, 0), 11: mul(6, 0)[:2] + swp(5)}
        seq(cmb(5) + cmb(6), F)
        a("s_nop 0"); a(ST(5)); a(mul(6, 0)[2:]); a(sto(6)); a(mul(6, 1)); a(pk(6, 0)); a("s_nop 1"); a(swp(6)); a("s_nop 0"); a(ST(6))
    else:
        stamp("e")
        a(R(4))
        a([ex(5), ex(6), ex(7)] + pk(5, 1)[:1] + [cv(2), cv(3)] + pk(5, 1)[1:])
        mf = [pv(6, dt, 1, False) for dt in range(2, 8)] + [sm(6, False), pv(6, 0, 1, False), pv(6, 1, 1, False)] + cmb(4)
        F = {0: [xw(5, 1)], 1: [lw(5)] + pk(5, 2), 2: acc(5), 3: [xw(5, 2)], 4: pk(5, 3), 5: [("W", None, [("x", 4)])] + ladd(4), 6: [xw(5, 3)], 7: pk(6, 1), 8: lrcp(4)[:1],
             9: [xw(6, 1)], 10: pk(6, 2) + lrcp(4)[1:], 11: [("W", None, [("xw", 5)])] + acc(6), 12: ["s_barrier", xw(6, 2)], 13: R(5) + pk(6, 3), 14: [lw(6), xw(6, 3)]}
        seq(mf, F)
        a([sto(4), f"s_mov_b32 s99, {hex(f2u(THRESH))}", ("W", None, [("x", 5)])] + ladd(5) + lrcp(5)[:1])
        a(pmul(4)); a(pk(4, 0)); a(lrcp(5)[1:])
        a(("W", None, [("xw", 6)])); a("s_barrier")
        stamp()
        a(R(6))
        F = {0: swp(4), 1: [ST(4)], 5: [("W", None, [("x", 6)])] + ladd(6), 6: [sto(5)] + lrcp(6)[:1], 7: mul(5, 0)[:2], 8: mul(5, 0)[2:] + lrcp(6)[1:],
             9: [f"s_cmp_lg_u32 s{S_FB}, 0"] + mul(5, 1), 10: pk(5, 0), 11: [f"v_cmp_ngt_f32 vcc, s99, v{V_CHK}", "s_nop 0"] + swp(5)}
        seq(cmb(5) + cmb(6), F)
        a("s_nop 0"); a(ST(5)); a(sto(6)); a("s_nop 0"); a(pmul(6)); a(pk(6, 0)); a("s_nop 1"); a(swp(6)); a("s_nop 0"); a(ST(6))
    a("s_cbranch_scc1 L_ok")
    a("s_cbranch_vccnz L_fallback")
    a.label("L_ok")
    a.free = True
    if diag and spin:
        i, j, mult = spin[:3]
        a("s_waitcnt vmcnt(0)")
        if len(spin) > 3 and spin[3] >= 32:
            a("s_lshr_b32 s84, s2, 6"); a(f"s_cmp_lg_u32 s84, {spin[3] - 32}"); a("s_cbranch_scc1 L_end")
        elif len(spin) > 3 and spin[3] >= 16:
            a("s_bfe_u32 s84, s2, 0x20001"); a(f"s_cmp_lg_u32 s84, {spin[3] - 16}"); a("s_cbranch_scc1 L_end")
        if len(spin) == 3:
            a(f"s_lshl_b32 s84, s2, 2"); a(f"s_add_u32 s84, s84, s{S_W}"); a("s_cmp_lg_u32 s84, 401"); a("s_cbranch_scc1 L_end")
        a("s_memrealtime s[80:81]"); a("s_memtime s[86:87]"); a("s_waitcnt lgkmcnt(0)")
        if absm:
            a("s_load_dwordx8 s[4:11], s[46:47], 0"); a("s_waitcnt lgkmcnt(0)")
            for k in range(4, 12): a(f"s_sub_u32 s{k}, s80, s{k}")
            for k in range(5, 12): a(f"s_max_u32 s4, s4, s{k}")
            a("s_sub_u32 s85, s80, s4")
            sj = 80 if j == 8 else S_STAMP + 2*j
            a(f"s_sub_u32 s84, s{sj}, s85"); a("s_add_u32 s84, s84, 100"); a(f"s_mul_i32 s84, s84, {mult}")
        elif mult >= 100:
            a(f"s_sub_u32 s84, s{S_STAMP+2*j}, s{S_STAMP+2*i}"); a(f"s_sub_u32 s85, s{S_STAMP+16+2*j}, s{S_STAMP+16+2*i}")
            a("s_mul_i32 s85, s85, 2731"); a("s_lshr_b32 s85, s85, 16"); a("s_sub_u32 s84, s84, s85"); a(f"s_mul_i32 s84, s84, {mult - 100}")
        elif mult > 0:
            sj = 80 if j == 8 else S_STAMP + 2*j
            a(f"s_sub_u32 s84, s{sj}, s{S_STAMP+2*i}"); a(f"s_mul_i32 s84, s84, {mult}")
        else:
            sj = 86 if j == 8 else S_STAMP + 16 + 2*j
            a(f"s_sub_u32 s84, s{sj}, s{S_STAMP+16+2*i}"); a(f"s_lshr_b32 s84, s84, {-mult}")
        a("s_min_u32 s84, s84, 20000")
        a.label("L_spin")
        a("s_memrealtime s[82:83]"); a("s_waitcnt lgkmcnt(0)")
        a("s_sub_u32 s85, s82, s80"); a("s_cmp_lt_u32 s85, s84"); a("s_cbranch_scc1 L_spin")
    elif diag:
        a("s_memrealtime s[84:85]"); a("s_memtime s[86:87]")
        a("s_waitcnt vmcnt(0)")
        a("s_memrealtime s[80:81]"); a("s_memtime s[82:83]")
        a("s_branch L_dump")
    a.label("L_end")
    a("s_endpgm")
    iend = len(a.l)
    if warm > 1:
        a.raw(f".fill ({4 * 4096 - head} - (. - {NAME}_kernel)) / 4, 4, 0xbf810000")
        a.label("L_pg3")
        a("s_branch L_back")
    a.c("fallback: redo the prologue, take the true row max over all keys, run again with it")
    a.label("L_fallback")
    a("s_waitcnt vmcnt(0) lgkmcnt(0)")
    a("s_barrier")
    a(f"s_mov_b32 s{S_FB}, 1")
    a("s_branch L_start")
    a.label("L_pass1")
    for u in range(7):
        for x in qreads(u)[1:]: a(x[1])
        a("s_waitcnt lgkmcnt(0)")
    a("s_waitcnt vmcnt(0)")
    a("s_barrier")
    a("s_mov_b32 s42, 0")
    MX = V_OWN
    for u in range(7): a(f"v_mov_b32 v{MX+u}, 0xff800000")
    a.label("L_fb1")
    a(m0(0)); a(f"s_add_u32 s{S_SO}, s42, 128")
    for p in range(4): a(dma(SRD_K, 42, p, "f")[1])
    a(m0(4096)); a("s_nop 0")
    for p in range(4): a(dma(SRD_K, S_SO, p, "f")[1])
    a("s_waitcnt vmcnt(0)")
    for j in range(8): a(kread(0, j))
    a("s_waitcnt lgkmcnt(0)")
    for u in range(7):
        for j in range(8): a(qk(u, j, zero=True))
        a("s_nop 7")
        for r in range(0, 8, 2): a(f"v_max3_f32 v{MX+u}, v{MX+u}, v{V_S+r}, v{V_S+r+1}")
    a("s_add_u32 s42, s42, 0x2000")
    a("s_cmp_lt_u32 s42, 0x10000")
    a("s_cbranch_scc1 L_fb1")
    for sw in ("v_permlane16_swap_b32", "v_permlane32_swap_b32"):
        for u in range(7): a(f"v_mov_b32 v{MX+8+u}, v{MX+u}")
        a("s_nop 1")
        for u in range(7): a(f"{sw} v{MX+u}, v{MX+8+u}")
        a("s_nop 1")
        for u in range(7): a(f"v_max_f32 v{MX+u}, v{MX+u}, v{MX+8+u}")
    a(f"v_add_u32 v{V_P}, s{S_LWO}, v{V_CIR}")
    for u in range(7): a(f"ds_write_b32 v{V_P}, v{MX+u} offset:{LTAB(u)}")
    a("s_waitcnt lgkmcnt(0)")
    a("s_barrier")
    a(f"s_and_b32 s42, s{S_W}, 1"); a("s_lshl_b32 s42, s42, 9")
    a(f"s_lshr_b32 s98, s{S_W}, 1"); a(f"s_mul_i32 s98, s98, {REG}"); a("s_add_u32 s42, s42, s98")
    a(f"s_sub_u32 s42, s42, {CI_AREA - LT0}")
    a(f"v_add_u32 v{V_P}, s42, v{V_CIR}")
    for h in range(2): a(f"ds_read_b128 {vr(V_S+4*h,4)}, v{V_P} offset:{256*h}")
    a("s_waitcnt lgkmcnt(0)")
    for h in range(2):
        a(f"v_max3_f32 v{V_KEEP+h}, v{V_S+4*h}, v{V_S+4*h+1}, v{V_S+4*h+2}")
        a(f"v_max_f32 v{V_KEEP+h}, v{V_KEEP+h}, v{V_S+4*h+3}")
    a(f"s_mov_b32 s{S_FB}, 2")
    a(f"s_mov_b64 s[{S_FBM}:{S_FBM+1}], -1")
    a("s_barrier")
    a("s_branch L_start")
    if diag and not spin:
        a.label("L_dump")
        a("s_mov_b32 s36, s46"); a("s_mov_b32 s37, s47"); a("s_mov_b32 s38, 0x100000"); a("s_mov_b32 s39, 0x20000")
        a("s_waitcnt lgkmcnt(0)")
        a("s_lshl_b32 s40, s2, 2"); a(f"s_add_u32 s40, s40, s{S_W}"); a("s_lshl_b32 s40, s40, 8")
        a(f"v_mov_b32 v4, s40")
        a(f"v_cmp_eq_u32 vcc, 0, v{L}")
        a("s_and_saveexec_b64 s[42:43], vcc")
        slots = [(S_STAMP+2*i, i) for i in range(8)] + [(84, 8), (80, 9)] + [(S_STAMP+16+2*i, 16+i) for i in range(8)] + [(86, 24), (82, 25)]
        for s, i in slots:
            a(f"v_mov_b32 v6, s{s}"); a(f"v_mov_b32 v7, s{s+1}"); a(f"buffer_store_dwordx2 v[6:7], v4, s[36:39], 0 offen offset:{8*i}"); a("s_nop 1")
        a("s_endpgm")
    lin = a.l[:i1] + a.l[i0:i1] + a.l[i1:iend]
    bad = hz.check(lin) + hz.check(a.l[iend:])
    for b in bad: print("HAZARD", b, file=sys.stderr)
    if unroll: a.raw(f".fill ({7 * 4096 - head} - (. - {NAME}_kernel)) / 4, 4, 0xbf810000")
    a.raw('.section .rodata,"a"'); a.raw(".p2align 6"); a.raw(f".amdhsa_kernel {NAME}_kernel")
    a.raw("  .amdhsa_next_free_vgpr 512"); a.raw("  .amdhsa_next_free_sgpr 102"); a.raw("  .amdhsa_accum_offset 256")
    a.raw("  .amdhsa_group_segment_fixed_size 0"); a.raw("  .amdhsa_kernarg_size 48"); a.raw("  .amdhsa_user_sgpr_count 2")
    a.raw("  .amdhsa_user_sgpr_kernarg_segment_ptr 1"); a.raw("  .amdhsa_system_sgpr_workgroup_id_x 1"); a.raw(".end_amdhsa_kernel")
    if warm: a.l = add_stubs(a.l, head)
    return "\n".join(a.l) + "\n"

if __name__ == "__main__":
    ap = argparse.ArgumentParser()
    ap.add_argument("-o", default=f"kK.s")
    ap.add_argument("--diag", action="store_true")
    ap.add_argument("--spin", default=None); ap.add_argument("--flags", default=""); ap.add_argument("--sflags", default="sc1")
    ap.add_argument("--n0", type=int, default=8); ap.add_argument("--mix", type=int, default=1); ap.add_argument("--vsch", default="2,2,2,2,0")
    ap.add_argument("--t0extra", type=int, default=2); ap.add_argument("--pace", type=int, default=2); ap.add_argument("--fine", default="c")
    ap.add_argument("--cgap", type=int, default=14); ap.add_argument("--pref", type=int, default=3); ap.add_argument("--align", type=int, default=12); ap.add_argument("--head", type=int, default=3328); ap.add_argument("--warm", type=int, default=0); ap.add_argument("--rot", default="0,0"); ap.add_argument("--touch", type=int, default=0); ap.add_argument("--pre0", type=int, default=2); ap.add_argument("--mid", default=""); ap.add_argument("--epi", type=int, default=1); ap.add_argument("--absm", action="store_true"); ap.add_argument("--unroll", type=int, default=0); ap.add_argument("--lpad", type=int, default=0); ap.add_argument("--lal", type=int, default=3); ap.add_argument("--bpad", type=int, default=0); ap.add_argument("--wg", default="4,5,6,7,8,9,10")
    args = ap.parse_args()
    tup = lambda s: tuple(map(int, s.split(',')))
    open(args.o, "w").write(gen(diag=args.diag, flags=args.flags, sflags=args.sflags, n0=args.n0, mix=args.mix, vsch=tup(args.vsch), t0extra=args.t0extra,
                                pace=args.pace, fine=args.fine, cgap=args.cgap, pref=args.pref, align=args.align, head=args.head, warm=args.warm, rot=tup(args.rot), touch=args.touch, pre0=args.pre0, epi=args.epi, absm=args.absm, unroll=args.unroll, lpad=args.lpad, lal=args.lal, bpad=args.bpad, mid=tup(args.mid) if args.mid else None, wg=tup(args.wg), spin=tup(args.spin) if args.spin else None))
```

```python
import sys, struct, argparse
import hz
NAME = "standalone__gqa_softmax__near_ridge"
def f2u(x): return struct.unpack("<I", struct.pack("<f", x))[0]
def vr(b, n=1): return f"v{b}" if n == 1 else f"v[{b}:{b+n-1}]"
def ar(b, n=1): return f"a{b}" if n == 1 else f"a[{b}:{b+n-1}]"
def srd(b): return f"s[{b}:{b+3}]"

V_LANE, V_LIN, V_KEEP, V_VOFF, V_AK, V_AV = 0, 1, 2, 4, 8, 10
V_QA0, V_QA1, V_X0, V_X1, V_ST, V_CIR = 14, 15, 16, 17, 18, 19
V_S, V_P, V_CI, V_OWN, V_OTH = 20, 28, 32, 60, 116
A_O7, A_L, A_ONE, A_K, A_V, A_Q = 0, 28, 56, 60, 92, 144
V_XR, V_LW, V_LR, V_CHK = 4, 7, 8, 9
A_SEL = A_V + 36
def A_X(u): return A_Q + 16 * (u % 2)
S_W = 3
SRD_Q, SRD_K, SRD_V, SRD_O = 12, 16, 20, 24
S_MK0, S_MK1, S_MV0, S_MV1 = 28, 29, 30, 31
S_Y, S_FB, S_WB, S_CNT = 32, 33, 34, 35
S_SO = 44
S_STAMP = 48
S_FBM = 88
S_XR = 90
S_LWO = 93
S_Y0 = 100
S_K0 = 101
S_YR = 43
REG = 40960
KB = lambda par: par * 8192
VB = lambda par: 16384 + par * 8192
XO = 32768
CI_AREA = 3 * REG + XO + 6144
LT0 = 3 * REG + XO + 2048
def LTAB(u): return u * 256
SENT = 0xf1800000
SCALE = (128 ** -0.5) * 1.4426950408889634
THRESH = 2.0 ** 40
M16 = "v_mfma_f32_16x16x32_bf16"

def Qf(u, c): return ar(A_Q + 16 * u + 4 * c, 4)
def Kf(j): return ar(A_K + 4 * j, 4)
def Vbase(dt, par): return A_V + 32 if (dt == 3 and par) else A_V + 4 * dt
def Ov(u, dt): return V_OWN + 8 * u + 4 * dt if dt < 2 else V_OTH + 20 * u + 4 * (dt - 2)
def Of(u, dt): return ar(A_O7 + 4 * u, 4) if dt == 7 else vr(Ov(u, dt), 4)
def qk(u, j, zero=False):
    kt, c = j // 4, j % 4
    S = vr(V_S + 4 * kt, 4)
    cc = S if c else ("0" if zero else vr(V_CI + 4 * u, 4))
    return f"{M16} {S}, {Kf(j)}, {Qf(u, c)}, {cc}"
def pv(u, dt, par, first):
    o = Of(u, dt)
    return f"{M16} {o}, {ar(Vbase(dt, par), 4)}, {vr(V_P, 4)}, {'0' if first else o}"
def sm(u, first):
    o = ar(A_L + 4 * u, 4)
    return f"{M16} {o}, {ar(A_ONE, 4)}, {vr(V_P, 4)}, {'0' if first else o}"
def ex(e): return f"v_exp_f32 v{V_S+e}, v{V_S+e}"
def cv(i): return f"v_cvt_pk_bf16_f32 v{V_P+i}, v{V_S+2*i}, v{V_S+2*i+1}"
def kread(par, j, base=None, dst=None):
    kt, c = j // 4, j % 4
    off = (KB(par) if base is None else base) + (c >> 1) * 4096 + kt * 2048
    return f"ds_read_b128 {dst or Kf(j)}, v{V_AK + (c & 1)} offset:{off}"
def vread(par, dt):
    b = Vbase(dt, par)
    return [f"ds_read_b64_tr_b16 {ar(b + 2*h, 2)}, v{V_AV + (dt & 3)} offset:{VB(par) + (dt >> 2) * 4096 + h * 2048}" for h in range(2)]


DOC = """
; ---------------------------------------------------------------------------------------------------------------
;   * wave w handles all 112 q rows (7 tiles of 16) against its own 256 keys, 32 keys per tile, v_mfma 16x16x32 bf16:
;   * K / V tiles come in by LDS-DMA (swizzled image, double buffered per wave); V is transposed by ds_read_b64_tr_b16.
;     the safe range (2^-40, 2^40) the workgroup computes the true row max over all keys (L_pass1) and
; ---------------------------------------------------------------------------------------------------------------"""

class Gen:
    def __init__(self):
        self.l = []; self.vq = []; self.lq = []; self.ldone = 0; self.free = False
    def __call__(self, s):
        if isinstance(s, list):
            for x in s: self(x)
        elif isinstance(s, tuple):
            if s[0] == "LBL": self.l.append(s[1] + ":")
            elif s[0] == "L": self.l.append("    " + s[1]); self.lq.append(s[2])
            elif s[0] == "V":
                tg = s[2]
                if isinstance(tg, tuple) and tg[0] in "KV" and tg[1] >= 2:
                    kv, x, hf = tg
                    need = ([("k", x-2)] if x > 2 else ["k0a", "k0b"]) if kv == "K" else [("v", x-2, dt) for dt in range(4*hf, 4*hf+4)]
                    for n in need:
                        idx = [i for i, t in enumerate(self.lq) if t == n]
                        assert idx and max(idx) < self.ldone, ("LDS WAR", tg, n)
                self.l.append("    " + s[1]); self.vq.append(s[2])
            elif s[0] == "W":
                parts = []
                for q, tags, nm, mx in ((self.vq, s[1], "vmcnt", 63), (self.lq, s[2], "lgkmcnt", 15)):
                    if tags is None: continue
                    if tags == "all": n = 0
                    else:
                        idx = [i for i, t in enumerate(q) if t in tags]
                        assert idx, ("no such tag", tags)
                        n = len(q) - 1 - max(idx)
                    if nm == "lgkmcnt": self.ldone = max(self.ldone, len(q) - min(n, mx))
                    parts.append(f"{nm}({min(n, mx)})")
                self.l.append("    s_waitcnt " + " ".join(parts))
        else:
            assert not (s.startswith("ds_") or s.startswith("buffer_")) or self.free, s
            self.l.append("    " + s)
    def label(self, s): self.l.append(s + ":")
    def c(self, s): self.l.append("    ; " + s)
    def raw(self, s): self.l.append(s)

def sizes(lines):
    import subprocess, tempfile, os, re
    with tempfile.TemporaryDirectory() as d:
        src = [l for l in lines]
        src.insert(src.index("L_end:"), "L_pg1:\nL_pg2:")
        open(d + "/t.s", "w").write("\n".join(src) + "\n")
        subprocess.run(["clang", "-x", "assembler", "-target", "amdgcn-amd-amdhsa", "-mcpu=gfx950", "-c", d + "/t.s", "-o", d + "/t.o"], check=True)
        out = subprocess.run(["llvm-objdump", "-d", "--mcpu=gfx950", d + "/t.o"], capture_output=True, text=True).stdout
    return [(int(m.group(2), 16), m.group(1)) for m in re.finditer(r"^\t(\S+).*// ([0-9A-F]+):", out, re.M)]
def add_stubs(lines, head):
    lines = list(lines)
    for pg in (1, 2):
        tmp = [l for l in lines if l not in ("L_pg1:", "L_pg2:")]
        ins = [x for x in sizes(tmp) if x[0] >= head]
        mf = [off for off, mn in ins if mn.startswith("v_mfma")]
        target = (pg + (1 if head else 0)) * 4096
        k = next(i for i, off in enumerate(mf) if off >= target - 8)
        assert mf[k] + 8 < target + 60, (mf[k], target)
        idx = [i for i, l in enumerate(lines) if l.strip().startswith("v_mfma")][k]
        lines[idx + 1:idx + 1] = [f"L_pg{pg}:", "    s_cbranch_execz L_back"]
    return lines

def gen(diag=False, flags="", sflags="sc1", spin=None, n0=8, mix=1, vsch=(2, 2, 2, 2, 0), t0extra=2, pace=2, fine='c', cgap=14, pref=3, align=12, head=3072, warm=0, rot=(0, 0), touch=0, pre0=2, mid=None, epi=1, absm=False, unroll=0, bars=(), lpad=0, lal=3, bpad=0, wg=(4, 5, 6, 7, 8, 9, 10)):
    a = Gen()
    fl = (" " + flags) if flags else ""
    def dma(s, soff, p, tag): return ("V", f"buffer_load_dwordx4 v{V_VOFF+p}, {srd(s)}, s{soff} offen offset:{p*1024}{fl} lds", tag)
    def m0(off): return f"s_add_u32 m0, s{S_WB}, {off}"
    def Ls(texts, tag): return [("L", t, tag) for t in texts]
    nst = [0]
    def stamp(kind="c"):
        if diag and kind in fine and nst[0] < 8:
            a(f"s_memrealtime s[{S_STAMP+2*nst[0]}:{S_STAMP+2*nst[0]+1}]")
            a(f"s_memtime s[{S_STAMP+16+2*nst[0]}:{S_STAMP+16+2*nst[0]+1}]")
            nst[0] += 1
    GROUPS = (("K", 0), ("K", 1), ("V", 0), ("V", 1))
    stream = []
    for x in range(1, 10):
        for gi, (kv, hf) in enumerate(GROUPS):
            s_, buf = (SRD_K, KB(x & 1)) if kv == "K" else (SRD_V, VB(x & 1))
            for p in range(4):
                pre = []; so = S_SO
                if p == 0:
                    if gi == 0: pre += [("Y", x)]
                    pre += [m0(buf + hf * 4096)]
                    pre += [f"s_or_b32 s{S_SO}, s{S_Y}, s{S_MV0+hf}" if kv == "V" else f"s_or_b32 s{S_SO}, s{S_Y}, {128*hf}"]
                stream.append((pre, dma(s_, so, p, (kv, x, hf)), x))
    spos = [0]
    def expand(pre):
        out = []
        for y in pre:
            if isinstance(y, tuple) and y[0] == "Y":
                out += [f"s_add_u32 s{S_Y}, s{S_Y}, 0x2000"]
                if y[1] % 2 == 0 and y[1] >= 4 and not unroll:
                    out += [f"s_cmp_lt_u32 s{S_Y}, 0x10000", f"s_cselect_b32 s{SRD_K+2}, 0x10000, 0", f"s_mov_b32 s{SRD_V+2}, s{SRD_K+2}"]
            elif isinstance(y, tuple): out += ["s_nop 0"]
            else: out.append(y)
        return out
    def nextpre():
        pre, d, x = stream[spos[0]]
        if unroll and x >= 8: return []
        stream[spos[0]] = ([], d, x)
        return expand(pre)
    def nextdma():
        pre, d, x = stream[spos[0]]
        if unroll and x >= 8: return []
        spos[0] += 1
        return expand(pre) + [d]

    a.raw(open("cdna_kernels/%s.s.ref" % NAME).read().split("; Override launch")[0].rstrip())
    a.raw("; @launch grid=(256,1,1) block=(256,1,1) lds=163840")
    a.raw(DOC.strip())
    a.raw('.amdgcn_target "amdgcn-amd-amdhsa--gfx950"')
    a.raw(".text"); a.raw(f".globl {NAME}_kernel"); a.raw(f".p2align {align}"); a.raw(f".fill {head // 4}, 4, 0xbf810000"); a.raw(".p2align 8"); a.raw(f".type {NAME}_kernel,@function")
    a.label(f"{NAME}_kernel")
    a("s_load_dwordx8 s[4:11], s[0:1], 0")
    a("s_cmp_ge_u32 s2, 256")
    a("s_cbranch_scc1 L_end")
    if diag:
        a("s_load_dwordx2 s[46:47], s[0:1], %d" % (32 if absm else 40))
        stamp(fine[0])
    L = V_LANE
    T = V_S
    a(f"v_lshrrev_b32 v{T}, 6, v0")
    a(f"v_and_b32 v{L}, 63, v0")
    a(f"v_readfirstlane_b32 s{S_W}, v{T}")
    a("s_and_b32 s36, s2, 7")
    a("s_lshr_b32 s37, s2, 3")
    a("s_lshl_b32 s36, s36, 5")
    a("s_add_u32 s36, s36, s37")
    a("s_mul_i32 s38, s36, 28672")
    a(f"s_mul_i32 s{S_WB}, s{S_W}, {REG}")
    a(f"s_movk_i32 s{SRD_Q+2}, 28672")
    a(f"s_mov_b32 s{SRD_Q+3}, 0x20000")
    a(f"s_lshl_b32 s40, s{S_W}, 12")
    a(f"s_mov_b32 s{S_FB}, 0")
    a(f"s_mov_b64 s[{S_FBM}:{S_FBM+1}], 0")
    a.label("L_start")
    a(f"v_lshrrev_b32 v{T}, 3, v{L}")
    a(f"v_and_b32 v{T+1}, 6, v{T}")
    a(f"v_xor_b32 v{T+1}, v{T+1}, v{L}")
    a(f"v_and_b32 v{T+1}, 7, v{T+1}")
    a(f"v_lshlrev_b32 v{T+1}, 4, v{T+1}")
    a(f"v_lshl_add_u32 v{V_VOFF}, v{T}, 8, v{T+1}")
    a(f"v_xor_b32 v{V_VOFF+1}, 16, v{V_VOFF}")
    a(f"v_add_u32 v{V_VOFF+1}, 0x400, v{V_VOFF+1}")
    a(m0(XO))
    a("s_add_u32 s41, s40, 128")
    a("s_lshr_b32 s39, s36, 2")
    a("s_lshl_b32 s39, s39, 18")
    a(f"s_lshl_b32 s42, s{S_W}, 16")
    a("s_add_u32 s39, s39, s42")
    a(f"s_mov_b32 s{SRD_K+2}, 0x10000")
    a(f"s_mov_b32 s{SRD_K+3}, 0x20000")
    a(f"s_mov_b32 s{S_Y}, 0")
    a("s_movk_i32 s43, 128")
    a.c("code prefetch into L2: one 64-B line of the following code pages per wave")
    a("s_getpc_b64 s[94:95]")
    a.label("L_pc")
    a(f"s_lshl_b32 s97, s{S_W}, 5")
    a("s_add_u32 s97, s97, s37")
    a("s_lshl_b32 s97, s97, 6")
    a(f"s_add_u32 s96, s97, {4096 - head}-(L_pc-{NAME}_kernel)")
    a("s_add_u32 s96, s94, s96")
    a(f"v_mov_b32 v{T+2}, s96")
    a("s_addc_u32 s96, s95, 0")
    a(f"v_mov_b32 v{T+3}, s96")
    a(("V", f"global_load_dword v{V_CI}, {vr(T+2, 2)}, off", "pf"))
    stamp("k")
    a("s_waitcnt lgkmcnt(0)")
    stamp("k")
    def base(b, src, off): return [f"s_add_u32 s{b}, s{src}, s{off}", f"s_addc_u32 s{b+1}, s{src+1}, 0"]
    a(base(SRD_Q, 4, 38))
    for p in (0, 1): a(dma(SRD_Q, 40, p, "Qa"))
    a(m0(XO + 4096)); a(base(SRD_K, 6, 39))
    for p in (0, 1): a(dma(SRD_Q, 41, p, "Qa"))
    a(m0(KB(0)))
    a(f"s_cmp_eq_u32 s{S_W}, 3")
    for p in (0, 1): a(dma(SRD_K, S_Y, p, "K0a"))
    a(f"s_cselect_b32 s45, 0x4000, 0")
    a(m0(KB(0) + 4096))
    a(f"s_add_u32 s45, s45, s{S_WB}")
    for p in (0, 1): a(dma(SRD_K, 43, p, "K0a"))
    a(f"v_add_u32 v{V_VOFF+2}, 0x800, v{V_VOFF}")
    a(f"v_add_u32 v{V_VOFF+3}, 0x800, v{V_VOFF+1}")
    a(f"s_add_u32 m0, s45, {XO + 4096}"); a("s_add_u32 s42, s41, 0x3000")
    for p in (2, 3): a(dma(SRD_Q, 42, p, "Qb"))
    a(f"s_add_u32 m0, s45, {XO}"); a("s_add_u32 s42, s40, 0x3000")
    for p in (2, 3): a(dma(SRD_Q, 42, p, "Qb"))
    a(base(SRD_V, 8, 39)); a(base(SRD_O, 10, 38))
    a(f"s_mov_b32 s{SRD_V+2}, 0x10000"); a(f"s_mov_b32 s{SRD_V+3}, 0x20000")
    a(f"s_movk_i32 s{SRD_O+2}, 28672"); a(f"s_mov_b32 s{SRD_O+3}, 0x20000")
    if warm:
        a("s_mov_b64 exec, 0")
        for w in (1, 2, 3)[:warm + 1]:
            a(f"s_cmp_eq_u32 s{S_W}, {w}")
            a(f"s_cbranch_scc1 L_pg{w}")
        a.label("L_back")
        a("s_mov_b64 exec, -1")
    a(f"s_lshr_b32 s{S_MV0}, s{S_W}, 1"); a(f"s_lshl_b32 s{S_MV0}, s{S_MV0}, 7")
    a(f"s_xor_b32 s{S_MV1}, s{S_MV0}, 128")

    a(f"v_and_b32 v{T}, 15, v{L}")
    a(f"v_and_b32 v{T+1}, 6, v{T}")
    a(f"v_lshrrev_b32 v{T+2}, 3, v{T}")
    a(f"v_or_b32 v{T+1}, v{T+1}, v{T+2}")
    a(f"v_lshrrev_b32 v{T+2}, 4, v{L}")
    a(f"v_lshlrev_b32 v{T+2}, 1, v{T+2}")
    a(f"v_xor_b32 v{T+1}, v{T+1}, v{T+2}")
    a(f"v_lshlrev_b32 v{T+1}, 4, v{T+1}")
    a(f"v_lshl_add_u32 v{T+1}, v{T}, 7, v{T+1}")
    a(f"v_add_u32 v{V_AK}, s{S_WB}, v{T+1}")
    a(f"v_xor_b32 v{V_AK+1}, 16, v{V_AK}")
    a(f"v_lshl_add_u32 v{V_LIN}, v{L}, 4, s{S_WB}")
    CIW, QWB, SC = V_CI + 24, V_CI + 25, V_CI + 26
    a(f"v_mov_b32 v{SC}, {hex(f2u(SCALE))}")
    a(f"v_lshl_add_u32 v{QWB}, v{L}, 4, s45")
    a(f"s_lshl_b32 s42, s{S_W}, 8")
    a(f"v_lshlrev_b32 v{T+3}, 4, v{T}")
    a(f"v_add_u32 v{V_CIR}, {CI_AREA}, v{T+3}")
    a(f"v_add_u32 v{CIW}, s42, v{V_CIR}")
    a(f"v_lshlrev_b32 v{T+3}, 4, v{L}")
    a(f"v_add_u32 v{V_QA0}, {XO}, v{T+3}")
    a(f"v_add_u32 v{V_QA1}, {2*REG + XO}, v{T+3}")
    for j in range(1, 4):
        a(f"s_xor_b32 s42, s{S_W}, {j}")
        a(f"s_mul_i32 s{S_XR+j-1}, s42, {REG}")
    a(f"s_lshl_b32 s{S_LWO}, s{S_W}, 2")
    a(f"s_sub_u32 s{S_LWO}, s{S_LWO}, {CI_AREA - LT0}")
    a(f"v_lshrrev_b32 v{T+1}, 4, v{L}")
    a(f"v_lshrrev_b32 v{T+2}, 2, v{T}")
    a(f"v_cmp_eq_u32 vcc, v{T+1}, v{T+2}")
    a(f"v_and_b32 v{T+2}, 1, v{L}")
    a(f"v_lshlrev_b32 v{T+2}, 4, v{T+2}")
    a(f"v_mov_b32 v{T+3}, 0x3f80")
    a(f"v_lshlrev_b32 v{T+3}, v{T+2}, v{T+3}")
    a(f"v_cndmask_b32 v{T+3}, 0, v{T+3}, vcc")
    a(f"v_and_b32 v{T+2}, 2, v{L}")
    a(f"v_cmp_eq_u32 vcc, 0, v{T+2}")
    a(f"v_bfe_u32 v{T+4}, v{L}, 4, 1")
    a(f"v_lshrrev_b32 v{T+5}, 5, v{L}")
    a(f"v_cndmask_b32 v{V_X0}, 0, v{T+3}, vcc")
    a(f"v_sub_u32 v{V_X1}, v{T+3}, v{V_X0}")
    for r, x in enumerate(("0", "0", f"v{V_X0}", f"v{V_X1}", "0", "0")): a(f"v_accvgpr_write_b32 a{A_SEL+r}, {x}")
    a(f"v_lshl_add_u32 v{T+4}, v{T+4}, 1, v{T+5}")
    a(f"v_lshlrev_b32 v{T+4}, 4, v{T+4}")
    a(f"v_lshl_add_u32 v{T+4}, v{T}, 8, v{T+4}")
    a(f"s_lshl_b32 s42, s{S_W}, 6")
    a(f"v_add_u32 v{V_ST}, s42, v{T+4}")
    a(f"v_and_b32 v{T+2}, 3, v{L}")
    a(f"v_cmp_eq_u32 vcc, 0, v{T+2}")
    a(f"v_lshrrev_b32 v{T}, 2, v{L}")
    a(f"v_and_b32 v{T+1}, 6, v{T}")
    a(f"v_lshrrev_b32 v{T+2}, 3, v{T}")
    a(f"v_or_b32 v{T+1}, v{T+1}, v{T+2}")
    a(f"v_bfe_u32 v{T+2}, v{L}, 1, 1")
    a(f"v_xor_b32 v{T+1}, v{T+1}, v{T+2}")
    a(f"s_and_b32 s42, s{S_W}, 1")
    a("s_lshl_b32 s42, s42, 2")
    a(f"v_xor_b32 v{T+1}, s42, v{T+1}")
    a(f"v_lshlrev_b32 v{T+1}, 4, v{T+1}")
    a(f"v_lshl_add_u32 v{T+1}, v{T}, 7, v{T+1}")
    a(f"v_and_b32 v{T+2}, 1, v{L}")
    a(f"v_lshl_add_u32 v{T+1}, v{T+2}, 3, v{T+1}")
    a(f"v_add_u32 v{V_AV}, s{S_WB}, v{T+1}")
    for k in range(1, 4): a(f"v_xor_b32 v{V_AV+k}, {32*k}, v{V_AV}")
    a(f"v_mov_b32 v{T+2}, 0x3f803f80")
    a(f"v_cndmask_b32 v{T+2}, 0, v{T+2}, vcc")
    for r in range(4): a(f"v_accvgpr_write_b32 a{A_ONE+r}, v{T+2}")

    if pref:
        a(f"s_and_b32 s97, s97, 0xfff")
        a(f"s_add_u32 s97, s97, {3 * 4096 - head}-(L_pc-{NAME}_kernel)")
        a("s_add_u32 s94, s94, s97")
        a("s_addc_u32 s95, s95, 0")
        a(f"v_mov_b32 v{V_X0}, s94")
        a(f"v_mov_b32 v{V_X1}, s95")
    a(f"v_add_u32 v{T}, s{S_LWO}, v{V_CIR}")
    a(f"v_mov_b32 v{T+1}, {hex(SENT)}")
    for u in range(7): a(("L", f"ds_write_b32 v{T}, v{T+1} offset:{LTAB(u)}", "sent"))
    if touch: a(("V", f"buffer_load_dword v{V_CI}, off, {srd(SRD_O)}, 0", "touch"))
    a(m0(KB(0) + 4096)); a("s_nop 0")
    for p in (2, 3): a(dma(SRD_K, 43, p, "K0b"))
    a(m0(KB(0))); a("s_nop 0")
    for p in (2, 3): a(dma(SRD_K, S_Y, p, "K0b"))

    RAW, QP, TMP = V_OTH, V_OWN, V_OTH + 32
    left = [n0]
    def more(n=1):
        for _ in range(n):
            if left[0] > 0: a(nextdma()); left[0] -= 1
    v0 = [0]
    def v0dma(n=1):
        for _ in range(n):
            j = v0[0]
            if j >= 8: return
            if j % 4 == 0: a(m0(VB(0) + (j // 4) * 4096)); a("s_nop 0")
            a(dma(SRD_V, S_MV0 + j // 4, j % 4, ("V", 0, j // 4)))
            v0[0] += 1
    def qoff(h, c): return XO + (c >> 1) * 4096 + h * 2048 + (c & 1) * 1024
    def qw(h, c): return ("L", f"ds_write_b128 v{V_LIN if h == 0 else QWB}, {vr(QP + 16*h + 4*c, 4)} offset:{qoff(h, c)}", "qw")
    def scale_ops(j):
        o = []
        for r in range(4):
            o += [f"v_lshlrev_b32 v{TMP+2*r}, 16, v{RAW+4*j+r}", f"v_and_b32 v{TMP+2*r+1}, 0xffff0000, v{RAW+4*j+r}"]
        o += [f"v_pk_mul_f32 {vr(TMP+2*r,2)}, {vr(TMP+2*r,2)}, {vr(SC,2)} op_sel_hi:[1,0]" for r in range(4)]
        o += [f"v_cvt_pk_bf16_f32 v{QP+4*j+r}, v{TMP+2*r}, v{TMP+2*r+1}" for r in range(4)]
        return o
    def red_ops(h):
        S = V_S + 4*h; M = V_P + 2*h
        o = [f"v_max3_f32 v{M}, v{S}, v{S+1}, v{S+2}", f"v_max_f32 v{M}, v{M}, v{S+3}"]
        for sw in ("v_permlane16_swap_b32", "v_permlane32_swap_b32"):
            o += [f"v_mov_b32 v{M+1}, v{M}", f"{sw} v{M}, v{M+1}", f"v_max_f32 v{M}, v{M}, v{M+1}"]
        o += [f"v_mul_f32 v{M}, v{M}, v{SC}", f"v_cndmask_b32 v{M}, v{M}, v{V_KEEP+h}, s[{S_FBM}:{S_FBM+1}]"]
        o += [f"v_sub_f32 v{S+r}, 0, v{M}" for r in range(4)]
        return o
    def qreads(u):
        w, h = u % 4, u // 4
        ad = V_QA0 if w < 2 else V_QA1
        out = [f"ds_read_b128 {vr(V_CI+4*u,4)}, v{V_CIR} offset:{u*256}"]
        out += [f"ds_read_b128 {Qf(u,c)}, v{ad} offset:{(w&1)*REG + qoff(h, c) - XO}" for c in range(4)]
        return Ls(out, ("q", u))
    def part(h, d0, d1):
        for c in range(4): a(("L", kread(0, 4*h + c, base=XO, dst=vr(RAW + 16*h + 4*c, 4)), ("raw", h, c)))
        if h == 0:
            a(("W", ["K0a"], None))
            for jj in range(4): a(("L", kread(0, jj), "k0a"))
        v0dma(d0)
        a(("W", None, [("raw", h, 0)]))
        a(scale_ops(4*h))
        a(("W", None, [("raw", h, 3), "k0a"]))
        S = vr(V_S + 4*h, 4)
        o1 = scale_ops(4*h + 1)
        for c in range(4):
            a(f"{M16} {S}, {Kf(c)}, {vr(RAW + 16*h + 4*c, 4)}, {S if c else '0'}")
            if c == 0: a(qw(h, 0))
            else: a(o1[:2]); del o1[:2]
        a(o1)
        a(qw(h, 1)); v0dma(d1)

        red = red_ops(h)
        for c in (2, 3):
            o = scale_ops(4*h + c)
            while o:
                a(o[:2]); del o[:2]
                if red: a(red.pop(0))
            a(qw(h, c))
        a(red)
        a(("L", f"ds_write_b128 v{CIW}, {S} offset:{1024*h}", "ciw"))
    a.c("Q tiles w, 4+w: prescale, block max, publish through LDS")
    stamp("p")
    a(("W", ["Qa"], None))
    stamp(); stamp("p")
    part(0, vsch[0], vsch[1])
    v0dma(vsch[2])
    a(("W", None, "all")); a("s_barrier")
    a(qreads(0)); a(qreads(1))
    stamp("p")
    a(("W", ["Qb"], None))
    stamp("p")
    part(1, vsch[3], vsch[4])
    v0dma(8); more(pace)
    a(("W", ["K0b"], None))
    for jj in range(4, 8): a(("L", kread(0, jj), "k0b"))
    a(f"s_cmp_eq_u32 s{S_FB}, 1")
    stamp(); stamp("p")
    a("s_cbranch_scc1 L_pass1")
    stamp(); stamp("p")
    for j in range(8):
        a(qk(0, j))
        if j in (0, 1, 2): more()
        if j == 3: a(("W", [("V", 0, 0)], ["k0b"]))
        if j >= 4: a(Ls(vread(0, j - 4), ("v", 0, j - 4)))
    more(64)
    a([ex(0), ex(1), ex(2), ex(3), cv(0), cv(1), ex(4)])
    stamp()

    pend = []
    def emit_step(u, par, first, ext, shadow, dgaps):
        for g in range(17):
            a(qk((u + 1) % 7, g) if g < 8 else (pv(u, g - 8, par, first) if g < 16 else sm(u, first)))
            valu = g < 4 or g > 10
            if g in dgaps:
                a(list(pend)); pend.clear()
                a(nextdma())
                a(shadow[g])
            else:
                a(shadow[g])
                room = (1 if valu else 2) - len(ext[g]) - len(shadow[g])
                if room > 0 and dgaps:
                    if not pend: pend.extend(nextpre())
                    a(pend[:room]); del pend[:room]
            a(ext[g])
            if g < 3: a(ex(5 + g))
            elif g == 3: a(cv(2)); a(cv(3))
            elif 11 <= g <= 15: a(ex(g - 11))
            elif g == 16: a(cv(0)); a(cv(1))

    def vh1(t, ext, sh):
        sh[2].append(("W", None, [("v", t, dt) for dt in range(4)]))
        sh[3].append(("W", [("V", t, 1)], None))
        for g, dt in zip((4, 5, 6, 7), (4, 5, 6, 7)): ext[g] += Ls(vread(t & 1, dt), ("v", t, dt))
    def tile(t):
        par = t & 1; nx = par ^ 1
        first = t == 0
        for u in range(7):
            ext = {g: [] for g in range(17)}; sh = {g: [] for g in range(17)}
            dgaps = {0: (8, 10), 1: (4, 10), 2: (4, 7, 10), 3: (4, 10), 4: (4, 7, 10), 5: (5, 9), 6: (4, 7)}[u]
            if u == 0:
                vh1(t, ext, sh)
                sh[11].append(("W", None, [("v", t, 5)])); sh[13].append(("W", None, [("v", t, 7)]))
            if u == 5:
                sh[3].append(("W", [("K", t+1, 0), ("K", t+1, 1)], None))
                for i, g in enumerate((4, 6, 8, 10)): ext[g] += Ls([kread(nx, 2*i), kread(nx, 2*i+1)], ("k", t+1))
                sh[16].append(("W", None, [("k", t+1)]))
            if u == 6:
                sh[5].append(("W", [("V", t+1, 0)], None))
                for g, dt in zip((6, 8, 9, 10), (3, 0, 1, 2)): ext[g] += Ls(vread(nx, dt), ("v", t+1, dt))
                if t % 2 == 0 and t > 0 and not unroll: sh[15].append(f"s_sub_u32 s{S_CNT}, s{S_CNT}, 1"); sh[16].append(f"s_cmp_lg_u32 s{S_CNT}, 0")
            if pref == 2 and not unroll and t % 2 == 0 and t > 0 and u == 1: sh[0].append("s_load_dword s96, s[94:95], s97")
            if pref == 3 and t % 2 == 0 and u == 1: ext[7 if t else 9] += [("V", f"global_load_dword v{V_KEEP}, {vr(V_X0, 2)}, off", "pf"), []]
            if pref and unroll and t in (1, 3, 5) and u == 1:
                sh[0].append(f"s_add_u32 s97, s97, {0x2000 if t == 1 else 0x1000}"); sh[1].append("s_load_dword s96, s[94:95], s97")
            if first:
                if u == 0:
                    dgaps = ()
                    sh[2] = []; ext[7].append(("W", None, [("v", 0, 3)]))
                    q = qreads(2); ext[8] += q[0:2]; ext[9] += q[2:4]; ext[10] += q[4:5]
                elif u < 5:
                    q = qreads(u + 2); ext[5] += q[0:2]; ext[6] += q[2:3]; ext[8] += q[3:5]
                    dgaps = (4, 7, 10)
                if u < 5: sh[16].append(("W", None, [("q", u + 2)]))
                if u == 1: sh[14].append("s_barrier")
                xs = [(0, 1), (0, 14), (1, 9), (2, 9), (3, 9), (4, 9), (5, 7), (1, 1), (2, 1), (3, 1), (4, 1), (5, 1)][:t0extra]
                dgaps = tuple(sorted(set(dgaps) | set(g for (uu, g) in xs if uu == u)))
                stamp("t")
            if t > 0 and t % 2 == 1 and u in (1, 3):
                for i in range(bpad // 2 + (bpad % 2 if u == 1 else 0)): ext[(6, 8, 5, 7, 9, 6, 8, 5)[i]].append("s_nop 0")
            if t == 5: stamp('l')
            if t == 6: stamp('m')
            emit_step(u, par, first, ext, sh, dgaps)

    a.c("tile 0"); tile(0)
    if not unroll: a(f"s_mov_b32 s{S_CNT}, 3")
    if absm:
        a.free = True
        a(f"s_lshr_b32 s84, s2, 3"); a(f"s_add_u32 s84, s84, s{S_W}"); a("s_cmp_lg_u32 s84, 0"); a("s_cbranch_scc1 L_nopost")
        a("s_waitcnt lgkmcnt(0)"); a(f"v_mov_b32 v14, s{S_STAMP}"); a("s_lshl_b32 s84, s2, 2"); a("v_mov_b32 v15, s84")
        a("global_store_dword v15, v14, s[46:47] sc1")
        a.label("L_nopost")
        a.free = False
    stamp()
    if unroll:
        for t in range(1, 7): a.c(f"tile {t}"); tile(t)
        i0 = i1 = len(a.l)
    else:
        a.raw(f".p2align {lal}")
        for _ in range(lpad): a("s_nop 0")
        a.label("L_loop")
        i0 = len(a.l)
        bodies = []
        for t in range(1, 7):
            b = len(a.l); tile(t); bodies.append(a.l[b:])
        for t in (2, 4):
            for k in (0, 1):
                assert absm or fine[0] in 'lm' or bodies[t + k] == bodies[k], [(x, y) for x, y in zip(bodies[k], bodies[t + k]) if x != y][:4]
        del a.l[i0:]
        a.l += bodies[4] + bodies[5]
        a("s_cbranch_scc1 L_loop")
        i1 = len(a.l)
    assert stream[spos[0]][2] >= 8, "stream not fully issued"
    stamp()

    def blk(u, j): return (u * 3 + j - 1) * 1024
    def pk(u, j):
        o = Ov(u, 2*j); p = Ov(u, 2*j+1) if j < 3 else Ov(u, 3)
        return [f"v_cvt_pk_bf16_f32 v{o+r}, v{(o, p)[r//2] + 2*(r%2)}, v{(o, p)[r//2] + 2*(r%2) + 1}" for r in range(4)]
    def acc(u): return [f"v_accvgpr_read_b32 v{Ov(u,3)+r}, a{A_O7+4*u+r}" for r in range(4)]
    def xw(u, j): return ("L", f"ds_write_b128 v{V_LIN}, {vr(Ov(u, 2*j), 4)} offset:{blk(u, j)}", ("xw", u))
    def lw(u): return ("L", f"ds_write_b32 v{V_LW}, a{A_L+4*u} offset:{LTAB(u)}", ("xw", u))
    def R(u):
        o = [("L", f"ds_read_b128 {vr(V_CI+4*u,4)}, v{V_LR} offset:{LTAB(u)}", ("x", u))]
        return o + [("L", f"ds_read_b128 {ar(A_X(u) + 4*(j-1), 4)}, v{V_XR+j-1} offset:{blk(u, j)}", ("x", u)) for j in range(1, 4)]
    def chk(u): return f"v_cmp_gt_f32 vcc, 0, v{V_CI+4*u}" if u not in bars else []
    def br(u): return [f"s_cbranch_vccnz L_rt{u}", ("LBL", f"L_rb{u}")] if u not in bars else []
    def bar(u): return [("W", None, [("xw", u)]), "s_barrier"] if u in bars else []
    def cmb(u):
        return [f"{M16} {Of(u, b)}, {ar(A_SEL + 2 - 2*b, 4)}, {ar(A_X(u) + 4*j, 4)}, {Of(u, b)}" for b in range(2) for j in range(3)]
    def ladd(u):
        c = V_CI + 4*u
        return [f"v_add_f32 v{c}, v{c}, v{c+1}", f"v_add_f32 v{c+2}, v{c+2}, v{c+3}", f"v_add_f32 v{c}, v{c}, v{c+2}"]
    def lrcp(u):
        c = V_CI + 4*u
        return [f"v_rcp_f32 v{c+2}, v{c}", f"v_max3_f32 v{V_CHK}, v{V_CHK}, v{c}, v{c+2}" if u else f"v_max_f32 v{V_CHK}, v{c}, v{c+2}"]
    def mul(u, b): return [f"v_mul_f32 v{Ov(u,b)+r}, v{Ov(u,b)+r}, v{V_CI+4*u+2}" for r in range(4)]
    def pmul(u): return [f"v_pk_mul_f32 {vr(Ov(u,0)+r,2)}, {vr(Ov(u,0)+r,2)}, {vr(V_CI+4*u+2,2)} op_sel_hi:[1,0]" for r in range(0, 8, 2)]
    def swp(u): return [f"v_permlane16_swap_b32 v{Ov(u,0)+r}, v{Ov(u,0)+2+r}" for r in range(2)]
    def sto(u): return f"s_movk_i32 s98, {u*4096}"
    def ST(u): return ("V", f"buffer_store_dwordx4 {vr(Ov(u,0),4)}, v{V_ST}, {srd(SRD_O)}, s98 offen{(' '+sflags) if sflags else ''}", "st")
    def seq(mf, fill):
        for i, m in enumerate(mf):
            if m: a(m)
            a(fill.get(i, []))
    a.c("tile 7")
    for u in range(6):
        stamp("e")
        w = u - 1; f = u - 2
        mf = [qk(u + 1, g) for g in range(8)] + (cmb(f) if f >= 0 else [None] * 6) + [pv(u, dt, 1, False) for dt in range(8)] + [sm(u, False)]
        F = {i: [] for i in range(23)}
        if f >= 0:
            r = R(f); F[0] += r[0:2]; F[1] += r[2:4]
        for g in range(3): F[g] += [ex(5 + g)]
        F[3] += [cv(2), cv(3)]
        if u == 0:
            e_ = {g: [] for g in range(8)}; s_ = {g: [] for g in range(8)}
            vh1(7, e_, s_)
            for g in range(8): F[g] = s_[g] + e_[g] + F[g]
            F[14] += [f"v_add_u32 v{V_LW}, s{S_LWO}, v{V_CIR}", f"v_subrev_u32 v{V_LR}, {CI_AREA - LT0}, v{V_CIR}"]
            F[15] += [f"v_lshl_add_u32 v{V_XR+j}, v{L}, 4, s{S_XR+j}" for j in range(2)]
            F[16] += [f"v_lshl_add_u32 v{V_XR+2}, v{L}, 4, s{S_XR+2}"]
            F[17] += [("W", None, [("v", 7, 5)])]; F[19] += [("W", "all", [("v", 7, 7)])]
        if f >= 0:
            p1, p2, p3, ac, la, p0 = pk(w, 1), pk(w, 2), pk(w, 3), acc(w), ladd(f), pk(f, 0)
            F[4] += p1; F[5] += [xw(w, 1)]; F[6] += [("W", None, [("x", f)])] + la + [chk(f)]
            F[7] += p2[:2] + br(f)
            F[8] += p2[2:]; F[9] += [xw(w, 2)]; F[10] += ac[:2]; F[11] += ac[2:]; F[12] += p3[:2]; F[13] += p3[2:]
            F[14] += [xw(w, 3)]; F[15] += [lw(w)]; F[16] += lrcp(f)[:1]; F[17] += [ex(0)]
            F[18] += [ex(1), ex(2)] + lrcp(f)[1:] + pmul(f)
            F[19] += p0
            F[20] += [ex(3)]
            F[21] += [sto(f)] + swp(f)
            F[22] += [ST(f), ex(4), cv(0), cv(1)]
            F[19] = bar(w)[:1] + F[19]; F[20] = bar(w)[1:] + F[20]
        else:
            if w >= 0:
                F[4] += pk(w, 1); F[5] += [xw(w, 1)]; F[6] += pk(w, 2); F[7] += acc(w)
                F[14] += [xw(w, 2)]; F[15] += pk(w, 3); F[17] += [xw(w, 3)]; F[18] += [lw(w)]
            for i, g in enumerate((17, 18, 19, 20, 21) if w < 0 else (16, 19, 20, 21, 22)): F[g] += [ex(i)]
            F[22] += [cv(0), cv(1)]
            if w >= 0: F[22] += bar(w)
        seq(mf, F)
    stamp("e")
    a(R(4))
    a([ex(5), ex(6), ex(7)] + pk(5, 1)[:1] + [cv(2), cv(3)] + pk(5, 1)[1:])
    mf = [pv(6, dt, 1, False) for dt in range(2, 8)] + [sm(6, False), pv(6, 0, 1, False), pv(6, 1, 1, False)] + cmb(4)
    F = {0: [xw(5, 1)], 1: pk(5, 2), 2: acc(5), 3: [xw(5, 2)], 4: pk(5, 3), 5: [("W", None, [("x", 4)])] + ladd(4) + [chk(4)], 6: [xw(5, 3), lw(5)], 7: br(4) + pk(6, 1),
         8: lrcp(4)[:1], 9: [xw(6, 1)], 10: pk(6, 2) + lrcp(4)[1:], 11: bar(5)[:1] + acc(6), 12: bar(5)[1:] + [xw(6, 2)], 13: R(5) + pk(6, 3), 14: [xw(6, 3), lw(6)]}
    seq(mf, F)
    a([sto(4), f"s_mov_b32 s99, {hex(f2u(THRESH))}", ("W", None, [("x", 5)])] + ladd(5) + [chk(5)])
    a(pmul(4)); a(pk(4, 0)); a(br(5)); a(bar(6))
    stamp()
    a(R(6))
    F = {0: swp(4), 1: [ST(4)], 2: lrcp(5)[:1], 4: [("W", None, [("x", 6)])] + ladd(6) + [chk(6)], 5: lrcp(5)[1:] + mul(5, 0)[:1] + br(6),
         6: [sto(5)] + lrcp(6)[:1], 7: mul(5, 0)[1:], 8: lrcp(6)[1:] + [f"s_cmp_lg_u32 s{S_FB}, 0"],
         9: mul(5, 1), 10: pk(5, 0), 11: [f"v_cmp_ngt_f32 vcc, s99, v{V_CHK}", "s_nop 0"] + swp(5)}
    seq(cmb(5) + cmb(6), F)
    a("s_nop 0"); a(ST(5)); a(sto(6)); a("s_nop 0"); a(pmul(6)); a(pk(6, 0)); a("s_nop 1"); a(swp(6)); a("s_nop 0"); a(ST(6))
    a("s_cbranch_scc1 L_ok")
    a("s_cbranch_vccnz L_fallback")
    a.label("L_ok")
    a.free = True
    if diag and spin:
        i, j, mult = spin[:3]
        a("s_waitcnt vmcnt(0)")
        if len(spin) > 3 and spin[3] >= 32:
            a("s_lshr_b32 s84, s2, 6"); a(f"s_cmp_lg_u32 s84, {spin[3] - 32}"); a("s_cbranch_scc1 L_end")
        elif len(spin) > 3 and spin[3] >= 16:
            a("s_bfe_u32 s84, s2, 0x20001"); a(f"s_cmp_lg_u32 s84, {spin[3] - 16}"); a("s_cbranch_scc1 L_end")
        if len(spin) == 3:
            a(f"s_lshl_b32 s84, s2, 2"); a(f"s_add_u32 s84, s84, s{S_W}"); a("s_cmp_lg_u32 s84, 401"); a("s_cbranch_scc1 L_end")
        a("s_memrealtime s[80:81]"); a("s_memtime s[86:87]"); a("s_waitcnt lgkmcnt(0)")
        if absm:
            a("s_load_dwordx8 s[4:11], s[46:47], 0"); a("s_waitcnt lgkmcnt(0)")
            for k in range(4, 12): a(f"s_sub_u32 s{k}, s80, s{k}")
            for k in range(5, 12): a(f"s_max_u32 s4, s4, s{k}")
            a("s_sub_u32 s85, s80, s4")
            sj = 80 if j == 8 else S_STAMP + 2*j
            a(f"s_sub_u32 s84, s{sj}, s85"); a("s_add_u32 s84, s84, 100"); a(f"s_mul_i32 s84, s84, {mult}")
        elif mult >= 100:
            a(f"s_sub_u32 s84, s{S_STAMP+2*j}, s{S_STAMP+2*i}"); a(f"s_sub_u32 s85, s{S_STAMP+16+2*j}, s{S_STAMP+16+2*i}")
            a("s_mul_i32 s85, s85, 2731"); a("s_lshr_b32 s85, s85, 16"); a("s_sub_u32 s84, s84, s85"); a(f"s_mul_i32 s84, s84, {mult - 100}")
        elif mult > 0:
            sj = 80 if j == 8 else S_STAMP + 2*j
            a(f"s_sub_u32 s84, s{sj}, s{S_STAMP+2*i}"); a(f"s_mul_i32 s84, s84, {mult}")
        else:
            sj = 86 if j == 8 else S_STAMP + 16 + 2*j
            a(f"s_sub_u32 s84, s{sj}, s{S_STAMP+16+2*i}"); a(f"s_lshr_b32 s84, s84, {-mult}")
        a("s_min_u32 s84, s84, 20000")
        a.label("L_spin")
        a("s_memrealtime s[82:83]"); a("s_waitcnt lgkmcnt(0)")
        a("s_sub_u32 s85, s82, s80"); a("s_cmp_lt_u32 s85, s84"); a("s_cbranch_scc1 L_spin")
    elif diag:
        a("s_memrealtime s[84:85]"); a("s_memtime s[86:87]")
        a("s_waitcnt vmcnt(0)")
        a("s_memrealtime s[80:81]"); a("s_memtime s[82:83]")
        a("s_branch L_dump")
    a.label("L_end")
    a("s_endpgm")
    iend = len(a.l)
    a.c("a partner wave had not published this q tile yet: read again")
    for u in range(7):
        if u in bars: continue
        a.label(f"L_rt{u}")
        for x in R(u): a(x[1])
        a("s_waitcnt lgkmcnt(0)")
        a(ladd(u)); a(chk(u)); a("s_nop 1")
        a(f"s_cbranch_vccnz L_rt{u}")
        a(f"s_branch L_rb{u}")
    if warm > 1:
        a.raw(f".fill ({4 * 4096 - head} - (. - {NAME}_kernel)) / 4, 4, 0xbf810000")
        a.label("L_pg3")
        a("s_branch L_back")
    a.c("fallback: redo the prologue, take the true row max over all keys, run again with it")
    a.label("L_fallback")
    a("s_waitcnt vmcnt(0) lgkmcnt(0)")
    a("s_barrier")
    a(f"s_mov_b32 s{S_FB}, 1")
    a("s_branch L_start")
    a.label("L_pass1")
    a("s_waitcnt lgkmcnt(0)")
    a("s_barrier")
    for u in range(7):
        for x in qreads(u)[1:]: a(x[1])
        a("s_waitcnt lgkmcnt(0)")
    a("s_waitcnt vmcnt(0)")
    a("s_barrier")
    a("s_mov_b32 s42, 0")
    MX = V_OWN
    for u in range(7): a(f"v_mov_b32 v{MX+u}, 0xff800000")
    a.label("L_fb1")
    a(m0(0)); a(f"s_add_u32 s{S_SO}, s42, 128")
    for p in range(4): a(dma(SRD_K, 42, p, "f")[1])
    a(m0(4096)); a("s_nop 0")
    for p in range(4): a(dma(SRD_K, S_SO, p, "f")[1])
    a("s_waitcnt vmcnt(0)")
    for j in range(8): a(kread(0, j))
    a("s_waitcnt lgkmcnt(0)")
    for u in range(7):
        for j in range(8): a(qk(u, j, zero=True))
        a("s_nop 7")
        for r in range(0, 8, 2): a(f"v_max3_f32 v{MX+u}, v{MX+u}, v{V_S+r}, v{V_S+r+1}")
    a("s_add_u32 s42, s42, 0x2000")
    a("s_cmp_lt_u32 s42, 0x10000")
    a("s_cbranch_scc1 L_fb1")
    for sw in ("v_permlane16_swap_b32", "v_permlane32_swap_b32"):
        for u in range(7): a(f"v_mov_b32 v{MX+8+u}, v{MX+u}")
        a("s_nop 1")
        for u in range(7): a(f"{sw} v{MX+u}, v{MX+8+u}")
        a("s_nop 1")
        for u in range(7): a(f"v_max_f32 v{MX+u}, v{MX+u}, v{MX+8+u}")
    a(f"v_add_u32 v{V_P}, s{S_LWO}, v{V_CIR}")
    for u in range(7): a(f"ds_write_b32 v{V_P}, v{MX+u} offset:{LTAB(u)}")
    a("s_waitcnt lgkmcnt(0)")
    a("s_barrier")
    a(f"s_lshl_b32 s42, s{S_W}, 8")
    a(f"s_sub_u32 s42, s42, {CI_AREA - LT0}")
    a(f"v_add_u32 v{V_P}, s42, v{V_CIR}")
    for h in range(2): a(f"ds_read_b128 {vr(V_S+4*h,4)}, v{V_P} offset:{1024*h}")
    a("s_waitcnt lgkmcnt(0)")
    for h in range(2):
        a(f"v_max3_f32 v{V_KEEP+h}, v{V_S+4*h}, v{V_S+4*h+1}, v{V_S+4*h+2}")
        a(f"v_max_f32 v{V_KEEP+h}, v{V_KEEP+h}, v{V_S+4*h+3}")
    a(f"s_mov_b32 s{S_FB}, 2")
    a(f"s_mov_b64 s[{S_FBM}:{S_FBM+1}], -1")
    a("s_barrier")
    a("s_branch L_start")
    if diag and not spin:
        a.label("L_dump")
        a("s_mov_b32 s36, s46"); a("s_mov_b32 s37, s47"); a("s_mov_b32 s38, 0x100000"); a("s_mov_b32 s39, 0x20000")
        a("s_waitcnt lgkmcnt(0)")
        a("s_lshl_b32 s40, s2, 2"); a(f"s_add_u32 s40, s40, s{S_W}"); a("s_lshl_b32 s40, s40, 8")
        a(f"v_mov_b32 v4, s40")
        a(f"v_cmp_eq_u32 vcc, 0, v{L}")
        a("s_and_saveexec_b64 s[42:43], vcc")
        slots = [(S_STAMP+2*i, i) for i in range(8)] + [(84, 8), (80, 9)] + [(S_STAMP+16+2*i, 16+i) for i in range(8)] + [(86, 24), (82, 25)]
        for s, i in slots:
            a(f"v_mov_b32 v6, s{s}"); a(f"v_mov_b32 v7, s{s+1}"); a(f"buffer_store_dwordx2 v[6:7], v4, s[36:39], 0 offen offset:{8*i}"); a("s_nop 1")
        a("s_endpgm")
    lin = a.l[:i1] + a.l[i0:i1] + a.l[i1:iend]
    bad = hz.check(lin) + hz.check(a.l[iend:])
    for b in bad: print("HAZARD", b, file=sys.stderr)
    if unroll: a.raw(f".fill ({7 * 4096 - head} - (. - {NAME}_kernel)) / 4, 4, 0xbf810000")
    a.raw('.section .rodata,"a"'); a.raw(".p2align 6"); a.raw(f".amdhsa_kernel {NAME}_kernel")
    a.raw("  .amdhsa_next_free_vgpr 512"); a.raw("  .amdhsa_next_free_sgpr 102"); a.raw("  .amdhsa_accum_offset 256")
    a.raw("  .amdhsa_group_segment_fixed_size 0"); a.raw("  .amdhsa_kernarg_size 48"); a.raw("  .amdhsa_user_sgpr_count 2")
    a.raw("  .amdhsa_user_sgpr_kernarg_segment_ptr 1"); a.raw("  .amdhsa_system_sgpr_workgroup_id_x 1"); a.raw(".end_amdhsa_kernel")
    if warm: a.l = add_stubs(a.l, head)
    return "\n".join(a.l) + "\n"

if __name__ == "__main__":
    ap = argparse.ArgumentParser()
    ap.add_argument("-o", default=f"kN.s")
    ap.add_argument("--diag", action="store_true")
    ap.add_argument("--spin", default=None); ap.add_argument("--flags", default=""); ap.add_argument("--sflags", default="sc1")
    ap.add_argument("--n0", type=int, default=8); ap.add_argument("--mix", type=int, default=1); ap.add_argument("--vsch", default="2,2,2,2,0")
    ap.add_argument("--t0extra", type=int, default=2); ap.add_argument("--pace", type=int, default=2); ap.add_argument("--fine", default="c")
    ap.add_argument("--cgap", type=int, default=14); ap.add_argument("--pref", type=int, default=3); ap.add_argument("--align", type=int, default=12); ap.add_argument("--head", type=int, default=3072); ap.add_argument("--warm", type=int, default=0); ap.add_argument("--rot", default="0,0"); ap.add_argument("--touch", type=int, default=0); ap.add_argument("--pre0", type=int, default=2); ap.add_argument("--mid", default=""); ap.add_argument("--epi", type=int, default=1); ap.add_argument("--absm", action="store_true"); ap.add_argument("--unroll", type=int, default=0); ap.add_argument("--bars", default=""); ap.add_argument("--lpad", type=int, default=0); ap.add_argument("--lal", type=int, default=3); ap.add_argument("--bpad", type=int, default=0); ap.add_argument("--wg", default="4,5,6,7,8,9,10")
    args = ap.parse_args()
    tup = lambda s: tuple(map(int, s.split(',')))
    open(args.o, "w").write(gen(diag=args.diag, flags=args.flags, sflags=args.sflags, n0=args.n0, mix=args.mix, vsch=tup(args.vsch), t0extra=args.t0extra,
                                pace=args.pace, fine=args.fine, cgap=args.cgap, pref=args.pref, align=args.align, head=args.head, warm=args.warm, rot=tup(args.rot), touch=args.touch, pre0=args.pre0, epi=args.epi, absm=args.absm, unroll=args.unroll, bars=tup(args.bars) if args.bars else (), lpad=args.lpad, lal=args.lal, bpad=args.bpad, mid=tup(args.mid) if args.mid else None, wg=tup(args.wg), spin=tup(args.spin) if args.spin else None))
```

```python
import sys, struct, argparse
import hz
NAME = "standalone__gqa_softmax__near_ridge"
def f2u(x): return struct.unpack("<I", struct.pack("<f", x))[0]
def vr(b, n=1): return f"v{b}" if n == 1 else f"v[{b}:{b+n-1}]"
def ar(b, n=1): return f"a{b}" if n == 1 else f"a[{b}:{b+n-1}]"
def srd(b): return f"s[{b}:{b+3}]"

V_LANE, V_LIN, V_KEEP, V_VOFF, V_AK, V_AV = 0, 1, 2, 4, 8, 10
V_QA0, V_QA1, V_X0, V_X1, V_ST, V_CIR = 14, 15, 16, 17, 18, 19
V_S, V_P, V_CI, V_OWN, V_OTH = 20, 28, 32, 60, 116
A_O7, A_L, A_ONE, A_K, A_V, A_Q = 0, 28, 56, 60, 92, 144
V_XR, V_LW, V_LR, V_CHK = 4, 7, 8, 9
A_SEL = A_V + 36
def A_X(u): return A_Q + 16 * (u % 2)
S_W = 3
SRD_Q, SRD_K, SRD_V, SRD_O = 12, 16, 20, 24
S_MK0, S_MK1, S_MV0, S_MV1 = 28, 29, 30, 31
S_Y, S_FB, S_WB, S_CNT = 32, 33, 34, 35
S_SO = 44
S_STAMP = 48
S_FBM = 88
S_XR = 90
S_LWO = 93
S_Y0 = 100
S_K0 = 101
S_YR = 43
REG = 40960
KB = lambda par: par * 8192
VB = lambda par: 16384 + par * 8192
XO = 32768
CI_AREA = 3 * REG + XO + 6144
LT0 = 3 * REG + XO + 2048
def LTAB(u): return u * 256
SENT = 0xf1800000
SCALE = (128 ** -0.5) * 1.4426950408889634
THRESH = 2.0 ** 40
M16 = "v_mfma_f32_16x16x32_bf16"

def Qf(u, c): return ar(A_Q + 16 * u + 4 * c, 4)
def Kf(j): return ar(A_K + 4 * j, 4)
def Vbase(dt, par): return A_V + 32 if (dt == 3 and par) else A_V + 4 * dt
def Ov(u, dt): return V_OWN + 8 * u + 4 * dt if dt < 2 else V_OTH + 20 * u + 4 * (dt - 2)
def Of(u, dt): return ar(A_O7 + 4 * u, 4) if dt == 7 else vr(Ov(u, dt), 4)
def qk(u, j, zero=False):
    kt, c = j // 4, j % 4
    S = vr(V_S + 4 * kt, 4)
    cc = S if c else ("0" if zero else vr(V_CI + 4 * u, 4))
    return f"{M16} {S}, {Kf(j)}, {Qf(u, c)}, {cc}"
def pv(u, dt, par, first):
    o = Of(u, dt)
    return f"{M16} {o}, {ar(Vbase(dt, par), 4)}, {vr(V_P, 4)}, {'0' if first else o}"
def sm(u, first):
    o = ar(A_L + 4 * u, 4)
    return f"{M16} {o}, {ar(A_ONE, 4)}, {vr(V_P, 4)}, {'0' if first else o}"
def ex(e): return f"v_exp_f32 v{V_S+e}, v{V_S+e}"
def cv(i): return f"v_cvt_pk_bf16_f32 v{V_P+i}, v{V_S+2*i}, v{V_S+2*i+1}"
def kread(par, j, base=None, dst=None):
    kt, c = j // 4, j % 4
    off = (KB(par) if base is None else base) + (c >> 1) * 4096 + kt * 2048
    return f"ds_read_b128 {dst or Kf(j)}, v{V_AK + (c & 1)} offset:{off}"
def vread(par, dt):
    b = Vbase(dt, par)
    return [f"ds_read_b64_tr_b16 {ar(b + 2*h, 2)}, v{V_AV + (dt & 3)} offset:{VB(par) + (dt >> 2) * 4096 + h * 2048}" for h in range(2)]


DOC = """
; ---------------------------------------------------------------------------------------------------------------
;   * wave w handles all 112 q rows (7 tiles of 16) against its own 256 keys, 32 keys per tile, v_mfma 16x16x32 bf16:
;   * K / V tiles come in by LDS-DMA (swizzled image, double buffered per wave); V is transposed by ds_read_b64_tr_b16.
;     the safe range (2^-40, 2^40) the workgroup computes the true row max over all keys (L_pass1) and
; ---------------------------------------------------------------------------------------------------------------"""

class Gen:
    def __init__(self):
        self.l = []; self.vq = []; self.lq = []; self.ldone = 0; self.free = False
    def __call__(self, s):
        if isinstance(s, list):
            for x in s: self(x)
        elif isinstance(s, tuple):
            if s[0] == "LBL": self.l.append(s[1] + ":")
            elif s[0] == "L": self.l.append("    " + s[1]); self.lq.append(s[2])
            elif s[0] == "V":
                tg = s[2]
                if isinstance(tg, tuple) and tg[0] in "KV" and tg[1] >= 2:
                    kv, x, hf = tg
                    need = ([("k", x-2)] if x > 2 else ["k0a", "k0b"]) if kv == "K" else [("v", x-2, dt) for dt in range(4*hf, 4*hf+4)]
                    for n in need:
                        idx = [i for i, t in enumerate(self.lq) if t == n]
                        assert idx and max(idx) < self.ldone, ("LDS WAR", tg, n)
                self.l.append("    " + s[1]); self.vq.append(s[2])
            elif s[0] == "W":
                parts = []
                for q, tags, nm, mx in ((self.vq, s[1], "vmcnt", 63), (self.lq, s[2], "lgkmcnt", 15)):
                    if tags is None: continue
                    if tags == "all": n = 0
                    else:
                        idx = [i for i, t in enumerate(q) if t in tags]
                        assert idx, ("no such tag", tags)
                        n = len(q) - 1 - max(idx)
                    if nm == "lgkmcnt": self.ldone = max(self.ldone, len(q) - min(n, mx))
                    parts.append(f"{nm}({min(n, mx)})")
                self.l.append("    s_waitcnt " + " ".join(parts))
        else:
            assert not (s.startswith("ds_") or s.startswith("buffer_")) or self.free, s
            self.l.append("    " + s)
    def label(self, s): self.l.append(s + ":")
    def c(self, s): self.l.append("    ; " + s)
    def raw(self, s): self.l.append(s)

def sizes(lines):
    import subprocess, tempfile, os, re
    with tempfile.TemporaryDirectory() as d:
        src = [l for l in lines]
        src.insert(src.index("L_end:"), "L_pg1:\nL_pg2:")
        open(d + "/t.s", "w").write("\n".join(src) + "\n")
        subprocess.run(["clang", "-x", "assembler", "-target", "amdgcn-amd-amdhsa", "-mcpu=gfx950", "-c", d + "/t.s", "-o", d + "/t.o"], check=True)
        out = subprocess.run(["llvm-objdump", "-d", "--mcpu=gfx950", d + "/t.o"], capture_output=True, text=True).stdout
    return [(int(m.group(2), 16), m.group(1)) for m in re.finditer(r"^\t(\S+).*// ([0-9A-F]+):", out, re.M)]
def add_stubs(lines, head):
    lines = list(lines)
    for pg in (1, 2):
        tmp = [l for l in lines if l not in ("L_pg1:", "L_pg2:")]
        ins = [x for x in sizes(tmp) if x[0] >= head]
        mf = [off for off, mn in ins if mn.startswith("v_mfma")]
        target = (pg + (1 if head else 0)) * 4096
        k = next(i for i, off in enumerate(mf) if off >= target - 8)
        assert mf[k] + 8 < target + 60, (mf[k], target)
        idx = [i for i, l in enumerate(lines) if l.strip().startswith("v_mfma")][k]
        lines[idx + 1:idx + 1] = [f"L_pg{pg}:", "    s_cbranch_execz L_back"]
    return lines

def gen(diag=False, flags="", sflags="sc1", spin=None, n0=8, mix=1, vsch=(2, 2, 2, 2, 0), t0extra=2, pace=2, fine='c', cgap=14, pref=3, align=12, head=3072, warm=0, rot=(0, 0), touch=0, pre0=2, mid=None, epi=1, absm=False, unroll=0, kb=0, bars=(), lpad=0, lal=3, bpad=0, wg=(4, 5, 6, 7, 8, 9, 10)):
    a = Gen()
    fl = (" " + flags) if flags else ""
    def dma(s, soff, p, tag): return ("V", f"buffer_load_dwordx4 v{V_VOFF+p}, {srd(s)}, s{soff} offen offset:{p*1024}{fl} lds", tag)
    def m0(off): return f"s_add_u32 m0, s{S_WB}, {off}"
    def Ls(texts, tag): return [("L", t, tag) for t in texts]
    nst = [0]
    def stamp(kind="c"):
        if diag and kind in fine and nst[0] < 8:
            a(f"s_memrealtime s[{S_STAMP+2*nst[0]}:{S_STAMP+2*nst[0]+1}]")
            a(f"s_memtime s[{S_STAMP+16+2*nst[0]}:{S_STAMP+16+2*nst[0]+1}]")
            nst[0] += 1
    GROUPS = (("K", 0), ("K", 1), ("V", 0), ("V", 1))
    stream = []
    for x in range(1, 10):
        for gi, (kv, hf) in enumerate(GROUPS):
            s_, buf = (SRD_K, KB(x & 1)) if kv == "K" else (SRD_V, VB(x & 1))
            for p in range(4):
                pre = []; so = S_SO
                if p == 0:
                    if gi == 0: pre += [("Y", x)]
                    pre += [m0(buf + hf * 4096)]
                    pre += [f"s_or_b32 s{S_SO}, s{S_Y}, s{S_MV0+hf}" if kv == "V" else f"s_or_b32 s{S_SO}, s{S_Y}, {128*hf}"]
                stream.append((pre, dma(s_, so, p, (kv, x, hf)), x))
    spos = [0]
    def expand(pre):
        out = []
        for y in pre:
            if isinstance(y, tuple) and y[0] == "Y":
                out += [f"s_add_u32 s{S_Y}, s{S_Y}, 0x2000"]
                if y[1] % 2 == 0 and y[1] >= 4 and not unroll:
                    out += [f"s_cmp_lt_u32 s{S_Y}, 0x10000", f"s_cselect_b32 s{SRD_K+2}, 0x10000, 0", f"s_mov_b32 s{SRD_V+2}, s{SRD_K+2}"]
            elif isinstance(y, tuple): out += ["s_nop 0"]
            else: out.append(y)
        return out
    def nextpre():
        pre, d, x = stream[spos[0]]
        if unroll and x >= 8: return []
        stream[spos[0]] = ([], d, x)
        return expand(pre)
    def nextdma():
        pre, d, x = stream[spos[0]]
        if unroll and x >= 8: return []
        spos[0] += 1
        return expand(pre) + [d]

    a.raw(open("cdna_kernels/%s.s.ref" % NAME).read().split("; Override launch")[0].rstrip())
    a.raw("; @launch grid=(256,1,1) block=(256,1,1) lds=163840")
    a.raw(DOC.strip())
    a.raw('.amdgcn_target "amdgcn-amd-amdhsa--gfx950"')
    a.raw(".text"); a.raw(f".globl {NAME}_kernel"); a.raw(f".p2align {align}"); a.raw(f".fill {head // 4}, 4, 0xbf810000"); a.raw(".p2align 8"); a.raw(f".type {NAME}_kernel,@function")
    a.label(f"{NAME}_kernel")
    a("s_load_dwordx8 s[4:11], s[0:1], 0")
    a("s_cmp_ge_u32 s2, 256")
    a("s_cbranch_scc1 L_end")
    if diag:
        a("s_load_dwordx2 s[46:47], s[0:1], %d" % (32 if absm else 40))
        stamp(fine[0])
    L = V_LANE
    T = V_S
    a(f"v_lshrrev_b32 v{T}, 6, v0")
    a(f"v_and_b32 v{L}, 63, v0")
    a(f"v_readfirstlane_b32 s{S_W}, v{T}")
    a("s_and_b32 s36, s2, 7")
    a("s_lshr_b32 s37, s2, 3")
    a("s_lshl_b32 s36, s36, 5")
    a("s_add_u32 s36, s36, s37")
    a("s_mul_i32 s38, s36, 28672")
    a(f"s_mul_i32 s{S_WB}, s{S_W}, {REG}")
    a(f"s_movk_i32 s{SRD_Q+2}, 28672")
    a(f"s_mov_b32 s{SRD_Q+3}, 0x20000")
    a(f"s_lshl_b32 s40, s{S_W}, 12")
    a(f"s_mov_b32 s{S_FB}, 0")
    a(f"s_mov_b64 s[{S_FBM}:{S_FBM+1}], 0")
    a.label("L_start")
    a(f"v_lshrrev_b32 v{T}, 3, v{L}")
    a(f"v_and_b32 v{T+1}, 6, v{T}")
    a(f"v_xor_b32 v{T+1}, v{T+1}, v{L}")
    a(f"v_and_b32 v{T+1}, 7, v{T+1}")
    a(f"v_lshlrev_b32 v{T+1}, 4, v{T+1}")
    a(f"v_lshl_add_u32 v{V_VOFF}, v{T}, 8, v{T+1}")
    a(f"v_xor_b32 v{V_VOFF+1}, 16, v{V_VOFF}")
    a(f"v_add_u32 v{V_VOFF+1}, 0x400, v{V_VOFF+1}")
    a(m0(XO))
    a("s_add_u32 s41, s40, 128")
    a("s_lshr_b32 s39, s36, 2")
    a("s_lshl_b32 s39, s39, 18")
    a(f"s_lshl_b32 s42, s{S_W}, 16")
    a("s_add_u32 s39, s39, s42")
    a(f"s_mov_b32 s{SRD_K+2}, 0x10000")
    a(f"s_mov_b32 s{SRD_K+3}, 0x20000")
    a(f"s_mov_b32 s{S_Y}, 0")
    a("s_movk_i32 s43, 128")
    a.c("code prefetch into L2: one 64-B line of the following code pages per wave")
    a("s_getpc_b64 s[94:95]")
    a.label("L_pc")
    a(f"s_lshl_b32 s97, s{S_W}, 5")
    a("s_add_u32 s97, s97, s37")
    a("s_lshl_b32 s97, s97, 6")
    a(f"s_add_u32 s96, s97, {4096 - head}-(L_pc-{NAME}_kernel)")
    a("s_add_u32 s96, s94, s96")
    a(f"v_mov_b32 v{T+2}, s96")
    a("s_addc_u32 s96, s95, 0")
    a(f"v_mov_b32 v{T+3}, s96")
    pfl = ("V", f"global_load_dword v{V_CI+8}, {vr(T+2, 2)}, off", "pf")
    if pre0 == 2: a(pfl)
    stamp("k")
    a("s_waitcnt lgkmcnt(0)")
    stamp("k")
    def base(b, src, off): return [f"s_add_u32 s{b}, s{src}, s{off}", f"s_addc_u32 s{b+1}, s{src+1}, 0"]
    a(base(SRD_Q, 4, 38))
    for p in (0, 1): a(dma(SRD_Q, 40, p, "Qa"))
    a(m0(XO + 4096)); a(base(SRD_K, 6, 39))
    for p in (0, 1): a(dma(SRD_Q, 41, p, "Qa"))
    a(m0(KB(0)))
    a(f"s_cmp_eq_u32 s{S_W}, 3")
    for p in (0, 1): a(dma(SRD_K, S_Y, p, "K0a"))
    a(f"s_cselect_b32 s45, 0x4000, 0")
    a(m0(KB(0) + 4096))
    a(f"s_add_u32 s45, s45, s{S_WB}")
    for p in (0, 1): a(dma(SRD_K, 43, p, "K0a"))
    a(f"v_add_u32 v{V_VOFF+2}, 0x800, v{V_VOFF}")
    a(f"v_add_u32 v{V_VOFF+3}, 0x800, v{V_VOFF+1}")
    a(f"s_add_u32 m0, s45, {XO + 4096}"); a("s_add_u32 s42, s41, 0x3000")
    for p in (2, 3): a(dma(SRD_Q, 42, p, "Qb"))
    a(f"s_add_u32 m0, s45, {XO}"); a("s_add_u32 s42, s40, 0x3000")
    for p in (2, 3): a(dma(SRD_Q, 42, p, "Qb"))
    if pre0 == 3: a(pfl)
    a(base(SRD_V, 8, 39)); a(base(SRD_O, 10, 38))
    a(f"s_mov_b32 s{SRD_V+2}, 0x10000"); a(f"s_mov_b32 s{SRD_V+3}, 0x20000")
    a(f"s_movk_i32 s{SRD_O+2}, 28672"); a(f"s_mov_b32 s{SRD_O+3}, 0x20000")
    if warm:
        a("s_mov_b64 exec, 0")
        for w in (1, 2, 3)[:warm + 1]:
            a(f"s_cmp_eq_u32 s{S_W}, {w}")
            a(f"s_cbranch_scc1 L_pg{w}")
        a.label("L_back")
        a("s_mov_b64 exec, -1")
    a(f"s_lshr_b32 s{S_MV0}, s{S_W}, 1"); a(f"s_lshl_b32 s{S_MV0}, s{S_MV0}, 7")
    a(f"s_xor_b32 s{S_MV1}, s{S_MV0}, 128")

    a(f"v_and_b32 v{T}, 15, v{L}")
    a(f"v_and_b32 v{T+1}, 6, v{T}")
    a(f"v_lshrrev_b32 v{T+2}, 3, v{T}")
    a(f"v_or_b32 v{T+1}, v{T+1}, v{T+2}")
    a(f"v_lshrrev_b32 v{T+2}, 4, v{L}")
    a(f"v_lshlrev_b32 v{T+2}, 1, v{T+2}")
    a(f"v_xor_b32 v{T+1}, v{T+1}, v{T+2}")
    a(f"v_lshlrev_b32 v{T+1}, 4, v{T+1}")
    a(f"v_lshl_add_u32 v{T+1}, v{T}, 7, v{T+1}")
    a(f"v_add_u32 v{V_AK}, s{S_WB}, v{T+1}")
    a(f"v_xor_b32 v{V_AK+1}, 16, v{V_AK}")
    a(f"v_lshl_add_u32 v{V_LIN}, v{L}, 4, s{S_WB}")
    CIW, QWB, SC = V_CI + 24, V_CI + 25, V_CI + 26
    a(f"v_mov_b32 v{SC}, {hex(f2u(SCALE))}")
    a(f"v_lshl_add_u32 v{QWB}, v{L}, 4, s45")
    a(f"s_lshl_b32 s42, s{S_W}, 8")
    a(f"v_lshlrev_b32 v{T+3}, 4, v{T}")
    a(f"v_add_u32 v{V_CIR}, {CI_AREA}, v{T+3}")
    a(f"v_add_u32 v{CIW}, s42, v{V_CIR}")
    a(f"v_lshlrev_b32 v{T+3}, 4, v{L}")
    a(f"v_add_u32 v{V_QA0}, {XO}, v{T+3}")
    a(f"v_add_u32 v{V_QA1}, {2*REG + XO}, v{T+3}")
    for j in range(1, 4):
        a(f"s_xor_b32 s42, s{S_W}, {j}")
        a(f"s_mul_i32 s{S_XR+j-1}, s42, {REG}")
    a(f"s_lshl_b32 s{S_LWO}, s{S_W}, 2")
    a(f"s_sub_u32 s{S_LWO}, s{S_LWO}, {CI_AREA - LT0}")
    a(f"v_lshrrev_b32 v{T+1}, 4, v{L}")
    a(f"v_lshrrev_b32 v{T+2}, 2, v{T}")
    a(f"v_cmp_eq_u32 vcc, v{T+1}, v{T+2}")
    a(f"v_and_b32 v{T+2}, 1, v{L}")
    a(f"v_lshlrev_b32 v{T+2}, 4, v{T+2}")
    a(f"v_mov_b32 v{T+3}, 0x3f80")
    a(f"v_lshlrev_b32 v{T+3}, v{T+2}, v{T+3}")
    a(f"v_cndmask_b32 v{T+3}, 0, v{T+3}, vcc")
    a(f"v_and_b32 v{T+2}, 2, v{L}")
    a(f"v_cmp_eq_u32 vcc, 0, v{T+2}")
    a(f"v_bfe_u32 v{T+4}, v{L}, 4, 1")
    a(f"v_lshrrev_b32 v{T+5}, 5, v{L}")
    a(f"v_cndmask_b32 v{V_X0}, 0, v{T+3}, vcc")
    a(f"v_sub_u32 v{V_X1}, v{T+3}, v{V_X0}")
    for r, x in enumerate(("0", "0", f"v{V_X0}", f"v{V_X1}", "0", "0")): a(f"v_accvgpr_write_b32 a{A_SEL+r}, {x}")
    a(f"v_lshl_add_u32 v{T+4}, v{T+4}, 1, v{T+5}")
    a(f"v_lshlrev_b32 v{T+4}, 4, v{T+4}")
    a(f"v_lshl_add_u32 v{T+4}, v{T}, 8, v{T+4}")
    a(f"s_lshl_b32 s42, s{S_W}, 6")
    a(f"v_add_u32 v{V_ST}, s42, v{T+4}")
    a(f"v_and_b32 v{T+2}, 3, v{L}")
    a(f"v_cmp_eq_u32 vcc, 0, v{T+2}")
    a(f"v_lshrrev_b32 v{T}, 2, v{L}")
    a(f"v_and_b32 v{T+1}, 6, v{T}")
    a(f"v_lshrrev_b32 v{T+2}, 3, v{T}")
    a(f"v_or_b32 v{T+1}, v{T+1}, v{T+2}")
    a(f"v_bfe_u32 v{T+2}, v{L}, 1, 1")
    a(f"v_xor_b32 v{T+1}, v{T+1}, v{T+2}")
    a(f"s_and_b32 s42, s{S_W}, 1")
    a("s_lshl_b32 s42, s42, 2")
    a(f"v_xor_b32 v{T+1}, s42, v{T+1}")
    a(f"v_lshlrev_b32 v{T+1}, 4, v{T+1}")
    a(f"v_lshl_add_u32 v{T+1}, v{T}, 7, v{T+1}")
    a(f"v_and_b32 v{T+2}, 1, v{L}")
    a(f"v_lshl_add_u32 v{T+1}, v{T+2}, 3, v{T+1}")
    a(f"v_add_u32 v{V_AV}, s{S_WB}, v{T+1}")
    for k in range(1, 4): a(f"v_xor_b32 v{V_AV+k}, {32*k}, v{V_AV}")
    a(f"v_mov_b32 v{T+2}, 0x3f803f80")
    a(f"v_cndmask_b32 v{T+2}, 0, v{T+2}, vcc")
    for r in range(4): a(f"v_accvgpr_write_b32 a{A_ONE+r}, v{T+2}")

    if pref:
        a(f"s_and_b32 s97, s97, 0xfff")
        a(f"s_add_u32 s97, s97, {3 * 4096 - head}-(L_pc-{NAME}_kernel)")
        a("s_add_u32 s94, s94, s97")
        a("s_addc_u32 s95, s95, 0")
        a(f"v_mov_b32 v{V_X0}, s94")
        a(f"v_mov_b32 v{V_X1}, s95")
    a(f"v_add_u32 v{T}, s{S_LWO}, v{V_CIR}")
    a(f"v_mov_b32 v{T+1}, {hex(SENT)}")
    for u in range(7): a(("L", f"ds_write_b32 v{T}, v{T+1} offset:{LTAB(u)}", "sent"))
    if touch: a(("V", f"buffer_load_dword v{V_CI}, off, {srd(SRD_O)}, 0", "touch"))
    def k0b():
        a(m0(KB(0) + 4096)); a("s_nop 0")
        for p in (2, 3): a(dma(SRD_K, 43, p, "K0b"))
        a(m0(KB(0))); a("s_nop 0")
        for p in (2, 3): a(dma(SRD_K, S_Y, p, "K0b"))
    if kb == 0: k0b()
    RAW, QP, TMP = V_OTH, V_OWN, V_OTH + 32
    left = [n0]
    def more(n=1):
        for _ in range(n):
            if left[0] > 0: a(nextdma()); left[0] -= 1
    v0 = [0]
    def v0dma(n=1):
        for _ in range(n):
            j = v0[0]
            if j >= 8: return
            if j % 4 == 0: a(m0(VB(0) + (j // 4) * 4096)); a("s_nop 0")
            a(dma(SRD_V, S_MV0 + j // 4, j % 4, ("V", 0, j // 4)))
            v0[0] += 1
    def qoff(h, c): return XO + (c >> 1) * 4096 + h * 2048 + (c & 1) * 1024
    def qw(h, c): return ("L", f"ds_write_b128 v{V_LIN if h == 0 else QWB}, {vr(QP + 16*h + 4*c, 4)} offset:{qoff(h, c)}", "qw")
    def scale_ops(j):
        o = []
        for r in range(4):
            o += [f"v_lshlrev_b32 v{TMP+2*r}, 16, v{RAW+4*j+r}", f"v_and_b32 v{TMP+2*r+1}, 0xffff0000, v{RAW+4*j+r}"]
        o += [f"v_pk_mul_f32 {vr(TMP+2*r,2)}, {vr(TMP+2*r,2)}, {vr(SC,2)} op_sel_hi:[1,0]" for r in range(4)]
        o += [f"v_cvt_pk_bf16_f32 v{QP+4*j+r}, v{TMP+2*r}, v{TMP+2*r+1}" for r in range(4)]
        return o
    def red_ops(h):
        S = V_S + 4*h; M = V_P + 2*h
        o = [f"v_max3_f32 v{M}, v{S}, v{S+1}, v{S+2}", f"v_max_f32 v{M}, v{M}, v{S+3}"]
        for sw in ("v_permlane16_swap_b32", "v_permlane32_swap_b32"):
            o += [f"v_mov_b32 v{M+1}, v{M}", f"{sw} v{M}, v{M+1}", f"v_max_f32 v{M}, v{M}, v{M+1}"]
        o += [f"v_mul_f32 v{M}, v{M}, v{SC}", f"v_cndmask_b32 v{M}, v{M}, v{V_KEEP+h}, s[{S_FBM}:{S_FBM+1}]"]
        o += [f"v_sub_f32 v{S+r}, 0, v{M}" for r in range(4)]
        return o
    def qreads(u):
        w, h = u % 4, u // 4
        ad = V_QA0 if w < 2 else V_QA1
        out = [f"ds_read_b128 {vr(V_CI+4*u,4)}, v{V_CIR} offset:{u*256}"]
        out += [f"ds_read_b128 {Qf(u,c)}, v{ad} offset:{(w&1)*REG + qoff(h, c) - XO}" for c in range(4)]
        return Ls(out, ("q", u))
    def part(h, d0, d1):
        for c in range(4): a(("L", kread(0, 4*h + c, base=XO, dst=vr(RAW + 16*h + 4*c, 4)), ("raw", h, c)))
        if h == 0:
            a(("W", ["K0a"], None))
            for jj in range(4): a(("L", kread(0, jj), "k0a"))
            if kb == 1: k0b()
        v0dma(d0)
        a(("W", None, [("raw", h, 0)]))
        a(scale_ops(4*h))
        a(("W", None, [("raw", h, 3), "k0a"]))
        S = vr(V_S + 4*h, 4)
        o1 = scale_ops(4*h + 1)
        for c in range(4):
            a(f"{M16} {S}, {Kf(c)}, {vr(RAW + 16*h + 4*c, 4)}, {S if c else '0'}")
            if c == 0: a(qw(h, 0))
            else: a(o1[:2]); del o1[:2]
        a(o1)
        a(qw(h, 1)); v0dma(d1)

        red = red_ops(h)
        for c in (2, 3):
            o = scale_ops(4*h + c)
            while o:
                a(o[:2]); del o[:2]
                if red: a(red.pop(0))
            a(qw(h, c))
        a(red)
        a(("L", f"ds_write_b128 v{CIW}, {S} offset:{1024*h}", "ciw"))
    a.c("Q tiles w, 4+w: prescale, block max, publish through LDS")
    stamp("p")
    a(("W", ["Qa"], None))
    stamp(); stamp("p")
    part(0, vsch[0], vsch[1])
    if kb == 2: k0b()
    v0dma(vsch[2])
    a(("W", None, "all")); a("s_barrier")
    a(qreads(0)); a(qreads(1))
    stamp("p")
    a(("W", ["Qb"], None))
    stamp("p")
    part(1, vsch[3], vsch[4])
    v0dma(8); more(pace)
    a(("W", ["K0b"], None))
    for jj in range(4, 8): a(("L", kread(0, jj), "k0b"))
    a(f"s_cmp_eq_u32 s{S_FB}, 1")
    stamp(); stamp("p")
    a("s_cbranch_scc1 L_pass1")
    stamp(); stamp("p")
    for j in range(8):
        a(qk(0, j))
        if j in (0, 1, 2): more()
        if j == 3: a(("W", [("V", 0, 0)], ["k0b"]))
        if j >= 4: a(Ls(vread(0, j - 4), ("v", 0, j - 4)))
    more(64)
    a([ex(0), ex(1), ex(2), ex(3), cv(0), cv(1), ex(4)])
    stamp()

    pend = []
    def emit_step(u, par, first, ext, shadow, dgaps):
        for g in range(17):
            a(qk((u + 1) % 7, g) if g < 8 else (pv(u, g - 8, par, first) if g < 16 else sm(u, first)))
            valu = g < 4 or g > 10
            if g in dgaps:
                a(list(pend)); pend.clear()
                a(nextdma())
                a(shadow[g])
            else:
                a(shadow[g])
                room = (1 if valu else 2) - len(ext[g]) - len(shadow[g])
                if room > 0 and dgaps:
                    if not pend: pend.extend(nextpre())
                    a(pend[:room]); del pend[:room]
            a(ext[g])
            if g < 3: a(ex(5 + g))
            elif g == 3: a(cv(2)); a(cv(3))
            elif 11 <= g <= 15: a(ex(g - 11))
            elif g == 16: a(cv(0)); a(cv(1))

    def vh1(t, ext, sh):
        sh[2].append(("W", None, [("v", t, dt) for dt in range(4)]))
        sh[3].append(("W", [("V", t, 1)], None))
        for g, dt in zip((4, 5, 6, 7), (4, 5, 6, 7)): ext[g] += Ls(vread(t & 1, dt), ("v", t, dt))
    def tile(t):
        par = t & 1; nx = par ^ 1
        first = t == 0
        for u in range(7):
            ext = {g: [] for g in range(17)}; sh = {g: [] for g in range(17)}
            dgaps = {0: (8, 10), 1: (4, 10), 2: (4, 7, 10), 3: (4, 10), 4: (4, 7, 10), 5: (5, 9), 6: (4, 7)}[u]
            if u == 0:
                vh1(t, ext, sh)
                sh[11].append(("W", None, [("v", t, 5)])); sh[13].append(("W", None, [("v", t, 7)]))
            if u == 5:
                sh[3].append(("W", [("K", t+1, 0), ("K", t+1, 1)], None))
                for i, g in enumerate((4, 6, 8, 10)): ext[g] += Ls([kread(nx, 2*i), kread(nx, 2*i+1)], ("k", t+1))
                sh[16].append(("W", None, [("k", t+1)]))
            if u == 6:
                sh[5].append(("W", [("V", t+1, 0)], None))
                for g, dt in zip((6, 8, 9, 10), (3, 0, 1, 2)): ext[g] += Ls(vread(nx, dt), ("v", t+1, dt))
                if t % 2 == 0 and t > 0 and not unroll: sh[15].append(f"s_sub_u32 s{S_CNT}, s{S_CNT}, 1"); sh[16].append(f"s_cmp_lg_u32 s{S_CNT}, 0")
            if pref == 2 and not unroll and t % 2 == 0 and t > 0 and u == 1: sh[0].append("s_load_dword s96, s[94:95], s97")
            if pref == 3 and t % 2 == 0 and u == 1: ext[7 if t else 9] += [("V", f"global_load_dword v{V_KEEP}, {vr(V_X0, 2)}, off", "pf"), []]
            if pref and unroll and t in (1, 3, 5) and u == 1:
                sh[0].append(f"s_add_u32 s97, s97, {0x2000 if t == 1 else 0x1000}"); sh[1].append("s_load_dword s96, s[94:95], s97")
            if first:
                if u == 0:
                    dgaps = ()
                    sh[2] = []; ext[7].append(("W", None, [("v", 0, 3)]))
                    q = qreads(2); ext[8] += q[0:2]; ext[9] += q[2:4]; ext[10] += q[4:5]
                elif u < 5:
                    q = qreads(u + 2); ext[5] += q[0:2]; ext[6] += q[2:3]; ext[8] += q[3:5]
                    dgaps = (4, 7, 10)
                if u < 5: sh[16].append(("W", None, [("q", u + 2)]))
                if u == 1: sh[14].append("s_barrier")
                xs = [(0, 1), (0, 14), (1, 9), (2, 9), (3, 9), (4, 9), (5, 7), (1, 1), (2, 1), (3, 1), (4, 1), (5, 1)][:t0extra]
                dgaps = tuple(sorted(set(dgaps) | set(g for (uu, g) in xs if uu == u)))
                stamp("t")
            if t > 0 and t % 2 == 1 and u in (1, 3):
                for i in range(bpad // 2 + (bpad % 2 if u == 1 else 0)): ext[(6, 8, 5, 7, 9, 6, 8, 5)[i]].append("s_nop 0")
            if t == 5: stamp('l')
            if t == 6: stamp('m')
            emit_step(u, par, first, ext, sh, dgaps)

    a.c("tile 0"); tile(0)
    if not unroll: a(f"s_mov_b32 s{S_CNT}, 3")
    if absm:
        a.free = True
        a(f"s_lshr_b32 s84, s2, 3"); a(f"s_add_u32 s84, s84, s{S_W}"); a("s_cmp_lg_u32 s84, 0"); a("s_cbranch_scc1 L_nopost")
        a("s_waitcnt lgkmcnt(0)"); a(f"v_mov_b32 v14, s{S_STAMP}"); a("s_lshl_b32 s84, s2, 2"); a("v_mov_b32 v15, s84")
        a("global_store_dword v15, v14, s[46:47] sc1")
        a.label("L_nopost")
        a.free = False
    stamp()
    if unroll:
        for t in range(1, 7): a.c(f"tile {t}"); tile(t)
        i0 = i1 = len(a.l)
    else:
        a.raw(f".p2align {lal}")
        for _ in range(lpad): a("s_nop 0")
        a.label("L_loop")
        i0 = len(a.l)
        bodies = []
        for t in range(1, 7):
            b = len(a.l); tile(t); bodies.append(a.l[b:])
        for t in (2, 4):
            for k in (0, 1):
                assert absm or fine[0] in 'lm' or bodies[t + k] == bodies[k], [(x, y) for x, y in zip(bodies[k], bodies[t + k]) if x != y][:4]
        del a.l[i0:]
        a.l += bodies[4] + bodies[5]
        a("s_cbranch_scc1 L_loop")
        i1 = len(a.l)
    assert stream[spos[0]][2] >= 8, "stream not fully issued"
    stamp()

    def blk(u, j): return (u * 3 + j - 1) * 1024
    def pk(u, j):
        o = Ov(u, 2*j); p = Ov(u, 2*j+1) if j < 3 else Ov(u, 3)
        return [f"v_cvt_pk_bf16_f32 v{o+r}, v{(o, p)[r//2] + 2*(r%2)}, v{(o, p)[r//2] + 2*(r%2) + 1}" for r in range(4)]
    def acc(u): return [f"v_accvgpr_read_b32 v{Ov(u,3)+r}, a{A_O7+4*u+r}" for r in range(4)]
    def xw(u, j): return ("L", f"ds_write_b128 v{V_LIN}, {vr(Ov(u, 2*j), 4)} offset:{blk(u, j)}", ("xw", u))
    def lw(u): return ("L", f"ds_write_b32 v{V_LW}, a{A_L+4*u} offset:{LTAB(u)}", ("xw", u))
    def R(u):
        o = [("L", f"ds_read_b128 {vr(V_CI+4*u,4)}, v{V_LR} offset:{LTAB(u)}", ("x", u))]
        return o + [("L", f"ds_read_b128 {ar(A_X(u) + 4*(j-1), 4)}, v{V_XR+j-1} offset:{blk(u, j)}", ("x", u)) for j in range(1, 4)]
    def chk(u): return f"v_cmp_gt_f32 vcc, 0, v{V_CI+4*u}" if u not in bars else []
    def br(u): return [f"s_cbranch_vccnz L_rt{u}", ("LBL", f"L_rb{u}")] if u not in bars else []
    def bar(u): return [("W", None, [("xw", u)]), "s_barrier"] if u in bars else []
    def cmb(u):
        return [f"{M16} {Of(u, b)}, {ar(A_SEL + 2 - 2*b, 4)}, {ar(A_X(u) + 4*j, 4)}, {Of(u, b)}" for b in range(2) for j in range(3)]
    def ladd(u):
        c = V_CI + 4*u
        return [f"v_add_f32 v{c}, v{c}, v{c+1}", f"v_add_f32 v{c+2}, v{c+2}, v{c+3}", f"v_add_f32 v{c}, v{c}, v{c+2}"]
    def lrcp(u):
        c = V_CI + 4*u
        return [f"v_rcp_f32 v{c+2}, v{c}", f"v_maximum3_f32 v{V_CHK}, v{V_CHK if u else c}, v{c}, v{c+2}"]
    def mul(u, b): return [f"v_mul_f32 v{Ov(u,b)+r}, v{Ov(u,b)+r}, v{V_CI+4*u+2}" for r in range(4)]
    def pmul(u): return [f"v_pk_mul_f32 {vr(Ov(u,0)+r,2)}, {vr(Ov(u,0)+r,2)}, {vr(V_CI+4*u+2,2)} op_sel_hi:[1,0]" for r in range(0, 8, 2)]
    def swp(u): return [f"v_permlane16_swap_b32 v{Ov(u,0)+r}, v{Ov(u,0)+2+r}" for r in range(2)]
    def sto(u): return f"s_movk_i32 s98, {u*4096}"
    def ST(u): return ("V", f"buffer_store_dwordx4 {vr(Ov(u,0),4)}, v{V_ST}, {srd(SRD_O)}, s98 offen{(' '+sflags) if sflags else ''}", "st")
    def seq(mf, fill):
        for i, m in enumerate(mf):
            if m: a(m)
            a(fill.get(i, []))
    a.c("tile 7")
    for u in range(6):
        stamp("e")
        w = u - 1; f = u - 2
        mf = [qk(u + 1, g) for g in range(8)] + (cmb(f) if f >= 0 else [None] * 6) + [pv(u, dt, 1, False) for dt in range(8)] + [sm(u, False)]
        F = {i: [] for i in range(23)}
        if f >= 0:
            r = R(f); F[0] += r[0:2]; F[1] += r[2:4]
        for g in range(3): F[g] += [ex(5 + g)]
        F[3] += [cv(2), cv(3)]
        if u == 0:
            e_ = {g: [] for g in range(8)}; s_ = {g: [] for g in range(8)}
            vh1(7, e_, s_)
            for g in range(8): F[g] = s_[g] + e_[g] + F[g]
            F[14] += [f"v_add_u32 v{V_LW}, s{S_LWO}, v{V_CIR}", f"v_subrev_u32 v{V_LR}, {CI_AREA - LT0}, v{V_CIR}"]
            F[15] += [f"v_lshl_add_u32 v{V_XR+j}, v{L}, 4, s{S_XR+j}" for j in range(2)]
            F[16] += [f"v_lshl_add_u32 v{V_XR+2}, v{L}, 4, s{S_XR+2}"]
            F[17] += [("W", None, [("v", 7, 5)])]; F[19] += [("W", "all", [("v", 7, 7)])]
        if f >= 0:
            p1, p2, p3, ac, la, p0 = pk(w, 1), pk(w, 2), pk(w, 3), acc(w), ladd(f), pk(f, 0)
            F[4] += p1; F[5] += [xw(w, 1)]; F[6] += [("W", None, [("x", f)])] + la + [chk(f)]
            F[7] += p2[:2] + br(f)
            F[8] += p2[2:]; F[9] += [xw(w, 2)]; F[10] += ac[:2]; F[11] += ac[2:]; F[12] += p3[:2]; F[13] += p3[2:]
            F[14] += [xw(w, 3)]; F[15] += [lw(w)]; F[16] += lrcp(f)[:1]; F[17] += [ex(0)]
            F[18] += [ex(1), ex(2)] + lrcp(f)[1:] + pmul(f)
            F[19] += p0
            F[20] += [ex(3)]
            F[21] += [sto(f)] + swp(f)
            F[22] += [ST(f), ex(4), cv(0), cv(1)]
            F[19] = bar(w)[:1] + F[19]; F[20] = bar(w)[1:] + F[20]
        else:
            if w >= 0:
                F[4] += pk(w, 1); F[5] += [xw(w, 1)]; F[6] += pk(w, 2); F[7] += acc(w)
                F[14] += [xw(w, 2)]; F[15] += pk(w, 3); F[17] += [xw(w, 3)]; F[18] += [lw(w)]
            for i, g in enumerate((17, 18, 19, 20, 21) if w < 0 else (16, 19, 20, 21, 22)): F[g] += [ex(i)]
            F[22] += [cv(0), cv(1)]
            if w >= 0: F[22] += bar(w)
        seq(mf, F)
    stamp("e")
    a(R(4))
    a([ex(5), ex(6), ex(7)] + pk(5, 1)[:1] + [cv(2), cv(3)] + pk(5, 1)[1:])
    mf = [pv(6, dt, 1, False) for dt in range(2, 8)] + [sm(6, False), pv(6, 0, 1, False), pv(6, 1, 1, False)] + cmb(4)
    F = {0: [xw(5, 1)], 1: pk(5, 2), 2: acc(5), 3: [xw(5, 2)], 4: pk(5, 3), 5: [("W", None, [("x", 4)])] + ladd(4) + [chk(4)], 6: [xw(5, 3), lw(5)], 7: br(4) + pk(6, 1),
         8: lrcp(4)[:1], 9: [xw(6, 1)], 10: pk(6, 2) + lrcp(4)[1:], 11: bar(5)[:1] + acc(6), 12: bar(5)[1:] + [xw(6, 2)], 13: R(5) + pk(6, 3), 14: [xw(6, 3), lw(6)]}
    seq(mf, F)
    a([sto(4), f"s_mov_b32 s99, {hex(f2u(THRESH))}", ("W", None, [("x", 5)])] + ladd(5) + [chk(5)])
    a(pmul(4)); a(pk(4, 0)); a(br(5)); a(bar(6))
    stamp()
    a(R(6))
    F = {0: swp(4), 1: [ST(4)], 2: lrcp(5)[:1], 4: [("W", None, [("x", 6)])] + ladd(6) + [chk(6)], 5: lrcp(5)[1:] + mul(5, 0)[:1] + br(6),
         6: [sto(5)] + lrcp(6)[:1], 7: mul(5, 0)[1:], 8: lrcp(6)[1:] + [f"s_cmp_lg_u32 s{S_FB}, 0"],
         9: mul(5, 1), 10: pk(5, 0), 11: [f"v_cmp_ngt_f32 vcc, s99, v{V_CHK}", "s_nop 0"] + swp(5)}
    seq(cmb(5) + cmb(6), F)
    a("s_nop 0"); a(ST(5)); a(sto(6)); a("s_nop 0"); a(pmul(6)); a(pk(6, 0)); a("s_nop 1"); a(swp(6)); a("s_nop 0"); a(ST(6))
    a("s_cbranch_scc1 L_ok")
    a("s_cbranch_vccnz L_fallback")
    a.label("L_ok")
    a.free = True
    if diag and spin:
        i, j, mult = spin[:3]
        a("s_waitcnt vmcnt(0)")
        if len(spin) > 3 and spin[3] >= 32:
            a("s_lshr_b32 s84, s2, 6"); a(f"s_cmp_lg_u32 s84, {spin[3] - 32}"); a("s_cbranch_scc1 L_end")
        elif len(spin) > 3 and spin[3] >= 16:
            a("s_bfe_u32 s84, s2, 0x20001"); a(f"s_cmp_lg_u32 s84, {spin[3] - 16}"); a("s_cbranch_scc1 L_end")
        if len(spin) == 3:
            a(f"s_lshl_b32 s84, s2, 2"); a(f"s_add_u32 s84, s84, s{S_W}"); a("s_cmp_lg_u32 s84, 401"); a("s_cbranch_scc1 L_end")
        a("s_memrealtime s[80:81]"); a("s_memtime s[86:87]"); a("s_waitcnt lgkmcnt(0)")
        if absm:
            a("s_load_dwordx8 s[4:11], s[46:47], 0"); a("s_waitcnt lgkmcnt(0)")
            for k in range(4, 12): a(f"s_sub_u32 s{k}, s80, s{k}")
            for k in range(5, 12): a(f"s_max_u32 s4, s4, s{k}")
            a("s_sub_u32 s85, s80, s4")
            sj = 80 if j == 8 else S_STAMP + 2*j
            a(f"s_sub_u32 s84, s{sj}, s85"); a("s_add_u32 s84, s84, 100"); a(f"s_mul_i32 s84, s84, {mult}")
        elif mult >= 100:
            a(f"s_sub_u32 s84, s{S_STAMP+2*j}, s{S_STAMP+2*i}"); a(f"s_sub_u32 s85, s{S_STAMP+16+2*j}, s{S_STAMP+16+2*i}")
            a("s_mul_i32 s85, s85, 2731"); a("s_lshr_b32 s85, s85, 16"); a("s_sub_u32 s84, s84, s85"); a(f"s_mul_i32 s84, s84, {mult - 100}")
        elif mult > 0:
            sj = 80 if j == 8 else S_STAMP + 2*j
            a(f"s_sub_u32 s84, s{sj}, s{S_STAMP+2*i}"); a(f"s_mul_i32 s84, s84, {mult}")
        else:
            sj = 86 if j == 8 else S_STAMP + 16 + 2*j
            a(f"s_sub_u32 s84, s{sj}, s{S_STAMP+16+2*i}"); a(f"s_lshr_b32 s84, s84, {-mult}")
        a("s_min_u32 s84, s84, 20000")
        a.label("L_spin")
        a("s_memrealtime s[82:83]"); a("s_waitcnt lgkmcnt(0)")
        a("s_sub_u32 s85, s82, s80"); a("s_cmp_lt_u32 s85, s84"); a("s_cbranch_scc1 L_spin")
    elif diag:
        a("s_memrealtime s[84:85]"); a("s_memtime s[86:87]")
        a("s_waitcnt vmcnt(0)")
        a("s_memrealtime s[80:81]"); a("s_memtime s[82:83]")
        a("s_branch L_dump")
    a.label("L_end")
    a("s_endpgm")
    iend = len(a.l)
    a.c("a partner wave had not published this q tile yet: read again")
    for u in range(7):
        if u in bars: continue
        a.label(f"L_rt{u}")
        for x in R(u): a(x[1])
        a("s_waitcnt lgkmcnt(0)")
        a(ladd(u)); a(chk(u)); a("s_nop 1")
        a(f"s_cbranch_vccnz L_rt{u}")
        a(f"s_branch L_rb{u}")
    if warm > 1:
        a.raw(f".fill ({4 * 4096 - head} - (. - {NAME}_kernel)) / 4, 4, 0xbf810000")
        a.label("L_pg3")
        a("s_branch L_back")
    a.c("fallback: redo the prologue, take the true row max over all keys, run again with it")
    a.label("L_fallback")
    a("s_waitcnt vmcnt(0) lgkmcnt(0)")
    a("s_barrier")
    a(f"s_mov_b32 s{S_FB}, 1")
    a("s_branch L_start")
    a.label("L_pass1")
    a("s_waitcnt lgkmcnt(0)")
    a("s_barrier")
    for u in range(7):
        for x in qreads(u)[1:]: a(x[1])
        a("s_waitcnt lgkmcnt(0)")
    a("s_waitcnt vmcnt(0)")
    a("s_barrier")
    a("s_mov_b32 s42, 0")
    MX = V_OWN
    for u in range(7): a(f"v_mov_b32 v{MX+u}, 0xff800000")
    a.label("L_fb1")
    a(m0(0)); a(f"s_add_u32 s{S_SO}, s42, 128")
    for p in range(4): a(dma(SRD_K, 42, p, "f")[1])
    a(m0(4096)); a("s_nop 0")
    for p in range(4): a(dma(SRD_K, S_SO, p, "f")[1])
    a("s_waitcnt vmcnt(0)")
    for j in range(8): a(kread(0, j))
    a("s_waitcnt lgkmcnt(0)")
    for u in range(7):
        for j in range(8): a(qk(u, j, zero=True))
        a("s_nop 7")
        for r in range(0, 8, 2): a(f"v_max3_f32 v{MX+u}, v{MX+u}, v{V_S+r}, v{V_S+r+1}")
    a("s_add_u32 s42, s42, 0x2000")
    a("s_cmp_lt_u32 s42, 0x10000")
    a("s_cbranch_scc1 L_fb1")
    for sw in ("v_permlane16_swap_b32", "v_permlane32_swap_b32"):
        for u in range(7): a(f"v_mov_b32 v{MX+8+u}, v{MX+u}")
        a("s_nop 1")
        for u in range(7): a(f"{sw} v{MX+u}, v{MX+8+u}")
        a("s_nop 1")
        for u in range(7): a(f"v_max_f32 v{MX+u}, v{MX+u}, v{MX+8+u}")
    a(f"v_add_u32 v{V_P}, s{S_LWO}, v{V_CIR}")
    for u in range(7): a(f"ds_write_b32 v{V_P}, v{MX+u} offset:{LTAB(u)}")
    a("s_waitcnt lgkmcnt(0)")
    a("s_barrier")
    a(f"s_lshl_b32 s42, s{S_W}, 8")
    a(f"s_sub_u32 s42, s42, {CI_AREA - LT0}")
    a(f"v_add_u32 v{V_P}, s42, v{V_CIR}")
    for h in range(2): a(f"ds_read_b128 {vr(V_S+4*h,4)}, v{V_P} offset:{1024*h}")
    a("s_waitcnt lgkmcnt(0)")
    for h in range(2):
        a(f"v_max3_f32 v{V_KEEP+h}, v{V_S+4*h}, v{V_S+4*h+1}, v{V_S+4*h+2}")
        a(f"v_max_f32 v{V_KEEP+h}, v{V_KEEP+h}, v{V_S+4*h+3}")
    a(f"s_mov_b32 s{S_FB}, 2")
    a(f"s_mov_b64 s[{S_FBM}:{S_FBM+1}], -1")
    a("s_barrier")
    a("s_branch L_start")
    if diag and not spin:
        a.label("L_dump")
        a("s_mov_b32 s36, s46"); a("s_mov_b32 s37, s47"); a("s_mov_b32 s38, 0x100000"); a("s_mov_b32 s39, 0x20000")
        a("s_waitcnt lgkmcnt(0)")
        a("s_lshl_b32 s40, s2, 2"); a(f"s_add_u32 s40, s40, s{S_W}"); a("s_lshl_b32 s40, s40, 8")
        a(f"v_mov_b32 v4, s40")
        a(f"v_cmp_eq_u32 vcc, 0, v{L}")
        a("s_and_saveexec_b64 s[42:43], vcc")
        slots = [(S_STAMP+2*i, i) for i in range(8)] + [(84, 8), (80, 9)] + [(S_STAMP+16+2*i, 16+i) for i in range(8)] + [(86, 24), (82, 25)]
        for s, i in slots:
            a(f"v_mov_b32 v6, s{s}"); a(f"v_mov_b32 v7, s{s+1}"); a(f"buffer_store_dwordx2 v[6:7], v4, s[36:39], 0 offen offset:{8*i}"); a("s_nop 1")
        a("s_endpgm")
    lin = a.l[:i1] + a.l[i0:i1] + a.l[i1:iend]
    bad = hz.check(lin) + hz.check(a.l[iend:])
    for b in bad: print("HAZARD", b, file=sys.stderr)
    if unroll: a.raw(f".fill ({7 * 4096 - head} - (. - {NAME}_kernel)) / 4, 4, 0xbf810000")
    a.raw('.section .rodata,"a"'); a.raw(".p2align 6"); a.raw(f".amdhsa_kernel {NAME}_kernel")
    a.raw("  .amdhsa_next_free_vgpr 512"); a.raw("  .amdhsa_next_free_sgpr 102"); a.raw("  .amdhsa_accum_offset 256")
    a.raw("  .amdhsa_group_segment_fixed_size 0"); a.raw("  .amdhsa_kernarg_size 48"); a.raw("  .amdhsa_user_sgpr_count 2")
    a.raw("  .amdhsa_user_sgpr_kernarg_segment_ptr 1"); a.raw("  .amdhsa_system_sgpr_workgroup_id_x 1"); a.raw(".end_amdhsa_kernel")
    if warm: a.l = add_stubs(a.l, head)
    return "\n".join(a.l) + "\n"

if __name__ == "__main__":
    ap = argparse.ArgumentParser()
    ap.add_argument("-o", default=f"kN.s")
    ap.add_argument("--diag", action="store_true")
    ap.add_argument("--spin", default=None); ap.add_argument("--flags", default=""); ap.add_argument("--sflags", default="sc1")
    ap.add_argument("--n0", type=int, default=8); ap.add_argument("--mix", type=int, default=1); ap.add_argument("--vsch", default="2,2,2,2,0")
    ap.add_argument("--t0extra", type=int, default=2); ap.add_argument("--pace", type=int, default=2); ap.add_argument("--fine", default="c")
    ap.add_argument("--cgap", type=int, default=14); ap.add_argument("--pref", type=int, default=3); ap.add_argument("--align", type=int, default=12); ap.add_argument("--head", type=int, default=3072); ap.add_argument("--warm", type=int, default=0); ap.add_argument("--rot", default="0,0"); ap.add_argument("--touch", type=int, default=0); ap.add_argument("--pre0", type=int, default=2); ap.add_argument("--mid", default=""); ap.add_argument("--epi", type=int, default=1); ap.add_argument("--absm", action="store_true"); ap.add_argument("--unroll", type=int, default=0); ap.add_argument("--kb", type=int, default=0); ap.add_argument("--bars", default=""); ap.add_argument("--lpad", type=int, default=0); ap.add_argument("--lal", type=int, default=3); ap.add_argument("--bpad", type=int, default=0); ap.add_argument("--wg", default="4,5,6,7,8,9,10")
    args = ap.parse_args()
    tup = lambda s: tuple(map(int, s.split(',')))
    open(args.o, "w").write(gen(diag=args.diag, flags=args.flags, sflags=args.sflags, n0=args.n0, mix=args.mix, vsch=tup(args.vsch), t0extra=args.t0extra,
                                pace=args.pace, fine=args.fine, cgap=args.cgap, pref=args.pref, align=args.align, head=args.head, warm=args.warm, rot=tup(args.rot), touch=args.touch, pre0=args.pre0, epi=args.epi, absm=args.absm, unroll=args.unroll, kb=args.kb, bars=tup(args.bars) if args.bars else (), lpad=args.lpad, lal=args.lal, bpad=args.bpad, mid=tup(args.mid) if args.mid else None, wg=tup(args.wg), spin=tup(args.spin) if args.spin else None))
```
